```python
import torch

def _softmax(x, axis=-1):
    return torch.softmax(x, dim=axis)

def _gelu(x):
    return torch.nn.functional.gelu(x, approximate='tanh')

def _silu(x):
    return torch.nn.functional.silu(x)

def _sigmoid(x):
    return torch.sigmoid(x)

def _layernorm(x, axis=-1, eps=1e-05):
    m = x.mean(dim=axis, keepdim=True)
    v = x.var(dim=axis, keepdim=True, unbiased=False)
    return (x - m) / torch.sqrt(v + eps)

def _scatter_add(tgt, idx, src, axis=0):
    return tgt.clone().index_add_(axis, idx, src)

def _segment_sum(src, seg, n):
    out = torch.zeros((n,) + src.shape[1:], dtype=src.dtype)
    return out.index_add_(0, seg, src)

def _pad(x, pw):
    flat = tuple((v for pair in reversed(pw) for v in pair))
    return torch.nn.functional.pad(x, flat)
kernel_name = 'adaLN_cond__mha_block_cached__glu_gated_glu__decode'

def setup_inputs():

    _w = lambda a: (lambda t: t.to(torch.bfloat16) if t.is_floating_point() else t)(torch.as_tensor(a))

    def _A_setup():
        B, Sq, D = (1, 1, 576)
        H, Sk, Dh = (32, 8192, 128)
        return {'x': _w((lambda *s: torch.randn(*s, dtype=torch.bfloat16) * 0.05)(B, Sq, D)), 'k_cache': _w((lambda *s: torch.randn(*s, dtype=torch.bfloat16) * 3.2)(B, H, Sk, Dh)), 'v_cache': _w((lambda *s: torch.randn(*s, dtype=torch.bfloat16) * 0.4)(B, H, Sk, Dh)), 'wq': _w((lambda *s: torch.randn(*s, dtype=torch.bfloat16) * 3.2)(D, H * Dh) * D ** (-0.5)), 'wo': _w((lambda *s: torch.randn(*s, dtype=torch.bfloat16) * 0.4)(H * Dh, D) * (H * Dh) ** (-0.5))}
    _A_in = _A_setup()

    def _B_setup():
        B, S, D, F = (1, 1, 576, 4608)
        return {'x': _w((lambda *s: torch.randn(*s, dtype=torch.bfloat16) * 0.05)(B, S, D)), 'w_gate': _w((lambda *s: torch.randn(*s, dtype=torch.bfloat16) * 0.05)(D, F)), 'w_up': _w((lambda *s: torch.randn(*s, dtype=torch.bfloat16) * 0.05)(D, F)), 'w_down': _w((lambda *s: torch.randn(*s, dtype=torch.bfloat16) * 0.05)(F, D))}
    _B_in = _B_setup()
    return {'A_x': _A_in['x'], 'A_k_cache': _A_in['k_cache'], 'A_v_cache': _A_in['v_cache'], 'A_wq': _A_in['wq'], 'A_wo': _A_in['wo'], 'B_x': _B_in['x'], 'B_w_gate': _B_in['w_gate'], 'B_w_up': _B_in['w_up'], 'B_w_down': _B_in['w_down'], 'c': _w((lambda *s: torch.randn(*s, dtype=torch.bfloat16) * 0.2)(1, 576) * 8.0), 'w_mod': _w((lambda *s: torch.randn(*s, dtype=torch.bfloat16) * 0.2)(576, 6 * 576) * 576 ** (-0.5) * 8.0)}

def reference(A_x, A_k_cache, A_v_cache, A_wq, A_wo, B_x, B_w_gate, B_w_up, B_w_down, c, w_mod):

    def _A_ref(x, k_cache, v_cache, wq, wo):
        B, Sq, D = x.shape
        H, Dh = (32, 128)
        q = (lambda x, *d: x.permute(*d))((x @ wq).reshape(B, Sq, H, Dh), 0, 2, 1, 3)
        scores = torch.einsum('bhqd,bhkd->bhqk', q, k_cache) * Dh ** (-0.5)
        p = _softmax(scores, axis=-1)
        o = torch.einsum('bhqk,bhkd->bhqd', p, v_cache)
        return (lambda x, *d: x.permute(*d))(o, 0, 2, 1, 3).reshape(B, Sq, H * Dh) @ wo

    def _B_ref(x, w_gate, w_up, w_down):
        g = torch.einsum('bsd,df->bsf', x, w_gate)
        u = torch.einsum('bsd,df->bsf', x, w_up)
        h = _sigmoid(g) * u
        return torch.einsum('bsf,fd->bsd', h, w_down)
    x = A_x
    mod = (_silu(c) @ w_mod).reshape(c.shape[0], 6, 1, -1)
    sa, ca, ga, sb, cb, gb = (mod[:, 0].clone(), mod[:, 1].clone(), mod[:, 2].clone(), mod[:, 3].clone(), mod[:, 4].clone(), mod[:, 5].clone())
    h = _layernorm(x, axis=-1) * (1 + ca) + sa
    x = x + ga * _A_ref(h, A_k_cache, A_v_cache, A_wq, A_wo)
    h = _layernorm(x, axis=-1) * (1 + cb) + sb
    x = x + gb * _B_ref(h, B_w_gate, B_w_up, B_w_down)
    return x
```

```python
import re

class Asm:
    def __init__(self):
        self.lines = []
        self._uid = 0
    def __call__(self, s):
        for ln in s.split("\n"):
            ln = ln.strip()
            if ln: self.lines.append(ln)
    def label(self, name): self.lines.append(name + ":")
    def uid(self, p="L"):
        self._uid += 1
        return f"{p}_{self._uid}"
    def comment(self, s): self.lines.append("; " + s)

_reg = re.compile(r"^(-|\|)?(abs\()?([vas])(\d+)\)?\|?$")
_rng = re.compile(r"^(-)?([vas])\[(\d+):(\d+)\]$")

def regs_of(op):
    op = op.strip()
    if op in ("vcc",): return [("s", "vcc")]
    if op in ("vcc_lo", "vcc_hi"): return [("s", "vcc")]
    if op == "exec": return [("s", "exec")]
    if op == "m0": return [("s", "m0")]
    m = _reg.match(op)
    if m: return [(m.group(3), int(m.group(4)))]
    m = _rng.match(op)
    if m: return [(m.group(2), i) for i in range(int(m.group(3)), int(m.group(4)) + 1)]
    return []

TRANS = ("v_exp_f32", "v_log_f32", "v_rcp_f32", "v_rsq_f32", "v_sqrt_f32", "v_sin_f32", "v_cos_f32", "v_rcp_iflag_f32")

def parse(ln):
    code = ln.split(";")[0].strip()
    if not code or code.endswith(":") or code.startswith("."): return None
    parts = code.split(None, 1)
    op = parts[0]
    rest = parts[1] if len(parts) > 1 else ""
    ops = [o.strip() for o in re.split(r",(?![^\[]*\])", rest)] if rest else []
    mods = ""
    if ops:
        last = ops[-1].split(None, 1)
        ops[-1] = last[0]
        mods = last[1] if len(last) > 1 else ""
    d = dict(op=op, defs=[], uses=[], kind="other", dpp=False, mods=mods, n=1)
    base = re.sub(r"_(e32|e64|dpp|sdwa)$", "", op)
    d["base"] = base
    if op == "s_nop":
        d["kind"] = "nop"; d["n"] = int(ops[0], 0) + 1; return d
    if op.startswith("v_mfma"):
        d["kind"] = "mfma"; d["defs"] = regs_of(ops[0])
        d["srcA"] = regs_of(ops[1]); d["srcB"] = regs_of(ops[2]); d["srcC"] = regs_of(ops[3])
        d["uses"] = d["srcA"] + d["srcB"] + d["srcC"]
        if "32x32x16" in op or "32x32x8" in op: d["passes"] = 8
        elif "16x16x32" in op or "16x16x16" in op: d["passes"] = 4
        elif "16x16x4_f32" in op: d["passes"] = 8
        elif "4x4x4" in op: d["passes"] = 2
        else: d["passes"] = 16
        return d
    if op.startswith("v_"):
        d["kind"] = "valu"
        d["dpp"] = ("_dpp" in op) or any(k in mods for k in ("row_", "quad_perm", "wave_"))
        if base.startswith("v_cmp"):
            d["defs"] = regs_of(ops[0]); srcs = ops[1:]
            if base.startswith("v_cmpx"): d["defs"] += [("s", "exec")]
        elif base in ("v_readfirstlane_b32", "v_readlane_b32"):
            d["defs"] = regs_of(ops[0]); srcs = ops[1:]; d["lane_read"] = True
        elif base in ("v_permlane32_swap_b32", "v_permlane16_swap_b32"):
            d["defs"] = regs_of(ops[0]) + regs_of(ops[1]); srcs = ops[:2]; d["permlane"] = True
        elif base in ("v_add_co_u32", "v_sub_co_u32", "v_subrev_co_u32", "v_addc_co_u32", "v_subb_co_u32", "v_mad_u64_u32", "v_div_scale_f32"):
            d["defs"] = regs_of(ops[0]) + regs_of(ops[1]); srcs = ops[2:]
        else:
            d["defs"] = regs_of(ops[0]); srcs = ops[1:]
            if base in ("v_fmac_f32", "v_dot2c_f32_bf16", "v_writelane_b32", "v_pk_fmac_f16", "v_mac_f32"): srcs = ops
            if d["dpp"] and True:
                srcs = list(srcs) + [ops[0]]
        for o in srcs: d["uses"] += regs_of(o)
        if base == "v_cndmask_b32" and len(ops) == 3: d["uses"] += [("s", "vcc")]
        if base in ("v_addc_co_u32", "v_subb_co_u32") : pass
        d["trans"] = base in TRANS
        d["sdwa"] = "_sdwa" in op or "sel:" in mods
        return d
    if op.startswith("buffer_") or op.startswith("global_") or op.startswith("flat_"):
        d["kind"] = "vmem"
        is_load = "load" in op
        is_atomic = "atomic" in op
        lds = " lds" in (" " + mods) or "_lds_" in op
        if op in ("buffer_wbl2", "buffer_inv"): return d
        if op.startswith("buffer_"):
            if is_load and not lds:
                d["defs"] = regs_of(ops[0]); srcs = ops[1:]
            elif is_load and lds:
                srcs = ops
            else:
                srcs = ops; d["store_data"] = regs_of(ops[0]); d["wide"] = ("x3" in op or "x4" in op)
                if is_atomic and "sc0" in mods: d["defs"] = regs_of(ops[0])
        else:
            if is_load and not lds:
                d["defs"] = regs_of(ops[0]); srcs = ops[1:]
            elif is_load:
                srcs = ops
            elif is_atomic and "sc0" in mods:
                d["defs"] = regs_of(ops[0]); srcs = ops[1:]
            else:
                srcs = ops; d["store_data"] = regs_of(ops[1]); d["wide"] = ("x3" in op or "x4" in op)
        for o in srcs: d["uses"] += regs_of(o)
        return d
    if op.startswith("ds_"):
        d["kind"] = "ds"
        if op.startswith("ds_read") or "_rtn_" in op or op.startswith("ds_bpermute") or op.startswith("ds_permute") or op.startswith("ds_swizzle"):
            d["defs"] = regs_of(ops[0]); srcs = ops[1:]
        else:
            srcs = ops
        for o in srcs: d["uses"] += regs_of(o)
        return d
    if op.startswith("s_"):
        d["kind"] = "salu"
        if op.startswith("s_cbranch") or op in ("s_branch", "s_barrier", "s_endpgm", "s_waitcnt", "s_sleep", "s_setprio"):
            d["kind"] = "ctl"; return d
        if op.startswith("s_cmp") or op.startswith("s_bitcmp"):
            for o in ops: d["uses"] += regs_of(o)
            return d
        if op.startswith("s_load") or op.startswith("s_memtime") or op.startswith("s_memrealtime") or op.startswith("s_buffer_load"):
            d["kind"] = "smem"; d["defs"] = regs_of(ops[0])
            for o in ops[1:]: d["uses"] += regs_of(o)
            return d
        d["defs"] = regs_of(ops[0])
        for o in ops[1:]: d["uses"] += regs_of(o)
        if "saveexec" in op: d["defs"] += [("s", "exec")]; d["uses"] += [("s", "exec")]
        return d
    return d

def autonop(lines, verbose=False):
    incoming = {}
    _autonop(lines, incoming, False)
    return _autonop(lines, incoming, verbose)

def _snap(pos, dicts, exec_pos):
    snap = []
    for dct in dicts:
        e = {}
        for r, v in dct.items():
            p = v[0] if isinstance(v, tuple) else v
            if pos - p <= 24:
                e[r] = ((pos - p,) + tuple(v[1:])) if isinstance(v, tuple) else (pos - p)
        snap.append(e)
    return snap, pos - exec_pos

def _merge(pos, dicts, exec_pos, snap):
    sn, ex = snap
    for dct, e in zip(dicts, sn):
        for r, v in e.items():
            age = v[0] if isinstance(v, tuple) else v
            p = pos - age
            cur = dct.get(r)
            curp = (cur[0] if isinstance(cur, tuple) else cur) if cur is not None else -10**9
            if p > curp:
                dct[r] = ((p,) + tuple(v[1:])) if isinstance(v, tuple) else p
    return max(exec_pos, pos - ex)

def _autonop(lines, incoming, verbose=False):
    out = []
    pos = 0
    last_valu_w = {}
    last_valu_sw = {}
    last_trans_w = {}
    last_sdwa_w = {}
    last_mfma_w = {}
    last_mfma_c = {}
    last_store_data = {}
    last_valu_exec = -100
    nins = 0
    for ln in lines:
        d = parse(ln)
        dicts = [last_valu_w, last_valu_sw, last_trans_w, last_sdwa_w, last_mfma_w, last_mfma_c, last_store_data]
        if d is None:
            code = ln.split(";")[0].strip()
            if code.endswith(":"):
                for snap in incoming.get(code[:-1], []):
                    last_valu_exec = _merge(pos, dicts, last_valu_exec, snap)
            out.append(ln); continue
        need = 0
        def req(p, n):
            nonlocal need
            gap = pos - p - 1
            if n - gap > need: need = n - gap
        k = d["kind"]
        vuses = [r for r in d["uses"] if r[0] in "va"]
        vdefs = [r for r in d["defs"] if r[0] in "va"]
        suses = [r for r in d["uses"] if r[0] == "s"]
        if k == "valu":
            for r in vuses:
                if r in last_trans_w and not d.get("trans"): req(last_trans_w[r], 1)
                if r in last_sdwa_w: req(last_sdwa_w[r], 1)
                if d["dpp"] and r in last_valu_w: req(last_valu_w[r], 2)
                if d.get("permlane") and r in last_valu_w: req(last_valu_w[r], 2)
                if d.get("lane_read") and r in last_valu_w: req(last_valu_w[r], 1)
                if r in last_mfma_w: req(last_mfma_w[r][0], {2: 5, 4: 8, 8: 12, 16: 20}[last_mfma_w[r][1]])
            for r in vdefs:
                if r in last_mfma_w: req(last_mfma_w[r][0], {2: 5, 4: 8, 8: 12, 16: 20}[last_mfma_w[r][1]])
                if r in last_mfma_c: req(last_mfma_c[r][0], {2: 1, 4: 3, 8: 7, 16: 15}[last_mfma_c[r][1]])
                if r in last_store_data: req(last_store_data[r], 2)
            for r in suses:
                if r in last_valu_sw:
                    req(last_valu_sw[r], 4 if d.get("lane_read") else 2)
            if d["dpp"]: req(last_valu_exec, 5)
        elif k == "mfma":
            for r in vuses:
                if r in last_valu_w: req(last_valu_w[r], 2)
            for r in d["srcA"] + d["srcB"]:
                if r in last_mfma_w: req(last_mfma_w[r][0], {2: 5, 4: 8, 8: 12, 16: 20}[last_mfma_w[r][1]])
            cfirst = d["srcC"][0] if d["srcC"] else None
            for r in d["srcC"]:
                if r in last_mfma_w:
                    p, ps, first, n = last_mfma_w[r]
                    if not (first == cfirst and n == len(d["srcC"]) and ps == d["passes"]):
                        req(p, {2: 4, 4: 6, 8: 10, 16: 18}[ps])
                    elif ps == 2: req(p, 2)
            for r in d["defs"]:
                if r in last_mfma_w and r not in d["srcC"]:
                    p, ps, first, n = last_mfma_w[r]
                    req(p, {2: 4, 4: 6, 8: 10, 16: 18}[ps])
            req(last_valu_exec, 4)
        elif k in ("vmem", "ds"):
            for r in vuses + vdefs:
                if r in last_mfma_w: req(last_mfma_w[r][0], {2: 5, 4: 8, 8: 12, 16: 20}[last_mfma_w[r][1]])
            if k == "vmem":
                for r in suses:
                    if r in last_valu_sw: req(last_valu_sw[r], 5)
            for r in vdefs:
                if r in last_store_data: req(last_store_data[r], 1)
        elif k in ("salu", "smem"):
            for r in suses:
                if r in last_valu_sw: req(last_valu_sw[r], 1)
        if need > 0:
            nins += need
            n = need
            while n > 0:
                c = min(n, 16)
                out.append(f"s_nop {c-1}"); pos += c; n -= c
        out.append(ln)
        if k == "valu":
            for r in d["defs"]:
                if r[0] in "va":
                    last_valu_w[r] = pos
                    last_mfma_w.pop(r, None)
                    if d.get("trans"): last_trans_w[r] = pos
                    else: last_trans_w.pop(r, None)
                    if d.get("sdwa"): last_sdwa_w[r] = pos
                    else: last_sdwa_w.pop(r, None)
                else:
                    last_valu_sw[r] = pos
                    if r == ("s", "exec"): last_valu_exec = pos
        elif k == "mfma":
            for r in d["defs"]:
                last_mfma_w[r] = (pos, d["passes"], d["defs"][0], len(d["defs"]))
                last_valu_w.pop(r, None)
            for r in d["srcC"]: last_mfma_c[r] = (pos, d["passes"])
        elif k in ("vmem", "ds"):
            for r in d["defs"]:
                last_valu_w.pop(r, None); last_mfma_w.pop(r, None); last_trans_w.pop(r, None)
            if d.get("wide"):
                for r in d.get("store_data", []): last_store_data[r] = pos
        elif k in ("salu", "smem"):
            for r in d["defs"]: last_valu_sw.pop(r, None)
        pos += d["n"]
        if d["op"].startswith("s_cbranch") or d["op"] == "s_branch":
            tgt = ln.split(";")[0].split()[1]
            incoming.setdefault(tgt, []).append(_snap(pos, dicts, last_valu_exec))
        if d["op"] in ("s_branch", "s_endpgm"):
            for dct in dicts: dct.clear()
            last_valu_exec = -100 + pos - 1000
    if verbose: print(f"autonop inserted {nins} wait states")
    return out
```

```python
import sys
from asmlib import Asm, autonop

KNAME = "adaLN_cond__mha_block_cached__glu_gated_glu__decode_kernel"

WS_EPOCH = 0
WS_MOD = 0x1000
WS_Q = 0x8000
WS_O = 0x10000
OSLOT = 640
WS_ATT = 0x40000
WS_OUT = 0x50000
WS_DBG = 0x100000
WS_SIZE = 0x200000

L_QFLAG = 0
L_WFLAG = 4
L_CNT = 8
L_Q = 0x40
L_TBL = 0x200
L_PART = 0x1000
L_OPART = 0x1800
L_ML = 0x2000
L_STAT = 0x2100
L_FIN = 0x2200
L_DOWN = 0x3000
LDS_BYTES = 0x8000

LOG2E = 0x3FB8AA3B
SCALE = 0x3DB504F3
SPIN_MAX = 200000

class P:
    R = 48
    D = 6
    NP = 48
    WTRIG = 40
    STAMPS = False
    QSLEEP = 4

def f32hex(x):
    import struct
    return "0x%08x" % struct.unpack("<I", struct.pack("<f", x))[0]

sWAVE = "s3"
sX, sK, sV, sWQ, sWO, sWG, sWU, sWD, sC, sWM, sOUT, sDBG, sWS = 16, 18, 20, 22, 24, 28, 30, 32, 34, 36, 38, 40, 42
SRD_A, SRD_B, SRD_WS, SRD_C = 44, 48, 52, 56
sTAG = "s64"
sT0, sT1, sT2, sT3 = "s65", "s66", "s67", "s68"
sSPIN = "s69"
sM0 = 70
sSAVE = 72
sACT = 74
sHW = "s76"
sROLE0, sROLE1, sROLE2 = "s77", "s78", "s79"
sFFFF0000 = "s80"
sFF = "s81"
sPERM = "s82"
sSTAMP = 84
def srd(b): return f"s[{b}:{b+3}]"
def sp(b): return f"s[{b}:{b+1}]"

vLANE = "v3"
vM = [4, 5, 6, 7]
vTAG = "v60"

class Gen:
    def __init__(self, p=P):
        self.a = Asm(); self.p = p; self.nstamp = 0

    def mask64(self, sreg, val):
        a = self.a
        a(f"s_mov_b32 s{sreg}, 0x{val & 0xffffffff:08x}")
        a(f"s_mov_b32 s{sreg+1}, 0x{(val >> 32) & 0xffffffff:08x}")
    def setexec(self, val):
        a = self.a
        if val == (1 << 64) - 1: a("s_mov_b64 exec, -1")
        elif val < 64 and False: pass
        else:
            a(f"s_mov_b32 exec_lo, 0x{val & 0xffffffff:08x}")
            a(f"s_mov_b32 exec_hi, 0x{(val >> 32) & 0xffffffff:08x}")
    def stamp(self, idx):
        if self.p.STAMPS:
            self.a(f"s_memrealtime s[{sSTAMP+2*idx}:{sSTAMP+2*idx+1}]")
    def dump_stamps(self, n=8):
        if not self.p.STAMPS: return
        a = self.a
        a("s_waitcnt lgkmcnt(0) vmcnt(0)")
        a("s_mov_b64 exec, 1")
        a(f"s_lshl_b32 {sT0}, s2, 3"); a(f"s_add_u32 {sT0}, {sT0}, {sWAVE}"); a(f"s_lshl_b32 {sT0}, {sT0}, 7")
        a(f"s_add_u32 {sT0}, {sT0}, {WS_DBG}")
        for i in range(n):
            a(f"v_mov_b32 v8, s{sSTAMP+2*i}"); a(f"v_mov_b32 v9, s{sSTAMP+2*i+1}")
            a(f"buffer_store_dwordx2 v[8:9], off, {srd(SRD_WS)}, {sT0} offset:{8*i}")
            a("s_waitcnt vmcnt(0)")
    def lds_spin(self, addr, vtmp="v61", vaddr="v62", sleep=1):
        a = self.a; L = a.uid("Lspin"); E = a.uid("Lspun")
        a(f"v_mov_b32 {vaddr}, {addr}")
        a(f"s_mov_b32 {sSPIN}, 0")
        a.label(L)
        a(f"ds_read_b32 {vtmp}, {vaddr}")
        a("s_waitcnt lgkmcnt(0)")
        a(f"v_readfirstlane_b32 {sT3}, {vtmp}")
        a(f"s_cmp_lg_u32 {sT3}, 0")
        a(f"s_cbranch_scc1 {E}")
        if sleep: a(f"s_sleep {sleep}")
        a(f"s_add_u32 {sSPIN}, {sSPIN}, 1")
        a(f"s_cmp_lt_u32 {sSPIN}, {SPIN_MAX * 4}")
        a(f"s_cbranch_scc1 {L}")
        a.label(E)
    def poll(self, loads, active_mask=None, sleep=0, tmps=("v61", "v62", "v63")):
        a = self.a; L = a.uid("Lpoll"); E = a.uid("Lpolled")
        t0, t1, t2 = tmps
        if active_mask is not None: self.setexec(active_mask)
        a(f"s_mov_b64 {sp(sSAVE)}, exec")
        a(f"s_mov_b32 {sSPIN}, 0")
        a.label(L)
        for (dst, n, voff, soff, imm) in loads:
            op = {1: "buffer_load_dword", 2: "buffer_load_dwordx2", 4: "buffer_load_dwordx4"}[n]
            r = f"v{dst}" if n == 1 else f"v[{dst}:{dst+n-1}]"
            if soff is not None and not str(soff).startswith("s"):
                a(f"s_mov_b32 {sT3}, {soff}"); so = sT3
            else: so = soff if soff is not None else "0"
            a(f"{op} {r}, {voff}, {srd(SRD_WS)}, {so} offen offset:{imm} sc1")
        a("s_waitcnt vmcnt(0)")
        regs = [dst + i for (dst, n, _, _, _) in loads for i in range(n)]
        first = True
        i = 0
        while i < len(regs):
            if i + 1 < len(regs):
                if first:
                    a(f"v_xor_b32 {t0}, {vTAG}, v{regs[i]}"); a(f"v_xor_b32 {t1}, {vTAG}, v{regs[i+1]}"); a(f"v_or_b32 {t0}, {t0}, {t1}"); first = False
                else:
                    a(f"v_xor_b32 {t1}, {vTAG}, v{regs[i]}"); a(f"v_xor_b32 {t2}, {vTAG}, v{regs[i+1]}"); a(f"v_or3_b32 {t0}, {t0}, {t1}, {t2}")
                i += 2
            else:
                if first: a(f"v_xor_b32 {t0}, {vTAG}, v{regs[i]}"); first = False
                else: a(f"v_xor_b32 {t1}, {vTAG}, v{regs[i]}"); a(f"v_or_b32 {t0}, {t0}, {t1}")
                i += 1
        a(f"v_and_b32 {t0}, 0xff, {t0}")
        a(f"v_cmp_ne_u32 vcc, 0, {t0}")
        a("s_and_b64 exec, exec, vcc")
        a(f"s_cbranch_execz {E}")
        if sleep: a(f"s_sleep {sleep}")
        a(f"s_add_u32 {sSPIN}, {sSPIN}, 1")
        a(f"s_cmp_lt_u32 {sSPIN}, {SPIN_MAX}")
        a(f"s_cbranch_scc1 {L}")
        a.label(E)
        a(f"s_mov_b64 exec, {sp(sSAVE)}")
    def bf16_round(self, dst, src, tmp):
        a = self.a
        a(f"v_cvt_pk_bf16_f32 {tmp}, {src}, {src}")
        a(f"v_and_b32 {dst}, {sFFFF0000}, {tmp}") if False else a(f"v_lshlrev_b32 {dst}, 16, {tmp}")
    def bf16_round2(self, d0, d1, s0, s1, tmp):
        a = self.a
        a(f"v_cvt_pk_bf16_f32 {tmp}, {s0}, {s1}")
        a(f"v_lshlrev_b32 {d0}, 16, {tmp}")
        a(f"v_and_b32 {d1}, {sFFFF0000}, {tmp}")
    def allreduce(self, op, v, t, steps):
        a = self.a
        for s in steps:
            if s == "q1": a(f"{op}_dpp {v}, {v}, {v} quad_perm:[1,0,3,2] row_mask:0xf bank_mask:0xf")
            elif s == "q2": a(f"{op}_dpp {v}, {v}, {v} quad_perm:[2,3,0,1] row_mask:0xf bank_mask:0xf")
            elif s == "hm": a(f"{op}_dpp {v}, {v}, {v} row_half_mirror row_mask:0xf bank_mask:0xf")
            elif s == "r4": a(f"{op}_dpp {v}, {v}, {v} row_ror:4 row_mask:0xf bank_mask:0xf")
            elif s == "r8": a(f"{op}_dpp {v}, {v}, {v} row_ror:8 row_mask:0xf bank_mask:0xf")
            elif s == "p16":
                a(f"v_mov_b32 {t}, {v}"); a(f"v_permlane16_swap_b32 {v}, {t}"); a(f"{op} {v}, {v}, {t}")
            elif s == "p32":
                a(f"v_mov_b32 {t}, {v}"); a(f"v_permlane32_swap_b32 {v}, {t}"); a(f"{op} {v}, {v}, {t}")
    def allreduce2(self, op, v0, t0, v1, t1, steps):
        a = self.a
        for s in steps:
            for (v, t) in ((v0, t0), (v1, t1)):
                if s in ("p16", "p32"): a(f"v_mov_b32 {t}, {v}")
                else: self.allreduce(op, v, t, [s])
            if s in ("p16", "p32"):
                ins = "v_permlane16_swap_b32" if s == "p16" else "v_permlane32_swap_b32"
                for (v, t) in ((v0, t0), (v1, t1)): a(f"{ins} {v}, {t}")
                for (v, t) in ((v0, t0), (v1, t1)): a(f"{op} {v}, {v}, {t}")

    def gemv(self, ntiles, abase, xx, D, bsets=(8, 12), waits=None):
        a = self.a
        def mkB(t):
            b = bsets[t & 1]
            for r in range(4): a(f"v_and_b32 v{b+r}, v{xx[t]}, v{vM[r]}")
        mkB(0)
        for t in range(ntiles):
            if t + 1 < ntiles: mkB(t + 1)
            if waits and t in waits: a(f"s_waitcnt vmcnt({waits[t]})")
            b = bsets[t & 1]
            c = "0" if t == 0 else f"v[{D}:{D+3}]"
            a(f"v_mfma_f32_16x16x32_bf16 v[{D}:{D+3}], a[{abase+4*t}:{abase+4*t+3}], v[{b}:{b+3}], {c}")

    def table_write(self, xxregs, vaddr, nl):
        a = self.a
        for k in range(4): a(f"ds_write_b32 {vaddr}, v{xxregs[k]} offset:{k*80}")
    def table_addr_w(self, vaddr, vt, lane=vLANE):
        a = self.a
        a(f"v_and_b32 {vt}, 1, {lane}"); a(f"v_mul_u32_u24 {vt}, 320, {vt}")
        a(f"v_lshrrev_b32 {vaddr}, 1, {lane}"); a(f"v_lshl_add_u32 {vaddr}, {vaddr}, 2, {vt}")
        a(f"s_mul_i32 {sT0}, {sHW}, 640"); a(f"s_add_u32 {sT0}, {sT0}, {L_TBL}")
        a(f"v_add_u32 {vaddr}, {sT0}, {vaddr}")
    def table_read(self, first, nb128, vaddr):
        a = self.a
        a(f"v_lshrrev_b32 {vaddr}, 3, {vLANE}"); a(f"v_mul_u32_u24 {vaddr}, 80, {vaddr}")
        a(f"s_mul_i32 {sT0}, {sHW}, 640"); a(f"s_add_u32 {sT0}, {sT0}, {L_TBL}")
        a(f"v_add_u32 {vaddr}, {sT0}, {vaddr}")
        a("s_waitcnt lgkmcnt(0)")
        for i in range(nb128): a(f"ds_read_b128 v[{first+4*i}:{first+4*i+3}], {vaddr} offset:{16*i}")
        a("s_waitcnt lgkmcnt(0)")
    VALIDMASK = 0xFF00FF0000FF00FF
    def part_write(self, D, vaddr, vt, base, rowlen=64, colblock=0, compute_addr=True):
        a = self.a
        if compute_addr:
            a(f"v_lshrrev_b32 {vaddr}, 5, {vLANE}"); a(f"v_mul_u32_u24 {vaddr}, {rowlen*4}, {vaddr}")
            a(f"v_bfe_u32 {vt}, {vLANE}, 4, 1"); a(f"v_lshl_add_u32 {vaddr}, {vt}, 7, {vaddr}")
            a(f"v_and_b32 {vt}, 7, {vLANE}"); a(f"v_lshl_add_u32 {vaddr}, {vt}, 2, {vaddr}")
            a(f"s_mul_i32 {sT0}, {sHW}, {2*rowlen*4}"); a(f"s_add_u32 {sT0}, {sT0}, {base}")
            a(f"v_add_u32 {vaddr}, {sT0}, {vaddr}")
        self.setexec(self.VALIDMASK)
        for r in range(4): a(f"ds_write_b32 {vaddr}, v{D+r} offset:{colblock*256 + r*32}")
        a("s_mov_b64 exec, -1")

    def prologue(self):
        a = self.a
        a("s_cmp_ge_u32 s2, 256"); a("s_cbranch_scc1 L_exit")
        self.stamp(0)
        a("s_load_dwordx16 s[16:31], s[0:1], 0")
        a("s_load_dwordx8 s[32:39], s[0:1], 64")
        a("s_load_dwordx4 s[40:43], s[0:1], 96")
        a("v_lshrrev_b32 v1, 6, v0")
        a(f"v_and_b32 {vLANE}, 63, v0")
        a(f"v_readfirstlane_b32 {sWAVE}, v1")
        a(f"v_and_b32 v8, 1, {vLANE}"); a("v_cmp_eq_u32 vcc, 1, v8")
        a("v_mov_b32 v9, 0xffff"); a("v_mov_b32 v10, 0xffff0000")
        a("v_cndmask_b32 v9, v9, v10, vcc")
        a(f"v_bfe_u32 v8, {vLANE}, 1, 2")
        for r in range(4):
            a(f"v_cmp_eq_u32 vcc, {r}, v8"); a(f"v_cndmask_b32 v{vM[r]}, 0, v9, vcc")
        a(f"s_mov_b32 {sFFFF0000}, 0xffff0000"); a(f"s_mov_b32 {sFF}, 0xff"); a(f"s_mov_b32 {sPERM}, 0x07060302")
        a("s_waitcnt lgkmcnt(0)")
        a(f"s_mov_b32 s{SRD_WS}, s{sWS}"); a(f"s_mov_b32 s{SRD_WS+1}, s{sWS+1}"); a(f"s_mov_b32 s{SRD_WS+2}, {WS_SIZE}"); a(f"s_mov_b32 s{SRD_WS+3}, 0x20000")
        a(f"buffer_load_dword {vTAG}, off, {srd(SRD_WS)}, 0 sc1")
        a(f"s_cmp_ge_u32 {sWAVE}, 4"); a("s_cbranch_scc1 L_helper")

    def get_tag(self, vm):
        a = self.a
        a(f"s_waitcnt vmcnt({vm})")
        a(f"v_add_u32 {vTAG}, 1, {vTAG}")
        a(f"v_readfirstlane_b32 {sTAG}, {vTAG}")
        a(f"v_and_b32 {vTAG}, 0xff, {vTAG}")

    def swave(self):
        a = self.a; p = self.p
        R, D, NP = p.R, p.D, p.NP
        vK, vV = "v1", "v2"
        B_T = 8
        S = 24
        DQ = (40, 44)
        DO = 48
        T = 52
        a(f"s_lshl_b32 {sT0}, s2, 18")
        a(f"s_add_u32 s{SRD_A}, s{sK}, {sT0}"); a(f"s_addc_u32 s{SRD_A+1}, s{sK+1}, 0"); a(f"s_mov_b32 s{SRD_A+2}, 0x40000"); a(f"s_mov_b32 s{SRD_A+3}, 0x20000")
        a(f"s_add_u32 s{SRD_B}, s{sV}, {sT0}"); a(f"s_addc_u32 s{SRD_B+1}, s{sV+1}, 0"); a(f"s_mov_b32 s{SRD_B+2}, 0x40000"); a(f"s_mov_b32 s{SRD_B+3}, 0x20000")
        a(f"s_lshl_b32 {sT0}, {sWAVE}, 10")
        a(f"v_lshrrev_b32 v8, 4, {vLANE}"); a("v_lshlrev_b32 v8, 6, v8")
        a(f"v_bfe_u32 v9, {vLANE}, 2, 2"); a("v_lshl_add_u32 v8, v9, 8, v8")
        a(f"v_and_b32 v9, 3, {vLANE}"); a("v_lshl_add_u32 v8, v9, 4, v8")
        a(f"v_add_u32 {vK}, {sT0}, v8")
        a(f"v_lshlrev_b32 v9, 4, {vLANE}"); a(f"v_add_u32 {vV}, {sT0}, v9")
        N = 128
        st = dict(issued=0)
        def issue(throttle=True):
            i = st["issued"]
            if throttle and i >= D: a(f"s_waitcnt vmcnt({D-1})")
            off = (i % 64) * 4096
            a(f"s_mov_b32 {sT1}, {off}")
            s_, v_ = (SRD_A, vK) if i < 64 else (SRD_B, vV)
            sl = 4 * (i % R)
            a(f"buffer_load_dwordx4 a[{sl}:{sl+3}], {v_}, {srd(s_)}, {sT1} offen nt")
            st["issued"] = i + 1
            if i == 64 + p.WTRIG:
                L = a.uid("Ltrig")
                a(f"s_cmp_lg_u32 {sWAVE}, 0"); a(f"s_cbranch_scc1 {L}")
                a(f"v_mov_b32 v{T}, {L_WFLAG}"); a(f"v_mov_b32 v{T+1}, 1"); a(f"ds_write_b32 v{T}, v{T+1}")
                a.label(L)
        def need(tile):
            n = st["issued"] - 1 - tile
            a(f"s_waitcnt vmcnt({n})")
        for _ in range(min(D, NP)): issue(False)
        a("s_barrier")
        while st["issued"] < NP: issue()
        self.stamp(1)
        self.get_tag(D)
        self.lds_spin(L_QFLAG)
        self.stamp(2)
        a(f"v_lshrrev_b32 v{T}, 4, {vLANE}"); a(f"v_lshlrev_b32 v{T}, 6, v{T}")
        a(f"v_and_b32 v{T+1}, 3, {vLANE}"); a(f"v_lshl_add_u32 v{T}, v{T+1}, 4, v{T}")
        a(f"ds_read_b128 v[{T+4}:{T+7}], v{T} offset:{L_Q}")
        mT = [6, 8, 10, 12]
        for t in range(4): self.mask64(mT[t], 0x000F000F000F000F << (4 * t))
        m1, m3, m23 = 14, 4, 92
        if p.STAMPS: m23 = 100 - 100 + 62
        else: m23 = 62
        self.mask64(m1, 0x2222222222222222); self.mask64(m3, 0x8888888888888888); self.mask64(m23, 0xCCCCCCCCCCCCCCCC)
        a("s_waitcnt lgkmcnt(0)")
        for t in range(4):
            for k in range(4): a(f"v_cndmask_b32 v{B_T+4*t+k}, 0, v{T+4+k}, {sp(mT[t])}")
        def qk_mfma(g):
            d = DQ[g & 1]
            need(4 * g + 3)
            for t in range(4):
                sl = 4 * ((4 * g + t) % R)
                c = "0" if t == 0 else f"v[{d}:{d+3}]"
                a(f"v_mfma_f32_16x16x32_bf16 v[{d}:{d+3}], a[{sl}:{sl+3}], v[{B_T+4*t}:{B_T+4*t+3}], {c}")
        def qk_post(g):
            d = DQ[g & 1]
            a(f"v_cndmask_b32 v{T}, v{d}, v{d+1}, {sp(m1)}")
            a(f"v_cndmask_b32 v{T+1}, v{d+2}, v{d+3}, {sp(m3)}")
            a(f"v_cndmask_b32 v{T}, v{T}, v{T+1}, {sp(m23)}")
            a(f"v_add_f32_dpp v{T+1}, v{T}, v{T} quad_perm:[1,0,3,2] row_mask:0xf bank_mask:0xf")
            a(f"v_add_f32_dpp v{S+g}, v{T+1}, v{T+1} quad_perm:[2,3,0,1] row_mask:0xf bank_mask:0xf")
        g = 0
        while g < 16:
            lag = st["issued"] - 4 * g
            qk_mfma(g)
            if g > 0: qk_post(g - 1)
            g += 1
            free = 4 * g + R - st["issued"]
            if lag > D + 8:
                nissue = 1 if (g % 3 == 0) else 0
            else:
                nissue = 4
            for _ in range(min(nissue, free)):
                if st["issued"] < N: issue()
        qk_post(15)
        self.stamp(3)
        for _ in range(3): issue(False)
        a(f"s_mov_b32 {sT0}, 0x{SCALE:08x}")
        for k in range(0, 16, 2):
            x, y = f"v{S+k}", f"v{S+k+1}"
            t = f"v{T + (k // 2) % 4}"
            a(f"v_cvt_pk_bf16_f32 {t}, {x}, {y}")
            a(f"v_lshlrev_b32 {x}, 16, {t}"); a(f"v_and_b32 {y}, {sFFFF0000}, {t}")
            a(f"v_mul_f32 {x}, {sT0}, {x}"); a(f"v_mul_f32 {y}, {sT0}, {y}")
            a(f"v_cvt_pk_bf16_f32 {t}, {x}, {y}")
            a(f"v_lshlrev_b32 {x}, 16, {t}"); a(f"v_and_b32 {y}, {sFFFF0000}, {t}")
        vm, vl = f"v{T+4}", f"v{T+5}"
        a(f"v_max3_f32 {vm}, v{S}, v{S+1}, v{S+2}")
        for k in range(3, 15, 2): a(f"v_max3_f32 {vm}, {vm}, v{S+k}, v{S+k+1}")
        a(f"v_max_f32 {vm}, {vm}, v{S+15}")
        self.allreduce("v_max_f32", vm, f"v{T}", ["r4", "r8", "p16", "p32"])
        a(f"s_mov_b32 {sT0}, 0x{LOG2E:08x}")
        a(f"v_mul_f32 v{T+6}, {sT0}, {vm}")
        for k in range(16):
            a(f"v_fma_f32 v{S+k}, v{S+k}, {sT0}, -v{T+6}")
        for k in range(16):
            a(f"v_exp_f32 v{S+k}, v{S+k}")
        a(f"v_add_f32 {vl}, v{S}, v{S+1}")
        for k in range(2, 16): a(f"v_add_f32 {vl}, {vl}, v{S+k}")
        for k in range(16):
            a(f"v_cvt_pk_bf16_f32 v{S+k}, v{S+k}, v{S+k}")
        self.allreduce("v_add_f32", vl, f"v{T}", ["r4", "r8", "p16", "p32"])
        self.stamp(4)
        BV = (8, 12)
        def mkB(vi):
            g_, t_ = vi >> 2, vi & 3
            b = BV[vi & 1]
            for r in range(4):
                a(f"v_and_b32_dpp v{b+r}, v{S+g_}, v{vM[r]} row_newbcast:{4*t_} row_mask:0xf bank_mask:0xf")
        mkB(0)
        for vi in range(64):
            if vi + 1 < 64: mkB(vi + 1)
            tile = 64 + vi
            while st["issued"] < N and st["issued"] - tile < D + 1: issue()
            need(tile)
            sl = 4 * (tile % R)
            b = BV[vi & 1]
            c = "0" if vi == 0 else f"v[{DO}:{DO+3}]"
            a(f"v_mfma_f32_16x16x32_bf16 v[{DO}:{DO+3}], a[{sl}:{sl+3}], v[{b}:{b+3}], {c}")
        self.stamp(5)
        a(f"v_lshrrev_b32 v{T}, 4, {vLANE}"); a(f"v_lshlrev_b32 v{T}, 7, v{T}")
        a(f"v_and_b32 v{T+1}, 7, {vLANE}"); a(f"v_lshl_add_u32 v{T}, v{T+1}, 2, v{T}")
        a(f"s_lshl_b32 {sT0}, {sWAVE}, 9"); a(f"s_add_u32 {sT0}, {sT0}, {L_OPART}")
        a(f"v_add_u32 v{T}, {sT0}, v{T}")
        self.setexec(0x00FF00FF00FF00FF)
        for r in range(4): a(f"ds_write_b32 v{T}, v{DO+r} offset:{32*r}")
        a("s_mov_b64 exec, 1")
        a(f"s_lshl_b32 {sT0}, {sWAVE}, 3"); a(f"s_add_u32 {sT0}, {sT0}, {L_ML}")
        a(f"v_mov_b32 v{T+1}, {sT0}")
        a(f"ds_write_b64 v{T+1}, v[{T+4}:{T+5}]")
        a("s_mov_b64 exec, -1")
        a("s_waitcnt lgkmcnt(0)")
        a("s_barrier")
        a(f"s_cmp_lg_u32 {sWAVE}, 0"); a("s_cbranch_scc1 L_sdone")
        a(f"v_and_b32 v8, 31, {vLANE}"); a("v_lshlrev_b32 v8, 4, v8")
        a(f"v_mov_b32 v9, {L_ML}")
        for w in range(4): a(f"ds_read_b128 v[{12+4*w}:{15+4*w}], v8 offset:{L_OPART + 512*w}")
        a("ds_read_b128 v[28:31], v9"); a("ds_read_b128 v[32:35], v9 offset:16")
        a("s_waitcnt lgkmcnt(0)")
        a("v_max3_f32 v36, v28, v30, v32"); a("v_max_f32 v36, v36, v34")
        a(f"s_mov_b32 {sT0}, 0x{LOG2E:08x}")
        for w, r in enumerate((28, 30, 32, 34)):
            a(f"v_sub_f32 v{40+w}, v{r}, v36"); a(f"v_mul_f32 v{40+w}, {sT0}, v{40+w}"); a(f"v_exp_f32 v{40+w}, v{40+w}")
        a("v_mul_f32 v37, v40, v29"); a("v_fmac_f32 v37, v41, v31"); a("v_fmac_f32 v37, v42, v33"); a("v_fmac_f32 v37, v43, v35")
        for c in range(4):
            a(f"v_mul_f32 v{44+c}, v40, v{12+c}")
            for w in range(1, 4): a(f"v_fmac_f32 v{44+c}, v{40+w}, v{12+4*w+c}")
        a(f"v_cmp_eq_u32 vcc, 32, {vLANE}")
        a("v_cndmask_b32 v44, v44, v36, vcc"); a("v_cndmask_b32 v45, v45, v37, vcc")
        for c in range(4): a(f"v_bfi_b32 v{44+c}, {sFF}, {vTAG}, v{44+c}")
        a(f"s_mul_i32 {sT0}, s2, {OSLOT}"); a(f"s_add_u32 {sT0}, {sT0}, {WS_O}")
        a(f"v_lshlrev_b32 v8, 4, {vLANE}")
        self.setexec((1 << 33) - 1)
        a(f"buffer_store_dwordx4 v[44:47], v8, {srd(SRD_WS)}, {sT0} offen sc1")
        self.stamp(6)
        a.label("L_sdone")
        self.dump_stamps()
        a("s_endpgm")

    def load_w64(self, stride_s, ntiles, abase, rows_per_wave, pol="nt"):
        a = self.a
        a(f"s_mul_i32 {sT0}, {sHW}, {rows_per_wave}")
        a(f"v_lshrrev_b32 v1, 3, {vLANE}"); a(f"v_add_u32 v1, {sT0}, v1")
        a(f"v_mul_lo_u32 v1, v1, {stride_s}")
        a(f"v_and_b32 v2, 7, {vLANE}"); a("v_lshl_add_u32 v1, v2, 4, v1")
        a(f"s_lshl_b32 {sT1}, {stride_s}, 3"); a(f"s_mov_b32 {sT0}, 0")
        for t in range(ntiles):
            a(f"buffer_load_dwordx4 a[{abase+4*t}:{abase+4*t+3}], v1, {srd(SRD_A)}, {sT0} offen {pol}")
            if t + 1 < ntiles: a(f"s_add_u32 {sT0}, {sT0}, {sT1}")

    def reduce_publish(self, area_s, fp32):
        a = self.a
        a(f"v_lshlrev_b32 v2, 4, {vLANE}")
        self.setexec(0xFFFF)
        for k in range(8): a(f"ds_read_b128 v[{8+4*k}:{11+4*k}], v2 offset:{L_PART + 256*k}")
        a("s_waitcnt lgkmcnt(0)")
        for c in range(4):
            a(f"v_add_f32 v{8+c}, v{8+c}, v{12+c}"); a(f"v_add_f32 v{16+c}, v{16+c}, v{20+c}")
            a(f"v_add_f32 v{24+c}, v{24+c}, v{28+c}"); a(f"v_add_f32 v{32+c}, v{32+c}, v{36+c}")
        for c in range(4):
            a(f"v_add_f32 v{8+c}, v{8+c}, v{16+c}"); a(f"v_add_f32 v{24+c}, v{24+c}, v{32+c}")
        for c in range(4): a(f"v_add_f32 v{8+c}, v{8+c}, v{24+c}")
        if fp32:
            for c in range(4): a(f"v_bfi_b32 v{8+c}, {sFF}, {vTAG}, v{8+c}")
        else:
            a("v_cvt_pk_bf16_f32 v12, v8, v9"); a("v_cvt_pk_bf16_f32 v13, v10, v11")
            a(f"v_lshl_or_b32 v8, v12, 16, {vTAG}"); a(f"v_and_or_b32 v9, v12, {sFFFF0000}, {vTAG}")
            a(f"v_lshl_or_b32 v10, v13, 16, {vTAG}"); a(f"v_and_or_b32 v11, v13, {sFFFF0000}, {vTAG}")
        a(f"buffer_store_dwordx4 v[8:11], v2, {srd(SRD_WS)}, {area_s} offen sc1")
        a("s_mov_b64 exec, -1")

    def silu_or_sigmoid(self, v, t, silu):
        a = self.a
        a(f"v_mul_f32 {t}, 0x{(LOG2E | 0x80000000):08x}, {v}")
        a(f"v_exp_f32 {t}, {t}")
        a(f"v_add_f32 {t}, 1.0, {t}")
        a(f"v_rcp_f32 {t}, {t}")
        if silu: a(f"v_mul_f32 {v}, {v}, {t}")
        else: a(f"v_mov_b32 {v}, {t}")

    def unpack4(self, dst, src):
        a = self.a
        a(f"v_lshlrev_b32 v{dst}, 16, v{src}"); a(f"v_and_b32 v{dst+1}, {sFFFF0000}, v{src}")
        a(f"v_lshlrev_b32 v{dst+2}, 16, v{src+1}"); a(f"v_and_b32 v{dst+3}, {sFFFF0000}, v{src+1}")

    def ln_finish(self, X, MEAN, VAR, SC, SH, OUTXX, T):
        a = self.a
        t0, t1, t2, t3 = [f"v{T+i}" for i in range(4)]
        self.bf16_round2(t0, t1, MEAN, VAR, t2)
        a(f"v_add_f32 {t1}, {f32hex(1e-5)}, {t1}")
        self.bf16_round(t1, t1, t2)
        a(f"v_sqrt_f32 {t1}, {t1}")
        self.bf16_round(t1, t1, t2)
        a(f"v_rcp_f32 {t1}, {t1}")
        for k in range(4): a(f"v_sub_f32 v{X+k}, v{X+k}, {t0}")
        for k in (0, 2): self.bf16_round2(f"v{X+k}", f"v{X+k+1}", f"v{X+k}", f"v{X+k+1}", t2)
        for k in range(4): a(f"v_mul_f32 v{X+k}, v{X+k}, {t1}")
        for k in (0, 2): self.bf16_round2(f"v{X+k}", f"v{X+k+1}", f"v{X+k}", f"v{X+k+1}", t2)
        for k in range(4): a(f"v_add_f32 v{SC+k}, 1.0, v{SC+k}")
        for k in (0, 2): self.bf16_round2(f"v{SC+k}", f"v{SC+k+1}", f"v{SC+k}", f"v{SC+k+1}", t2)
        for k in range(4): a(f"v_mul_f32 v{X+k}, v{X+k}, v{SC+k}")
        for k in (0, 2): self.bf16_round2(f"v{X+k}", f"v{X+k+1}", f"v{X+k}", f"v{X+k+1}", t2)
        for k in range(4): a(f"v_add_f32 v{X+k}, v{X+k}, v{SH+k}")
        for k in range(4): a(f"v_cvt_pk_bf16_f32 v{OUTXX+k}, v{X+k}, v{X+k}")

    def mask_hi(self, regs):
        for r in regs: self.a(f"v_and_b32 v{r}, {sFFFF0000}, v{r}")

    def hwave(self):
        a = self.a; p = self.p
        a.label("L_helper")
        a("s_setprio 3")
        a(f"s_sub_u32 {sHW}, {sWAVE}, 4")
        a(f"s_cmp_lg_u32 {sHW}, 0"); a("s_cbranch_scc1 L_h_noinit")
        a(f"v_lshlrev_b32 v8, 2, {vLANE}"); a("v_mov_b32 v9, 0")
        self.setexec(0xFFFF); a("ds_write_b32 v8, v9"); a("s_mov_b64 exec, -1"); a("s_waitcnt lgkmcnt(0)")
        a.label("L_h_noinit")
        L16 = (1 << 36) - 1
        a("s_cmp_lt_u32 s2, 54"); a("s_cbranch_scc1 L_modrole")
        a("s_cmp_lt_u32 s2, 64"); a("s_cbranch_scc1 L_norole")
        a("s_cmp_lt_u32 s2, 128"); a("s_cbranch_scc1 L_qrole")
        a("s_branch L_norole")
        a.label("L_modrole")
        a(f"s_lshl_b32 {sROLE0}, s2, 7")
        a(f"s_add_u32 s{SRD_A}, s{sWM}, {sROLE0}"); a(f"s_addc_u32 s{SRD_A+1}, s{sWM+1}, 0")
        a(f"s_sub_u32 s{SRD_A+2}, {576*6912}, {sROLE0}"); a(f"s_mov_b32 s{SRD_A+3}, 0x20000")
        a(f"s_mov_b32 {sROLE1}, 6912")
        a(f"s_mov_b32 s{SRD_B}, s{sC}"); a(f"s_mov_b32 s{SRD_B+1}, s{sC+1}"); a(f"s_mov_b32 s{SRD_B+2}, 1152"); a(f"s_mov_b32 s{SRD_B+3}, 0x20000")
        a(f"s_mul_i32 {sT0}, {sHW}, 288"); a(f"v_lshlrev_b32 v8, 3, {vLANE}")
        a(f"buffer_load_dwordx2 v[40:41], v8, {srd(SRD_B)}, {sT0} offen")
        self.load_w64(sROLE1, 18, 0, 144)
        a("s_barrier")
        self.get_tag(19)
        a("s_waitcnt vmcnt(18)")
        self.unpack4(44, 40)
        for k in range(4): self.silu_or_sigmoid(f"v{44+k}", f"v{48+k}", True)
        for k in range(4): a(f"v_cvt_pk_bf16_f32 v{44+k}, v{44+k}, v{44+k}")
        a(f"s_lshl_b32 {sROLE2}, s2, 8"); a(f"s_add_u32 {sROLE2}, {sROLE2}, {WS_MOD}")
        a("s_branch L_gemv576")
        a.label("L_qrole")
        a(f"s_sub_u32 {sT2}, s2, 64")
        a(f"s_lshl_b32 {sROLE0}, {sT2}, 7")
        a(f"s_add_u32 s{SRD_A}, s{sWQ}, {sROLE0}"); a(f"s_addc_u32 s{SRD_A+1}, s{sWQ+1}, 0")
        a(f"s_sub_u32 s{SRD_A+2}, {576*8192}, {sROLE0}"); a(f"s_mov_b32 s{SRD_A+3}, 0x20000")
        a(f"s_mov_b32 {sROLE1}, 8192")
        a(f"s_lshl_b32 {sROLE2}, {sT2}, 8"); a(f"s_add_u32 {sROLE2}, {sROLE2}, {WS_Q}")
        a(f"s_mov_b32 s{SRD_B}, s{sX}"); a(f"s_mov_b32 s{SRD_B+1}, s{sX+1}"); a(f"s_mov_b32 s{SRD_B+2}, 1152"); a(f"s_mov_b32 s{SRD_B+3}, 0x20000")
        a(f"s_mul_i32 {sT0}, {sHW}, 288"); a(f"v_lshlrev_b32 v8, 3, {vLANE}")
        a(f"buffer_load_dwordx2 v[40:41], v8, {srd(SRD_B)}, {sT0} offen")
        a(f"v_lshlrev_b32 v9, 5, {vLANE}")
        a(f"buffer_load_dwordx4 v[16:19], v9, {srd(SRD_B)}, 0 offen")
        a(f"buffer_load_dwordx4 v[20:23], v9, {srd(SRD_B)}, 0 offen offset:16")
        self.load_w64(sROLE1, 18, 0, 144)
        a("s_barrier")
        self.get_tag(21)
        a("s_waitcnt vmcnt(18)")
        for i in range(8):
            a(f"v_lshlrev_b32 v{24+2*i}, 16, v{16+i}"); a(f"v_and_b32 v{25+2*i}, {sFFFF0000}, v{16+i}")
        a("v_add_f32 v42, v24, v25")
        for i in range(2, 16): a(f"v_add_f32 v42, v42, v{24+i}")
        self.allreduce("v_add_f32", "v42", "v43", ["q1", "q2", "r4", "r8", "p16", "p32"])
        a(f"v_mul_f32 v42, {f32hex(1/576)}, v42")
        for i in range(16): a(f"v_sub_f32 v{24+i}, v{24+i}, v42")
        a("v_mul_f32 v43, v24, v24")
        for i in range(1, 16): a(f"v_fmac_f32 v43, v{24+i}, v{24+i}")
        a(f"v_cmp_gt_u32 vcc, 36, {vLANE}"); a("v_cndmask_b32 v43, 0, v43, vcc")
        self.allreduce("v_add_f32", "v43", "v56", ["q1", "q2", "r4", "r8", "p16", "p32"])
        a(f"v_mul_f32 v43, {f32hex(1/576)}, v43")
        self.unpack4(44, 40)
        a(f"s_mul_i32 {sT0}, {sHW}, 576"); a(f"v_lshlrev_b32 v2, 4, {vLANE}"); a(f"v_add_u32 v2, {sT0}, v2")
        self.stamp(1)
        self.poll([(48, 4, "v2", WS_MOD, 0), (52, 4, "v2", WS_MOD + 2304, 0)], active_mask=L16, sleep=1)
        a("s_mov_b64 exec, -1")
        self.stamp(2)
        self.mask_hi(range(48, 56))
        self.ln_finish(44, "v42", "v43", 52, 48, 44, 56)
        a.label("L_gemv576")
        self.table_addr_w("v2", "v8")
        self.setexec(L16); self.table_write([44, 45, 46, 47], "v2", 36); a("s_mov_b64 exec, -1")
        self.table_read(16, 5, "v2")
        self.gemv(18, 0, list(range(16, 34)), 36, waits={0: 14, 4: 10, 8: 6, 12: 2, 16: 0})
        self.part_write(36, "v2", "v8", L_PART)
        a("s_waitcnt lgkmcnt(0)")
        a("s_mov_b64 exec, 1")
        a(f"v_mov_b32 v8, {L_CNT}"); a("v_mov_b32 v9, 1")
        a("ds_add_rtn_u32 v9, v8, v9"); a("s_waitcnt lgkmcnt(0)")
        a(f"v_readfirstlane_b32 {sT0}, v9")
        a("s_mov_b64 exec, -1")
        a(f"s_cmp_lg_u32 {sT0}, 3"); a("s_cbranch_scc1 L_pre_done")
        self.reduce_publish(sROLE2, fp32=False)
        self.stamp(3)
        a("s_branch L_pre_done")
        a.label("L_norole")
        a("s_barrier")
        self.get_tag(0)
        a.label("L_pre_done")
        a(f"s_cmp_lg_u32 {sHW}, 3"); a("s_cbranch_scc1 L_noq")
        a(f"s_lshr_b32 {sT0}, s2, 3"); a(f"s_lshl_b32 {sT0}, {sT0}, 9"); a(f"s_add_u32 {sROLE0}, {sT0}, {WS_Q}")
        a(f"v_lshlrev_b32 v2, 4, {vLANE}")
        self.poll([(8, 4, "v2", sROLE0, 0)], active_mask=(1 << 32) - 1, sleep=p.QSLEEP)
        a(f"v_perm_b32 v12, v9, v8, {sPERM}"); a(f"v_perm_b32 v13, v11, v10, {sPERM}")
        a(f"v_lshlrev_b32 v2, 3, {vLANE}")
        a(f"ds_write_b64 v2, v[12:13] offset:{L_Q}")
        a("s_waitcnt lgkmcnt(0)")
        a("s_mov_b64 exec, 1")
        a(f"v_mov_b32 v8, {L_QFLAG}"); a("v_mov_b32 v9, 1"); a("ds_write_b32 v8, v9")
        a("s_mov_b64 exec, -1")
        self.stamp(4)
        a.label("L_noq")
        a("s_cmp_lt_u32 s2, 72"); a("s_cbranch_scc1 L_wo")
        a("s_cmp_lt_u32 s2, 216"); a("s_cbranch_scc1 L_mlp")
        a("s_cmp_lt_u32 s2, 234"); a("s_cbranch_scc1 L_fin")
        a("s_barrier")
        self.dump_stamps()
        a("s_endpgm")
        self.role_wo(); self.role_mlp(); self.role_fin()

    def role_wo(self):
        a = self.a; p = self.p
        a.label("L_wo")
        a(f"s_and_b32 {sROLE0}, s2, 7"); a(f"s_lshr_b32 {sROLE1}, s2, 3")
        a(f"s_lshl_b32 {sT2}, {sROLE1}, 7")
        a(f"s_add_u32 s{SRD_A}, s{sWO}, {sT2}"); a(f"s_addc_u32 s{SRD_A+1}, s{sWO+1}, 0")
        a(f"s_sub_u32 s{SRD_A+2}, {4096*1152}, {sT2}"); a(f"s_mov_b32 s{SRD_A+3}, 0x20000")
        a(f"s_lshl_b32 {sROLE2}, {sROLE0}, 2"); a(f"s_add_u32 {sROLE2}, {sROLE2}, {sHW}")
        a(f"s_lshl_b32 {sT0}, {sROLE2}, 7")
        a(f"v_lshrrev_b32 v1, 3, {vLANE}"); a(f"v_add_u32 v1, {sT0}, v1"); a("v_mul_u32_u24 v1, 1152, v1")
        a(f"v_and_b32 v2, 7, {vLANE}"); a("v_lshl_add_u32 v1, v2, 4, v1")
        a(f"s_mul_i32 {sT0}, {sROLE2}, {8*OSLOT}"); a(f"s_add_u32 {sT0}, {sT0}, {WS_O}")
        a(f"v_lshrrev_b32 v40, 5, {vLANE}"); a(f"v_mul_u32_u24 v40, {4*OSLOT}, v40")
        a(f"v_and_b32 v41, 31, {vLANE}"); a("v_lshl_add_u32 v40, v41, 4, v40"); a(f"v_add_u32 v40, {sT0}, v40")
        a(f"v_and_b32 v41, 7, {vLANE}"); a(f"v_mul_u32_u24 v41, {OSLOT}, v41"); a(f"v_add_u32 v41, {sT0}, v41")
        self.lds_spin(L_WFLAG, sleep=4)
        a(f"s_mov_b32 {sT0}, 0")
        for t in range(16):
            a(f"buffer_load_dwordx4 a[{4*t}:{4*t+3}], v1, {srd(SRD_A)}, {sT0} offen nt")
            if t < 15: a(f"s_add_u32 {sT0}, {sT0}, 9216")
        a("s_barrier")
        self.stamp(5)
        self.poll([(8, 4, "v40", None, 0), (12, 4, "v40", None, OSLOT), (16, 4, "v40", None, 2*OSLOT), (20, 4, "v40", None, 3*OSLOT), (24, 4, "v41", None, 512)])
        self.stamp(6)
        a(f"v_and_b32 v24, {sFFFF0000}, v24")
        a("v_mov_b32 v28, v24")
        self.allreduce("v_max_f32", "v28", "v29", ["q1", "q2", "hm"])
        a("v_sub_f32 v29, v24, v28"); a(f"v_mul_f32 v29, 0x{LOG2E:08x}, v29"); a("v_exp_f32 v29, v29")
        a("v_mul_f32 v30, v29, v25")
        self.allreduce("v_add_f32", "v30", "v31", ["q1", "q2", "hm"])
        a("v_rcp_f32 v30, v30"); a("v_mul_f32 v29, v29, v30")
        for k in range(4):
            a(f"v_mov_b32_dpp v{32+k}, v29 row_newbcast:{k} row_mask:0x3 bank_mask:0xf")
            a(f"v_mov_b32_dpp v{32+k}, v29 row_newbcast:{4+k} row_mask:0xc bank_mask:0xf")
        for c in range(4):
            a(f"v_mul_f32 v{36+c}, v32, v{8+c}")
            for k in range(1, 4): a(f"v_fmac_f32 v{36+c}, v{32+k}, v{8+4*k+c}")
        for c in range(4): a(f"v_mov_b32 v{8+c}, v{36+c}")
        for c in range(4): a(f"v_permlane32_swap_b32 v{36+c}, v{8+c}")
        for c in range(4): a(f"v_add_f32 v{36+c}, v{36+c}, v{8+c}")
        for c in range(4): a(f"v_cvt_pk_bf16_f32 v{36+c}, v{36+c}, v{36+c}")
        self.table_addr_w("v2", "v8")
        self.setexec((1 << 32) - 1); self.table_write([36, 37, 38, 39], "v2", 32); a("s_mov_b64 exec, -1")
        self.table_read(16, 4, "v2")
        self.gemv(16, 0, list(range(16, 32)), 36)
        self.part_write(36, "v2", "v8", L_PART)
        a("s_waitcnt lgkmcnt(0)")
        a("s_barrier")
        a(f"s_cmp_lg_u32 {sHW}, 0"); a("s_cbranch_scc1 L_wo_done")
        a(f"s_mul_i32 {sT0}, {sROLE0}, 2304"); a(f"s_lshl_b32 {sT1}, {sROLE1}, 8"); a(f"s_add_u32 {sT0}, {sT0}, {sT1}")
        a(f"s_add_u32 {sROLE2}, {sT0}, {WS_ATT}")
        self.reduce_publish(sROLE2, fp32=True)
        self.stamp(7)
        a.label("L_wo_done")
        self.dump_stamps()
        a("s_endpgm")

    def role_mlp(self):
        a = self.a; p = self.p
        L36 = (1 << 36) - 1
        a.label("L_mlp")
        a(f"s_sub_u32 {sT0}, s2, 72"); a(f"s_and_b32 {sT1}, {sT0}, 7"); a(f"s_mul_i32 {sT1}, {sT1}, 18")
        a(f"s_lshr_b32 {sT0}, {sT0}, 3"); a(f"s_add_u32 {sROLE0}, {sT0}, {sT1}")
        a(f"s_mov_b32 s{SRD_B}, s{sX}"); a(f"s_mov_b32 s{SRD_B+1}, s{sX+1}"); a(f"s_mov_b32 s{SRD_B+2}, 1152"); a(f"s_mov_b32 s{SRD_B+3}, 0x20000")
        a(f"s_mul_i32 {sT0}, {sHW}, 288"); a(f"v_lshlrev_b32 v8, 3, {vLANE}")
        a(f"buffer_load_dwordx2 v[40:41], v8, {srd(SRD_B)}, {sT0} offen")
        a(f"s_mul_i32 {sT0}, {sHW}, 576"); a(f"v_lshlrev_b32 v2, 4, {vLANE}"); a(f"v_add_u32 v2, {sT0}, v2")
        self.poll([(48, 4, "v2", WS_MOD + 2 * 2304, 0), (52, 4, "v2", WS_MOD + 3 * 2304, 0), (56, 4, "v2", WS_MOD + 4 * 2304, 0)], active_mask=L36, sleep=8)
        a("s_mov_b64 exec, -1")
        self.mask_hi(range(48, 60))
        self.unpack4(44, 40)
        a(f"v_add_u32 v42, {WS_ATT}, v2")
        a(f"s_lshl_b32 {sT2}, {sROLE0}, 6")
        a(f"s_add_u32 s{SRD_A}, s{sWG}, {sT2}"); a(f"s_addc_u32 s{SRD_A+1}, s{sWG+1}, 0"); a(f"s_sub_u32 s{SRD_A+2}, {576*9216}, {sT2}"); a(f"s_mov_b32 s{SRD_A+3}, 0x20000")
        a(f"s_add_u32 s{SRD_B}, s{sWU}, {sT2}"); a(f"s_addc_u32 s{SRD_B+1}, s{sWU+1}, 0"); a(f"s_sub_u32 s{SRD_B+2}, {576*9216}, {sT2}"); a(f"s_mov_b32 s{SRD_B+3}, 0x20000")
        a(f"s_mul_i32 {sT2}, {sROLE0}, {32*1152}")
        a(f"s_add_u32 s{SRD_C}, s{sWD}, {sT2}"); a(f"s_addc_u32 s{SRD_C+1}, s{sWD+1}, 0"); a(f"s_mov_b32 s{SRD_C+2}, {32*1152}"); a(f"s_mov_b32 s{SRD_C+3}, 0x20000")
        a(f"s_mul_i32 {sT0}, {sHW}, 144")
        a(f"v_lshrrev_b32 v1, 3, {vLANE}"); a(f"v_add_u32 v1, {sT0}, v1"); a("v_mul_u32_u24 v1, 9216, v1")
        a(f"v_and_b32 v8, 3, {vLANE}"); a("v_lshl_add_u32 v1, v8, 4, v1")
        a(f"s_lshl_b32 {sT0}, {sHW}, 3")
        a(f"v_lshrrev_b32 v43, 3, {vLANE}"); a(f"v_add_u32 v43, {sT0}, v43"); a("v_mul_u32_u24 v43, 1152, v43")
        a(f"v_and_b32 v8, 7, {vLANE}"); a("v_lshl_add_u32 v43, v8, 4, v43")
        self.mask64(6, 0x0F0F0F0F0F0F0F0F); self.mask64(8, 0xF0F0F0F0F0F0F0F0)
        self.lds_spin(L_WFLAG, sleep=4)
        a(f"s_mov_b32 {sT0}, 0")
        for t in range(18):
            a("s_mov_b64 exec, s[6:7]")
            a(f"buffer_load_dwordx4 a[{4*t}:{4*t+3}], v1, {srd(SRD_A)}, {sT0} offen nt")
            a("s_mov_b64 exec, s[8:9]")
            a(f"buffer_load_dwordx4 a[{4*t}:{4*t+3}], v1, {srd(SRD_B)}, {sT0} offen nt")
            if t < 17: a(f"s_add_u32 {sT0}, {sT0}, {8*9216}")
        a("s_mov_b64 exec, -1")
        for cb in range(9):
            a(f"buffer_load_dwordx4 a[{72+4*cb}:{75+4*cb}], v43, {srd(SRD_C)}, 0 offen offset:{128*cb} nt")
        a("s_barrier")
        self.stamp(5)
        loads = [(8 + 4 * k, 4, "v42", k * 2304 if k >= 2 else None, 0 if k >= 2 else k * 2304) for k in range(8)]
        self.poll(loads, active_mask=L36)
        self.stamp(6)
        for c in range(4):
            a(f"v_add_f32 v{8+c}, v{8+c}, v{12+c}"); a(f"v_add_f32 v{16+c}, v{16+c}, v{20+c}")
            a(f"v_add_f32 v{24+c}, v{24+c}, v{28+c}"); a(f"v_add_f32 v{32+c}, v{32+c}, v{36+c}")
        for c in range(4):
            a(f"v_add_f32 v{8+c}, v{8+c}, v{16+c}"); a(f"v_add_f32 v{24+c}, v{24+c}, v{32+c}")
        for c in range(4): a(f"v_add_f32 v{8+c}, v{8+c}, v{24+c}")
        a("s_mov_b64 exec, -1")
        for k in (0, 2): self.bf16_round2(f"v{8+k}", f"v{9+k}", f"v{8+k}", f"v{9+k}", "v12")
        for k in range(4): a(f"v_mul_f32 v{8+k}, v{8+k}, v{48+k}")
        for k in (0, 2): self.bf16_round2(f"v{8+k}", f"v{9+k}", f"v{8+k}", f"v{9+k}", "v12")
        for k in range(4): a(f"v_add_f32 v{44+k}, v{44+k}, v{8+k}")
        for k in (0, 2): self.bf16_round2(f"v{44+k}", f"v{45+k}", f"v{44+k}", f"v{45+k}", "v12")
        a(f"v_readfirstlane_b32 {sT2}, v44")
        for k in range(4): a(f"v_subrev_f32 v{8+k}, {sT2}, v{44+k}")
        a("v_add_f32 v12, v8, v9"); a("v_add_f32 v13, v10, v11"); a("v_add_f32 v12, v12, v13")
        a("v_mul_f32 v13, v8, v8")
        for k in range(1, 4): a(f"v_fmac_f32 v13, v{8+k}, v{8+k}")
        a(f"v_cmp_gt_u32 vcc, 36, {vLANE}"); a("v_cndmask_b32 v12, 0, v12, vcc"); a("v_cndmask_b32 v13, 0, v13, vcc")
        self.allreduce2("v_add_f32", "v12", "v14", "v13", "v15", ["q1", "q2", "r4", "r8", "p16", "p32"])
        a(f"v_mul_f32 v14, {f32hex(1/144)}, v12")
        a("v_fma_f32 v13, -v14, v12, v13")
        a(f"v_add_f32 v12, {sT2}, v14")
        a("s_mov_b64 exec, 1")
        a(f"s_lshl_b32 {sT0}, {sHW}, 3"); a(f"s_add_u32 {sT0}, {sT0}, {L_STAT}"); a(f"v_mov_b32 v14, {sT0}")
        a("ds_write_b64 v14, v[12:13]")
        a("s_mov_b64 exec, -1")
        a("s_waitcnt lgkmcnt(0)")
        a("s_barrier")
        a(f"v_mov_b32 v14, {L_STAT}")
        a("ds_read_b128 v[16:19], v14"); a("ds_read_b128 v[20:23], v14 offset:16")
        a("s_waitcnt lgkmcnt(0)")
        a("v_add_f32 v24, v16, v18"); a("v_add_f32 v25, v20, v22"); a("v_add_f32 v24, v24, v25"); a("v_mul_f32 v24, 0.25, v24")
        a("v_add_f32 v25, v17, v19"); a("v_add_f32 v25, v25, v21"); a("v_add_f32 v25, v25, v23")
        for r in (16, 18, 20, 22): a(f"v_sub_f32 v{r}, v{r}, v24")
        a("v_mul_f32 v26, v16, v16"); a("v_fmac_f32 v26, v18, v18"); a("v_fmac_f32 v26, v20, v20"); a("v_fmac_f32 v26, v22, v22")
        a(f"v_mov_b32 v27, {f32hex(144.0)}"); a("v_fmac_f32 v25, v26, v27")
        a(f"v_mul_f32 v25, {f32hex(1/576)}, v25")
        self.ln_finish(44, "v24", "v25", 56, 52, 44, 28)
        self.table_addr_w("v2", "v8")
        self.setexec(L36); self.table_write([44, 45, 46, 47], "v2", 36); a("s_mov_b64 exec, -1")
        self.table_read(16, 5, "v2")
        self.gemv(18, 0, list(range(16, 34)), 36)
        self.part_write(36, "v2", "v8", L_PART)
        a("s_waitcnt lgkmcnt(0)")
        a("s_barrier")
        a(f"s_lshl_b32 {sT0}, {sHW}, 3"); a(f"v_lshrrev_b32 v2, 3, {vLANE}"); a(f"v_add_u32 v2, {sT0}, v2"); a("v_lshlrev_b32 v2, 2, v2")
        for k in range(8):
            a(f"ds_read_b32 v{8+k}, v2 offset:{L_PART + 256*k}"); a(f"ds_read_b32 v{16+k}, v2 offset:{L_PART + 256*k + 128}")
        a("s_waitcnt lgkmcnt(0)")
        for b in (8, 16):
            a(f"v_add_f32 v{b}, v{b}, v{b+1}"); a(f"v_add_f32 v{b+2}, v{b+2}, v{b+3}"); a(f"v_add_f32 v{b+4}, v{b+4}, v{b+5}"); a(f"v_add_f32 v{b+6}, v{b+6}, v{b+7}")
        for b in (8, 16):
            a(f"v_add_f32 v{b}, v{b}, v{b+2}"); a(f"v_add_f32 v{b+4}, v{b+4}, v{b+6}")
        for b in (8, 16): a(f"v_add_f32 v{b}, v{b}, v{b+4}")
        self.bf16_round2("v8", "v16", "v8", "v16", "v9")
        self.silu_or_sigmoid("v8", "v9", False)
        self.bf16_round("v8", "v8", "v9")
        a("v_mul_f32 v8, v8, v16")
        a("v_cvt_pk_bf16_f32 v8, v8, v8")
        for r in range(4): a(f"v_and_b32 v{12+r}, v8, v{vM[r]}")
        for cb in range(9):
            d = 16 + 4 * cb
            a(f"v_mfma_f32_16x16x32_bf16 v[{d}:{d+3}], a[{72+4*cb}:{75+4*cb}], v[12:15], 0")
        for cb in range(9):
            self.part_write(16 + 4 * cb, "v2", "v8", L_DOWN, rowlen=576, colblock=cb, compute_addr=(cb == 0))
        a("s_waitcnt lgkmcnt(0)")
        a("s_barrier")
        a(f"s_cmp_ge_u32 {sHW}, 3"); a("s_cbranch_scc1 L_mlp_done")
        a(f"s_mul_i32 {sT0}, {sHW}, 48"); a(f"v_add_u32 v2, {sT0}, {vLANE}"); a("v_lshlrev_b32 v2, 4, v2")
        self.setexec((1 << 48) - 1)
        for k in range(8): a(f"ds_read_b128 v[{8+4*k}:{11+4*k}], v2 offset:{L_DOWN + 2304*k}")
        a("s_waitcnt lgkmcnt(0)")
        for c in range(4):
            a(f"v_add_f32 v{8+c}, v{8+c}, v{12+c}"); a(f"v_add_f32 v{16+c}, v{16+c}, v{20+c}")
            a(f"v_add_f32 v{24+c}, v{24+c}, v{28+c}"); a(f"v_add_f32 v{32+c}, v{32+c}, v{36+c}")
        for c in range(4):
            a(f"v_add_f32 v{8+c}, v{8+c}, v{16+c}"); a(f"v_add_f32 v{24+c}, v{24+c}, v{32+c}")
        for c in range(4): a(f"v_add_f32 v{8+c}, v{8+c}, v{24+c}")
        for c in range(4): a(f"v_bfi_b32 v{8+c}, {sFF}, {vTAG}, v{8+c}")
        a(f"s_mul_i32 {sT0}, {sROLE0}, 2304"); a(f"s_add_u32 {sT0}, {sT0}, {WS_OUT}")
        a(f"buffer_store_dwordx4 v[8:11], v2, {srd(SRD_WS)}, {sT0} offen sc1")
        self.stamp(7)
        a.label("L_mlp_done")
        self.dump_stamps()
        a("s_endpgm")

    def role_fin(self):
        a = self.a; p = self.p
        a.label("L_fin")
        a(f"s_sub_u32 {sROLE0}, s2, 216")
        a(f"s_mov_b32 s{SRD_B}, s{sX}"); a(f"s_mov_b32 s{SRD_B+1}, s{sX+1}"); a(f"s_mov_b32 s{SRD_B+2}, 1152"); a(f"s_mov_b32 s{SRD_B+3}, 0x20000")
        a(f"v_and_b32 v1, 7, {vLANE}")
        a(f"s_lshl_b32 {sT0}, {sROLE0}, 6"); a("v_lshlrev_b32 v8, 3, v1")
        a(f"buffer_load_dwordx2 v[40:41], v8, {srd(SRD_B)}, {sT0} offen")
        a(f"s_lshl_b32 {sT0}, {sROLE0}, 7"); a("v_lshlrev_b32 v2, 4, v1"); a(f"v_add_u32 v2, {sT0}, v2")
        self.poll([(48, 4, "v2", WS_MOD + 2 * 2304, 0), (52, 4, "v2", WS_MOD + 5 * 2304, 0)], sleep=8)
        self.mask_hi(range(48, 56))
        self.unpack4(44, 40)
        a(f"v_lshrrev_b32 v8, 3, {vLANE}"); a("v_mul_u32_u24 v42, 2304, v8"); a("v_add_u32 v42, v42, v2"); a(f"v_add_u32 v42, {WS_ATT}, v42")
        a(f"s_mul_i32 {sT0}, {sHW}, 36"); a(f"v_add_u32 v8, {sT0}, v8"); a("v_mul_u32_u24 v43, 2304, v8"); a("v_add_u32 v43, v43, v2"); a(f"v_add_u32 v43, {WS_OUT}, v43")
        a("s_barrier")
        self.stamp(5)
        self.poll([(8, 4, "v42", None, 0)])
        for c in range(4):
            self.allreduce("v_add_f32", f"v{8+c}", "v12", ["r8", "p16", "p32"])
        for k in (0, 2): self.bf16_round2(f"v{8+k}", f"v{9+k}", f"v{8+k}", f"v{9+k}", "v12")
        for k in range(4): a(f"v_mul_f32 v{8+k}, v{8+k}, v{48+k}")
        for k in (0, 2): self.bf16_round2(f"v{8+k}", f"v{9+k}", f"v{8+k}", f"v{9+k}", "v12")
        for k in range(4): a(f"v_add_f32 v{44+k}, v{44+k}, v{8+k}")
        for k in (0, 2): self.bf16_round2(f"v{44+k}", f"v{45+k}", f"v{44+k}", f"v{45+k}", "v12")
        self.stamp(6)
        a(f"v_add_u32 v56, {4*8*2304}, v43"); a(f"v_cmp_gt_u32 vcc, 32, {vLANE}"); a("v_cndmask_b32 v56, v43, v56, vcc")
        self.poll([(8, 4, "v43", None, 0), (12, 4, "v43", 8*2304, 0), (16, 4, "v43", 16*2304, 0), (20, 4, "v43", 24*2304, 0), (24, 4, "v56", None, 0)])
        a(f"v_cmp_gt_u32 vcc, 32, {vLANE}")
        for c in range(4): a(f"v_cndmask_b32 v{24+c}, 0, v{24+c}, vcc")
        for c in range(4):
            a(f"v_add_f32 v{8+c}, v{8+c}, v{12+c}"); a(f"v_add_f32 v{16+c}, v{16+c}, v{20+c}")
        for c in range(4):
            a(f"v_add_f32 v{8+c}, v{8+c}, v{16+c}")
        for c in range(4): a(f"v_add_f32 v{8+c}, v{8+c}, v{24+c}")
        for c in range(4):
            self.allreduce("v_add_f32", f"v{8+c}", "v12", ["r8", "p16", "p32"])
        a(f"s_lshl_b32 {sT0}, {sHW}, 7"); a(f"s_add_u32 {sT0}, {sT0}, {L_FIN}")
        a("v_lshlrev_b32 v2, 4, v1"); a(f"v_add_u32 v2, {sT0}, v2")
        self.setexec(0xFF)
        a("ds_write_b128 v2, v[8:11]")
        a("s_mov_b64 exec, -1")
        a("s_waitcnt lgkmcnt(0)")
        a("s_barrier")
        a(f"s_cmp_lg_u32 {sHW}, 0"); a("s_cbranch_scc1 L_fin_done")
        a("v_lshlrev_b32 v2, 4, v1")
        for w in range(4): a(f"ds_read_b128 v[{8+4*w}:{11+4*w}], v2 offset:{L_FIN + 128*w}")
        a("s_waitcnt lgkmcnt(0)")
        for c in range(4):
            a(f"v_add_f32 v{8+c}, v{8+c}, v{12+c}"); a(f"v_add_f32 v{16+c}, v{16+c}, v{20+c}")
        for c in range(4): a(f"v_add_f32 v{8+c}, v{8+c}, v{16+c}")
        for k in (0, 2): self.bf16_round2(f"v{8+k}", f"v{9+k}", f"v{8+k}", f"v{9+k}", "v12")
        for k in range(4): a(f"v_mul_f32 v{8+k}, v{8+k}, v{52+k}")
        for k in (0, 2): self.bf16_round2(f"v{8+k}", f"v{9+k}", f"v{8+k}", f"v{9+k}", "v12")
        for k in range(4): a(f"v_add_f32 v{8+k}, v{8+k}, v{44+k}")
        a("v_cvt_pk_bf16_f32 v12, v8, v9"); a("v_cvt_pk_bf16_f32 v13, v10, v11")
        a(f"s_mov_b32 s{SRD_B}, s{sOUT}"); a(f"s_mov_b32 s{SRD_B+1}, s{sOUT+1}"); a(f"s_mov_b32 s{SRD_B+2}, 1152"); a(f"s_mov_b32 s{SRD_B+3}, 0x20000")
        a(f"s_lshl_b32 {sT0}, {sROLE0}, 6"); a("v_lshlrev_b32 v8, 3, v1")
        self.setexec(0xFF)
        a(f"buffer_store_dwordx2 v[12:13], v8, {srd(SRD_B)}, {sT0} offen")
        a(f"s_cmp_lg_u32 {sROLE0}, 0"); a("s_cbranch_scc1 L_fin_done")
        a("s_mov_b64 exec, 1")
        a(f"v_mov_b32 v8, {sTAG}")
        a(f"buffer_store_dword v8, off, {srd(SRD_WS)}, 0 sc1")
        a.label("L_fin_done")
        self.stamp(7)
        self.dump_stamps()
        a("s_endpgm")

    def build(self):
        self.prologue()
        self.swave()
        self.hwave()
        self.a.label("L_exit")
        self.a("s_endpgm")
        body = autonop(self.a.lines)
        return body

HEADER = open("adaLN_cond__mha_block_cached__glu_gated_glu__decode.s.ref").read().split("; Override launch geometry")[0]

def make(p=P):
    g = Gen(p)
    body = g.build()
    txt = HEADER + "; Override launch geometry by editing the next line (default: block=256,\n; grid=ceil(out_elems/256), lds=0). Harness parses it; keep it on one line.\n"
    txt += f"; @launch grid=(256,1,1) block=(512,1,1) lds={LDS_BYTES}\n"
    txt += f""".amdgcn_target "amdgcn-amd-amdhsa--gfx950"
.text
.globl {KNAME}
.p2align 8
.type {KNAME},@function
{KNAME}:
"""
    txt += "\n".join(("" if l.endswith(":") else "    ") + l for l in body) + "\n"
    txt += f""".section .rodata,"a"
.p2align 6
.amdhsa_kernel {KNAME}
  .amdhsa_next_free_vgpr 256
  .amdhsa_next_free_sgpr 102
  .amdhsa_accum_offset 64
  .amdhsa_group_segment_fixed_size 0
  .amdhsa_kernarg_size 112
  .amdhsa_user_sgpr_count 2
  .amdhsa_user_sgpr_kernarg_segment_ptr 1
  .amdhsa_system_sgpr_workgroup_id_x 1
.end_amdhsa_kernel
"""
    return txt

if __name__ == "__main__":
    out = sys.argv[1] if len(sys.argv) > 1 else "adaLN_cond__mha_block_cached__glu_gated_glu__decode.s"
    open(out, "w").write(make())
    print("wrote", out)
```

```python
import sys
from asmlib import Asm, autonop

KNAME = "adaLN_cond__mha_block_cached__glu_gated_glu__decode_kernel"

WS_EPOCH = 0
WS_O = 0x10000
OSLOT = 640
WS_ATT = 0x40000
WS_MOD = 0x80000
WS_Q = 0x90000
WS_OUT = 0xA0000
WS_DBG = 0x100000
WS_SIZE = 0x200000

L_QFLAG = 0
L_WCNT = 4
L_MLCNT = 8
L_OCNT = 12
L_Q = 0x40
L_ML = 0x180
L_STAT = 0x1C0
L_TBL = 0x200
TBLW = 768
L_PART = 0x1000
L_OPART = 0x1800
L_FIN = 0x2000
L_DOWN = 0x3000
L_MODV = 0x8000
MODVW = 1920
LDS_BYTES = 0xA000

LOG2E = 0x3FB8AA3B
SCALE = 0x3DB504F3
SPIN_MAX = 200000
NVGPR = 96

class P:
    R = 44
    D = 6
    NP = 44
    STAMPS = False
    MODE = "tail"
    QSLEEP = 2
    WTRIG = 'issued'
    DEND = 0
    DENDAT = 32
    D2 = 0
    NEARLY = 0
    EPACE = 1
    WTHR = 0
    SPRIO = 2
    WOPACE = 2

def f32hex(x):
    import struct
    return "0x%08x" % struct.unpack("<I", struct.pack("<f", x))[0]

sWAVE = "s3"
sX, sK, sV, sWQ, sWO, sWG, sWU, sWD, sC, sWM, sOUT, sDBG, sWS = 16, 18, 20, 22, 24, 28, 30, 32, 34, 36, 38, 40, 42
SRD_A, SRD_B, SRD_WS, SRD_C = 44, 48, 52, 56
sTAG = "s64"
sT0, sT1, sT2, sT3 = "s65", "s66", "s67", "s68"
sSPIN = "s69"
sSAVE = 72
sHW = "s76"
sR0, sR1, sR2, sR3 = "s77", "s78", "s79", "s83"
sFFFF0000 = "s80"
sFF = "s81"
sSTAMP = 84
def srd(b): return f"s[{b}:{b+3}]"
def sp(b): return f"s[{b}:{b+1}]"
vLANE = "v3"
vM = [4, 5, 6, 7]
vTAG = "v60"
FULL = (1 << 64) - 1
def lanes(n): return (1 << n) - 1

class Gen:
    def __init__(self, p=P):
        self.a = Asm(); self.p = p

    def mask64(self, sreg, val):
        self.a(f"s_mov_b32 s{sreg}, 0x{val & 0xffffffff:08x}"); self.a(f"s_mov_b32 s{sreg+1}, 0x{(val >> 32) & 0xffffffff:08x}")
    def setexec(self, val):
        a = self.a
        if val == FULL: a("s_mov_b64 exec, -1")
        elif val <= 64: a(f"s_mov_b64 exec, {val}")
        elif val < (1 << 32): a(f"s_mov_b64 exec, 0x{val:x}")
        else:
            a(f"s_mov_b32 exec_lo, 0x{val & 0xffffffff:08x}"); a(f"s_mov_b32 exec_hi, 0x{(val >> 32) & 0xffffffff:08x}")
    def stamp(self, idx, mode="tail"):
        if self.p.STAMPS and (mode == self.p.MODE or mode == "all" or (mode == "tail" and self.p.MODE == "fine")):
            self.a(f"s_memrealtime s[{sSTAMP+2*idx}:{sSTAMP+2*idx+1}]")
    def dump_stamps(self, n=8):
        if not self.p.STAMPS: return
        a = self.a
        a("s_waitcnt lgkmcnt(0) vmcnt(0)")
        a("s_mov_b64 exec, 1")
        a(f"s_lshl_b32 {sT0}, s2, 3"); a(f"s_add_u32 {sT0}, {sT0}, {sWAVE}"); a(f"s_lshl_b32 {sT0}, {sT0}, 7")
        a(f"s_add_u32 {sT0}, {sT0}, {WS_DBG}")
        for i in range(n):
            a(f"v_mov_b32 v8, s{sSTAMP+2*i}"); a(f"v_mov_b32 v9, s{sSTAMP+2*i+1}")
            a(f"buffer_store_dwordx2 v[8:9], off, {srd(SRD_WS)}, {sT0} offset:{8*i}")
            a("s_waitcnt vmcnt(0)")
    def lds_spin(self, addr, target=1, vtmp="v61", vaddr="v62", sleep=1):
        a = self.a; L = a.uid("Lspin"); E = a.uid("Lspun")
        a(f"v_mov_b32 {vaddr}, {addr}")
        a(f"s_mov_b32 {sSPIN}, 0")
        a.label(L)
        a(f"ds_read_b32 {vtmp}, {vaddr}")
        a("s_waitcnt lgkmcnt(0)")
        a(f"v_readfirstlane_b32 {sT3}, {vtmp}")
        a(f"s_cmp_ge_u32 {sT3}, {target}")
        a(f"s_cbranch_scc1 {E}")
        if sleep: a(f"s_sleep {sleep}")
        a(f"s_add_u32 {sSPIN}, {sSPIN}, 1")
        a(f"s_cmp_lt_u32 {sSPIN}, {SPIN_MAX * 4}")
        a(f"s_cbranch_scc1 {L}")
        a.label(E)
    def lds_add1(self, addr, va, vb):
        a = self.a
        a("s_mov_b64 exec, 1")
        a(f"v_mov_b32 {va}, {addr}"); a(f"v_mov_b32 {vb}, 1"); a(f"ds_add_u32 {va}, {vb}")
        a("s_mov_b64 exec, -1")
    def poll(self, loads, active=None, sleep=0, tmps=("v61", "v62", "v63")):
        a = self.a; L = a.uid("Lpoll"); E = a.uid("Lpolled")
        t0, t1, t2 = tmps
        if active is not None: self.setexec(active)
        a(f"s_mov_b64 {sp(sSAVE)}, exec")
        a(f"s_mov_b32 {sSPIN}, 0")
        a.label(L)
        for (dst, n, voff, soff, imm) in loads:
            op = {1: "buffer_load_dword", 2: "buffer_load_dwordx2", 4: "buffer_load_dwordx4"}[n]
            r = f"v{dst}" if n == 1 else f"v[{dst}:{dst+n-1}]"
            if soff is not None and not str(soff).startswith("s"):
                a(f"s_mov_b32 {sT3}, {soff}"); so = sT3
            else: so = soff if soff is not None else "0"
            a(f"{op} {r}, {voff}, {srd(SRD_WS)}, {so} offen offset:{imm} sc1")
        regs = [dst + i for (dst, n, _, _, _) in loads for i in range(n)]
        nl = len(loads); first = True; done = 0
        for li, (dst, n, _, _, _) in enumerate(loads):
            a(f"s_waitcnt vmcnt({nl-1-li})")
            rr = [dst + i for i in range(n)]
            i = 0
            while i < len(rr):
                if first:
                    if len(rr) - i >= 2:
                        a(f"v_xor_b32 {t0}, {vTAG}, v{rr[i]}"); a(f"v_xor_b32 {t1}, {vTAG}, v{rr[i+1]}"); a(f"v_or_b32 {t0}, {t0}, {t1}"); i += 2
                    else:
                        a(f"v_xor_b32 {t0}, {vTAG}, v{rr[i]}"); i += 1
                    first = False
                elif len(rr) - i >= 2:
                    a(f"v_xor_b32 {t1}, {vTAG}, v{rr[i]}"); a(f"v_xor_b32 {t2}, {vTAG}, v{rr[i+1]}"); a(f"v_or3_b32 {t0}, {t0}, {t1}, {t2}"); i += 2
                else:
                    a(f"v_xor_b32 {t1}, {vTAG}, v{rr[i]}"); a(f"v_or_b32 {t0}, {t0}, {t1}"); i += 1
        a(f"v_and_b32 {t0}, 0xff, {t0}")
        a(f"v_cmp_ne_u32 vcc, 0, {t0}")
        a("s_and_b64 exec, exec, vcc")
        a(f"s_cbranch_execz {E}")
        if sleep: a(f"s_sleep {sleep}")
        a(f"s_add_u32 {sSPIN}, {sSPIN}, 1")
        a(f"s_cmp_lt_u32 {sSPIN}, {SPIN_MAX}")
        a(f"s_cbranch_scc1 {L}")
        a.label(E)
        a(f"s_mov_b64 exec, {sp(sSAVE)}")
    def bf16_round(self, dst, src, tmp):
        self.a(f"v_cvt_pk_bf16_f32 {tmp}, {src}, {src}"); self.a(f"v_lshlrev_b32 {dst}, 16, {tmp}")
    def bf16_round2(self, d0, d1, s0, s1, tmp):
        a = self.a
        a(f"v_cvt_pk_bf16_f32 {tmp}, {s0}, {s1}"); a(f"v_lshlrev_b32 {d0}, 16, {tmp}"); a(f"v_and_b32 {d1}, {sFFFF0000}, {tmp}")
    def allreduce(self, op, v, t, steps):
        self.allreduceN(op, [(v, t)], steps)
    def allreduceN(self, op, vts, steps):
        a = self.a
        dpp = {"q1": "quad_perm:[1,0,3,2]", "q2": "quad_perm:[2,3,0,1]", "hm": "row_half_mirror", "r4": "row_ror:4", "r8": "row_ror:8"}
        for s in steps:
            if s in dpp:
                for (v, t) in vts: a(f"{op}_dpp {v}, {v}, {v} {dpp[s]} row_mask:0xf bank_mask:0xf")
            else:
                ins = "v_permlane16_swap_b32" if s == "p16" else "v_permlane32_swap_b32"
                for (v, t) in vts: a(f"v_mov_b32 {t}, {v}")
                for (v, t) in vts: a(f"{ins} {v}, {t}")
                for (v, t) in vts: a(f"{op} {v}, {v}, {t}")
    def pk_add(self, d, x, y): self.a(f"v_pk_add_f32 v[{d}:{d+1}], v[{x}:{x+1}], v[{y}:{y+1}]")
    def sum_rows4(self, bases):
        b = list(bases)
        while len(b) > 1:
            nb = []
            for i in range(0, len(b) - 1, 2):
                self.pk_add(b[i], b[i], b[i+1]); self.pk_add(b[i] + 2, b[i] + 2, b[i+1] + 2); nb.append(b[i])
            if len(b) % 2: nb.append(b[-1])
            b = nb
    def gemv(self, ntiles, abase, xx, D, bsets=(8, 12), waits=None):
        a = self.a
        def mkB(t):
            b = bsets[t & 1]
            for r in range(4): a(f"v_and_b32 v{b+r}, v{xx[t]}, v{vM[r]}")
        mkB(0)
        for t in range(ntiles):
            if t + 1 < ntiles: mkB(t + 1)
            if waits and t in waits: a(f"s_waitcnt vmcnt({waits[t]})")
            b = bsets[t & 1]
            c = "0" if t == 0 else f"v[{D}:{D+3}]"
            a(f"v_mfma_f32_16x16x32_bf16 v[{D}:{D+3}], a[{abase+4*t}:{abase+4*t+3}], v[{b}:{b+3}], {c}")
    def taddr_w(self, vaddr, vt, TS):
        a = self.a
        a(f"v_and_b32 {vt}, 1, {vLANE}"); a(f"v_mul_u32_u24 {vt}, {TS*16}, {vt}")
        a(f"v_lshrrev_b32 {vaddr}, 1, {vLANE}"); a(f"v_lshl_add_u32 {vaddr}, {vaddr}, 2, {vt}")
        a(f"s_mul_i32 {sT0}, {sHW}, {TBLW}"); a(f"s_add_u32 {sT0}, {sT0}, {L_TBL}")
        a(f"v_add_u32 {vaddr}, {sT0}, {vaddr}")
    def taddr_r(self, vaddr, TS):
        a = self.a
        a(f"v_lshrrev_b32 {vaddr}, 3, {vLANE}"); a(f"v_mul_u32_u24 {vaddr}, {TS*4}, {vaddr}")
        a(f"s_mul_i32 {sT0}, {sHW}, {TBLW}"); a(f"s_add_u32 {sT0}, {sT0}, {L_TBL}")
        a(f"v_add_u32 {vaddr}, {sT0}, {vaddr}")
    def twrite4(self, regs, vaddr, TS):
        for k in range(4): self.a(f"ds_write_b32 {vaddr}, v{regs[k]} offset:{k*TS*4}")
    def tread(self, first, nb128, vaddr):
        a = self.a
        a("s_waitcnt lgkmcnt(0)")
        for i in range(nb128): a(f"ds_read_b128 v[{first+4*i}:{first+4*i+3}], {vaddr} offset:{16*i}")
        a("s_waitcnt lgkmcnt(0)")
    VALID = 0xFF00FF0000FF00FF
    def paddr(self, vaddr, vt, base, rowlen):
        a = self.a
        a(f"v_lshrrev_b32 {vaddr}, 5, {vLANE}"); a(f"v_mul_u32_u24 {vaddr}, {rowlen*4}, {vaddr}")
        a(f"v_bfe_u32 {vt}, {vLANE}, 4, 1"); a(f"v_lshl_add_u32 {vaddr}, {vt}, 7, {vaddr}")
        a(f"v_and_b32 {vt}, 7, {vLANE}"); a(f"v_lshl_add_u32 {vaddr}, {vt}, 2, {vaddr}")
        a(f"s_mul_i32 {sT0}, {sHW}, {2*rowlen*4}"); a(f"s_add_u32 {sT0}, {sT0}, {base}")
        a(f"v_add_u32 {vaddr}, {sT0}, {vaddr}")
    def pwrite(self, D, vaddr, off=0):
        for r in range(4): self.a(f"ds_write_b32 {vaddr}, v{D+r} offset:{off + r*32}")
    def sigmoid(self, dst, v, t):
        a = self.a
        a(f"v_mul_f32 {t}, 0x{(LOG2E | 0x80000000):08x}, {v}"); a(f"v_exp_f32 {t}, {t}")
        a(f"v_add_f32 {t}, 1.0, {t}"); a(f"v_rcp_f32 {dst}, {t}")
    def unpack4(self, dst, src):
        a = self.a
        a(f"v_lshlrev_b32 v{dst}, 16, v{src}"); a(f"v_and_b32 v{dst+1}, {sFFFF0000}, v{src}")
        a(f"v_lshlrev_b32 v{dst+2}, 16, v{src+1}"); a(f"v_and_b32 v{dst+3}, {sFFFF0000}, v{src+1}")
    def round4(self, X, tmp):
        for k in (0, 2): self.bf16_round2(f"v{X+k}", f"v{X+k+1}", f"v{X+k}", f"v{X+k+1}", tmp)
    def set_srd(self, s, base, off=None, size=None, size_minus_off=None):
        a = self.a
        if off is None:
            a(f"s_mov_b32 s{s}, s{base}"); a(f"s_mov_b32 s{s+1}, s{base+1}")
        else:
            a(f"s_add_u32 s{s}, s{base}, {off}"); a(f"s_addc_u32 s{s+1}, s{base+1}, 0")
        if size_minus_off is not None: a(f"s_sub_u32 s{s+2}, {size_minus_off}, {off}")
        else: a(f"s_mov_b32 s{s+2}, {size}")
        a(f"s_mov_b32 s{s+3}, 0x20000")
    def div3(self, q, r, x):
        a = self.a
        a(f"s_mul_i32 {q}, {x}, 0x5556"); a(f"s_lshr_b32 {q}, {q}, 16")
        a(f"s_mul_i32 {r}, {q}, 3"); a(f"s_sub_u32 {r}, {x}, {r}")

    def prologue(self):
        a = self.a
        a("s_cmp_ge_u32 s2, 256"); a("s_cbranch_scc1 L_exit")
        self.stamp(0, "all")
        a("s_load_dwordx16 s[16:31], s[0:1], 0")
        a("s_load_dwordx8 s[32:39], s[0:1], 64")
        a("s_load_dwordx4 s[40:43], s[0:1], 96")
        a("v_lshrrev_b32 v1, 6, v0")
        a(f"v_and_b32 {vLANE}, 63, v0")
        a(f"v_readfirstlane_b32 {sWAVE}, v1")
        a(f"v_and_b32 v8, 1, {vLANE}"); a("v_cmp_eq_u32 vcc, 1, v8")
        a("v_mov_b32 v9, 0xffff"); a("v_mov_b32 v10, 0xffff0000")
        a("v_cndmask_b32 v9, v9, v10, vcc")
        a(f"v_bfe_u32 v8, {vLANE}, 1, 2")
        for r in range(4):
            a(f"v_cmp_eq_u32 vcc, {r}, v8"); a(f"v_cndmask_b32 v{vM[r]}, 0, v9, vcc")
        a(f"s_mov_b32 {sFFFF0000}, 0xffff0000"); a(f"s_mov_b32 {sFF}, 0xff")
        a("s_waitcnt lgkmcnt(0)")
        a(f"s_load_dword {sTAG}, s[{sWS}:{sWS+1}], 0")
        self.set_srd(SRD_WS, sWS, size=WS_SIZE)
        a(f"s_cmp_ge_u32 {sWAVE}, 4"); a("s_cbranch_scc1 L_helper")
    def get_tag(self):
        a = self.a
        a("s_waitcnt lgkmcnt(0)")
        a(f"s_add_u32 {sTAG}, {sTAG}, 1")
        a(f"s_and_b32 {sT3}, {sTAG}, 0xff")
        a(f"v_mov_b32 {vTAG}, {sT3}")

    def swave(self):
        a = self.a; p = self.p
        R, D, NP = p.R, max(p.D, p.D2), p.NP
        Dlo = p.D
        vK, vV = "v1", "v2"
        B_T = 8; S = 24; DQ = (40, 44); DO = 48; T = 52
        vm, vl, vf = "v56", "v57", "v58"
        vOW, vPUB = "v64", "v65"
        if p.SPRIO: a(f"s_setprio {p.SPRIO}")
        a(f"s_lshl_b32 {sT0}, s2, 18")
        self.set_srd(SRD_A, sK, off=sT0, size=0x40000); self.set_srd(SRD_B, sV, off=sT0, size=0x40000)
        a(f"s_lshl_b32 {sT0}, {sWAVE}, 10")
        a(f"v_lshrrev_b32 v8, 4, {vLANE}"); a("v_lshlrev_b32 v8, 6, v8")
        a(f"v_bfe_u32 v9, {vLANE}, 2, 2"); a("v_lshl_add_u32 v8, v9, 8, v8")
        a(f"v_and_b32 v9, 3, {vLANE}"); a("v_lshl_add_u32 v8, v9, 4, v8")
        a(f"v_add_u32 {vK}, {sT0}, v8")
        a(f"v_lshlrev_b32 v9, 4, {vLANE}"); a(f"v_add_u32 {vV}, {sT0}, v9")
        N = 128
        def slot(i):
            k = i % R
            return f"a[{4*k}:{4*k+3}]" if k < 40 else f"v[{68+4*(k-40)}:{71+4*(k-40)}]"
        st = dict(issued=0)
        def issue(throttle=True):
            nonlocal D, Dlo
            i = st["issued"]
            if p.DEND and i >= 64 + p.DENDAT: D = Dlo = p.DEND
            if throttle and i >= Dlo and D != Dlo:
                L = a.uid("Lthr")
                a(f"s_cbranch_vccnz {L}"); a(f"s_waitcnt vmcnt({Dlo-1})"); a.label(L)
            if throttle and i >= D: a(f"s_waitcnt vmcnt({D-1})")
            a(f"s_mov_b32 {sT1}, {(i % 64) * 4096}")
            s_, v_ = (SRD_A, vK) if i < 64 else (SRD_B, vV)
            a(f"buffer_load_dwordx4 {slot(i)}, {v_}, {srd(s_)}, {sT1} offen nt")
            st["issued"] = i + 1
            if i == N - 1: self.lds_add1(L_WCNT, f"v{T}", f"v{T+1}")
        def need(tile): a(f"s_waitcnt vmcnt({st['issued'] - 1 - tile})")
        if D != Dlo:
            a("s_mov_b64 vcc, 0"); a("s_cmp_lt_u32 s2, 72"); a("s_cbranch_scc1 L_vset"); a("s_cmp_ge_u32 s2, 216"); a("s_cbranch_scc1 L_vset")
            a("s_mov_b64 vcc, -1"); a.label("L_vset")
        self.stamp(3, "start")
        for _ in range(min(Dlo, NP)): issue(False)
        self.stamp(4, "start")
        a("s_barrier")
        self.stamp(5, "start")
        if p.STAMPS and p.MODE == "start":
            a(f"s_waitcnt vmcnt({D-1})"); self.stamp(6, "start")
        a(f"v_lshrrev_b32 v8, 4, {vLANE}"); a("v_lshlrev_b32 v8, 7, v8")
        a(f"v_and_b32 v9, 7, {vLANE}"); a("v_lshl_add_u32 v8, v9, 2, v8")
        a(f"s_lshl_b32 {sT0}, {sWAVE}, 9"); a(f"s_add_u32 {sT0}, {sT0}, {L_OPART}")
        a(f"v_add_u32 {vOW}, {sT0}, v8")
        a(f"v_lshlrev_b32 {vPUB}, 4, {vLANE}")
        mT = [6, 8, 10, 12]; m1, m3, m23 = 14, 4, 62
        for t in range(4): self.mask64(mT[t], 0x000F000F000F000F << (4 * t))
        self.mask64(m1, 0x2222222222222222); self.mask64(m3, 0x8888888888888888); self.mask64(m23, 0xCCCCCCCCCCCCCCCC)
        while st["issued"] < NP: issue()
        self.stamp(1, "all")
        self.get_tag()
        self.lds_spin(L_QFLAG)
        self.stamp(2, "all")
        a(f"v_lshrrev_b32 v{T}, 4, {vLANE}"); a(f"v_lshlrev_b32 v{T}, 6, v{T}")
        a(f"v_and_b32 v{T+1}, 3, {vLANE}"); a(f"v_lshl_add_u32 v{T}, v{T+1}, 4, v{T}")
        a(f"ds_read_b128 v[{T+4}:{T+7}], v{T} offset:{L_Q}")
        a("s_waitcnt lgkmcnt(0)")
        for t in range(4):
            for k in range(4): a(f"v_cndmask_b32 v{B_T+4*t+k}, 0, v{T+4+k}, {sp(mT[t])}")
        def qk_mfma(g):
            d = DQ[g & 1]; need(4 * g + 3)
            for t in range(4):
                c = "0" if t == 0 else f"v[{d}:{d+3}]"
                a(f"v_mfma_f32_16x16x32_bf16 v[{d}:{d+3}], {slot(4*g+t)}, v[{B_T+4*t}:{B_T+4*t+3}], {c}")
        def qk_post(g):
            d = DQ[g & 1]
            a(f"v_cndmask_b32 v{T}, v{d}, v{d+1}, {sp(m1)}")
            a(f"v_cndmask_b32 v{T+1}, v{d+2}, v{d+3}, {sp(m3)}")
            a(f"v_cndmask_b32 v{T}, v{T}, v{T+1}, {sp(m23)}")
            a(f"v_add_f32_dpp v{T+1}, v{T}, v{T} quad_perm:[1,0,3,2] row_mask:0xf bank_mask:0xf")
            a(f"v_add_f32_dpp v{S+g}, v{T+1}, v{T+1} quad_perm:[2,3,0,1] row_mask:0xf bank_mask:0xf")
        g = 0
        while g < 16:
            lag = st["issued"] - 4 * g
            qk_mfma(g)
            if g > 0: qk_post(g - 1)
            g += 1
            free = 4 * g + R - st["issued"]
            nissue = (1 if (g % 3 == 0) else 0) if lag > D + 8 else 4
            for _ in range(min(nissue, free)):
                if st["issued"] < N: issue()
        qk_post(15)
        self.stamp(3, "tail")
        for _ in range(3): issue(False)
        a(f"s_mov_b32 {sT0}, 0x{SCALE:08x}")
        for k in range(0, 16, 2):
            x, y = f"v{S+k}", f"v{S+k+1}"; t = f"v{T + (k // 2) % 4}"
            a(f"v_cvt_pk_bf16_f32 {t}, {x}, {y}")
            a(f"v_lshlrev_b32 {x}, 16, {t}"); a(f"v_and_b32 {y}, {sFFFF0000}, {t}")
            a(f"v_mul_f32 {x}, {sT0}, {x}"); a(f"v_mul_f32 {y}, {sT0}, {y}")
            a(f"v_cvt_pk_bf16_f32 {t}, {x}, {y}")
            a(f"v_lshlrev_b32 {x}, 16, {t}"); a(f"v_and_b32 {y}, {sFFFF0000}, {t}")
        a(f"v_max3_f32 {vm}, v{S}, v{S+1}, v{S+2}")
        for k in range(3, 15, 2): a(f"v_max3_f32 {vm}, {vm}, v{S+k}, v{S+k+1}")
        a(f"v_max_f32 {vm}, {vm}, v{S+15}")
        self.allreduce("v_max_f32", vm, f"v{T}", ["r4", "r8", "p16", "p32"])
        a(f"s_mov_b32 {sT0}, 0x{LOG2E:08x}")
        a(f"v_mul_f32 v{T+3}, {sT0}, {vm}")
        for k in range(16): a(f"v_fma_f32 v{S+k}, v{S+k}, {sT0}, -v{T+3}")
        for k in range(16): a(f"v_exp_f32 v{S+k}, v{S+k}")
        a(f"v_add_f32 {vl}, v{S}, v{S+1}")
        for k in range(2, 16): a(f"v_add_f32 {vl}, {vl}, v{S+k}")
        for k in range(16): a(f"v_cvt_pk_bf16_f32 v{S+k}, v{S+k}, v{S+k}")
        self.allreduce("v_add_f32", vl, f"v{T}", ["r4", "r8", "p16", "p32"])
        a("s_mov_b64 exec, 1")
        a(f"s_lshl_b32 {sT0}, {sWAVE}, 3"); a(f"s_add_u32 {sT0}, {sT0}, {L_ML}")
        a(f"v_mov_b32 v{T}, {sT0}"); a(f"ds_write_b64 v{T}, v[56:57]")
        a(f"v_mov_b32 v{T}, {L_MLCNT}"); a(f"v_mov_b32 v{T+1}, 1"); a(f"ds_add_u32 v{T}, v{T+1}")
        a("s_mov_b64 exec, -1")
        self.stamp(4, "tail")
        BV = (8, 12)
        def mkB(vi):
            g_, t_ = vi >> 2, vi & 3; b = BV[vi & 1]
            for r in range(4): a(f"v_and_b32_dpp v{b+r}, v{S+g_}, v{vM[r]} row_newbcast:{4*t_} row_mask:0xf bank_mask:0xf")
        def ml_exchange():
            self.lds_spin(L_MLCNT, target=4)
            a(f"v_mov_b32 v16, {L_ML}")
            a("ds_read_b128 v[20:23], v16"); a("ds_read_b128 v[40:43], v16 offset:16")
            a("s_waitcnt lgkmcnt(0)")
            a("v_max3_f32 v16, v20, v22, v40"); a("v_max_f32 v16, v16, v42")
            a(f"s_mov_b32 {sT0}, 0x{LOG2E:08x}")
            a(f"v_sub_f32 {vf}, {vm}, v16"); a(f"v_mul_f32 {vf}, {sT0}, {vf}"); a(f"v_exp_f32 {vf}, {vf}")
            L = a.uid("Lnoml")
            a(f"s_cmp_lg_u32 {sWAVE}, 0"); a(f"s_cbranch_scc1 {L}")
            for i, r in enumerate((20, 22, 40, 42)):
                a(f"v_sub_f32 v{r}, v{r}, v16"); a(f"v_mul_f32 v{r}, {sT0}, v{r}"); a(f"v_exp_f32 v{r}, v{r}")
            a("v_mul_f32 v17, v20, v21"); a("v_fmac_f32 v17, v22, v23"); a("v_fmac_f32 v17, v40, v41"); a("v_fmac_f32 v17, v42, v43")
            a("v_mov_b32 v18, 0"); a("v_mov_b32 v19, 0")
            for c in range(4): a(f"v_bfi_b32 v{16+c}, {sFF}, {vTAG}, v{16+c}")
            a(f"s_mul_i32 {sT0}, s2, {OSLOT}"); a(f"s_add_u32 {sT0}, {sT0}, {WS_O + 512}")
            a("s_mov_b64 exec, 1")
            a(f"buffer_store_dwordx4 v[16:19], off, {srd(SRD_WS)}, {sT0} sc1")
            a("s_mov_b64 exec, -1")
            st["extra_wave0"] = True
            a.label(L)
        mkB(0)
        for vi in range(64):
            if vi + 1 < 64: mkB(vi + 1)
            tile = 64 + vi
            while st["issued"] < N and st["issued"] - tile < (p.DEND if (p.DEND and st["issued"] >= 64 + p.DENDAT) else D) + 1: issue()
            need(tile)
            b = BV[vi & 1]
            c = "0" if vi == 0 else f"v[{DO}:{DO+3}]"
            a(f"v_mfma_f32_16x16x32_bf16 v[{DO}:{DO+3}], {slot(tile)}, v[{b}:{b+3}], {c}")
            if vi == 12:
                ml_exchange()
        self.stamp(5, "tail")
        for r in range(4): a(f"v_mul_f32 v{DO+r}, {vf}, v{DO+r}")
        self.setexec(0x00FF00FF00FF00FF)
        for r in range(4): a(f"ds_write_b32 {vOW}, v{DO+r} offset:{32*r}")
        a("s_mov_b64 exec, 1")
        a(f"v_mov_b32 v8, {L_OCNT}"); a("v_mov_b32 v9, 1"); a("ds_add_rtn_u32 v9, v8, v9")
        a(f"s_mul_i32 {sT0}, s2, {OSLOT}"); a(f"s_add_u32 {sT0}, {sT0}, {WS_O}")
        a("s_waitcnt lgkmcnt(0)")
        a(f"v_readfirstlane_b32 {sT1}, v9")
        a(f"s_cmp_lg_u32 {sT1}, 3"); a("s_cbranch_scc1 L_sdone")
        self.setexec(lanes(32))
        for w in range(4): a(f"ds_read_b128 v[{12+4*w}:{15+4*w}], {vPUB} offset:{L_OPART + 512*w}")
        a("s_waitcnt lgkmcnt(0)")
        self.sum_rows4([12, 16, 20, 24])
        for c in range(4): a(f"v_bfi_b32 v{12+c}, {sFF}, {vTAG}, v{12+c}")
        a(f"buffer_store_dwordx4 v[12:15], {vPUB}, {srd(SRD_WS)}, {sT0} offen sc1")
        self.stamp(6, "tail")
        a.label("L_sdone")
        self.dump_stamps()
        a("s_endpgm")

    def unit_loads(self, stride_s, tau_s):
        a = self.a
        a(f"s_mul_i32 {sT0}, {tau_s}, 192")
        a(f"v_lshrrev_b32 v1, 3, {vLANE}"); a(f"v_add_u32 v1, {sT0}, v1")
        a(f"v_mul_lo_u32 v1, v1, {stride_s}")
        a(f"v_and_b32 v2, 7, {vLANE}"); a("v_lshl_add_u32 v1, v2, 4, v1")
        a(f"s_lshl_b32 {sT1}, {stride_s}, 3"); a(f"s_mov_b32 {sT0}, 0")
        for t in range(24):
            a(f"buffer_load_dwordx4 a[{4*t}:{4*t+3}], v1, {srd(SRD_A)}, {sT0} offen nt")
            if t < 23: a(f"s_add_u32 {sT0}, {sT0}, {sT1}")

    def hwave(self):
        a = self.a; p = self.p
        a.label("L_helper")
        a("s_setprio 3")
        a(f"s_sub_u32 {sHW}, {sWAVE}, 4")
        a(f"s_cmp_eq_u32 {sHW}, 0"); a("s_cbranch_scc1 L_h0")
        a(f"s_cmp_eq_u32 {sHW}, 1"); a("s_cbranch_scc1 L_h1")
        a(f"s_cmp_lg_u32 {sHW}, 2"); a("s_cbranch_scc1 L_nounit")
        a(f"v_lshlrev_b32 v8, 2, {vLANE}"); a("v_mov_b32 v9, 0")
        self.setexec(0xFFFF); a("ds_write_b32 v8, v9"); a("s_mov_b64 exec, -1"); a("s_waitcnt lgkmcnt(0)")
        a("s_branch L_nounit")
        a.label("L_h0")
        a("s_cmp_lt_u32 s2, 192"); a("s_cbranch_scc1 L_qunit")
        a("s_cmp_ge_u32 s2, 246"); a("s_cbranch_scc1 L_nounit")
        a(f"s_sub_u32 {sT2}, s2, 192"); self.div3(sR0, sR1, sT2)
        a("s_branch L_munit")
        a.label("L_h1")
        a("s_cmp_lt_u32 s2, 72"); a("s_cbranch_scc1 L_nounit")
        a("s_cmp_ge_u32 s2, 180"); a("s_cbranch_scc1 L_nounit")
        a(f"s_sub_u32 {sT2}, s2, 72"); self.div3(sR0, sR1, sT2); a(f"s_add_u32 {sR0}, {sR0}, 18")
        a.label("L_munit")
        a(f"s_lshl_b32 {sT2}, {sR0}, 7")
        self.set_srd(SRD_A, sWM, off=sT2, size_minus_off=576 * 6912)
        self.set_srd(SRD_B, sC, size=1152)
        a(f"s_mul_i32 {sT0}, {sR1}, 384"); a(f"v_lshlrev_b32 v8, 3, {vLANE}")
        a(f"buffer_load_dwordx2 v[40:41], v8, {srd(SRD_B)}, {sT0} offen")
        a(f"s_mov_b32 {sR2}, 6912")
        self.unit_loads(sR2, sR1)
        a("s_barrier")
        self.get_tag()
        self.stamp(1, "pre")
        a(f"s_mul_i32 {sR2}, {sR0}, 3"); a(f"s_add_u32 {sR2}, {sR2}, {sR1}"); a(f"s_lshl_b32 {sR2}, {sR2}, 8"); a(f"s_add_u32 {sR2}, {sR2}, {WS_MOD}")
        self.taddr_w("v2", "v8", 24)
        a("s_waitcnt vmcnt(24)")
        self.unpack4(44, 40)
        for k in range(4): self.sigmoid(f"v{48+k}", f"v{44+k}", f"v{48+k}")
        for k in range(4): a(f"v_mul_f32 v{44+k}, v{44+k}, v{48+k}")
        for k in range(4): a(f"v_cvt_pk_bf16_f32 v{44+k}, v{44+k}, v{44+k}")
        self.setexec(lanes(48)); self.twrite4([44, 45, 46, 47], "v2", 24); a("s_mov_b64 exec, -1")
        self.stamp(2, "pre")
        a("s_branch L_unit_gemv")
        a.label("L_qunit")
        self.div3(sR0, sR1, "s2")
        a(f"s_lshl_b32 {sT2}, {sR0}, 7")
        self.set_srd(SRD_A, sWQ, off=sT2, size_minus_off=576 * 8192)
        self.set_srd(SRD_B, sX, size=1152)
        a(f"v_lshrrev_b32 v8, 3, {vLANE}"); a("v_lshlrev_b32 v8, 5, v8"); a(f"v_and_b32 v9, 7, {vLANE}"); a("v_add_u32 v8, v8, v9"); a("v_lshlrev_b32 v8, 1, v8")
        a(f"s_mul_i32 {sT0}, {sR1}, 384")
        for r in range(4): a(f"buffer_load_ushort v{44+r}, v8, {srd(SRD_B)}, {sT0} offen offset:{16*r}")
        a(f"v_lshlrev_b32 v9, 5, {vLANE}")
        a(f"buffer_load_dwordx4 v[16:19], v9, {srd(SRD_B)}, 0 offen")
        a(f"buffer_load_dwordx4 v[20:23], v9, {srd(SRD_B)}, 0 offen offset:16")
        a(f"s_mov_b32 {sR2}, 8192")
        self.unit_loads(sR2, sR1)
        a("s_barrier")
        self.get_tag()
        a(f"s_mul_i32 {sR2}, {sR0}, 3"); a(f"s_add_u32 {sR2}, {sR2}, {sR1}"); a(f"s_lshl_b32 {sR2}, {sR2}, 8"); a(f"s_add_u32 {sR2}, {sR2}, {WS_Q}")
        a(f"s_mul_i32 {sT0}, {sR1}, 6"); a(f"v_lshrrev_b32 v8, 3, {vLANE}"); a(f"v_add_u32 v8, {sT0}, v8")
        a("v_lshrrev_b32 v9, 1, v8"); a("v_mul_u32_u24 v9, 768, v9")
        a("v_and_b32 v8, 1, v8"); a("v_lshl_add_u32 v9, v8, 7, v9")
        a(f"v_and_b32 v8, 7, {vLANE}"); a("v_lshl_add_u32 v50, v8, 4, v9")
        a(f"v_mul_u32_u24 v51, 96, v8"); a(f"v_lshrrev_b32 v9, 3, {vLANE}"); a("v_lshl_add_u32 v51, v9, 4, v51")
        a(f"v_add_u32 v51, {L_TBL}, v51")
        a("s_waitcnt vmcnt(24)")
        for r in range(4): a(f"v_lshlrev_b32 v{44+r}, 16, v{44+r}")
        for i in range(8):
            a(f"v_lshlrev_b32 v{24+2*i}, 16, v{16+i}"); a(f"v_and_b32 v{25+2*i}, {sFFFF0000}, v{16+i}")
        a("v_add_f32 v48, v24, v25")
        for i in range(2, 16): a(f"v_add_f32 v48, v48, v{24+i}")
        self.allreduce("v_add_f32", "v48", "v49", ["q1", "q2", "r4", "r8", "p16", "p32"])
        a(f"v_mul_f32 v48, {f32hex(1/576)}, v48")
        for i in range(16): a(f"v_sub_f32 v{24+i}, v{24+i}, v48")
        a("v_mul_f32 v49, v24, v24")
        for i in range(1, 16): a(f"v_fmac_f32 v49, v{24+i}, v{24+i}")
        a(f"v_cmp_gt_u32 vcc, 36, {vLANE}"); a("v_cndmask_b32 v49, 0, v49, vcc")
        self.allreduce("v_add_f32", "v49", "v52", ["q1", "q2", "r4", "r8", "p16", "p32"])
        a(f"v_mul_f32 v49, {f32hex(1/576)}, v49")
        self.bf16_round2("v48", "v49", "v48", "v49", "v52")
        a(f"v_add_f32 v49, {f32hex(1e-5)}, v49"); self.bf16_round("v49", "v49", "v52")
        a("v_sqrt_f32 v49, v49"); self.bf16_round("v49", "v49", "v52"); a("v_rcp_f32 v49, v49")
        for k in range(4): a(f"v_sub_f32 v{44+k}, v{44+k}, v48")
        self.round4(44, "v52")
        for k in range(4): a(f"v_mul_f32 v{44+k}, v{44+k}, v49")
        self.round4(44, "v52")
        self.stamp(1, "pre")
        self.poll([(8 + 4 * t, 4, "v50", WS_MOD, 256 * t) for t in range(3)] + [(20 + 4 * t, 4, "v50", WS_MOD + 9 * 768, 256 * t) for t in range(3)],
                  active=lanes(48), sleep=1)
        self.stamp(2, "pre")
        self.sum_rows4([8, 12, 16]); self.sum_rows4([20, 24, 28])
        self.round4(8, "v52"); self.round4(20, "v53")
        for k in range(4): a(f"v_add_f32 v{20+k}, 1.0, v{20+k}")
        self.round4(20, "v52")
        for k in range(4): a(f"v_mul_f32 v{44+k}, v{44+k}, v{20+k}")
        self.round4(44, "v52")
        for k in range(4): a(f"v_add_f32 v{44+k}, v{44+k}, v{8+k}")
        for k in range(4): a(f"v_cvt_pk_bf16_f32 v{44+k}, v{44+k}, v{44+k}")
        a("ds_write_b128 v51, v[44:47]")
        a("s_mov_b64 exec, -1")
        a.label("L_unit_gemv")
        self.taddr_r("v2", 24)
        self.tread(16, 6, "v2")
        self.gemv(24, 0, list(range(16, 40)), 40, waits={0: 20, 4: 16, 8: 12, 12: 8, 16: 4, 20: 0})
        self.stamp(3, "pre")
        a(f"v_lshrrev_b32 v2, 4, {vLANE}"); a("v_lshlrev_b32 v2, 7, v2"); a(f"v_and_b32 v8, 7, {vLANE}"); a("v_lshl_add_u32 v2, v8, 4, v2")
        for r in range(4): a(f"v_mov_b32 v{44+r}, v{40+r}")
        for r in range(4): a(f"v_permlane32_swap_b32 v{40+r}, v{44+r}")
        for r in range(4): a(f"v_add_f32_dpp v{40+r}, v{44+r}, v{40+r} row_ror:8 row_mask:0xf bank_mask:0xf")
        for r in range(4): a(f"v_bfi_b32 v{40+r}, {sFF}, {vTAG}, v{40+r}")
        self.setexec(0x00FF00FF)
        a(f"buffer_store_dwordx4 v[40:43], v2, {srd(SRD_WS)}, {sR2} offen sc1")
        a("s_mov_b64 exec, -1")
        if p.STAMPS and p.MODE == "pre":
            a("s_waitcnt vmcnt(0)")
        self.stamp(7, "pre")
        a("s_branch L_pre_done")
        a.label("L_nounit")
        a("s_barrier")
        self.get_tag()
        a.label("L_pre_done")
        a(f"s_cmp_lg_u32 {sHW}, 3"); a("s_cbranch_scc1 L_noq")
        a(f"s_lshr_b32 {sT0}, s2, 3"); a(f"s_mul_i32 {sT0}, {sT0}, {2*768}"); a(f"s_add_u32 {sR0}, {sT0}, {WS_Q}")
        a(f"v_lshrrev_b32 v8, 4, {vLANE}"); a("v_mul_u32_u24 v2, 768, v8"); a(f"v_and_b32 v9, 15, {vLANE}"); a("v_lshl_add_u32 v2, v9, 4, v2")
        a("v_lshlrev_b32 v8, 6, v8"); a(f"v_bfe_u32 v9, {vLANE}, 3, 1"); a("v_lshl_add_u32 v8, v9, 5, v8")
        a(f"v_and_b32 v9, 7, {vLANE}"); a("v_add_u32 v8, v8, v9"); a("v_lshlrev_b32 v24, 1, v8")
        self.poll([(8 + 4 * t, 4, "v2", sR0, 256 * t) for t in range(3)], active=lanes(32), sleep=p.QSLEEP)
        self.sum_rows4([8, 12, 16])
        a("v_cvt_pk_bf16_f32 v12, v8, v9"); a("v_cvt_pk_bf16_f32 v13, v10, v11")
        a(f"ds_write_b16 v24, v12 offset:{L_Q}"); a(f"ds_write_b16_d16_hi v24, v12 offset:{L_Q + 16}")
        a(f"ds_write_b16 v24, v13 offset:{L_Q + 32}"); a(f"ds_write_b16_d16_hi v24, v13 offset:{L_Q + 48}")
        a("s_waitcnt lgkmcnt(0)")
        a("s_mov_b64 exec, 1")
        a(f"v_mov_b32 v8, {L_QFLAG}"); a("v_mov_b32 v9, 1"); a("ds_write_b32 v8, v9")
        a("s_mov_b64 exec, -1")
        if p.MODE != "fine": self.stamp(4, "all")
        a.label("L_noq")
        a("s_cmp_lt_u32 s2, 72"); a("s_cbranch_scc1 L_wo")
        a("s_cmp_lt_u32 s2, 216"); a("s_cbranch_scc1 L_mlp")
        a("s_cmp_lt_u32 s2, 234"); a("s_cbranch_scc1 L_fin")
        self.dump_stamps()
        a("s_endpgm")
        self.role_wo(); self.role_mlp(); self.role_fin()

    def gather_mod(self, vecs, g0_s, ngroups, dst, rdoff_v):
        a = self.a
        nl = 8 * ngroups
        a(f"v_lshrrev_b32 v8, 3, {vLANE}"); a(f"v_add_u32 v8, {g0_s}, v8")
        a("v_lshrrev_b32 v9, 1, v8"); a("v_mul_u32_u24 v9, 768, v9"); a("v_and_b32 v8, 1, v8"); a("v_lshl_add_u32 v9, v8, 7, v9")
        a(f"v_and_b32 v8, 7, {vLANE}"); a("v_lshl_add_u32 v2, v8, 4, v9")
        a(f"v_lshrrev_b32 v9, 3, {vLANE}"); a("v_lshl_add_u32 v9, v9, 5, v8"); a("v_lshlrev_b32 v1, 2, v9")
        a(f"s_mul_i32 {sT0}, {sHW}, {MODVW}"); a(f"s_add_u32 {sT0}, {sT0}, {L_MODV}"); a(f"v_add_u32 v1, {sT0}, v1")
        loads = []
        for i, v in enumerate(vecs):
            for t in range(3): loads.append((8 + 12 * i + 4 * t, 4, "v2", WS_MOD + 9 * v * 768, 256 * t))
        self.poll(loads, active=lanes(nl), sleep=16)
        for i, v in enumerate(vecs):
            b = 8 + 12 * i
            self.sum_rows4([b, b + 4, b + 8]); self.round4(b, "v61")
            for r in range(4): a(f"ds_write_b32 v1, v{b+r} offset:{640*i + 32*r}")
        a("s_mov_b64 exec, -1")
        a(f"s_mul_i32 {sT0}, {sHW}, {MODVW}"); a(f"s_add_u32 {sT0}, {sT0}, {L_MODV}"); a(f"v_add_u32 v1, {sT0}, {rdoff_v}")
        a("s_waitcnt lgkmcnt(0)")
        for i, v in enumerate(vecs): a(f"ds_read_b128 v[{dst[i]}:{dst[i]+3}], v1 offset:{640*i}")
        a("s_waitcnt lgkmcnt(0)")

    def role_wo(self):
        a = self.a; p = self.p
        a.label("L_wo")
        a(f"s_and_b32 {sR0}, s2, 7"); a(f"s_lshr_b32 {sR1}, s2, 3")
        a(f"s_lshl_b32 {sT2}, {sR1}, 7")
        self.set_srd(SRD_A, sWO, off=sT2, size_minus_off=4096 * 1152)
        a(f"s_lshl_b32 {sR2}, {sR0}, 2"); a(f"s_add_u32 {sR2}, {sR2}, {sHW}")
        a(f"s_lshl_b32 {sT0}, {sR2}, 7")
        a(f"v_lshrrev_b32 v1, 3, {vLANE}"); a(f"v_add_u32 v1, {sT0}, v1"); a("v_mul_u32_u24 v1, 1152, v1")
        a(f"v_and_b32 v2, 7, {vLANE}"); a("v_lshl_add_u32 v1, v2, 4, v1")
        a(f"s_mov_b32 {sT0}, 0")
        for t in range(16):
            if t >= p.WOPACE: a(f"s_waitcnt vmcnt({p.WOPACE-1})")
            a(f"buffer_load_dwordx4 a[{4*t}:{4*t+3}], v1, {srd(SRD_A)}, {sT0} offen nt")
            if t < 15: a(f"s_add_u32 {sT0}, {sT0}, 9216")
        a(f"s_mul_i32 {sR3}, {sR2}, {8*OSLOT}"); a(f"s_add_u32 {sR3}, {sR3}, {WS_O}")
        a(f"v_lshlrev_b32 v40, 3, {vLANE}"); a(f"v_add_u32 v40, {sR3}, v40")
        a(f"v_and_b32 v41, 7, {vLANE}"); a(f"v_mul_u32_u24 v41, {OSLOT}, v41"); a(f"v_add_u32 v41, {sR3}, v41")
        a(f"v_and_b32 v8, 3, {vLANE}"); a("v_mul_u32_u24 v8, 160, v8"); a(f"v_lshrrev_b32 v42, 2, {vLANE}"); a("v_lshl_add_u32 v42, v42, 2, v8")
        a(f"s_mul_i32 {sT0}, {sHW}, {TBLW}"); a(f"s_add_u32 {sT0}, {sT0}, {L_TBL}"); a(f"v_add_u32 v42, {sT0}, v42")
        self.taddr_r("v43", 20)
        self.paddr("v44", "v8", L_PART, 64)
        a(f"v_lshlrev_b32 v45, 4, {vLANE}")
        a(f"s_mul_i32 {sT0}, {sR0}, 2304"); a(f"s_lshl_b32 {sT1}, {sR1}, 8"); a(f"s_add_u32 {sT0}, {sT0}, {sT1}"); a(f"s_add_u32 {sR1}, {sT0}, {WS_ATT}")
        self.poll([(8, 2, "v41", None, 512)], sleep=32)
        a(f"v_and_b32 v8, {sFFFF0000}, v8")
        a("v_mov_b32 v10, v8")
        self.allreduce("v_max_f32", "v10", "v11", ["q1", "q2", "hm"])
        a("v_sub_f32 v11, v8, v10"); a(f"v_mul_f32 v11, 0x{LOG2E:08x}, v11"); a("v_exp_f32 v11, v11")
        a("v_mul_f32 v12, v11, v9")
        self.allreduce("v_add_f32", "v12", "v13", ["q1", "q2", "hm"])
        a("v_rcp_f32 v12, v12"); a("v_mul_f32 v11, v11, v12")
        for s_ in range(8): a(f"v_mov_b32_dpp v{48+s_}, v11 row_newbcast:{s_} row_mask:0xf bank_mask:0xf")
        self.lds_spin(L_WCNT, target=4, sleep=2)
        self.stamp(5)
        self.poll([(8 + 2 * s_, 2, "v40", None if s_ < 6 else 3200, s_ * OSLOT if s_ < 6 else (s_ - 5) * OSLOT) for s_ in range(8)])
        self.stamp(6)
        a("v_pk_mul_f32 v[24:25], v[8:9], v[48:49] op_sel_hi:[1,0]")
        a("v_pk_mul_f32 v[26:27], v[10:11], v[48:49] op_sel:[0,1]")
        for s_ in range(2, 8):
            d = 24 + 2 * (s_ & 1); w = 48 + (s_ & ~1)
            sel = "op_sel_hi:[1,0,1]" if (s_ & 1) == 0 else "op_sel:[0,1,0]"
            a(f"v_pk_fma_f32 v[{d}:{d+1}], v[{8+2*s_}:{9+2*s_}], v[{w}:{w+1}], v[{d}:{d+1}] {sel}")
        self.pk_add(24, 24, 26)
        a("v_cvt_pk_bf16_f32 v24, v24, v24"); a("v_cvt_pk_bf16_f32 v25, v25, v25")
        a("ds_write_b32 v42, v24"); a("ds_write_b32 v42, v25 offset:80")
        self.tread(16, 4, "v43")
        self.stamp(2, "fine")
        self.gemv(16, 0, list(range(16, 32)), 36)
        self.stamp(3, "fine")
        self.setexec(self.VALID); self.pwrite(36, "v44"); a("s_mov_b64 exec, -1")
        a("s_waitcnt lgkmcnt(0)")
        a("s_barrier")
        a(f"s_cmp_lg_u32 {sHW}, 0"); a("s_cbranch_scc1 L_wo_done")
        self.setexec(0xFFFF)
        for k in range(8): a(f"ds_read_b128 v[{8+4*k}:{11+4*k}], v45 offset:{L_PART + 256*k}")
        a("s_waitcnt lgkmcnt(0)")
        self.sum_rows4([8 + 4 * k for k in range(8)])
        for c in range(4): a(f"v_bfi_b32 v{8+c}, {sFF}, {vTAG}, v{8+c}")
        a(f"buffer_store_dwordx4 v[8:11], v45, {srd(SRD_WS)}, {sR1} offen sc1")
        self.stamp(7)
        a.label("L_wo_done")
        self.dump_stamps()
        a("s_endpgm")

    def role_mlp(self):
        a = self.a; p = self.p
        L36 = lanes(36)
        X, GA, SB, CB = 64, 68, 72, 76
        vATT, vTW, vTR, vPW, vGU, vDW, vFR, vG, vDN = "v80", "v81", "v82", "v83", "v84", "v85", "v86", "v87", "v88"
        a.label("L_mlp")
        a(f"s_sub_u32 {sT0}, s2, 72"); a(f"s_and_b32 {sT1}, {sT0}, 7"); a(f"s_mul_i32 {sT1}, {sT1}, 18")
        a(f"s_lshr_b32 {sT0}, {sT0}, 3"); a(f"s_add_u32 {sR0}, {sT0}, {sT1}")
        self.set_srd(SRD_B, sX, size=1152)
        a(f"s_mul_i32 {sT0}, {sHW}, 288"); a(f"v_lshlrev_b32 v8, 3, {vLANE}")
        a(f"buffer_load_dwordx2 v[90:91], v8, {srd(SRD_B)}, {sT0} offen")
        a(f"s_mul_i32 {sR1}, {sHW}, 9"); a(f"s_lshr_b32 {sR1}, {sR1}, 1")
        a(f"s_and_b32 {sT1}, {sHW}, 1"); a(f"s_lshl_b32 {sT1}, {sT1}, 6")
        a(f"v_lshlrev_b32 v92, 4, {vLANE}"); a(f"v_add_u32 v92, {sT1}, v92")
        self.gather_mod([2, 3, 4], sR1, 5, [GA, SB, CB], "v92")
        self.unpack4(X, 90)
        for k in range(4): a(f"v_add_f32 v{CB+k}, 1.0, v{CB+k}")
        self.round4(CB, "v8")
        a(f"s_lshl_b32 {sT2}, {sR0}, 6")
        self.set_srd(SRD_A, sWG, off=sT2, size_minus_off=576 * 9216); self.set_srd(SRD_B, sWU, off=sT2, size_minus_off=576 * 9216)
        a(f"s_mul_i32 {sT2}, {sR0}, {32*1152}"); self.set_srd(SRD_C, sWD, off=sT2, size=32 * 1152)
        a(f"s_mul_i32 {sT0}, {sHW}, 144")
        a(f"v_lshrrev_b32 {vG}, 3, {vLANE}"); a(f"v_add_u32 {vG}, {sT0}, {vG}"); a(f"v_mul_u32_u24 {vG}, 9216, {vG}")
        a(f"v_and_b32 v8, 3, {vLANE}"); a(f"v_lshl_add_u32 {vG}, v8, 4, {vG}")
        a(f"s_lshl_b32 {sT0}, {sHW}, 3")
        a(f"v_lshrrev_b32 {vDN}, 3, {vLANE}"); a(f"v_add_u32 {vDN}, {sT0}, {vDN}"); a(f"v_mul_u32_u24 {vDN}, 1152, {vDN}")
        a(f"v_and_b32 v8, 7, {vLANE}"); a(f"v_lshl_add_u32 {vDN}, v8, 4, {vDN}")
        a(f"s_mul_i32 {sT0}, {sHW}, 576"); a(f"v_lshlrev_b32 {vATT}, 4, {vLANE}"); a(f"v_add_u32 {vATT}, {sT0}, {vATT}"); a(f"v_add_u32 {vATT}, {WS_ATT}, {vATT}")
        self.taddr_w(vTW, "v8", 20); self.taddr_r(vTR, 20); self.paddr(vPW, "v8", L_PART, 64); self.paddr(vDW, "v8", L_DOWN, 576)
        a(f"s_lshl_b32 {sT0}, {sHW}, 3"); a(f"v_lshrrev_b32 {vGU}, 3, {vLANE}"); a(f"v_add_u32 {vGU}, {sT0}, {vGU}"); a(f"v_lshlrev_b32 {vGU}, 2, {vGU}")
        a(f"s_mul_i32 {sT0}, {sHW}, 48"); a(f"v_add_u32 {vFR}, {sT0}, {vLANE}"); a(f"v_lshlrev_b32 {vFR}, 4, {vFR}")
        a(f"s_mul_i32 {sR1}, {sR0}, 2304"); a(f"s_add_u32 {sR1}, {sR1}, {WS_OUT}")
        a(f"s_lshl_b32 {sR2}, {sHW}, 3"); a(f"s_add_u32 {sR2}, {sR2}, {L_STAT}")
        self.mask64(6, 0x0F0F0F0F0F0F0F0F); self.mask64(8, 0xF0F0F0F0F0F0F0F0); self.mask64(10, self.VALID); self.mask64(12, L36)
        a("s_setprio 0")
        a(f"s_mov_b32 {sT0}, 0")
        for t in range(18):
            if t < p.NEARLY and t >= 1: a(f"s_waitcnt vmcnt({2*p.EPACE-2})")
            if t == p.NEARLY:
                a("s_mov_b64 exec, -1")
                self.lds_spin(L_WCNT if p.WTRIG == "issued" else L_OCNT, target=4, sleep=2)
            if t > p.NEARLY and p.WTHR and t >= p.WTHR: a(f"s_waitcnt vmcnt({2*p.WTHR-2})")
            a("s_mov_b64 exec, s[6:7]")
            a(f"buffer_load_dwordx4 a[{4*t}:{4*t+3}], {vG}, {srd(SRD_A)}, {sT0} offen nt")
            a("s_mov_b64 exec, s[8:9]")
            a(f"buffer_load_dwordx4 a[{4*t}:{4*t+3}], {vG}, {srd(SRD_B)}, {sT0} offen nt")
            if t < 17: a(f"s_add_u32 {sT0}, {sT0}, {8*9216}")
        a("s_mov_b64 exec, -1")
        if p.NEARLY >= 18: self.lds_spin(L_WCNT if p.WTRIG == "issued" else L_OCNT, target=4, sleep=2)
        for cb in range(9):
            if p.WTHR: a(f"s_waitcnt vmcnt({2*p.WTHR-2})")
            a(f"buffer_load_dwordx4 a[{72+4*cb}:{75+4*cb}], {vDN}, {srd(SRD_C)}, 0 offen offset:{128*cb} nt")
        a("s_setprio 3")
        self.stamp(5)
        loads = [(8 + 4 * k, 4, vATT, None if k < 2 else (k & ~1) * 2304, (k & 1) * 2304) for k in range(8)]
        self.poll(loads, active=L36)
        self.stamp(6)
        self.sum_rows4([8 + 4 * k for k in range(8)])
        a(f"v_pk_fma_f32 v[{X}:{X+1}], v[8:9], v[{GA}:{GA+1}], v[{X}:{X+1}]"); a(f"v_pk_fma_f32 v[{X+2}:{X+3}], v[10:11], v[{GA+2}:{GA+3}], v[{X+2}:{X+3}]")
        a("s_mov_b64 exec, -1")
        a(f"v_mov_b32 v12, 0"); a("v_mov_b32 v13, 0")
        a("s_mov_b64 exec, s[12:13]")
        a(f"v_pk_add_f32 v[14:15], v[{X}:{X+1}], v[{X+2}:{X+3}]"); a(f"v_pk_mul_f32 v[16:17], v[{X}:{X+1}], v[{X}:{X+1}]")
        a(f"v_pk_fma_f32 v[16:17], v[{X+2}:{X+3}], v[{X+2}:{X+3}], v[16:17]")
        a("v_add_f32 v12, v14, v15"); a("v_add_f32 v13, v16, v17")
        a("s_mov_b64 exec, -1")
        self.allreduceN("v_add_f32", [("v12", "v14"), ("v13", "v15")], ["q1", "q2", "r4", "r8", "p16", "p32"])
        a("s_mov_b64 exec, 1")
        a(f"v_mov_b32 v14, {sR2}"); a("ds_write_b64 v14, v[12:13]")
        a("s_mov_b64 exec, -1")
        a(f"v_mov_b32 v14, {L_STAT}")
        a("s_waitcnt lgkmcnt(0)")
        a("s_barrier")
        a("ds_read_b128 v[16:19], v14"); a("ds_read_b128 v[20:23], v14 offset:16")
        a("s_waitcnt lgkmcnt(0)")
        self.stamp(1, "fine")
        self.pk_add(16, 16, 18); self.pk_add(20, 20, 22); self.pk_add(16, 16, 20)
        a(f"v_mul_f32 v16, {f32hex(1/576)}, v16"); a(f"v_mul_f32 v17, {f32hex(1/576)}, v17")
        a("v_fma_f32 v17, -v16, v16, v17")
        a(f"v_add_f32 v17, {f32hex(1e-5)}, v17"); a("v_rsq_f32 v17, v17")
        a(f"v_pk_add_f32 v[{X}:{X+1}], v[{X}:{X+1}], v[16:17] op_sel_hi:[1,0] neg_lo:[0,1] neg_hi:[0,1]")
        a(f"v_pk_add_f32 v[{X+2}:{X+3}], v[{X+2}:{X+3}], v[16:17] op_sel_hi:[1,0] neg_lo:[0,1] neg_hi:[0,1]")
        a(f"v_pk_mul_f32 v[{CB}:{CB+1}], v[{CB}:{CB+1}], v[16:17] op_sel:[0,1]")
        a(f"v_pk_mul_f32 v[{CB+2}:{CB+3}], v[{CB+2}:{CB+3}], v[16:17] op_sel:[0,1]")
        a(f"v_pk_fma_f32 v[{X}:{X+1}], v[{X}:{X+1}], v[{CB}:{CB+1}], v[{SB}:{SB+1}]")
        a(f"v_pk_fma_f32 v[{X+2}:{X+3}], v[{X+2}:{X+3}], v[{CB+2}:{CB+3}], v[{SB+2}:{SB+3}]")
        for k in range(4): a(f"v_cvt_pk_bf16_f32 v{X+k}, v{X+k}, v{X+k}")
        a("s_mov_b64 exec, s[12:13]"); self.twrite4([X, X + 1, X + 2, X + 3], vTW, 20); a("s_mov_b64 exec, -1")
        self.tread(16, 5, vTR)
        self.stamp(2, "fine")
        self.gemv(18, 0, list(range(16, 34)), 36)
        self.stamp(3, "fine")
        a("s_mov_b64 exec, s[10:11]"); self.pwrite(36, vPW); a("s_mov_b64 exec, -1")
        a("s_waitcnt lgkmcnt(0)")
        a("s_barrier")
        for k in range(8):
            a(f"ds_read_b32 v{8+k}, {vGU} offset:{L_PART + 256*k}"); a(f"ds_read_b32 v{16+k}, {vGU} offset:{L_PART + 256*k + 128}")
        a("s_waitcnt lgkmcnt(0)")
        for d, x, y in ((8, 8, 10), (12, 12, 14), (16, 16, 18), (20, 20, 22), (8, 8, 12), (16, 16, 20)): self.pk_add(d, x, y)
        a("v_add_f32 v8, v8, v9"); a("v_add_f32 v16, v16, v17")
        self.sigmoid("v9", "v8", "v9")
        a("v_mul_f32 v8, v9, v16")
        a("v_cvt_pk_bf16_f32 v8, v8, v8")
        for r in range(4): a(f"v_and_b32 v{12+r}, v8, v{vM[r]}")
        self.stamp(4, "fine")
        for cb in range(9):
            d = 16 + 4 * cb
            a(f"v_mfma_f32_16x16x32_bf16 v[{d}:{d+3}], a[{72+4*cb}:{75+4*cb}], v[12:15], 0")
        a("s_mov_b64 exec, s[10:11]")
        for cb in range(9): self.pwrite(16 + 4 * cb, vDW, off=256 * cb)
        a("s_mov_b64 exec, -1")
        a("s_waitcnt lgkmcnt(0)")
        a("s_barrier")
        a(f"s_cmp_ge_u32 {sHW}, 3"); a("s_cbranch_scc1 L_mlp_done")
        self.setexec(lanes(48))
        for k in range(8): a(f"ds_read_b128 v[{8+4*k}:{11+4*k}], {vFR} offset:{L_DOWN + 2304*k}")
        a("s_waitcnt lgkmcnt(0)")
        self.sum_rows4([8 + 4 * k for k in range(8)])
        for c in range(4): a(f"v_bfi_b32 v{8+c}, {sFF}, {vTAG}, v{8+c}")
        a(f"buffer_store_dwordx4 v[8:11], {vFR}, {srd(SRD_WS)}, {sR1} offen sc1")
        self.stamp(7)
        a.label("L_mlp_done")
        self.dump_stamps()
        a("s_endpgm")

    def role_fin(self):
        a = self.a; p = self.p
        X, GA, GB = 64, 68, 72
        a.label("L_fin")
        a(f"s_sub_u32 {sR0}, s2, 216")
        self.set_srd(SRD_B, sX, size=1152)
        a(f"v_and_b32 v46, 7, {vLANE}")
        a(f"s_lshl_b32 {sT0}, {sR0}, 6"); a("v_lshlrev_b32 v8, 3, v46")
        a(f"buffer_load_dwordx2 v[40:41], v8, {srd(SRD_B)}, {sT0} offen")
        a("v_lshlrev_b32 v42, 4, v46")
        self.gather_mod([2, 5], sR0, 1, [GA, GB], "v42")
        self.unpack4(X, 40)
        a(f"s_lshl_b32 {sT0}, {sR0}, 7"); a("v_lshlrev_b32 v47, 4, v46"); a(f"v_add_u32 v47, {sT0}, v47")
        a(f"v_lshrrev_b32 v8, 3, {vLANE}"); a("v_mul_u32_u24 v42, 2304, v8"); a("v_add_u32 v42, v42, v47"); a(f"v_add_u32 v42, {WS_ATT}, v42")
        a(f"s_mul_i32 {sT0}, {sHW}, 36"); a(f"v_add_u32 v8, {sT0}, v8"); a("v_mul_u32_u24 v43, 2304, v8"); a("v_add_u32 v43, v43, v47"); a(f"v_add_u32 v43, {WS_OUT}, v43")
        a(f"v_add_u32 v44, {4*8*2304}, v43"); a(f"v_cmp_gt_u32 vcc, 32, {vLANE}"); a("v_cndmask_b32 v44, v43, v44, vcc")
        a(f"s_lshl_b32 {sT0}, {sHW}, 7"); a(f"s_add_u32 {sT0}, {sT0}, {L_FIN}"); a("v_lshlrev_b32 v45, 4, v46"); a(f"v_add_u32 v48, {sT0}, v45")
        self.set_srd(SRD_B, sOUT, size=1152)
        a(f"s_lshl_b32 {sR1}, {sR0}, 6"); a("v_lshlrev_b32 v49, 3, v46")
        self.lds_spin(L_WCNT, target=4, sleep=2)
        self.stamp(5)
        self.poll([(8, 4, "v42", None, 0)], sleep=2)
        self.allreduceN("v_add_f32", [(f"v{8+c}", f"v{12+c}") for c in range(4)], ["r8", "p16", "p32"])
        a(f"v_pk_fma_f32 v[{X}:{X+1}], v[8:9], v[{GA}:{GA+1}], v[{X}:{X+1}]"); a(f"v_pk_fma_f32 v[{X+2}:{X+3}], v[10:11], v[{GA+2}:{GA+3}], v[{X+2}:{X+3}]")
        self.stamp(6)
        self.poll([(8, 4, "v43", None, 0), (12, 4, "v43", 8*2304, 0), (16, 4, "v43", 16*2304, 0), (20, 4, "v43", 24*2304, 0), (24, 4, "v44", None, 0)])
        a(f"v_cmp_gt_u32 vcc, 32, {vLANE}")
        self.sum_rows4([8, 12, 16, 20])
        for c in range(4): a(f"v_cndmask_b32 v{24+c}, 0, v{24+c}, vcc")
        self.sum_rows4([8, 24])
        self.allreduceN("v_add_f32", [(f"v{8+c}", f"v{12+c}") for c in range(4)], ["r8", "p16", "p32"])
        self.setexec(0xFF)
        a("ds_write_b128 v48, v[8:11]")
        a("s_mov_b64 exec, -1")
        a("s_waitcnt lgkmcnt(0)")
        a("s_barrier")
        a(f"s_cmp_lg_u32 {sHW}, 0"); a("s_cbranch_scc1 L_fin_done")
        self.setexec(0xFF)
        for w in range(4): a(f"ds_read_b128 v[{8+4*w}:{11+4*w}], v45 offset:{L_FIN + 128*w}")
        a("s_waitcnt lgkmcnt(0)")
        self.sum_rows4([8, 12, 16, 20])
        a(f"v_pk_fma_f32 v[8:9], v[8:9], v[{GB}:{GB+1}], v[{X}:{X+1}]"); a(f"v_pk_fma_f32 v[10:11], v[10:11], v[{GB+2}:{GB+3}], v[{X+2}:{X+3}]")
        a("v_cvt_pk_bf16_f32 v12, v8, v9"); a("v_cvt_pk_bf16_f32 v13, v10, v11")
        a(f"buffer_store_dwordx2 v[12:13], v49, {srd(SRD_B)}, {sR1} offen")
        a(f"s_cmp_lg_u32 {sR0}, 0"); a("s_cbranch_scc1 L_fin_done")
        a("s_mov_b64 exec, 1")
        a(f"v_mov_b32 v8, {sTAG}")
        a(f"buffer_store_dword v8, off, {srd(SRD_WS)}, 0 sc1")
        a.label("L_fin_done")
        self.stamp(7)
        self.dump_stamps()
        a("s_endpgm")

    def build(self):
        self.prologue(); self.swave(); self.hwave()
        self.a.label("L_exit"); self.a("s_endpgm")
        return autonop(self.a.lines)

HEADER = open("adaLN_cond__mha_block_cached__glu_gated_glu__decode.s.ref").read().split("; Override launch geometry")[0]

def make(p=P):
    body = Gen(p).build()
    txt = HEADER + "; Override launch geometry by editing the next line (default: block=256,\n; grid=ceil(out_elems/256), lds=0). Harness parses it; keep it on one line.\n"
    txt += f"; @launch grid=(256,1,1) block=(512,1,1) lds={LDS_BYTES}\n"
    txt += f""".amdgcn_target "amdgcn-amd-amdhsa--gfx950"
.text
.globl {KNAME}
.p2align 8
.type {KNAME},@function
{KNAME}:
"""
    txt += "\n".join(("" if l.endswith(":") else "    ") + l for l in body) + "\n"
    txt += f""".section .rodata,"a"
.p2align 6
.amdhsa_kernel {KNAME}
  .amdhsa_next_free_vgpr 256
  .amdhsa_next_free_sgpr 102
  .amdhsa_accum_offset {NVGPR}
  .amdhsa_group_segment_fixed_size 0
  .amdhsa_kernarg_size 112
  .amdhsa_user_sgpr_count 2
  .amdhsa_user_sgpr_kernarg_segment_ptr 1
  .amdhsa_system_sgpr_workgroup_id_x 1
.end_amdhsa_kernel
"""
    return txt

def report_h(pr, hw, mode):
    if mode == "pre":
        qs = hw[:192, 0]; mc = hw[192:246, 0]; mn = hw[72:180, 1]
        pr("H start", hw[:, :, 0])
        pr("modc: tag", mc[:, 1]); pr("modc: silu done", mc[:, 2]); pr("modc: gemv done", mc[:, 3]); pr("modc: pub complete", mc[:, 7])
        pr("modn: gemv done", mn[:, 3]); pr("modn: pub complete", mn[:, 7])
        pr("q: poll start", qs[:, 1]); pr("q: pollA done", qs[:, 2]); pr("q: gemv done", qs[:, 3]); pr("q: pub complete", qs[:, 7])
        pr("q gathered (H3)", hw[:, 3, 4])
    elif mode == "fine":
        w = hw[:72]; d = lambda i, j: w[:, :, j] - w[:, :, i]
        pr("wo gathered->tbl", d(6, 2)); pr("wo gemv", d(2, 3)); pr("wo gemv->pub", w[:, 0, 7] - w[:, 0, 3])
        m = hw[72:216]; d = lambda i, j: m[:, :, j] - m[:, :, i]
        pr("mlp gath->stats", d(6, 1)); pr("mlp stats->tbl", d(1, 2)); pr("mlp gemv", d(2, 3)); pr("mlp gemv->hh", d(3, 4)); pr("mlp hh->pub", m[:, :3, 7] - m[:, :3, 4])
        pr("mlp: B1", hw[72:216, :, 5]); pr("mlp: gathered", hw[72:216, :, 6]); pr("mlp: published", hw[72:216, :3, 7])
        pr("fin: x1", hw[216:234, :, 6]); pr("fin: done", hw[216:234, :, 7])
    else:
        pr("q gathered (H3)", hw[:, 3, 4])
        pr("wo: B1", hw[:72, :, 5]); pr("wo: gathered", hw[:72, :, 6]); pr("wo: published", hw[:72, 0, 7])
        pr("mlp: B1", hw[72:216, :, 5]); pr("mlp: gathered", hw[72:216, :, 6]); pr("mlp: published", hw[72:216, :3, 7])
        pr("fin: B1", hw[216:234, :, 5]); pr("fin: x1", hw[216:234, :, 6]); pr("fin: done", hw[216:234, :, 7])
def end_time(hw): return hw[216:234, :, 7].max()

if __name__ == "__main__":
    out = sys.argv[1] if len(sys.argv) > 1 else "adaLN_cond__mha_block_cached__glu_gated_glu__decode.s"
    open(out, "w").write(make())
    print("wrote", out)
```

```python
import sys
from asmlib import Asm, autonop

KNAME = "adaLN_cond__mha_block_cached__glu_gated_glu__decode_kernel"

WS_EPOCH = 0
WS_O = 0x10000
OSLOT = 640
WS_ATT = 0x40000
WS_MOD = 0x80000
WS_Q = 0x90000
WS_OUT = 0xA0000
WS_G = 0x100000
WS_C = 0x140000
WS_ST = 0x1B0000
WS_DBG = 0x200000
WS_SIZE = 0x300000

L_QFLAG = 0
L_WCNT = 4
L_MLCNT = 8
L_OCNT = 12
L_Q = 0x40
L_ML = 0x180
L_STAT = 0x1C0
L_TBL = 0x200
TBLW = 768
L_PART = 0x1000
L_OPART = 0x1800
L_FIN = 0x2000
L_DOWN = 0x3000
LDS_BYTES = 0x8000

LOG2E = 0x3FB8AA3B
SCALE = 0x3DB504F3
SPIN_MAX = 200000
NVGPR = 96

class P:
    R = 44
    D = 6
    NP = 44
    STAMPS = False
    MODE = "tail"
    QSLEEP = 2
    WTRIG = 'done'
    FULLCHECK = True
    LATEMOD = False
    WOEARLY = True
    PS_A = 0
    SL_A = 1
    PS_QG = 0
    PS_G = 0
    PS_OUT = 0
    PS_Q = 0
    DEND = 0
    DENDAT = 32
    D2 = 0
    NEARLY = 0
    EPACE = 1
    WTHR = 0
    SPRIO = 2
    WOPACE = 2

def f32hex(x):
    import struct
    return "0x%08x" % struct.unpack("<I", struct.pack("<f", x))[0]

sWAVE = "s3"
sX, sK, sV, sWQ, sWO, sWG, sWU, sWD, sC, sWM, sOUT, sDBG, sWS = 16, 18, 20, 22, 24, 28, 30, 32, 34, 36, 38, 40, 42
SRD_A, SRD_B, SRD_WS, SRD_C = 44, 48, 52, 56
sTAG = "s64"
sT0, sT1, sT2, sT3 = "s65", "s66", "s67", "s68"
sSPIN = "s69"
sSAVE = 72
sHW = "s76"
sR0, sR1, sR2, sR3 = "s77", "s78", "s79", "s83"
sFFFF0000 = "s80"
sFF = "s81"
sSTAMP = 84
def srd(b): return f"s[{b}:{b+3}]"
def sp(b): return f"s[{b}:{b+1}]"
vLANE = "v3"
vM = [4, 5, 6, 7]
vTAG = "v60"
FULL = (1 << 64) - 1
def lanes(n): return (1 << n) - 1

class Gen:
    def __init__(self, p=P):
        self.a = Asm(); self.p = p

    def mask64(self, sreg, val):
        self.a(f"s_mov_b32 s{sreg}, 0x{val & 0xffffffff:08x}"); self.a(f"s_mov_b32 s{sreg+1}, 0x{(val >> 32) & 0xffffffff:08x}")
    def setexec(self, val):
        a = self.a
        if val == FULL: a("s_mov_b64 exec, -1")
        elif val <= 64: a(f"s_mov_b64 exec, {val}")
        elif val < (1 << 32): a(f"s_mov_b64 exec, 0x{val:x}")
        else:
            a(f"s_mov_b32 exec_lo, 0x{val & 0xffffffff:08x}"); a(f"s_mov_b32 exec_hi, 0x{(val >> 32) & 0xffffffff:08x}")
    def stamp(self, idx, mode="tail"):
        if self.p.STAMPS and (mode == self.p.MODE or mode == "all" or (mode == "tail" and self.p.MODE == "fine")):
            self.a(f"s_memrealtime s[{sSTAMP+2*idx}:{sSTAMP+2*idx+1}]")
    def dump_stamps(self, n=8):
        if not self.p.STAMPS: return
        a = self.a
        a("s_waitcnt lgkmcnt(0) vmcnt(0)")
        a("s_mov_b64 exec, 1")
        a(f"s_lshl_b32 {sT0}, s2, 3"); a(f"s_add_u32 {sT0}, {sT0}, {sWAVE}"); a(f"s_lshl_b32 {sT0}, {sT0}, 7")
        a(f"s_add_u32 {sT0}, {sT0}, {WS_DBG}")
        for i in range(n):
            a(f"v_mov_b32 v8, s{sSTAMP+2*i}"); a(f"v_mov_b32 v9, s{sSTAMP+2*i+1}")
            a(f"buffer_store_dwordx2 v[8:9], off, {srd(SRD_WS)}, {sT0} offset:{8*i}")
            a("s_waitcnt vmcnt(0)")
    def lds_spin(self, addr, target=1, vtmp="v61", vaddr="v62", sleep=1):
        a = self.a; L = a.uid("Lspin"); E = a.uid("Lspun")
        a(f"v_mov_b32 {vaddr}, {addr}")
        a(f"s_mov_b32 {sSPIN}, 0")
        a.label(L)
        a(f"ds_read_b32 {vtmp}, {vaddr}")
        a("s_waitcnt lgkmcnt(0)")
        a(f"v_readfirstlane_b32 {sT3}, {vtmp}")
        a(f"s_cmp_ge_u32 {sT3}, {target}")
        a(f"s_cbranch_scc1 {E}")
        if sleep: a(f"s_sleep {sleep}")
        a(f"s_add_u32 {sSPIN}, {sSPIN}, 1")
        a(f"s_cmp_lt_u32 {sSPIN}, {SPIN_MAX * 4}")
        a(f"s_cbranch_scc1 {L}")
        a.label(E)
    def lds_add1(self, addr, va, vb):
        a = self.a
        a("s_mov_b64 exec, 1")
        a(f"v_mov_b32 {va}, {addr}"); a(f"v_mov_b32 {vb}, 1"); a(f"ds_add_u32 {va}, {vb}")
        a("s_mov_b64 exec, -1")
    def poll(self, loads, active=None, sleep=0, tmps=("v61", "v62", "v63"), presleep=0):
        a = self.a; L = a.uid("Lpoll"); E = a.uid("Lpolled")
        t0, t1, t2 = tmps
        sMISS = "s70"
        if active is not None: self.setexec(active)
        if presleep: a(f"s_sleep {presleep}")
        def issue(ld):
            (dst, n, voff, soff, imm) = ld
            op = {1: "buffer_load_dword", 2: "buffer_load_dwordx2", 4: "buffer_load_dwordx4"}[n]
            r = f"v{dst}" if n == 1 else f"v[{dst}:{dst+n-1}]"
            if soff is not None and not str(soff).startswith("s"):
                a(f"s_mov_b32 {sT3}, {soff}"); so = sT3
            else: so = soff if soff is not None else "0"
            a(f"{op} {r}, {voff}, {srd(SRD_WS)}, {so} offen offset:{imm} sc1")
        def check(counted):
            nl = len(loads); pend = []
            first = True
            for li, ld in enumerate(loads):
                if counted: a(f"s_waitcnt vmcnt({nl-1-li})")
                full = self.p.FULLCHECK
                rr = [ld[0] + k for k in range(ld[1] if full else 1)]
                for r in rr:
                    if first: a(f"v_xor_b32 {t0}, {vTAG}, v{r}"); first = False
                    else:
                        pend.append(r)
                        if len(pend) == 2:
                            a(f"v_xor_b32 {t1}, {vTAG}, v{pend[0]}"); a(f"v_xor_b32 {t2}, {vTAG}, v{pend[1]}"); a(f"v_or3_b32 {t0}, {t0}, {t1}, {t2}"); pend = []
            if pend: a(f"v_xor_b32 {t1}, {vTAG}, v{pend[0]}"); a(f"v_or_b32 {t0}, {t0}, {t1}")
            a(f"v_and_b32 {t0}, 0xff, {t0}")
            a(f"v_cmp_ne_u32 vcc, 0, {t0}")
            a(f"s_cbranch_vccz {E}")
        for ld in loads: issue(ld)
        check(True)
        a(f"s_mov_b32 {sMISS}, {(1 << len(loads)) - 1}")
        a(f"s_mov_b32 {sSPIN}, 0")
        a.label(L)
        if len(loads) > 1:
            for li, ld in enumerate(loads):
                Lk = a.uid("Lk")
                a(f"v_cmp_ne_u32_sdwa vcc, {vTAG}, v{ld[0]} src0_sel:BYTE_0 src1_sel:BYTE_0")
                a(f"s_cbranch_vccnz {Lk}")
                a(f"s_bitset0_b32 {sMISS}, {li}")
                a.label(Lk)
        if sleep: a(f"s_sleep {sleep}")
        for li, ld in enumerate(loads):
            if len(loads) > 1:
                Lk = a.uid("Ls")
                a(f"s_bitcmp1_b32 {sMISS}, {li}"); a(f"s_cbranch_scc0 {Lk}")
                issue(ld); a.label(Lk)
            else: issue(ld)
        a("s_waitcnt vmcnt(0)")
        a(f"s_add_u32 {sSPIN}, {sSPIN}, 1")
        a(f"s_cmp_ge_u32 {sSPIN}, {SPIN_MAX}"); a(f"s_cbranch_scc1 {E}")
        check(False)
        a(f"s_branch {L}")
        a.label(E)
    def bf16_round(self, dst, src, tmp):
        self.a(f"v_cvt_pk_bf16_f32 {tmp}, {src}, {src}"); self.a(f"v_lshlrev_b32 {dst}, 16, {tmp}")
    def bf16_round2(self, d0, d1, s0, s1, tmp):
        a = self.a
        a(f"v_cvt_pk_bf16_f32 {tmp}, {s0}, {s1}"); a(f"v_lshlrev_b32 {d0}, 16, {tmp}"); a(f"v_and_b32 {d1}, {sFFFF0000}, {tmp}")
    def allreduce(self, op, v, t, steps):
        self.allreduceN(op, [(v, t)], steps)
    def allreduceN(self, op, vts, steps):
        a = self.a
        dpp = {"q1": "quad_perm:[1,0,3,2]", "q2": "quad_perm:[2,3,0,1]", "hm": "row_half_mirror", "r4": "row_ror:4", "r8": "row_ror:8"}
        for s in steps:
            if s in dpp:
                for (v, t) in vts: a(f"{op}_dpp {v}, {v}, {v} {dpp[s]} row_mask:0xf bank_mask:0xf")
            else:
                ins = "v_permlane16_swap_b32" if s == "p16" else "v_permlane32_swap_b32"
                for (v, t) in vts: a(f"v_mov_b32 {t}, {v}")
                for (v, t) in vts: a(f"{ins} {v}, {t}")
                for (v, t) in vts: a(f"{op} {v}, {v}, {t}")
    def pk_add(self, d, x, y): self.a(f"v_pk_add_f32 v[{d}:{d+1}], v[{x}:{x+1}], v[{y}:{y+1}]")
    def sum_rows4(self, bases):
        b = list(bases)
        while len(b) > 1:
            nb = []
            for i in range(0, len(b) - 1, 2):
                self.pk_add(b[i], b[i], b[i+1]); self.pk_add(b[i] + 2, b[i] + 2, b[i+1] + 2); nb.append(b[i])
            if len(b) % 2: nb.append(b[-1])
            b = nb
    def gemv(self, ntiles, abase, xx, D, bsets=(8, 12), waits=None):
        a = self.a
        def mkB(t):
            b = bsets[t & 1]
            for r in range(4): a(f"v_and_b32 v{b+r}, v{xx[t]}, v{vM[r]}")
        mkB(0)
        for t in range(ntiles):
            if t + 1 < ntiles: mkB(t + 1)
            if waits and t in waits: a(f"s_waitcnt vmcnt({waits[t]})")
            b = bsets[t & 1]
            c = "0" if t == 0 else f"v[{D}:{D+3}]"
            a(f"v_mfma_f32_16x16x32_bf16 v[{D}:{D+3}], a[{abase+4*t}:{abase+4*t+3}], v[{b}:{b+3}], {c}")
    def taddr_w(self, vaddr, vt, TS):
        a = self.a
        a(f"v_and_b32 {vt}, 1, {vLANE}"); a(f"v_mul_u32_u24 {vt}, {TS*16}, {vt}")
        a(f"v_lshrrev_b32 {vaddr}, 1, {vLANE}"); a(f"v_lshl_add_u32 {vaddr}, {vaddr}, 2, {vt}")
        a(f"s_mul_i32 {sT0}, {sHW}, {TBLW}"); a(f"s_add_u32 {sT0}, {sT0}, {L_TBL}")
        a(f"v_add_u32 {vaddr}, {sT0}, {vaddr}")
    def taddr_r(self, vaddr, TS):
        a = self.a
        a(f"v_lshrrev_b32 {vaddr}, 3, {vLANE}"); a(f"v_mul_u32_u24 {vaddr}, {TS*4}, {vaddr}")
        a(f"s_mul_i32 {sT0}, {sHW}, {TBLW}"); a(f"s_add_u32 {sT0}, {sT0}, {L_TBL}")
        a(f"v_add_u32 {vaddr}, {sT0}, {vaddr}")
    def twrite4(self, regs, vaddr, TS):
        for k in range(4): self.a(f"ds_write_b32 {vaddr}, v{regs[k]} offset:{k*TS*4}")
    def tread(self, first, nb128, vaddr):
        a = self.a
        a("s_waitcnt lgkmcnt(0)")
        for i in range(nb128): a(f"ds_read_b128 v[{first+4*i}:{first+4*i+3}], {vaddr} offset:{16*i}")
        a("s_waitcnt lgkmcnt(0)")
    VALID = 0xFF00FF0000FF00FF
    def paddr(self, vaddr, vt, base, rowlen):
        a = self.a
        a(f"v_lshrrev_b32 {vaddr}, 5, {vLANE}"); a(f"v_mul_u32_u24 {vaddr}, {rowlen*4}, {vaddr}")
        a(f"v_bfe_u32 {vt}, {vLANE}, 4, 1"); a(f"v_lshl_add_u32 {vaddr}, {vt}, 7, {vaddr}")
        a(f"v_and_b32 {vt}, 7, {vLANE}"); a(f"v_lshl_add_u32 {vaddr}, {vt}, 2, {vaddr}")
        a(f"s_mul_i32 {sT0}, {sHW}, {2*rowlen*4}"); a(f"s_add_u32 {sT0}, {sT0}, {base}")
        a(f"v_add_u32 {vaddr}, {sT0}, {vaddr}")
    def pwrite(self, D, vaddr, off=0):
        for r in range(4): self.a(f"ds_write_b32 {vaddr}, v{D+r} offset:{off + r*32}")
    def sigmoid(self, dst, v, t):
        a = self.a
        a(f"v_mul_f32 {t}, 0x{(LOG2E | 0x80000000):08x}, {v}"); a(f"v_exp_f32 {t}, {t}")
        a(f"v_add_f32 {t}, 1.0, {t}"); a(f"v_rcp_f32 {dst}, {t}")
    def unpack4(self, dst, src):
        a = self.a
        a(f"v_lshlrev_b32 v{dst}, 16, v{src}"); a(f"v_and_b32 v{dst+1}, {sFFFF0000}, v{src}")
        a(f"v_lshlrev_b32 v{dst+2}, 16, v{src+1}"); a(f"v_and_b32 v{dst+3}, {sFFFF0000}, v{src+1}")
    def round4(self, X, tmp):
        for k in (0, 2): self.bf16_round2(f"v{X+k}", f"v{X+k+1}", f"v{X+k}", f"v{X+k+1}", tmp)
    def set_srd(self, s, base, off=None, size=None, size_minus_off=None):
        a = self.a
        if off is None:
            a(f"s_mov_b32 s{s}, s{base}"); a(f"s_mov_b32 s{s+1}, s{base+1}")
        else:
            a(f"s_add_u32 s{s}, s{base}, {off}"); a(f"s_addc_u32 s{s+1}, s{base+1}, 0")
        if size_minus_off is not None: a(f"s_sub_u32 s{s+2}, {size_minus_off}, {off}")
        else: a(f"s_mov_b32 s{s+2}, {size}")
        a(f"s_mov_b32 s{s+3}, 0x20000")
    def div3(self, q, r, x):
        a = self.a
        a(f"s_mul_i32 {q}, {x}, 0x5556"); a(f"s_lshr_b32 {q}, {q}, 16")
        a(f"s_mul_i32 {r}, {q}, 3"); a(f"s_sub_u32 {r}, {x}, {r}")

    def prologue(self):
        a = self.a
        a("s_cmp_ge_u32 s2, 256"); a("s_cbranch_scc1 L_exit")
        self.stamp(0, "all")
        a("s_load_dwordx16 s[16:31], s[0:1], 0")
        a("s_load_dwordx8 s[32:39], s[0:1], 64")
        a("s_load_dwordx4 s[40:43], s[0:1], 96")
        a("v_lshrrev_b32 v1, 6, v0")
        a(f"v_and_b32 {vLANE}, 63, v0")
        a(f"v_readfirstlane_b32 {sWAVE}, v1")
        a(f"v_and_b32 v8, 1, {vLANE}"); a("v_cmp_eq_u32 vcc, 1, v8")
        a("v_mov_b32 v9, 0xffff"); a("v_mov_b32 v10, 0xffff0000")
        a("v_cndmask_b32 v9, v9, v10, vcc")
        a(f"v_bfe_u32 v8, {vLANE}, 1, 2")
        for r in range(4):
            a(f"v_cmp_eq_u32 vcc, {r}, v8"); a(f"v_cndmask_b32 v{vM[r]}, 0, v9, vcc")
        a(f"s_mov_b32 {sFFFF0000}, 0xffff0000"); a(f"s_mov_b32 {sFF}, 0xff")
        a("s_waitcnt lgkmcnt(0)")
        a(f"s_load_dword {sTAG}, s[{sWS}:{sWS+1}], 0")
        self.set_srd(SRD_WS, sWS, size=WS_SIZE)
        for q in (SRD_A, SRD_B, SRD_C): self.set_srd(q, sWS, size=0)
        a(f"s_cmp_ge_u32 {sWAVE}, 4"); a("s_cbranch_scc1 L_helper")
    def get_tag(self):
        a = self.a
        a("s_waitcnt lgkmcnt(0)")
        a(f"s_add_u32 {sTAG}, {sTAG}, 1")
        a(f"s_and_b32 {sT3}, {sTAG}, 0xff")
        a(f"v_mov_b32 {vTAG}, {sT3}")

    def swave(self):
        a = self.a; p = self.p
        R, D, NP = p.R, max(p.D, p.D2), p.NP
        Dlo = p.D
        vK, vV = "v1", "v2"
        B_T = 8; S = 24; DQ = (40, 44); DO = 48; T = 52
        vm, vl, vf = "v56", "v57", "v58"
        vOW, vPUB = "v64", "v65"
        if p.SPRIO: a(f"s_setprio {p.SPRIO}")
        a(f"s_lshl_b32 {sT0}, s2, 18")
        self.set_srd(SRD_A, sK, off=sT0, size=0x40000); self.set_srd(SRD_B, sV, off=sT0, size=0x40000)
        a(f"s_lshl_b32 {sT0}, {sWAVE}, 10")
        a(f"v_lshrrev_b32 v8, 4, {vLANE}"); a("v_lshlrev_b32 v8, 6, v8")
        a(f"v_bfe_u32 v9, {vLANE}, 2, 2"); a("v_lshl_add_u32 v8, v9, 8, v8")
        a(f"v_and_b32 v9, 3, {vLANE}"); a("v_lshl_add_u32 v8, v9, 4, v8")
        a(f"v_add_u32 {vK}, {sT0}, v8")
        a(f"v_lshlrev_b32 v9, 4, {vLANE}"); a(f"v_add_u32 {vV}, {sT0}, v9")
        N = 128
        def slot(i):
            k = i % R
            return f"a[{4*k}:{4*k+3}]" if k < 40 else f"v[{68+4*(k-40)}:{71+4*(k-40)}]"
        st = dict(issued=0)
        def issue(throttle=True):
            nonlocal D, Dlo
            i = st["issued"]
            if p.DEND and i >= 64 + p.DENDAT: D = Dlo = p.DEND
            if throttle and i >= Dlo and D != Dlo:
                L = a.uid("Lthr")
                a(f"s_cbranch_vccnz {L}"); a(f"s_waitcnt vmcnt({Dlo-1})"); a.label(L)
            if throttle and i >= D: a(f"s_waitcnt vmcnt({D-1})")
            a(f"s_mov_b32 {sT1}, {(i % 64) * 4096}")
            s_, v_ = (SRD_A, vK) if i < 64 else (SRD_B, vV)
            a(f"buffer_load_dwordx4 {slot(i)}, {v_}, {srd(s_)}, {sT1} offen nt")
            st["issued"] = i + 1
            if i == N - 1: self.lds_add1(L_WCNT, f"v{T}", f"v{T+1}")
        def need(tile): a(f"s_waitcnt vmcnt({st['issued'] - 1 - tile})")
        if D != Dlo:
            a("s_mov_b64 vcc, 0"); a("s_cmp_lt_u32 s2, 72"); a("s_cbranch_scc1 L_vset"); a("s_cmp_ge_u32 s2, 216"); a("s_cbranch_scc1 L_vset")
            a("s_mov_b64 vcc, -1"); a.label("L_vset")
        self.stamp(3, "start")
        for _ in range(min(Dlo, NP)): issue(False)
        self.stamp(4, "start")
        a("s_barrier")
        self.stamp(5, "start")
        if p.STAMPS and p.MODE == "start":
            a(f"s_waitcnt vmcnt({D-1})"); self.stamp(6, "start")
        a(f"v_lshrrev_b32 v8, 4, {vLANE}"); a("v_lshlrev_b32 v8, 7, v8")
        a(f"v_and_b32 v9, 7, {vLANE}"); a("v_lshl_add_u32 v8, v9, 2, v8")
        a(f"s_lshl_b32 {sT0}, {sWAVE}, 9"); a(f"s_add_u32 {sT0}, {sT0}, {L_OPART}")
        a(f"v_add_u32 {vOW}, {sT0}, v8")
        a(f"v_lshlrev_b32 {vPUB}, 4, {vLANE}")
        mT = [6, 8, 10, 12]; m1, m3, m23 = 14, 4, 62
        for t in range(4): self.mask64(mT[t], 0x000F000F000F000F << (4 * t))
        self.mask64(m1, 0x2222222222222222); self.mask64(m3, 0x8888888888888888); self.mask64(m23, 0xCCCCCCCCCCCCCCCC)
        while st["issued"] < NP: issue()
        self.stamp(1, "all")
        self.get_tag()
        self.lds_spin(L_QFLAG)
        self.stamp(2, "all")
        a(f"v_lshrrev_b32 v{T}, 4, {vLANE}"); a(f"v_lshlrev_b32 v{T}, 6, v{T}")
        a(f"v_and_b32 v{T+1}, 3, {vLANE}"); a(f"v_lshl_add_u32 v{T}, v{T+1}, 4, v{T}")
        a(f"ds_read_b128 v[{T+4}:{T+7}], v{T} offset:{L_Q}")
        a("s_waitcnt lgkmcnt(0)")
        for t in range(4):
            for k in range(4): a(f"v_cndmask_b32 v{B_T+4*t+k}, 0, v{T+4+k}, {sp(mT[t])}")
        def qk_mfma(g):
            d = DQ[g & 1]; need(4 * g + 3)
            for t in range(4):
                c = "0" if t == 0 else f"v[{d}:{d+3}]"
                a(f"v_mfma_f32_16x16x32_bf16 v[{d}:{d+3}], {slot(4*g+t)}, v[{B_T+4*t}:{B_T+4*t+3}], {c}")
        def qk_post(g):
            d = DQ[g & 1]
            a(f"v_cndmask_b32 v{T}, v{d}, v{d+1}, {sp(m1)}")
            a(f"v_cndmask_b32 v{T+1}, v{d+2}, v{d+3}, {sp(m3)}")
            a(f"v_cndmask_b32 v{T}, v{T}, v{T+1}, {sp(m23)}")
            a(f"v_add_f32_dpp v{T+1}, v{T}, v{T} quad_perm:[1,0,3,2] row_mask:0xf bank_mask:0xf")
            a(f"v_add_f32_dpp v{S+g}, v{T+1}, v{T+1} quad_perm:[2,3,0,1] row_mask:0xf bank_mask:0xf")
        g = 0
        while g < 16:
            lag = st["issued"] - 4 * g
            qk_mfma(g)
            if g > 0: qk_post(g - 1)
            g += 1
            free = 4 * g + R - st["issued"]
            nissue = (1 if (g % 3 == 0) else 0) if lag > D + 8 else 4
            for _ in range(min(nissue, free)):
                if st["issued"] < N: issue()
        qk_post(15)
        self.stamp(3, "tail")
        for _ in range(3): issue(False)
        a(f"s_mov_b32 {sT0}, 0x{SCALE:08x}")
        for k in range(0, 16, 2):
            x, y = f"v{S+k}", f"v{S+k+1}"; t = f"v{T + (k // 2) % 4}"
            a(f"v_cvt_pk_bf16_f32 {t}, {x}, {y}")
            a(f"v_lshlrev_b32 {x}, 16, {t}"); a(f"v_and_b32 {y}, {sFFFF0000}, {t}")
            a(f"v_mul_f32 {x}, {sT0}, {x}"); a(f"v_mul_f32 {y}, {sT0}, {y}")
            a(f"v_cvt_pk_bf16_f32 {t}, {x}, {y}")
            a(f"v_lshlrev_b32 {x}, 16, {t}"); a(f"v_and_b32 {y}, {sFFFF0000}, {t}")
        a(f"v_max3_f32 {vm}, v{S}, v{S+1}, v{S+2}")
        for k in range(3, 15, 2): a(f"v_max3_f32 {vm}, {vm}, v{S+k}, v{S+k+1}")
        a(f"v_max_f32 {vm}, {vm}, v{S+15}")
        self.allreduce("v_max_f32", vm, f"v{T}", ["r4", "r8", "p16", "p32"])
        a(f"s_mov_b32 {sT0}, 0x{LOG2E:08x}")
        a(f"v_mul_f32 v{T+3}, {sT0}, {vm}")
        for k in range(16): a(f"v_fma_f32 v{S+k}, v{S+k}, {sT0}, -v{T+3}")
        for k in range(16): a(f"v_exp_f32 v{S+k}, v{S+k}")
        a(f"v_add_f32 {vl}, v{S}, v{S+1}")
        for k in range(2, 16): a(f"v_add_f32 {vl}, {vl}, v{S+k}")
        for k in range(16): a(f"v_cvt_pk_bf16_f32 v{S+k}, v{S+k}, v{S+k}")
        self.allreduce("v_add_f32", vl, f"v{T}", ["r4", "r8", "p16", "p32"])
        a("s_mov_b64 exec, 1")
        a(f"s_lshl_b32 {sT0}, {sWAVE}, 3"); a(f"s_add_u32 {sT0}, {sT0}, {L_ML}")
        a(f"v_mov_b32 v{T}, {sT0}"); a(f"ds_write_b64 v{T}, v[56:57]")
        a(f"v_mov_b32 v{T}, {L_MLCNT}"); a(f"v_mov_b32 v{T+1}, 1"); a(f"ds_add_u32 v{T}, v{T+1}")
        a("s_mov_b64 exec, -1")
        self.stamp(4, "tail")
        BV = (8, 12)
        def mkB(vi):
            g_, t_ = vi >> 2, vi & 3; b = BV[vi & 1]
            for r in range(4): a(f"v_and_b32_dpp v{b+r}, v{S+g_}, v{vM[r]} row_newbcast:{4*t_} row_mask:0xf bank_mask:0xf")
        def ml_exchange():
            self.lds_spin(L_MLCNT, target=4)
            a(f"v_mov_b32 v16, {L_ML}")
            a("ds_read_b128 v[20:23], v16"); a("ds_read_b128 v[40:43], v16 offset:16")
            a("s_waitcnt lgkmcnt(0)")
            a("v_max3_f32 v16, v20, v22, v40"); a("v_max_f32 v16, v16, v42")
            a(f"s_mov_b32 {sT0}, 0x{LOG2E:08x}")
            a(f"v_sub_f32 {vf}, {vm}, v16"); a(f"v_mul_f32 {vf}, {sT0}, {vf}"); a(f"v_exp_f32 {vf}, {vf}")
            L = a.uid("Lnoml")
            a(f"s_cmp_lg_u32 {sWAVE}, 0"); a(f"s_cbranch_scc1 {L}")
            for i, r in enumerate((20, 22, 40, 42)):
                a(f"v_sub_f32 v{r}, v{r}, v16"); a(f"v_mul_f32 v{r}, {sT0}, v{r}"); a(f"v_exp_f32 v{r}, v{r}")
            a("v_mul_f32 v17, v20, v21"); a("v_fmac_f32 v17, v22, v23"); a("v_fmac_f32 v17, v40, v41"); a("v_fmac_f32 v17, v42, v43")
            a("v_mov_b32 v18, 0"); a("v_mov_b32 v19, 0")
            for c in range(4): a(f"v_bfi_b32 v{16+c}, {sFF}, {vTAG}, v{16+c}")
            a(f"s_mul_i32 {sT0}, s2, {OSLOT}"); a(f"s_add_u32 {sT0}, {sT0}, {WS_O + 512}")
            a("s_mov_b64 exec, 1")
            a(f"buffer_store_dwordx4 v[16:19], off, {srd(SRD_WS)}, {sT0} sc1")
            a("s_mov_b64 exec, -1")
            st["extra_wave0"] = True
            a.label(L)
        mkB(0)
        for vi in range(64):
            if vi + 1 < 64: mkB(vi + 1)
            tile = 64 + vi
            while st["issued"] < N and st["issued"] - tile < (p.DEND if (p.DEND and st["issued"] >= 64 + p.DENDAT) else D) + 1: issue()
            need(tile)
            b = BV[vi & 1]
            c = "0" if vi == 0 else f"v[{DO}:{DO+3}]"
            a(f"v_mfma_f32_16x16x32_bf16 v[{DO}:{DO+3}], {slot(tile)}, v[{b}:{b+3}], {c}")
            if vi == 12:
                ml_exchange()
        self.stamp(5, "tail")
        for r in range(4): a(f"v_mul_f32 v{DO+r}, {vf}, v{DO+r}")
        self.setexec(0x00FF00FF00FF00FF)
        for r in range(4): a(f"ds_write_b32 {vOW}, v{DO+r} offset:{32*r}")
        a("s_mov_b64 exec, 1")
        a(f"v_mov_b32 v8, {L_OCNT}"); a("v_mov_b32 v9, 1"); a("ds_add_rtn_u32 v9, v8, v9")
        a(f"s_mul_i32 {sT0}, s2, {OSLOT}"); a(f"s_add_u32 {sT0}, {sT0}, {WS_O}")
        a("s_waitcnt lgkmcnt(0)")
        a(f"v_readfirstlane_b32 {sT1}, v9")
        a(f"s_cmp_lg_u32 {sT1}, 3"); a("s_cbranch_scc1 L_sdone")
        self.setexec(lanes(32))
        for w in range(4): a(f"ds_read_b128 v[{12+4*w}:{15+4*w}], {vPUB} offset:{L_OPART + 512*w}")
        a("s_waitcnt lgkmcnt(0)")
        self.sum_rows4([12, 16, 20, 24])
        for c in range(4): a(f"v_bfi_b32 v{12+c}, {sFF}, {vTAG}, v{12+c}")
        a(f"buffer_store_dwordx4 v[12:15], {vPUB}, {srd(SRD_WS)}, {sT0} offen sc1")
        self.stamp(6, "tail")
        a.label("L_sdone")
        self.dump_stamps()
        a("s_endpgm")

    def unit_loads(self, stride_s, tau_s):
        a = self.a
        a(f"s_mul_i32 {sT0}, {tau_s}, 192")
        a(f"v_lshrrev_b32 v1, 3, {vLANE}"); a(f"v_add_u32 v1, {sT0}, v1")
        a(f"v_mul_lo_u32 v1, v1, {stride_s}")
        a(f"v_and_b32 v2, 7, {vLANE}"); a("v_lshl_add_u32 v1, v2, 4, v1")
        a(f"s_lshl_b32 {sT1}, {stride_s}, 3"); a(f"s_mov_b32 {sT0}, 0")
        for t in range(24):
            a(f"buffer_load_dwordx4 a[{4*t}:{4*t+3}], v1, {srd(SRD_A)}, {sT0} offen nt")
            if t < 23: a(f"s_add_u32 {sT0}, {sT0}, {sT1}")

    def hwave(self):
        a = self.a; p = self.p
        a.label("L_helper")
        a("s_setprio 3")
        a(f"s_sub_u32 {sHW}, {sWAVE}, 4")
        a("s_mov_b32 s71, 0")
        for r in list(range(40, 60)) + list(range(80, 90)): a(f"v_mov_b32 v{r}, 0")
        if p.WOEARLY:
            a("s_cmp_ge_u32 s2, 72"); a("s_cbranch_scc1 L_nowoearly")
            a(f"s_cmp_eq_u32 {sHW}, 0"); a("s_cbranch_scc1 L_nowoearly")
            a(f"s_and_b32 {sT0}, s2, 7"); a(f"s_lshr_b32 {sT1}, s2, 3"); a(f"s_lshl_b32 {sT2}, {sT1}, 7")
            self.set_srd(SRD_C, sWO, off=sT2, size_minus_off=4096 * 1152)
            a(f"s_lshl_b32 {sT0}, {sT0}, 2"); a(f"s_add_u32 {sT0}, {sT0}, {sHW}"); a(f"s_lshl_b32 {sT0}, {sT0}, 7")
            a(f"v_lshrrev_b32 v1, 3, {vLANE}"); a(f"v_add_u32 v1, {sT0}, v1"); a("v_mul_u32_u24 v1, 1152, v1")
            a(f"v_and_b32 v2, 7, {vLANE}"); a("v_lshl_add_u32 v1, v2, 4, v1")
            a("s_setprio 0")
            a(f"s_mov_b32 {sT0}, 0")
            for t in range(16):
                a(f"buffer_load_dwordx4 a[{96+4*t}:{99+4*t}], v1, {srd(SRD_C)}, {sT0} offen nt")
                if t < 15: a(f"s_add_u32 {sT0}, {sT0}, 9216")
            a("s_setprio 3")
            a.label("L_nowoearly")
        a(f"s_cmp_eq_u32 {sHW}, 0"); a("s_cbranch_scc1 L_h0")
        a(f"s_cmp_eq_u32 {sHW}, 1"); a("s_cbranch_scc1 L_h1")
        a(f"s_cmp_lg_u32 {sHW}, 2"); a("s_cbranch_scc1 L_nounit")
        a(f"v_lshlrev_b32 v8, 2, {vLANE}"); a("v_mov_b32 v9, 0")
        self.setexec(0xFFFF); a("ds_write_b32 v8, v9"); a("s_mov_b64 exec, -1"); a("s_waitcnt lgkmcnt(0)")
        a("s_branch L_nounit")
        a.label("L_h0")
        a("s_cmp_lt_u32 s2, 192"); a("s_cbranch_scc1 L_qunit")
        a("s_cmp_ge_u32 s2, 246"); a("s_cbranch_scc1 L_nounit")
        a(f"s_sub_u32 {sT2}, s2, 192"); self.div3(sR0, sR1, sT2)
        a("s_branch L_munit")
        a.label("L_h1")
        a("s_cmp_lt_u32 s2, 72"); a("s_cbranch_scc1 L_nounit")
        a("s_cmp_ge_u32 s2, 180"); a("s_cbranch_scc1 L_nounit")
        a(f"s_sub_u32 {sT2}, s2, 72"); self.div3(sR0, sR1, sT2); a(f"s_add_u32 {sR0}, {sR0}, 18")
        if p.LATEMOD:
            a("s_barrier")
            self.lds_spin(L_QFLAG, target=1, sleep=8)
            a("s_setprio 0")
            a("s_mov_b32 s71, 1")
        a.label("L_munit")
        a(f"s_lshl_b32 {sT2}, {sR0}, 7")
        self.set_srd(SRD_A, sWM, off=sT2, size_minus_off=576 * 6912)
        self.set_srd(SRD_B, sC, size=1152)
        a(f"s_mul_i32 {sT0}, {sR1}, 384"); a(f"v_lshlrev_b32 v8, 3, {vLANE}")
        a(f"buffer_load_dwordx2 v[40:41], v8, {srd(SRD_B)}, {sT0} offen")
        a(f"s_mov_b32 {sR2}, 6912")
        self.unit_loads(sR2, sR1)
        a("s_cmp_eq_u32 s71, 1"); a("s_cbranch_scc1 L_mnobar")
        a("s_barrier")
        a.label("L_mnobar")
        self.get_tag()
        self.stamp(1, "pre")
        a(f"s_mul_i32 {sR2}, {sR0}, 3"); a(f"s_add_u32 {sR2}, {sR2}, {sR1}"); a(f"s_lshl_b32 {sR2}, {sR2}, 8"); a(f"s_add_u32 {sR2}, {sR2}, {WS_MOD}")
        self.taddr_w("v2", "v8", 24)
        a("s_waitcnt vmcnt(24)")
        self.unpack4(44, 40)
        for k in range(4): self.sigmoid(f"v{48+k}", f"v{44+k}", f"v{48+k}")
        for k in range(4): a(f"v_mul_f32 v{44+k}, v{44+k}, v{48+k}")
        for k in range(4): a(f"v_cvt_pk_bf16_f32 v{44+k}, v{44+k}, v{44+k}")
        self.setexec(lanes(48)); self.twrite4([44, 45, 46, 47], "v2", 24); a("s_mov_b64 exec, -1")
        self.stamp(2, "pre")
        a("s_branch L_unit_gemv")
        a.label("L_qunit")
        self.div3(sR0, sR1, "s2")
        a(f"s_lshl_b32 {sT2}, {sR0}, 7")
        self.set_srd(SRD_A, sWQ, off=sT2, size_minus_off=576 * 8192)
        self.set_srd(SRD_B, sX, size=1152)
        a(f"v_lshrrev_b32 v8, 3, {vLANE}"); a("v_lshlrev_b32 v8, 5, v8"); a(f"v_and_b32 v9, 7, {vLANE}"); a("v_add_u32 v8, v8, v9"); a("v_lshlrev_b32 v8, 1, v8")
        a(f"s_mul_i32 {sT0}, {sR1}, 384")
        for r in range(4): a(f"buffer_load_ushort v{44+r}, v8, {srd(SRD_B)}, {sT0} offen offset:{16*r}")
        a(f"v_lshlrev_b32 v9, 5, {vLANE}")
        a(f"buffer_load_dwordx4 v[16:19], v9, {srd(SRD_B)}, 0 offen")
        a(f"buffer_load_dwordx4 v[20:23], v9, {srd(SRD_B)}, 0 offen offset:16")
        a(f"s_mov_b32 {sR2}, 8192")
        self.unit_loads(sR2, sR1)
        a("s_barrier")
        self.get_tag()
        a(f"s_mul_i32 {sR2}, {sR0}, 3"); a(f"s_add_u32 {sR2}, {sR2}, {sR1}"); a(f"s_lshl_b32 {sR2}, {sR2}, 8"); a(f"s_add_u32 {sR2}, {sR2}, {WS_Q}")
        a(f"s_mul_i32 {sT0}, {sR1}, 6"); a(f"v_lshrrev_b32 v8, 3, {vLANE}"); a(f"v_add_u32 v8, {sT0}, v8")
        a("v_lshrrev_b32 v9, 1, v8"); a("v_mul_u32_u24 v9, 768, v9")
        a("v_and_b32 v8, 1, v8"); a("v_lshl_add_u32 v9, v8, 7, v9")
        a(f"v_and_b32 v8, 7, {vLANE}"); a("v_lshl_add_u32 v50, v8, 4, v9")
        a(f"v_mul_u32_u24 v51, 96, v8"); a(f"v_lshrrev_b32 v9, 3, {vLANE}"); a("v_lshl_add_u32 v51, v9, 4, v51")
        a(f"v_add_u32 v51, {L_TBL}, v51")
        a("s_waitcnt vmcnt(24)")
        for r in range(4): a(f"v_lshlrev_b32 v{44+r}, 16, v{44+r}")
        for i in range(8):
            a(f"v_lshlrev_b32 v{24+2*i}, 16, v{16+i}"); a(f"v_and_b32 v{25+2*i}, {sFFFF0000}, v{16+i}")
        a("v_add_f32 v48, v24, v25")
        for i in range(2, 16): a(f"v_add_f32 v48, v48, v{24+i}")
        self.allreduce("v_add_f32", "v48", "v49", ["q1", "q2", "r4", "r8", "p16", "p32"])
        a(f"v_mul_f32 v48, {f32hex(1/576)}, v48")
        for i in range(16): a(f"v_sub_f32 v{24+i}, v{24+i}, v48")
        a("v_mul_f32 v49, v24, v24")
        for i in range(1, 16): a(f"v_fmac_f32 v49, v{24+i}, v{24+i}")
        a(f"v_cmp_gt_u32 vcc, 36, {vLANE}"); a("v_cndmask_b32 v49, 0, v49, vcc")
        self.allreduce("v_add_f32", "v49", "v52", ["q1", "q2", "r4", "r8", "p16", "p32"])
        a(f"v_mul_f32 v49, {f32hex(1/576)}, v49")
        self.bf16_round2("v48", "v49", "v48", "v49", "v52")
        a(f"v_add_f32 v49, {f32hex(1e-5)}, v49"); self.bf16_round("v49", "v49", "v52")
        a("v_sqrt_f32 v49, v49"); self.bf16_round("v49", "v49", "v52"); a("v_rcp_f32 v49, v49")
        for k in range(4): a(f"v_sub_f32 v{44+k}, v{44+k}, v48")
        self.round4(44, "v52")
        for k in range(4): a(f"v_mul_f32 v{44+k}, v{44+k}, v49")
        self.round4(44, "v52")
        self.stamp(1, "pre")
        self.poll([(8 + 4 * t, 4, "v50", WS_MOD, 256 * t) for t in range(3)] + [(20 + 4 * t, 4, "v50", WS_MOD + 9 * 768, 256 * t) for t in range(3)],
                  active=lanes(48), sleep=p.SL_A, presleep=p.PS_A)
        self.stamp(2, "pre")
        self.sum_rows4([8, 12, 16]); self.sum_rows4([20, 24, 28])
        self.round4(8, "v52"); self.round4(20, "v53")
        for k in range(4): a(f"v_add_f32 v{20+k}, 1.0, v{20+k}")
        self.round4(20, "v52")
        for k in range(4): a(f"v_mul_f32 v{44+k}, v{44+k}, v{20+k}")
        self.round4(44, "v52")
        for k in range(4): a(f"v_add_f32 v{44+k}, v{44+k}, v{8+k}")
        for k in range(4): a(f"v_cvt_pk_bf16_f32 v{44+k}, v{44+k}, v{44+k}")
        a("ds_write_b128 v51, v[44:47]")
        a("s_mov_b64 exec, -1")
        a.label("L_unit_gemv")
        self.taddr_r("v2", 24)
        self.tread(16, 6, "v2")
        self.gemv(24, 0, list(range(16, 40)), 40, waits={0: 20, 4: 16, 8: 12, 12: 8, 16: 4, 20: 0})
        self.stamp(3, "pre")
        a(f"v_lshrrev_b32 v2, 4, {vLANE}"); a("v_lshlrev_b32 v2, 7, v2"); a(f"v_and_b32 v8, 7, {vLANE}"); a("v_lshl_add_u32 v2, v8, 4, v2")
        for r in range(4): a(f"v_mov_b32 v{44+r}, v{40+r}")
        for r in range(4): a(f"v_permlane32_swap_b32 v{40+r}, v{44+r}")
        for r in range(4): a(f"v_add_f32_dpp v{40+r}, v{44+r}, v{40+r} row_ror:8 row_mask:0xf bank_mask:0xf")
        for r in range(4): a(f"v_bfi_b32 v{40+r}, {sFF}, {vTAG}, v{40+r}")
        self.setexec(0x00FF00FF)
        a(f"buffer_store_dwordx4 v[40:43], v2, {srd(SRD_WS)}, {sR2} offen sc1")
        a("s_mov_b64 exec, -1")
        if p.STAMPS and p.MODE == "pre":
            a("s_waitcnt vmcnt(0)")
        self.stamp(7, "pre")
        a("s_branch L_pre_done")
        a.label("L_nounit")
        a("s_barrier")
        self.get_tag()
        a.label("L_pre_done")
        a(f"s_cmp_lg_u32 {sHW}, 3"); a("s_cbranch_scc1 L_noq")
        a(f"s_lshr_b32 {sT0}, s2, 3"); a(f"s_mul_i32 {sT0}, {sT0}, {2*768}"); a(f"s_add_u32 {sR0}, {sT0}, {WS_Q}")
        a(f"v_lshrrev_b32 v8, 4, {vLANE}"); a("v_mul_u32_u24 v2, 768, v8"); a(f"v_and_b32 v9, 15, {vLANE}"); a("v_lshl_add_u32 v2, v9, 4, v2")
        a("v_lshlrev_b32 v8, 6, v8"); a(f"v_bfe_u32 v9, {vLANE}, 3, 1"); a("v_lshl_add_u32 v8, v9, 5, v8")
        a(f"v_and_b32 v9, 7, {vLANE}"); a("v_add_u32 v8, v8, v9"); a("v_lshlrev_b32 v24, 1, v8")
        if p.PS_QG > 127: a("s_sleep 127")
        self.poll([(8 + 4 * t, 4, "v2", sR0, 256 * t) for t in range(3)], active=lanes(32), sleep=p.QSLEEP, presleep=(p.PS_QG - 127 if p.PS_QG > 127 else p.PS_QG))
        self.sum_rows4([8, 12, 16])
        a("v_cvt_pk_bf16_f32 v12, v8, v9"); a("v_cvt_pk_bf16_f32 v13, v10, v11")
        a(f"ds_write_b16 v24, v12 offset:{L_Q}"); a(f"ds_write_b16_d16_hi v24, v12 offset:{L_Q + 16}")
        a(f"ds_write_b16 v24, v13 offset:{L_Q + 32}"); a(f"ds_write_b16_d16_hi v24, v13 offset:{L_Q + 48}")
        a("s_waitcnt lgkmcnt(0)")
        a("s_mov_b64 exec, 1")
        a(f"v_mov_b32 v8, {L_QFLAG}"); a("v_mov_b32 v9, 1"); a("ds_write_b32 v8, v9")
        a("s_mov_b64 exec, -1")
        if p.MODE != "fine": self.stamp(4, "all")
        a.label("L_noq")
        self.tail()

    def piece_off(self, dst, gam_v, tmp):
        a = self.a
        a(f"v_lshrrev_b32 {tmp}, 1, {gam_v}"); a(f"v_mul_u32_u24 {tmp}, 768, {tmp}")
        a(f"v_and_b32 {dst}, 1, {gam_v}"); a(f"v_lshl_add_u32 {tmp}, {dst}, 7, {tmp}")
        a(f"v_and_b32 {dst}, 7, {vLANE}"); a(f"v_lshl_add_u32 {dst}, {dst}, 4, {tmp}")
    def gather_mod(self, vecs, voff, dsts, active, tmp0=8, sleep=16):
        a = self.a
        loads = []
        for i, v in enumerate(vecs):
            for t in range(3): loads.append((tmp0 + 12 * i + 4 * t, 4, voff, WS_MOD + 9 * v * 768, 256 * t))
        self.poll(loads, active=active, sleep=sleep)
        for i, v in enumerate(vecs):
            b = tmp0 + 12 * i
            self.sum_rows4([b, b + 4, b + 8]); self.round4(b, "v61")
            for r in range(4): a(f"v_mov_b32 v{dsts[i]+r}, v{b+r}")
    def half_add(self, D, T):
        a = self.a
        for r in range(4): a(f"v_mov_b32 v{T+r}, v{D+r}")
        for r in range(4): a(f"v_permlane32_swap_b32 v{D+r}, v{T+r}")
        for r in range(4): a(f"v_add_f32_dpp v{D+r}, v{T+r}, v{D+r} row_ror:8 row_mask:0xf bank_mask:0xf")
    def dpiece_addr(self, vaddr, vt, base, rowbytes):
        a = self.a
        a(f"v_lshrrev_b32 {vaddr}, 5, {vLANE}"); a(f"v_mul_u32_u24 {vaddr}, {rowbytes}, {vaddr}")
        a(f"v_bfe_u32 {vt}, {vLANE}, 4, 1"); a(f"v_lshl_add_u32 {vaddr}, {vt}, 7, {vaddr}")
        a(f"v_and_b32 {vt}, 7, {vLANE}"); a(f"v_lshl_add_u32 {vaddr}, {vt}, 4, {vaddr}")
        a(f"s_mul_i32 {sT0}, {sHW}, {2*rowbytes}"); a(f"s_add_u32 {sT0}, {sT0}, {base}")
        a(f"v_add_u32 {vaddr}, {sT0}, {vaddr}")

    def tail(self):
        a = self.a; p = self.p
        L24 = lanes(24)
        UX, UGA, UC1, USB = 64, 68, 72, 76
        vUT, vUR, vUP, vUA = "v80", "v81", "v82", "v83"
        FX, FGA, FGB = 84, 88, 92
        MS = 72 * 6 * 256
        a.label("L_tail")
        a("s_setprio 0")
        self.lds_spin(L_QFLAG, target=1, sleep=8)
        a("s_cmp_lt_u32 s2, 72"); a("s_cbranch_scc1 L_wo")
        a("s_cmp_ge_u32 s2, 252"); a("s_cbranch_scc1 L_hexit")
        a("s_cmp_ge_u32 s2, 216"); a("s_cbranch_scc1 L_dbl")
        a(f"s_sub_u32 {sT2}, s2, 72"); self.div3("s6", "s7", sT2)
        a("s_branch L_uprep")
        a.label("L_dbl")
        a(f"s_sub_u32 {sT2}, s2, 216"); self.div3("s6", "s7", sT2); a("s_lshl_b32 s6, s6, 1"); a("s_add_u32 s6, s6, 48")
        a.label("L_uprep")
        a(f"s_lshr_b32 {sT0}, {sHW}, 1"); a("s_lshl_b32 s7, s7, 1"); a(f"s_add_u32 s7, s7, {sT0}")
        a(f"s_and_b32 s8, {sHW}, 1")
        a("s_mul_i32 s9, s7, 3")
        a(f"v_lshrrev_b32 v8, 3, {vLANE}"); a("v_add_u32 v8, s9, v8")
        self.piece_off("v2", "v8", "v9")
        a(f"v_lshlrev_b32 {vUA}, 7, v8"); a(f"v_and_b32 v9, 7, {vLANE}"); a(f"v_lshl_add_u32 {vUA}, v9, 4, {vUA}"); a(f"v_add_u32 {vUA}, {WS_ATT}, {vUA}")
        self.set_srd(SRD_B, sX, size=1152)
        a("v_lshlrev_b32 v8, 5, v8"); a("v_add_u32 v8, v8, v9"); a("v_lshlrev_b32 v8, 1, v8")
        for r in range(4): a(f"buffer_load_ushort v{UX+r}, v8, {srd(SRD_B)}, 0 offen offset:{16*r}")
        self.gather_mod([2, 4, 3], "v2", [UGA, UC1, USB], L24, sleep=4)
        a("s_mov_b64 exec, -1")
        for r in range(4): a(f"v_lshlrev_b32 v{UX+r}, 16, v{UX+r}")
        for r in range(4): a(f"v_add_f32 v{UC1+r}, 1.0, v{UC1+r}")
        self.round4(UC1, "v8")
        a(f"s_mul_i32 {sT0}, {sHW}, {TBLW}"); a(f"s_add_u32 {sT0}, {sT0}, {L_TBL}")
        a(f"v_and_b32 v8, 7, {vLANE}"); a(f"v_mul_u32_u24 {vUT}, 48, v8"); a(f"v_lshrrev_b32 v9, 3, {vLANE}"); a(f"v_lshl_add_u32 {vUT}, v9, 4, {vUT}"); a(f"v_add_u32 {vUT}, {sT0}, {vUT}")
        a(f"v_mul_u32_u24 {vUR}, 48, v9"); a(f"v_add_u32 {vUR}, {sT0}, {vUR}")
        a(f"v_lshrrev_b32 {vUP}, 4, {vLANE}"); a(f"v_lshlrev_b32 {vUP}, 7, {vUP}"); a(f"v_lshl_add_u32 {vUP}, v8, 4, {vUP}")
        a("s_mul_i32 s10, s8, 72"); a("s_add_u32 s10, s10, s6"); a("s_mul_i32 s10, s10, 6"); a("s_add_u32 s10, s10, s7"); a("s_lshl_b32 s10, s10, 8")
        a("s_cmp_eq_u32 s8, 0"); a(f"s_cselect_b32 s12, s{sWG}, s{sWU}"); a(f"s_cselect_b32 s13, s{sWG+1}, s{sWU+1}")
        a(f"s_lshl_b32 {sT2}, s6, 7")
        self.set_srd(SRD_C, 12, off=sT2, size_minus_off=576 * 9216)
        a("s_mul_i32 s11, s7, 96"); a(f"v_lshrrev_b32 v56, 3, {vLANE}"); a("v_add_u32 v56, s11, v56"); a("v_mul_u32_u24 v56, 9216, v56")
        a(f"v_and_b32 v8, 7, {vLANE}"); a("v_lshl_add_u32 v56, v8, 4, v56")
        a("s_cmp_ge_u32 s2, 216"); a("s_cbranch_scc1 L_finprep")
        a(f"s_sub_u32 s14, s2, 72")
        a(f"s_mul_i32 {sT2}, s14, {32*1152}"); self.set_srd(SRD_A, sWD, off=sT2, size=32 * 1152)
        a(f"s_lshl_b32 {sT0}, {sHW}, 3")
        a(f"v_lshrrev_b32 v57, 3, {vLANE}"); a(f"v_add_u32 v57, {sT0}, v57"); a("v_mul_u32_u24 v57, 1152, v57")
        a(f"v_and_b32 v8, 7, {vLANE}"); a("v_lshl_add_u32 v57, v8, 4, v57")
        a("s_lshr_b32 s15, s14, 1"); a("s_mul_i32 s15, s15, 1536"); a(f"s_and_b32 {sT0}, s14, 1"); a(f"s_lshl_b32 {sT0}, {sT0}, 7"); a(f"s_add_u32 s15, s15, {sT0}")
        a(f"s_lshl_b32 {sT0}, {sHW}, 2"); a(f"s_add_u32 s15, s15, {sT0}")
        a(f"v_and_b32 v8, 7, {vLANE}"); a("v_min_u32 v8, 5, v8"); a("v_lshlrev_b32 v58, 8, v8"); a(f"v_lshrrev_b32 v9, 3, {vLANE}"); a("v_lshl_add_u32 v58, v9, 4, v58"); a("v_add_u32 v58, s15, v58")
        a("v_lshlrev_b32 v59, 7, v8"); a(f"v_add_u32 v59, {WS_ST}, v59")
        self.dpiece_addr(f"v{FX}", "v8", L_DOWN, 2304)
        a(f"s_mul_i32 {sT0}, {sHW}, 48"); a(f"v_add_u32 v{FX+1}, {sT0}, {vLANE}"); a(f"v_lshlrev_b32 v{FX+1}, 4, v{FX+1}")
        a("s_mul_i32 s15, s14, 2304"); a(f"s_add_u32 s15, s15, {WS_OUT}")
        a("s_branch L_late")
        a.label("L_finprep")
        a("s_cmp_ge_u32 s2, 234"); a("s_cbranch_scc1 L_late")
        a(f"s_sub_u32 s14, s2, 216")
        self.set_srd(SRD_B, sX, size=1152)
        a(f"v_and_b32 v46, 7, {vLANE}")
        a("s_lshl_b32 s15, s14, 6"); a("v_lshlrev_b32 v8, 1, v46")
        for r in range(4): a(f"buffer_load_ushort v{FX+r}, v8, {srd(SRD_B)}, s15 offen offset:{16*r}")
        a("v_mov_b32 v8, s14"); self.piece_off("v2", "v8", "v9")
        self.gather_mod([2, 5], "v2", [FGA, FGB], FULL, sleep=4)
        for r in range(4): a(f"v_lshlrev_b32 v{FX+r}, 16, v{FX+r}")
        a.label("L_late")
        self.lds_spin(L_WCNT if p.WTRIG == "issued" else L_OCNT, target=4, sleep=2)
        self.stamp(5)
        a(f"s_mov_b32 {sT0}, 0")
        for t in range(12):
            a(f"buffer_load_dwordx4 a[{4*t}:{4*t+3}], v56, {srd(SRD_C)}, {sT0} offen nt")
            if t < 11: a(f"s_add_u32 {sT0}, {sT0}, {8*9216}")
        a("s_cmp_ge_u32 s2, 216"); a("s_cbranch_scc1 L_late2")
        for cb in range(9):
            a(f"buffer_load_dwordx4 a[{48+4*cb}:{51+4*cb}], v57, {srd(SRD_A)}, 0 offen offset:{128*cb} nt")
        a("s_setprio 3")
        a("s_waitcnt vmcnt(9)")
        a("s_branch L_unit")
        a.label("L_late2")
        a(f"s_mov_b32 {sT0}, 128")
        for t in range(12):
            a(f"buffer_load_dwordx4 a[{48+4*t}:{51+4*t}], v56, {srd(SRD_C)}, {sT0} offen nt")
            if t < 11: a(f"s_add_u32 {sT0}, {sT0}, {8*9216}")
        a("s_setprio 3")
        a("s_waitcnt vmcnt(0)")
        a.label("L_unit")
        cnt = [0]
        def unit_pass(src4, area):
            cnt[0] += 1; L = f"L_up{cnt[0]}"
            for k in range(4): a(f"v_cvt_pk_bf16_f32 v{8+k}, v{src4+k}, v{src4+k}")
            self.setexec(L24); a(f"ds_write_b128 {vUT}, v[8:11]"); a("s_mov_b64 exec, -1")
            self.tread(16, 3, vUR)
            for st_ in range(2):
                if st_ == 1:
                    a("s_cmp_lt_u32 s2, 216"); a(f"s_cbranch_scc1 {L}")
                self.gemv(12, 48 * st_, list(range(16, 28)), 36)
                self.half_add(36, 40)
                for r in range(4): a(f"v_bfi_b32 v{36+r}, {sFF}, {vTAG}, v{36+r}")
                a(f"s_add_u32 {sT0}, s10, {area + 1536 * st_}")
                self.setexec(0x00FF00FF); a(f"buffer_store_dwordx4 v[36:39], {vUP}, {srd(SRD_WS)}, {sT0} offen sc1"); a("s_mov_b64 exec, -1")
            a.label(L)
        unit_pass(UC1, WS_C)
        unit_pass(USB, WS_C + 2 * MS)
        self.stamp(1, "fine")
        loads = [(8 + 4 * k, 4, vUA, None if k < 2 else (k & ~1) * 2304, (k & 1) * 2304) for k in range(8)]
        self.poll(loads, active=L24)
        self.stamp(6)
        self.sum_rows4([8 + 4 * k for k in range(8)])
        a(f"v_pk_fma_f32 v[{UX}:{UX+1}], v[8:9], v[{UGA}:{UGA+1}], v[{UX}:{UX+1}]"); a(f"v_pk_fma_f32 v[{UX+2}:{UX+3}], v[10:11], v[{UGA+2}:{UGA+3}], v[{UX+2}:{UX+3}]")
        a(f"v_pk_mul_f32 v[{UC1}:{UC1+1}], v[{UX}:{UX+1}], v[{UC1}:{UC1+1}]"); a(f"v_pk_mul_f32 v[{UC1+2}:{UC1+3}], v[{UX+2}:{UX+3}], v[{UC1+2}:{UC1+3}]")
        a("s_mov_b64 exec, -1")
        unit_pass(UC1, WS_G)
        self.stamp(2, "fine")
        a("s_or_b32 s11, s6, s8"); a("s_cmp_lg_u32 s11, 0"); a("s_cbranch_scc1 L_nostat")
        a("v_mov_b32 v12, 0"); a("v_mov_b32 v13, 0")
        self.setexec(L24)
        a(f"v_pk_add_f32 v[14:15], v[{UX}:{UX+1}], v[{UX+2}:{UX+3}]"); a(f"v_pk_mul_f32 v[16:17], v[{UX}:{UX+1}], v[{UX}:{UX+1}]")
        a(f"v_pk_fma_f32 v[16:17], v[{UX+2}:{UX+3}], v[{UX+2}:{UX+3}], v[16:17]")
        a("v_add_f32 v12, v14, v15"); a("v_add_f32 v13, v16, v17")
        a("s_mov_b64 exec, -1")
        self.allreduceN("v_add_f32", [("v12", "v14"), ("v13", "v15")], ["q1", "q2", "r4", "r8", "p16"])
        a("v_mov_b32 v14, 0"); a("v_mov_b32 v15, 0")
        for c in range(4): a(f"v_bfi_b32 v{12+c}, {sFF}, {vTAG}, v{12+c}")
        a("s_lshl_b32 s11, s7, 7"); a(f"s_add_u32 s11, s11, {WS_ST}")
        a("s_mov_b64 exec, 1"); a(f"buffer_store_dwordx4 v[12:15], off, {srd(SRD_WS)}, s11 sc1"); a("s_mov_b64 exec, -1")
        a.label("L_nostat")
        a("s_cmp_ge_u32 s2, 234"); a("s_cbranch_scc1 L_hexit")
        a("s_cmp_ge_u32 s2, 216"); a("s_cbranch_scc1 L_fin")
        self.poll([(20, 1, "v58", WS_C, 0), (21, 1, "v58", WS_C + 2 * MS, 0), (22, 1, "v58", WS_C + MS, 0), (23, 1, "v58", WS_C + 3 * MS, 0)])
        self.lane6_reduce([20, 21, 22, 23], 12)
        self.poll([(8, 1, "v58", WS_G, 0), (9, 1, "v58", WS_G + MS, 0), (10, 2, "v59", None, 0)], presleep=p.PS_G)
        self.stamp(3, "fine")
        self.lane6_reduce([8, 9, 10, 11], 12)
        a(f"v_mul_f32 v10, {f32hex(1/576)}, v10"); a(f"v_mul_f32 v11, {f32hex(1/576)}, v11")
        a("v_fma_f32 v11, -v10, v10, v11"); a(f"v_add_f32 v11, {f32hex(1e-5)}, v11"); a("v_rsq_f32 v11, v11")
        a("v_fma_f32 v8, -v10, v20, v8"); a("v_fma_f32 v9, -v10, v22, v9")
        a("v_fma_f32 v8, v8, v11, v21"); a("v_fma_f32 v9, v9, v11, v23")
        self.sigmoid("v12", "v8", "v12")
        a("v_mul_f32 v8, v12, v9")
        a("v_cvt_pk_bf16_f32 v8, v8, v8")
        for r in range(4): a(f"v_and_b32 v{12+r}, v8, v{vM[r]}")
        for cb in range(9):
            d = 16 + 4 * cb
            a(f"v_mfma_f32_16x16x32_bf16 v[{d}:{d+3}], a[{48+4*cb}:{51+4*cb}], v[12:15], 0")
        self.setexec(self.VALID)
        for cb in range(9): a(f"ds_write_b128 v{FX}, v[{16+4*cb}:{19+4*cb}] offset:{256*cb}")
        a("s_mov_b64 exec, -1")
        a("s_waitcnt lgkmcnt(0)")
        a("s_barrier")
        a(f"s_cmp_ge_u32 {sHW}, 3"); a("s_cbranch_scc1 L_hexit")
        self.setexec(lanes(48))
        for k in range(8): a(f"ds_read_b128 v[{8+4*k}:{11+4*k}], v{FX+1} offset:{L_DOWN + 2304*k}")
        a("s_waitcnt lgkmcnt(0)")
        self.sum_rows4([8 + 4 * k for k in range(8)])
        for c in range(4): a(f"v_bfi_b32 v{8+c}, {sFF}, {vTAG}, v{8+c}")
        a(f"buffer_store_dwordx4 v[8:11], v{FX+1}, {srd(SRD_WS)}, s15 offen sc1")
        self.stamp(7)
        a("s_branch L_hexit")
        a.label("L_fin")
        a(f"v_and_b32 v46, 7, {vLANE}")
        a("s_lshl_b32 s15, s14, 7"); a("v_lshlrev_b32 v47, 4, v46"); a("v_add_u32 v47, s15, v47")
        a(f"v_lshrrev_b32 v8, 3, {vLANE}"); a("v_mul_u32_u24 v42, 2304, v8"); a("v_add_u32 v42, v42, v47"); a(f"v_add_u32 v42, {WS_ATT}, v42")
        a(f"s_mul_i32 {sT0}, {sHW}, 36"); a(f"v_add_u32 v8, {sT0}, v8"); a("v_mul_u32_u24 v43, 2304, v8"); a("v_add_u32 v43, v43, v47"); a(f"v_add_u32 v43, {WS_OUT}, v43")
        a(f"v_add_u32 v44, {4*8*2304}, v43"); a(f"v_cmp_gt_u32 vcc, 32, {vLANE}"); a("v_cndmask_b32 v44, v43, v44, vcc")
        a(f"s_lshl_b32 {sT0}, {sHW}, 7"); a(f"s_add_u32 {sT0}, {sT0}, {L_FIN}"); a("v_lshlrev_b32 v45, 4, v46"); a(f"v_add_u32 v40, {sT0}, v45")
        self.poll([(8, 4, "v42", None, 0)], sleep=1)
        self.allreduceN("v_add_f32", [(f"v{8+c}", f"v{12+c}") for c in range(4)], ["r8", "p16", "p32"])
        a(f"v_pk_fma_f32 v[{FX}:{FX+1}], v[8:9], v[{FGA}:{FGA+1}], v[{FX}:{FX+1}]"); a(f"v_pk_fma_f32 v[{FX+2}:{FX+3}], v[10:11], v[{FGA+2}:{FGA+3}], v[{FX+2}:{FX+3}]")
        self.set_srd(SRD_B, sOUT, size=1152)
        a("s_lshl_b32 s15, s14, 6"); a("v_lshlrev_b32 v49, 1, v46")
        self.stamp(3, "fine")
        self.poll([(8, 4, "v43", None, 0), (12, 4, "v43", 8*2304, 0), (16, 4, "v43", 16*2304, 0), (20, 4, "v43", 24*2304, 0), (24, 4, "v44", None, 0)], presleep=p.PS_OUT)
        a(f"v_cmp_gt_u32 vcc, 32, {vLANE}")
        self.sum_rows4([8, 12, 16, 20])
        for c in range(4): a(f"v_cndmask_b32 v{24+c}, 0, v{24+c}, vcc")
        self.sum_rows4([8, 24])
        self.allreduceN("v_add_f32", [(f"v{8+c}", f"v{12+c}") for c in range(4)], ["r8", "p16", "p32"])
        self.setexec(0xFF)
        a("ds_write_b128 v40, v[8:11]")
        a("s_mov_b64 exec, -1")
        a("s_waitcnt lgkmcnt(0)")
        a("s_barrier")
        a(f"s_cmp_lg_u32 {sHW}, 0"); a("s_cbranch_scc1 L_hexit")
        self.setexec(0xFF)
        for w in range(4): a(f"ds_read_b128 v[{8+4*w}:{11+4*w}], v45 offset:{L_FIN + 128*w}")
        a("s_waitcnt lgkmcnt(0)")
        self.sum_rows4([8, 12, 16, 20])
        a(f"v_pk_fma_f32 v[8:9], v[8:9], v[{FGB}:{FGB+1}], v[{FX}:{FX+1}]"); a(f"v_pk_fma_f32 v[10:11], v[10:11], v[{FGB+2}:{FGB+3}], v[{FX+2}:{FX+3}]")
        a("v_cvt_pk_bf16_f32 v12, v8, v9"); a("v_cvt_pk_bf16_f32 v13, v10, v11")
        a(f"buffer_store_short v12, v49, {srd(SRD_B)}, s15 offen"); a(f"buffer_store_short_d16_hi v12, v49, {srd(SRD_B)}, s15 offen offset:16")
        a(f"buffer_store_short v13, v49, {srd(SRD_B)}, s15 offen offset:32"); a(f"buffer_store_short_d16_hi v13, v49, {srd(SRD_B)}, s15 offen offset:48")
        self.stamp(7)
        a("s_cmp_lg_u32 s14, 0"); a("s_cbranch_scc1 L_hexit")
        a("s_mov_b64 exec, 1")
        a(f"v_mov_b32 v8, {sTAG}")
        a(f"buffer_store_dword v8, off, {srd(SRD_WS)}, 0 sc1")
        a("s_branch L_hexit")
        a.label("L_wo")
        a(f"s_and_b32 {sR0}, s2, 7"); a(f"s_lshr_b32 {sR1}, s2, 3")
        a(f"s_lshl_b32 {sT2}, {sR1}, 7")
        self.set_srd(SRD_A, sWO, off=sT2, size_minus_off=4096 * 1152)
        a(f"s_lshl_b32 {sR2}, {sR0}, 2"); a(f"s_add_u32 {sR2}, {sR2}, {sHW}")
        a(f"s_lshl_b32 {sT0}, {sR2}, 7")
        a(f"v_lshrrev_b32 v1, 3, {vLANE}"); a(f"v_add_u32 v1, {sT0}, v1"); a("v_mul_u32_u24 v1, 1152, v1")
        a(f"v_and_b32 v2, 7, {vLANE}"); a("v_lshl_add_u32 v1, v2, 4, v1")
        if p.WOEARLY:
            a(f"s_cmp_lg_u32 {sHW}, 0"); a("s_cbranch_scc1 L_wo_have")
        a(f"s_mov_b32 {sT0}, 0")
        for t in range(16):
            if t >= p.WOPACE: a(f"s_waitcnt vmcnt({p.WOPACE-1})")
            a(f"buffer_load_dwordx4 a[{96+4*t}:{99+4*t}], v1, {srd(SRD_A)}, {sT0} offen nt")
            if t < 15: a(f"s_add_u32 {sT0}, {sT0}, 9216")
        a.label("L_wo_have")
        a(f"s_mul_i32 s4, {sR2}, {8*OSLOT}"); a("s_add_u32 s4, s4, " + str(WS_O))
        a(f"s_mul_i32 {sT0}, {sR0}, 2304"); a(f"s_lshl_b32 {sT1}, {sR1}, 8"); a(f"s_add_u32 {sT0}, {sT0}, {sT1}"); a(f"s_add_u32 s5, {sT0}, {WS_ATT}")
        a(f"v_and_b32 v41, 7, {vLANE}"); a(f"v_mul_u32_u24 v41, {OSLOT}, v41")
        a(f"v_lshlrev_b32 v40, 3, {vLANE}")
        a(f"v_and_b32 v8, 3, {vLANE}"); a("v_mul_u32_u24 v8, 160, v8"); a(f"v_lshrrev_b32 v42, 2, {vLANE}"); a("v_lshl_add_u32 v42, v42, 2, v8")
        a(f"s_mul_i32 {sT0}, {sHW}, {TBLW}"); a(f"s_add_u32 {sT0}, {sT0}, {L_TBL}"); a(f"v_add_u32 v42, {sT0}, v42")
        self.taddr_r("v43", 20)
        self.dpiece_addr("v44", "v8", L_PART, 256)
        a(f"v_lshlrev_b32 v45, 4, {vLANE}")
        a("s_add_u32 s15, s4, 3200")
        self.poll([(8, 2, "v41", "s4", 512)], sleep=32)
        a(f"v_and_b32 v8, {sFFFF0000}, v8")
        a("v_mov_b32 v10, v8")
        self.allreduce("v_max_f32", "v10", "v11", ["q1", "q2", "hm"])
        a("v_sub_f32 v11, v8, v10"); a(f"v_mul_f32 v11, 0x{LOG2E:08x}, v11"); a("v_exp_f32 v11, v11")
        a("v_mul_f32 v12, v11, v9")
        self.allreduce("v_add_f32", "v12", "v13", ["q1", "q2", "hm"])
        a("v_rcp_f32 v12, v12"); a("v_mul_f32 v11, v11, v12")
        for s_ in range(8): a(f"v_mov_b32_dpp v{48+s_}, v11 row_newbcast:{s_} row_mask:0xf bank_mask:0xf")
        self.lds_spin(L_WCNT, target=4, sleep=2)
        a("s_setprio 3")
        self.stamp(5)
        self.poll([(8 + 2 * s_, 2, "v40", "s4" if s_ < 6 else "s15", s_ * OSLOT if s_ < 6 else (s_ - 5) * OSLOT) for s_ in range(8)])
        self.stamp(6, "wo")
        a("v_pk_mul_f32 v[24:25], v[8:9], v[48:49] op_sel_hi:[1,0]")
        a("v_pk_mul_f32 v[26:27], v[10:11], v[48:49] op_sel:[0,1]")
        for s_ in range(2, 8):
            d = 24 + 2 * (s_ & 1); w = 48 + (s_ & ~1)
            sel = "op_sel_hi:[1,0,1]" if (s_ & 1) == 0 else "op_sel:[0,1,0]"
            a(f"v_pk_fma_f32 v[{d}:{d+1}], v[{8+2*s_}:{9+2*s_}], v[{w}:{w+1}], v[{d}:{d+1}] {sel}")
        self.pk_add(24, 24, 26)
        a("v_cvt_pk_bf16_f32 v24, v24, v24"); a("v_cvt_pk_bf16_f32 v25, v25, v25")
        a("ds_write_b32 v42, v24"); a("ds_write_b32 v42, v25 offset:80")
        self.tread(16, 4, "v43")
        self.stamp(1, "wo")
        self.gemv(16, 96, list(range(16, 32)), 36)
        self.stamp(2, "wo")
        self.setexec(self.VALID); a("ds_write_b128 v44, v[36:39]"); a("s_mov_b64 exec, -1")
        a("s_waitcnt lgkmcnt(0)")
        a("s_barrier")
        self.stamp(3, "wo")
        a(f"s_cmp_lg_u32 {sHW}, 0"); a("s_cbranch_scc1 L_hexit")
        self.setexec(0xFFFF)
        for k in range(8): a(f"ds_read_b128 v[{8+4*k}:{11+4*k}], v45 offset:{L_PART + 256*k}")
        a("s_waitcnt lgkmcnt(0)")
        self.sum_rows4([8 + 4 * k for k in range(8)])
        for c in range(4): a(f"v_bfi_b32 v{8+c}, {sFF}, {vTAG}, v{8+c}")
        a(f"buffer_store_dwordx4 v[8:11], v45, {srd(SRD_WS)}, s5 offen sc1")
        self.stamp(7, "wo")
        a.label("L_hexit")
        self.dump_stamps()
        a("s_endpgm")

    def lane6_reduce(self, regs, T):
        a = self.a
        a(f"v_and_b32 v{T}, 7, {vLANE}"); a(f"v_cmp_gt_u32 vcc, 6, v{T}")
        for r in regs: a(f"v_cndmask_b32 v{r}, 0, v{r}, vcc")
        self.allreduceN("v_add_f32", [(f"v{r}", f"v{T}") for r in regs], ["q1", "q2", "hm"])

    def build(self):
        self.prologue(); self.swave(); self.hwave()
        self.a.label("L_exit"); self.a("s_endpgm")
        return autonop(self.a.lines)

HEADER = open("adaLN_cond__mha_block_cached__glu_gated_glu__decode.s.ref").read().split("; Override launch geometry")[0]

def make(p=P):
    body = Gen(p).build()
    txt = HEADER + "; Override launch geometry by editing the next line (default: block=256,\n; grid=ceil(out_elems/256), lds=0). Harness parses it; keep it on one line.\n"
    txt += f"; @launch grid=(256,1,1) block=(512,1,1) lds={LDS_BYTES}\n"
    txt += f""".amdgcn_target "amdgcn-amd-amdhsa--gfx950"
.text
.globl {KNAME}
.p2align 8
.type {KNAME},@function
{KNAME}:
"""
    txt += "\n".join(("" if l.endswith(":") else "    ") + l for l in body) + "\n"
    txt += f""".section .rodata,"a"
.p2align 6
.amdhsa_kernel {KNAME}
  .amdhsa_next_free_vgpr 256
  .amdhsa_next_free_sgpr 102
  .amdhsa_accum_offset {NVGPR}
  .amdhsa_group_segment_fixed_size 0
  .amdhsa_kernarg_size 112
  .amdhsa_user_sgpr_count 2
  .amdhsa_user_sgpr_kernarg_segment_ptr 1
  .amdhsa_system_sgpr_workgroup_id_x 1
.end_amdhsa_kernel
"""
    return txt

def report_h(pr, hw, mode):
    if mode == "pre":
        qs = hw[:192, 0]; mc = hw[192:246, 0]; mn = hw[72:180, 1]
        pr("H start", hw[:, :, 0])
        pr("modc: tag", mc[:, 1]); pr("modc: silu done", mc[:, 2]); pr("modc: gemv done", mc[:, 3]); pr("modc: pub complete", mc[:, 7])
        pr("modn: gemv done", mn[:, 3]); pr("modn: pub complete", mn[:, 7])
        pr("q: poll start", qs[:, 1]); pr("q: pollA done", qs[:, 2]); pr("q: gemv done", qs[:, 3]); pr("q: pub complete", qs[:, 7])
        pr("q gathered (H3)", hw[:, 3, 4])
    elif mode == "wo":
        w = hw[:72]
        pr("wo: poll start", w[:, :, 5]); pr("wo: gathered", w[:, :, 6]); pr("wo: tbl-gath", w[:, :, 1] - w[:, :, 6]); pr("wo: gemv", w[:, :, 2] - w[:, :, 1]); pr("wo: barrier passed", w[:, :, 3]); pr("wo: published", w[:, 0, 7])
    elif mode == "fine":
        u = hw[72:252]
        pr("late trigger", u[:, :, 5]); pr("unit: C done", u[:, :, 1]); pr("unit: attn gathered", u[:, :, 6]); pr("unit: G published", u[:, :, 2])
        pr("down: G gathered", hw[72:216, :, 3]); pr("down: published", hw[72:216, :3, 7]); pr("fin: x1", hw[216:234, :, 3]); pr("fin: done", hw[216:234, 0, 7])
    else:
        u = hw[72:252]
        pr("q gathered (H3)", hw[:, 3, 4])
        pr("late trigger", u[:, :, 5]); pr("unit: attn gathered", u[:, :, 6]); pr("down: published", hw[72:216, :3, 7]); pr("fin: done", hw[216:234, 0, 7])
def end_time(hw): return hw[216:234, 0, 7].max()

if __name__ == "__main__":
    out = sys.argv[1] if len(sys.argv) > 1 else "adaLN_cond__mha_block_cached__glu_gated_glu__decode.s"
    open(out, "w").write(make())
    print("wrote", out)
```

```python
import sys
from asmlib import Asm, autonop

KNAME = "adaLN_cond__mha_block_cached__glu_gated_glu__decode_kernel"

WS_EPOCH = 0
WS_O = 0x10000
OSLOT = 640
WS_ATT = 0x40000
WS_MOD = 0x80000
WS_Q = 0x90000
WS_OUT = 0xA0000
WS_G = 0x100000
WS_C = 0x140000
WS_ST = 0x1B0000
WS_DBG = 0x200000
WS_SIZE = 0x300000

L_QFLAG = 0
L_WCNT = 4
L_MLCNT = 8
L_OCNT = 12
L_Q = 0x40
L_ML = 0x180
L_STAT = 0x1C0
L_TBL = 0x200
TBLW = 768
L_PART = 0x1000
L_OPART = 0x1800
L_FIN = 0x2000
L_DOWN = 0x3000
LDS_BYTES = 0x8000

LOG2E = 0x3FB8AA3B
SCALE = 0x3DB504F3
SPIN_MAX = 200000
NVGPR = 96

class P:
    R = 44
    D = 6
    NP = 44
    STAMPS = False
    MODE = "tail"
    QSLEEP = 2
    WTRIG = 'done'
    FULLCHECK = True
    LATEMOD = False
    WOEARLY = True
    PS_A = 0
    SL_A = 1
    PS_QG = 0
    PS_G = 0
    PS_OUT = 0
    PS_Q = 0
    DEND = 0
    DENDAT = 32
    D2 = 0
    NEARLY = 0
    EPACE = 1
    WTHR = 0
    SPRIO = 2
    WOPACE = 2

def f32hex(x):
    import struct
    return "0x%08x" % struct.unpack("<I", struct.pack("<f", x))[0]

sWAVE = "s3"
sX, sK, sV, sWQ, sWO, sWG, sWU, sWD, sC, sWM, sOUT, sDBG, sWS = 16, 18, 20, 22, 24, 28, 30, 32, 34, 36, 38, 40, 42
SRD_A, SRD_B, SRD_WS, SRD_C = 44, 48, 52, 56
sTAG = "s64"
sT0, sT1, sT2, sT3 = "s65", "s66", "s67", "s68"
sSPIN = "s69"
sSAVE = 72
sHW = "s76"
sR0, sR1, sR2, sR3 = "s77", "s78", "s79", "s83"
sFFFF0000 = "s80"
sFF = "s81"
sSTAMP = 84
def srd(b): return f"s[{b}:{b+3}]"
def sp(b): return f"s[{b}:{b+1}]"
vLANE = "v3"
vM = [4, 5, 6, 7]
vTAG = "v60"
FULL = (1 << 64) - 1
def lanes(n): return (1 << n) - 1

class Gen:
    def __init__(self, p=P):
        self.a = Asm(); self.p = p

    def mask64(self, sreg, val):
        self.a(f"s_mov_b32 s{sreg}, 0x{val & 0xffffffff:08x}"); self.a(f"s_mov_b32 s{sreg+1}, 0x{(val >> 32) & 0xffffffff:08x}")
    def setexec(self, val):
        a = self.a
        if val == FULL: a("s_mov_b64 exec, -1")
        elif val <= 64: a(f"s_mov_b64 exec, {val}")
        elif val < (1 << 32): a(f"s_mov_b64 exec, 0x{val:x}")
        else:
            a(f"s_mov_b32 exec_lo, 0x{val & 0xffffffff:08x}"); a(f"s_mov_b32 exec_hi, 0x{(val >> 32) & 0xffffffff:08x}")
    def stamp(self, idx, mode="tail"):
        if self.p.STAMPS and (mode == self.p.MODE or mode == "all" or (mode == "tail" and self.p.MODE == "fine")):
            self.a(f"s_memrealtime s[{sSTAMP+2*idx}:{sSTAMP+2*idx+1}]")
    def dump_stamps(self, n=8):
        if not self.p.STAMPS: return
        a = self.a
        a("s_waitcnt lgkmcnt(0) vmcnt(0)")
        a("s_mov_b64 exec, 1")
        a(f"s_lshl_b32 {sT0}, s2, 3"); a(f"s_add_u32 {sT0}, {sT0}, {sWAVE}"); a(f"s_lshl_b32 {sT0}, {sT0}, 7")
        a(f"s_add_u32 {sT0}, {sT0}, {WS_DBG}")
        for i in range(n):
            a(f"v_mov_b32 v8, s{sSTAMP+2*i}"); a(f"v_mov_b32 v9, s{sSTAMP+2*i+1}")
            a(f"buffer_store_dwordx2 v[8:9], off, {srd(SRD_WS)}, {sT0} offset:{8*i}")
            a("s_waitcnt vmcnt(0)")
    def lds_spin(self, addr, target=1, vtmp="v61", vaddr="v62", sleep=1):
        a = self.a; L = a.uid("Lspin"); E = a.uid("Lspun")
        a(f"v_mov_b32 {vaddr}, {addr}")
        a(f"s_mov_b32 {sSPIN}, 0")
        a.label(L)
        a(f"ds_read_b32 {vtmp}, {vaddr}")
        a("s_waitcnt lgkmcnt(0)")
        a(f"v_readfirstlane_b32 {sT3}, {vtmp}")
        a(f"s_cmp_ge_u32 {sT3}, {target}")
        a(f"s_cbranch_scc1 {E}")
        if sleep: a(f"s_sleep {sleep}")
        a(f"s_add_u32 {sSPIN}, {sSPIN}, 1")
        a(f"s_cmp_lt_u32 {sSPIN}, {SPIN_MAX * 4}")
        a(f"s_cbranch_scc1 {L}")
        a.label(E)
    def lds_add1(self, addr, va, vb):
        a = self.a
        a("s_mov_b64 exec, 1")
        a(f"v_mov_b32 {va}, {addr}"); a(f"v_mov_b32 {vb}, 1"); a(f"ds_add_u32 {va}, {vb}")
        a("s_mov_b64 exec, -1")
    def poll(self, loads, active=None, sleep=0, tmps=("v61", "v62", "v63"), presleep=0):
        a = self.a; L = a.uid("Lpoll"); E = a.uid("Lpolled")
        t0, t1, t2 = tmps
        sMISS = "s70"
        if active is not None: self.setexec(active)
        if presleep: a(f"s_sleep {presleep}")
        def issue(ld):
            (dst, n, voff, soff, imm) = ld
            op = {1: "buffer_load_dword", 2: "buffer_load_dwordx2", 4: "buffer_load_dwordx4"}[n]
            r = f"v{dst}" if n == 1 else f"v[{dst}:{dst+n-1}]"
            if soff is not None and not str(soff).startswith("s"):
                a(f"s_mov_b32 {sT3}, {soff}"); so = sT3
            else: so = soff if soff is not None else "0"
            a(f"{op} {r}, {voff}, {srd(SRD_WS)}, {so} offen offset:{imm} sc1")
        def check(counted):
            nl = len(loads); pend = []
            first = True
            for li, ld in enumerate(loads):
                if counted: a(f"s_waitcnt vmcnt({nl-1-li})")
                full = self.p.FULLCHECK
                rr = [ld[0] + k for k in range(ld[1] if full else 1)]
                for r in rr:
                    if first: a(f"v_xor_b32 {t0}, {vTAG}, v{r}"); first = False
                    else:
                        pend.append(r)
                        if len(pend) == 2:
                            a(f"v_xor_b32 {t1}, {vTAG}, v{pend[0]}"); a(f"v_xor_b32 {t2}, {vTAG}, v{pend[1]}"); a(f"v_or3_b32 {t0}, {t0}, {t1}, {t2}"); pend = []
            if pend: a(f"v_xor_b32 {t1}, {vTAG}, v{pend[0]}"); a(f"v_or_b32 {t0}, {t0}, {t1}")
            a(f"v_and_b32 {t0}, 0xff, {t0}")
            a(f"v_cmp_ne_u32 vcc, 0, {t0}")
            a(f"s_cbranch_vccz {E}")
        for ld in loads: issue(ld)
        check(True)
        a(f"s_mov_b32 {sMISS}, {(1 << len(loads)) - 1}")
        a(f"s_mov_b32 {sSPIN}, 0")
        a.label(L)
        if len(loads) > 1:
            for li, ld in enumerate(loads):
                Lk = a.uid("Lk")
                a(f"v_xor_b32 {t0}, {vTAG}, v{ld[0]}")
                for k in range(1, ld[1]):
                    a(f"v_xor_b32 {t1}, {vTAG}, v{ld[0]+k}"); a(f"v_or_b32 {t0}, {t0}, {t1}")
                a(f"v_and_b32 {t0}, 0xff, {t0}")
                a(f"v_cmp_ne_u32 vcc, 0, {t0}")
                a(f"s_cbranch_vccnz {Lk}")
                a(f"s_bitset0_b32 {sMISS}, {li}")
                a.label(Lk)
        if sleep: a(f"s_sleep {sleep}")
        for li, ld in enumerate(loads):
            if len(loads) > 1:
                Lk = a.uid("Ls")
                a(f"s_bitcmp1_b32 {sMISS}, {li}"); a(f"s_cbranch_scc0 {Lk}")
                issue(ld); a.label(Lk)
            else: issue(ld)
        a("s_waitcnt vmcnt(0)")
        a(f"s_add_u32 {sSPIN}, {sSPIN}, 1")
        a(f"s_cmp_ge_u32 {sSPIN}, {SPIN_MAX}"); a(f"s_cbranch_scc1 {E}")
        check(False)
        a(f"s_branch {L}")
        a.label(E)
    def bf16_round(self, dst, src, tmp):
        self.a(f"v_cvt_pk_bf16_f32 {tmp}, {src}, {src}"); self.a(f"v_lshlrev_b32 {dst}, 16, {tmp}")
    def bf16_round2(self, d0, d1, s0, s1, tmp):
        a = self.a
        a(f"v_cvt_pk_bf16_f32 {tmp}, {s0}, {s1}"); a(f"v_lshlrev_b32 {d0}, 16, {tmp}"); a(f"v_and_b32 {d1}, {sFFFF0000}, {tmp}")
    def allreduce(self, op, v, t, steps):
        self.allreduceN(op, [(v, t)], steps)
    def allreduceN(self, op, vts, steps):
        a = self.a
        dpp = {"q1": "quad_perm:[1,0,3,2]", "q2": "quad_perm:[2,3,0,1]", "hm": "row_half_mirror", "r4": "row_ror:4", "r8": "row_ror:8"}
        for s in steps:
            if s in dpp:
                for (v, t) in vts: a(f"{op}_dpp {v}, {v}, {v} {dpp[s]} row_mask:0xf bank_mask:0xf")
            else:
                ins = "v_permlane16_swap_b32" if s == "p16" else "v_permlane32_swap_b32"
                for (v, t) in vts: a(f"v_mov_b32 {t}, {v}")
                for (v, t) in vts: a(f"{ins} {v}, {t}")
                for (v, t) in vts: a(f"{op} {v}, {v}, {t}")
    def pk_add(self, d, x, y): self.a(f"v_pk_add_f32 v[{d}:{d+1}], v[{x}:{x+1}], v[{y}:{y+1}]")
    def sum_rows4(self, bases):
        b = list(bases)
        while len(b) > 1:
            nb = []
            for i in range(0, len(b) - 1, 2):
                self.pk_add(b[i], b[i], b[i+1]); self.pk_add(b[i] + 2, b[i] + 2, b[i+1] + 2); nb.append(b[i])
            if len(b) % 2: nb.append(b[-1])
            b = nb
    def gemv(self, ntiles, abase, xx, D, bsets=(8, 12), waits=None):
        a = self.a
        def mkB(t):
            b = bsets[t & 1]
            for r in range(4): a(f"v_and_b32 v{b+r}, v{xx[t]}, v{vM[r]}")
        mkB(0)
        for t in range(ntiles):
            if t + 1 < ntiles: mkB(t + 1)
            if waits and t in waits: a(f"s_waitcnt vmcnt({waits[t]})")
            b = bsets[t & 1]
            c = "0" if t == 0 else f"v[{D}:{D+3}]"
            a(f"v_mfma_f32_16x16x32_bf16 v[{D}:{D+3}], a[{abase+4*t}:{abase+4*t+3}], v[{b}:{b+3}], {c}")
    def taddr_w(self, vaddr, vt, TS):
        a = self.a
        a(f"v_and_b32 {vt}, 1, {vLANE}"); a(f"v_mul_u32_u24 {vt}, {TS*16}, {vt}")
        a(f"v_lshrrev_b32 {vaddr}, 1, {vLANE}"); a(f"v_lshl_add_u32 {vaddr}, {vaddr}, 2, {vt}")
        a(f"s_mul_i32 {sT0}, {sHW}, {TBLW}"); a(f"s_add_u32 {sT0}, {sT0}, {L_TBL}")
        a(f"v_add_u32 {vaddr}, {sT0}, {vaddr}")
    def taddr_r(self, vaddr, TS):
        a = self.a
        a(f"v_lshrrev_b32 {vaddr}, 3, {vLANE}"); a(f"v_mul_u32_u24 {vaddr}, {TS*4}, {vaddr}")
        a(f"s_mul_i32 {sT0}, {sHW}, {TBLW}"); a(f"s_add_u32 {sT0}, {sT0}, {L_TBL}")
        a(f"v_add_u32 {vaddr}, {sT0}, {vaddr}")
    def twrite4(self, regs, vaddr, TS):
        for k in range(4): self.a(f"ds_write_b32 {vaddr}, v{regs[k]} offset:{k*TS*4}")
    def tread(self, first, nb128, vaddr):
        a = self.a
        a("s_waitcnt lgkmcnt(0)")
        for i in range(nb128): a(f"ds_read_b128 v[{first+4*i}:{first+4*i+3}], {vaddr} offset:{16*i}")
        a("s_waitcnt lgkmcnt(0)")
    VALID = 0xFF00FF0000FF00FF
    def paddr(self, vaddr, vt, base, rowlen):
        a = self.a
        a(f"v_lshrrev_b32 {vaddr}, 5, {vLANE}"); a(f"v_mul_u32_u24 {vaddr}, {rowlen*4}, {vaddr}")
        a(f"v_bfe_u32 {vt}, {vLANE}, 4, 1"); a(f"v_lshl_add_u32 {vaddr}, {vt}, 7, {vaddr}")
        a(f"v_and_b32 {vt}, 7, {vLANE}"); a(f"v_lshl_add_u32 {vaddr}, {vt}, 2, {vaddr}")
        a(f"s_mul_i32 {sT0}, {sHW}, {2*rowlen*4}"); a(f"s_add_u32 {sT0}, {sT0}, {base}")
        a(f"v_add_u32 {vaddr}, {sT0}, {vaddr}")
    def pwrite(self, D, vaddr, off=0):
        for r in range(4): self.a(f"ds_write_b32 {vaddr}, v{D+r} offset:{off + r*32}")
    def sigmoid(self, dst, v, t):
        a = self.a
        a(f"v_mul_f32 {t}, 0x{(LOG2E | 0x80000000):08x}, {v}"); a(f"v_exp_f32 {t}, {t}")
        a(f"v_add_f32 {t}, 1.0, {t}"); a(f"v_rcp_f32 {dst}, {t}")
    def unpack4(self, dst, src):
        a = self.a
        a(f"v_lshlrev_b32 v{dst}, 16, v{src}"); a(f"v_and_b32 v{dst+1}, {sFFFF0000}, v{src}")
        a(f"v_lshlrev_b32 v{dst+2}, 16, v{src+1}"); a(f"v_and_b32 v{dst+3}, {sFFFF0000}, v{src+1}")
    def round4(self, X, tmp):
        for k in (0, 2): self.bf16_round2(f"v{X+k}", f"v{X+k+1}", f"v{X+k}", f"v{X+k+1}", tmp)
    def set_srd(self, s, base, off=None, size=None, size_minus_off=None):
        a = self.a
        if off is None:
            a(f"s_mov_b32 s{s}, s{base}"); a(f"s_mov_b32 s{s+1}, s{base+1}")
        else:
            a(f"s_add_u32 s{s}, s{base}, {off}"); a(f"s_addc_u32 s{s+1}, s{base+1}, 0")
        if size_minus_off is not None: a(f"s_sub_u32 s{s+2}, {size_minus_off}, {off}")
        else: a(f"s_mov_b32 s{s+2}, {size}")
        a(f"s_mov_b32 s{s+3}, 0x20000")
    def div3(self, q, r, x):
        a = self.a
        a(f"s_mul_i32 {q}, {x}, 0x5556"); a(f"s_lshr_b32 {q}, {q}, 16")
        a(f"s_mul_i32 {r}, {q}, 3"); a(f"s_sub_u32 {r}, {x}, {r}")

    def prologue(self):
        a = self.a
        a("s_cmp_ge_u32 s2, 256"); a("s_cbranch_scc1 L_exit")
        self.stamp(0, "all")
        a("s_load_dwordx16 s[16:31], s[0:1], 0")
        a("s_load_dwordx8 s[32:39], s[0:1], 64")
        a("s_load_dwordx4 s[40:43], s[0:1], 96")
        a("v_lshrrev_b32 v1, 6, v0")
        a(f"v_and_b32 {vLANE}, 63, v0")
        a(f"v_readfirstlane_b32 {sWAVE}, v1")
        a(f"v_and_b32 v8, 1, {vLANE}"); a("v_cmp_eq_u32 vcc, 1, v8")
        a("v_mov_b32 v9, 0xffff"); a("v_mov_b32 v10, 0xffff0000")
        a("v_cndmask_b32 v9, v9, v10, vcc")
        a(f"v_bfe_u32 v8, {vLANE}, 1, 2")
        for r in range(4):
            a(f"v_cmp_eq_u32 vcc, {r}, v8"); a(f"v_cndmask_b32 v{vM[r]}, 0, v9, vcc")
        a(f"s_mov_b32 {sFFFF0000}, 0xffff0000"); a(f"s_mov_b32 {sFF}, 0xff")
        a("s_waitcnt lgkmcnt(0)")
        a(f"s_load_dword {sTAG}, s[{sWS}:{sWS+1}], 0")
        self.set_srd(SRD_WS, sWS, size=WS_SIZE)
        for q in (SRD_A, SRD_B, SRD_C): self.set_srd(q, sWS, size=0)
        a(f"s_cmp_ge_u32 {sWAVE}, 4"); a("s_cbranch_scc1 L_helper")
    def get_tag(self):
        a = self.a
        a("s_waitcnt lgkmcnt(0)")
        a(f"s_add_u32 {sTAG}, {sTAG}, 1")
        a(f"s_and_b32 {sT3}, {sTAG}, 0xff")
        a(f"v_mov_b32 {vTAG}, {sT3}")

    def swave(self):
        a = self.a; p = self.p
        R, D, NP = p.R, max(p.D, p.D2), p.NP
        Dlo = p.D
        vK, vV = "v1", "v2"
        B_T = 8; S = 24; DQ = (40, 44); DO = 48; T = 52
        vm, vl, vf = "v56", "v57", "v58"
        vOW, vPUB = "v64", "v65"
        if p.SPRIO: a(f"s_setprio {p.SPRIO}")
        a(f"s_lshl_b32 {sT0}, s2, 18")
        self.set_srd(SRD_A, sK, off=sT0, size=0x40000); self.set_srd(SRD_B, sV, off=sT0, size=0x40000)
        a(f"s_lshl_b32 {sT0}, {sWAVE}, 10")
        a(f"v_lshrrev_b32 v8, 4, {vLANE}"); a("v_lshlrev_b32 v8, 6, v8")
        a(f"v_bfe_u32 v9, {vLANE}, 2, 2"); a("v_lshl_add_u32 v8, v9, 8, v8")
        a(f"v_and_b32 v9, 3, {vLANE}"); a("v_lshl_add_u32 v8, v9, 4, v8")
        a(f"v_add_u32 {vK}, {sT0}, v8")
        a(f"v_lshlrev_b32 v9, 4, {vLANE}"); a(f"v_add_u32 {vV}, {sT0}, v9")
        N = 128
        def slot(i):
            k = i % R
            return f"a[{4*k}:{4*k+3}]" if k < 40 else f"v[{68+4*(k-40)}:{71+4*(k-40)}]"
        st = dict(issued=0)
        def issue(throttle=True):
            nonlocal D, Dlo
            i = st["issued"]
            if p.DEND and i >= 64 + p.DENDAT: D = Dlo = p.DEND
            if throttle and i >= Dlo and D != Dlo:
                L = a.uid("Lthr")
                a(f"s_cbranch_vccnz {L}"); a(f"s_waitcnt vmcnt({Dlo-1})"); a.label(L)
            if throttle and i >= D: a(f"s_waitcnt vmcnt({D-1})")
            a(f"s_mov_b32 {sT1}, {(i % 64) * 4096}")
            s_, v_ = (SRD_A, vK) if i < 64 else (SRD_B, vV)
            a(f"buffer_load_dwordx4 {slot(i)}, {v_}, {srd(s_)}, {sT1} offen nt")
            st["issued"] = i + 1
            if i == N - 1: self.lds_add1(L_WCNT, f"v{T}", f"v{T+1}")
        def need(tile): a(f"s_waitcnt vmcnt({st['issued'] - 1 - tile})")
        if D != Dlo:
            a("s_mov_b64 vcc, 0"); a("s_cmp_lt_u32 s2, 72"); a("s_cbranch_scc1 L_vset"); a("s_cmp_ge_u32 s2, 216"); a("s_cbranch_scc1 L_vset")
            a("s_mov_b64 vcc, -1"); a.label("L_vset")
        self.stamp(3, "start")
        for _ in range(min(Dlo, NP)): issue(False)
        self.stamp(4, "start")
        a("s_barrier")
        self.stamp(5, "start")
        if p.STAMPS and p.MODE == "start":
            a(f"s_waitcnt vmcnt({D-1})"); self.stamp(6, "start")
        a(f"v_lshrrev_b32 v8, 4, {vLANE}"); a("v_lshlrev_b32 v8, 7, v8")
        a(f"v_and_b32 v9, 7, {vLANE}"); a("v_lshl_add_u32 v8, v9, 2, v8")
        a(f"s_lshl_b32 {sT0}, {sWAVE}, 9"); a(f"s_add_u32 {sT0}, {sT0}, {L_OPART}")
        a(f"v_add_u32 {vOW}, {sT0}, v8")
        a(f"v_lshlrev_b32 {vPUB}, 4, {vLANE}")
        mT = [6, 8, 10, 12]; m1, m3, m23 = 14, 4, 62
        for t in range(4): self.mask64(mT[t], 0x000F000F000F000F << (4 * t))
        self.mask64(m1, 0x2222222222222222); self.mask64(m3, 0x8888888888888888); self.mask64(m23, 0xCCCCCCCCCCCCCCCC)
        while st["issued"] < NP: issue()
        self.stamp(1, "all")
        self.get_tag()
        self.lds_spin(L_QFLAG)
        self.stamp(2, "all")
        a(f"v_lshrrev_b32 v{T}, 4, {vLANE}"); a(f"v_lshlrev_b32 v{T}, 6, v{T}")
        a(f"v_and_b32 v{T+1}, 3, {vLANE}"); a(f"v_lshl_add_u32 v{T}, v{T+1}, 4, v{T}")
        a(f"ds_read_b128 v[{T+4}:{T+7}], v{T} offset:{L_Q}")
        a("s_waitcnt lgkmcnt(0)")
        for t in range(4):
            for k in range(4): a(f"v_cndmask_b32 v{B_T+4*t+k}, 0, v{T+4+k}, {sp(mT[t])}")
        def qk_mfma(g):
            d = DQ[g & 1]; need(4 * g + 3)
            for t in range(4):
                c = "0" if t == 0 else f"v[{d}:{d+3}]"
                a(f"v_mfma_f32_16x16x32_bf16 v[{d}:{d+3}], {slot(4*g+t)}, v[{B_T+4*t}:{B_T+4*t+3}], {c}")
        def qk_post(g):
            d = DQ[g & 1]
            a(f"v_cndmask_b32 v{T}, v{d}, v{d+1}, {sp(m1)}")
            a(f"v_cndmask_b32 v{T+1}, v{d+2}, v{d+3}, {sp(m3)}")
            a(f"v_cndmask_b32 v{T}, v{T}, v{T+1}, {sp(m23)}")
            a(f"v_add_f32_dpp v{T+1}, v{T}, v{T} quad_perm:[1,0,3,2] row_mask:0xf bank_mask:0xf")
            a(f"v_add_f32_dpp v{S+g}, v{T+1}, v{T+1} quad_perm:[2,3,0,1] row_mask:0xf bank_mask:0xf")
        g = 0
        while g < 16:
            lag = st["issued"] - 4 * g
            qk_mfma(g)
            if g > 0: qk_post(g - 1)
            g += 1
            free = 4 * g + R - st["issued"]
            nissue = (1 if (g % 3 == 0) else 0) if lag > D + 8 else 4
            for _ in range(min(nissue, free)):
                if st["issued"] < N: issue()
        qk_post(15)
        self.stamp(3, "tail")
        for _ in range(3): issue(False)
        a(f"s_mov_b32 {sT0}, 0x{SCALE:08x}")
        for k in range(0, 16, 2):
            x, y = f"v{S+k}", f"v{S+k+1}"; t = f"v{T + (k // 2) % 4}"
            a(f"v_cvt_pk_bf16_f32 {t}, {x}, {y}")
            a(f"v_lshlrev_b32 {x}, 16, {t}"); a(f"v_and_b32 {y}, {sFFFF0000}, {t}")
            a(f"v_mul_f32 {x}, {sT0}, {x}"); a(f"v_mul_f32 {y}, {sT0}, {y}")
            a(f"v_cvt_pk_bf16_f32 {t}, {x}, {y}")
            a(f"v_lshlrev_b32 {x}, 16, {t}"); a(f"v_and_b32 {y}, {sFFFF0000}, {t}")
        a(f"v_max3_f32 {vm}, v{S}, v{S+1}, v{S+2}")
        for k in range(3, 15, 2): a(f"v_max3_f32 {vm}, {vm}, v{S+k}, v{S+k+1}")
        a(f"v_max_f32 {vm}, {vm}, v{S+15}")
        self.allreduce("v_max_f32", vm, f"v{T}", ["r4", "r8", "p16", "p32"])
        a(f"s_mov_b32 {sT0}, 0x{LOG2E:08x}")
        a(f"v_mul_f32 v{T+3}, {sT0}, {vm}")
        for k in range(16): a(f"v_fma_f32 v{S+k}, v{S+k}, {sT0}, -v{T+3}")
        for k in range(16): a(f"v_exp_f32 v{S+k}, v{S+k}")
        a(f"v_add_f32 {vl}, v{S}, v{S+1}")
        for k in range(2, 16): a(f"v_add_f32 {vl}, {vl}, v{S+k}")
        for k in range(16): a(f"v_cvt_pk_bf16_f32 v{S+k}, v{S+k}, v{S+k}")
        self.allreduce("v_add_f32", vl, f"v{T}", ["r4", "r8", "p16", "p32"])
        a("s_mov_b64 exec, 1")
        a(f"s_lshl_b32 {sT0}, {sWAVE}, 3"); a(f"s_add_u32 {sT0}, {sT0}, {L_ML}")
        a(f"v_mov_b32 v{T}, {sT0}"); a(f"ds_write_b64 v{T}, v[56:57]")
        a(f"v_mov_b32 v{T}, {L_MLCNT}"); a(f"v_mov_b32 v{T+1}, 1"); a(f"ds_add_u32 v{T}, v{T+1}")
        a("s_mov_b64 exec, -1")
        self.stamp(4, "tail")
        BV = (8, 12)
        def mkB(vi):
            g_, t_ = vi >> 2, vi & 3; b = BV[vi & 1]
            for r in range(4): a(f"v_and_b32_dpp v{b+r}, v{S+g_}, v{vM[r]} row_newbcast:{4*t_} row_mask:0xf bank_mask:0xf")
        def ml_exchange():
            self.lds_spin(L_MLCNT, target=4)
            a(f"v_mov_b32 v16, {L_ML}")
            a("ds_read_b128 v[20:23], v16"); a("ds_read_b128 v[40:43], v16 offset:16")
            a("s_waitcnt lgkmcnt(0)")
            a("v_max3_f32 v16, v20, v22, v40"); a("v_max_f32 v16, v16, v42")
            a(f"s_mov_b32 {sT0}, 0x{LOG2E:08x}")
            a(f"v_sub_f32 {vf}, {vm}, v16"); a(f"v_mul_f32 {vf}, {sT0}, {vf}"); a(f"v_exp_f32 {vf}, {vf}")
            L = a.uid("Lnoml")
            a(f"s_cmp_lg_u32 {sWAVE}, 0"); a(f"s_cbranch_scc1 {L}")
            for i, r in enumerate((20, 22, 40, 42)):
                a(f"v_sub_f32 v{r}, v{r}, v16"); a(f"v_mul_f32 v{r}, {sT0}, v{r}"); a(f"v_exp_f32 v{r}, v{r}")
            a("v_mul_f32 v17, v20, v21"); a("v_fmac_f32 v17, v22, v23"); a("v_fmac_f32 v17, v40, v41"); a("v_fmac_f32 v17, v42, v43")
            a("v_mov_b32 v18, 0"); a("v_mov_b32 v19, 0")
            for c in range(4): a(f"v_bfi_b32 v{16+c}, {sFF}, {vTAG}, v{16+c}")
            a(f"s_mul_i32 {sT0}, s2, {OSLOT}"); a(f"s_add_u32 {sT0}, {sT0}, {WS_O + 512}")
            a("s_mov_b64 exec, 1")
            a(f"buffer_store_dwordx4 v[16:19], off, {srd(SRD_WS)}, {sT0} sc1")
            a("s_mov_b64 exec, -1")
            st["extra_wave0"] = True
            a.label(L)
        mkB(0)
        for vi in range(64):
            if vi + 1 < 64: mkB(vi + 1)
            tile = 64 + vi
            while st["issued"] < N and st["issued"] - tile < (p.DEND if (p.DEND and st["issued"] >= 64 + p.DENDAT) else D) + 1: issue()
            need(tile)
            b = BV[vi & 1]
            c = "0" if vi == 0 else f"v[{DO}:{DO+3}]"
            a(f"v_mfma_f32_16x16x32_bf16 v[{DO}:{DO+3}], {slot(tile)}, v[{b}:{b+3}], {c}")
            if vi == 12:
                ml_exchange()
        self.stamp(5, "tail")
        for r in range(4): a(f"v_mul_f32 v{DO+r}, {vf}, v{DO+r}")
        self.setexec(0x00FF00FF00FF00FF)
        for r in range(4): a(f"ds_write_b32 {vOW}, v{DO+r} offset:{32*r}")
        a("s_mov_b64 exec, 1")
        a(f"v_mov_b32 v8, {L_OCNT}"); a("v_mov_b32 v9, 1"); a("ds_add_rtn_u32 v9, v8, v9")
        a(f"s_mul_i32 {sT0}, s2, {OSLOT}"); a(f"s_add_u32 {sT0}, {sT0}, {WS_O}")
        a("s_waitcnt lgkmcnt(0)")
        a(f"v_readfirstlane_b32 {sT1}, v9")
        a(f"s_cmp_lg_u32 {sT1}, 3"); a("s_cbranch_scc1 L_sdone")
        self.setexec(lanes(32))
        for w in range(4): a(f"ds_read_b128 v[{12+4*w}:{15+4*w}], {vPUB} offset:{L_OPART + 512*w}")
        a("s_waitcnt lgkmcnt(0)")
        self.sum_rows4([12, 16, 20, 24])
        for c in range(4): a(f"v_bfi_b32 v{12+c}, {sFF}, {vTAG}, v{12+c}")
        a(f"buffer_store_dwordx4 v[12:15], {vPUB}, {srd(SRD_WS)}, {sT0} offen sc1")
        self.stamp(6, "tail")
        a.label("L_sdone")
        self.dump_stamps()
        a("s_endpgm")

    def unit_loads(self, stride_s, tau_s):
        a = self.a
        a(f"s_mul_i32 {sT0}, {tau_s}, 192")
        a(f"v_lshrrev_b32 v1, 3, {vLANE}"); a(f"v_add_u32 v1, {sT0}, v1")
        a(f"v_mul_lo_u32 v1, v1, {stride_s}")
        a(f"v_and_b32 v2, 7, {vLANE}"); a("v_lshl_add_u32 v1, v2, 4, v1")
        a(f"s_lshl_b32 {sT1}, {stride_s}, 3"); a(f"s_mov_b32 {sT0}, 0")
        for t in range(24):
            a(f"buffer_load_dwordx4 a[{4*t}:{4*t+3}], v1, {srd(SRD_A)}, {sT0} offen nt")
            if t < 23: a(f"s_add_u32 {sT0}, {sT0}, {sT1}")

    def hwave(self):
        a = self.a; p = self.p
        a.label("L_helper")
        a("s_setprio 3")
        a(f"s_sub_u32 {sHW}, {sWAVE}, 4")
        a("s_mov_b32 s71, 0")
        for r in list(range(40, 60)) + list(range(80, 90)): a(f"v_mov_b32 v{r}, 0")
        if p.WOEARLY:
            a("s_cmp_ge_u32 s2, 72"); a("s_cbranch_scc1 L_nowoearly")
            a(f"s_cmp_eq_u32 {sHW}, 0"); a("s_cbranch_scc1 L_nowoearly")
            a(f"s_and_b32 {sT0}, s2, 7"); a(f"s_lshr_b32 {sT1}, s2, 3"); a(f"s_lshl_b32 {sT2}, {sT1}, 7")
            self.set_srd(SRD_C, sWO, off=sT2, size_minus_off=4096 * 1152)
            a(f"s_lshl_b32 {sT0}, {sT0}, 2"); a(f"s_add_u32 {sT0}, {sT0}, {sHW}"); a(f"s_lshl_b32 {sT0}, {sT0}, 7")
            a(f"v_lshrrev_b32 v1, 3, {vLANE}"); a(f"v_add_u32 v1, {sT0}, v1"); a("v_mul_u32_u24 v1, 1152, v1")
            a(f"v_and_b32 v2, 7, {vLANE}"); a("v_lshl_add_u32 v1, v2, 4, v1")
            a("s_setprio 0")
            a(f"s_mov_b32 {sT0}, 0")
            for t in range(16):
                a(f"buffer_load_dwordx4 a[{96+4*t}:{99+4*t}], v1, {srd(SRD_C)}, {sT0} offen nt")
                if t < 15: a(f"s_add_u32 {sT0}, {sT0}, 9216")
            a("s_setprio 3")
            a.label("L_nowoearly")
        a(f"s_cmp_eq_u32 {sHW}, 0"); a("s_cbranch_scc1 L_h0")
        a(f"s_cmp_eq_u32 {sHW}, 1"); a("s_cbranch_scc1 L_h1")
        a(f"s_cmp_lg_u32 {sHW}, 2"); a("s_cbranch_scc1 L_nounit")
        a(f"v_lshlrev_b32 v8, 2, {vLANE}"); a("v_mov_b32 v9, 0")
        self.setexec(0xFFFF); a("ds_write_b32 v8, v9"); a("s_mov_b64 exec, -1"); a("s_waitcnt lgkmcnt(0)")
        a("s_branch L_nounit")
        a.label("L_h0")
        a("s_cmp_lt_u32 s2, 192"); a("s_cbranch_scc1 L_qunit")
        a("s_cmp_ge_u32 s2, 246"); a("s_cbranch_scc1 L_nounit")
        a(f"s_sub_u32 {sT2}, s2, 192"); self.div3(sR0, sR1, sT2)
        a("s_branch L_munit")
        a.label("L_h1")
        a("s_cmp_lt_u32 s2, 72"); a("s_cbranch_scc1 L_nounit")
        a("s_cmp_ge_u32 s2, 180"); a("s_cbranch_scc1 L_nounit")
        a(f"s_sub_u32 {sT2}, s2, 72"); self.div3(sR0, sR1, sT2); a(f"s_add_u32 {sR0}, {sR0}, 18")
        if p.LATEMOD:
            a("s_barrier")
            self.lds_spin(L_QFLAG, target=1, sleep=8)
            a("s_setprio 0")
            a("s_mov_b32 s71, 1")
        a.label("L_munit")
        a(f"s_lshl_b32 {sT2}, {sR0}, 7")
        self.set_srd(SRD_A, sWM, off=sT2, size_minus_off=576 * 6912)
        self.set_srd(SRD_B, sC, size=1152)
        a(f"s_mul_i32 {sT0}, {sR1}, 384"); a(f"v_lshlrev_b32 v8, 3, {vLANE}")
        a(f"buffer_load_dwordx2 v[40:41], v8, {srd(SRD_B)}, {sT0} offen")
        a(f"s_mov_b32 {sR2}, 6912")
        self.unit_loads(sR2, sR1)
        a("s_cmp_eq_u32 s71, 1"); a("s_cbranch_scc1 L_mnobar")
        a("s_barrier")
        a.label("L_mnobar")
        self.get_tag()
        self.stamp(1, "pre")
        a(f"s_mul_i32 {sR2}, {sR0}, 3"); a(f"s_add_u32 {sR2}, {sR2}, {sR1}"); a(f"s_lshl_b32 {sR2}, {sR2}, 8"); a(f"s_add_u32 {sR2}, {sR2}, {WS_MOD}")
        self.taddr_w("v2", "v8", 24)
        a("s_waitcnt vmcnt(24)")
        self.unpack4(44, 40)
        for k in range(4): self.sigmoid(f"v{48+k}", f"v{44+k}", f"v{48+k}")
        for k in range(4): a(f"v_mul_f32 v{44+k}, v{44+k}, v{48+k}")
        for k in range(4): a(f"v_cvt_pk_bf16_f32 v{44+k}, v{44+k}, v{44+k}")
        self.setexec(lanes(48)); self.twrite4([44, 45, 46, 47], "v2", 24); a("s_mov_b64 exec, -1")
        self.stamp(2, "pre")
        a("s_branch L_unit_gemv")
        a.label("L_qunit")
        self.div3(sR0, sR1, "s2")
        a(f"s_lshl_b32 {sT2}, {sR0}, 7")
        self.set_srd(SRD_A, sWQ, off=sT2, size_minus_off=576 * 8192)
        self.set_srd(SRD_B, sX, size=1152)
        a(f"v_lshrrev_b32 v8, 3, {vLANE}"); a("v_lshlrev_b32 v8, 5, v8"); a(f"v_and_b32 v9, 7, {vLANE}"); a("v_add_u32 v8, v8, v9"); a("v_lshlrev_b32 v8, 1, v8")
        a(f"s_mul_i32 {sT0}, {sR1}, 384")
        for r in range(4): a(f"buffer_load_ushort v{44+r}, v8, {srd(SRD_B)}, {sT0} offen offset:{16*r}")
        a(f"v_lshlrev_b32 v9, 5, {vLANE}")
        a(f"buffer_load_dwordx4 v[16:19], v9, {srd(SRD_B)}, 0 offen")
        a(f"buffer_load_dwordx4 v[20:23], v9, {srd(SRD_B)}, 0 offen offset:16")
        a(f"s_mov_b32 {sR2}, 8192")
        self.unit_loads(sR2, sR1)
        a("s_barrier")
        self.get_tag()
        a(f"s_mul_i32 {sR2}, {sR0}, 3"); a(f"s_add_u32 {sR2}, {sR2}, {sR1}"); a(f"s_lshl_b32 {sR2}, {sR2}, 8"); a(f"s_add_u32 {sR2}, {sR2}, {WS_Q}")
        a(f"s_mul_i32 {sT0}, {sR1}, 6"); a(f"v_lshrrev_b32 v8, 3, {vLANE}"); a(f"v_add_u32 v8, {sT0}, v8")
        a("v_lshrrev_b32 v9, 1, v8"); a("v_mul_u32_u24 v9, 768, v9")
        a("v_and_b32 v8, 1, v8"); a("v_lshl_add_u32 v9, v8, 7, v9")
        a(f"v_and_b32 v8, 7, {vLANE}"); a("v_lshl_add_u32 v50, v8, 4, v9")
        a(f"v_mul_u32_u24 v51, 96, v8"); a(f"v_lshrrev_b32 v9, 3, {vLANE}"); a("v_lshl_add_u32 v51, v9, 4, v51")
        a(f"v_add_u32 v51, {L_TBL}, v51")
        a("s_waitcnt vmcnt(24)")
        for r in range(4): a(f"v_lshlrev_b32 v{44+r}, 16, v{44+r}")
        for i in range(8):
            a(f"v_lshlrev_b32 v{24+2*i}, 16, v{16+i}"); a(f"v_and_b32 v{25+2*i}, {sFFFF0000}, v{16+i}")
        a("v_add_f32 v48, v24, v25")
        for i in range(2, 16): a(f"v_add_f32 v48, v48, v{24+i}")
        self.allreduce("v_add_f32", "v48", "v49", ["q1", "q2", "r4", "r8", "p16", "p32"])
        a(f"v_mul_f32 v48, {f32hex(1/576)}, v48")
        for i in range(16): a(f"v_sub_f32 v{24+i}, v{24+i}, v48")
        a("v_mul_f32 v49, v24, v24")
        for i in range(1, 16): a(f"v_fmac_f32 v49, v{24+i}, v{24+i}")
        a(f"v_cmp_gt_u32 vcc, 36, {vLANE}"); a("v_cndmask_b32 v49, 0, v49, vcc")
        self.allreduce("v_add_f32", "v49", "v52", ["q1", "q2", "r4", "r8", "p16", "p32"])
        a(f"v_mul_f32 v49, {f32hex(1/576)}, v49")
        self.bf16_round2("v48", "v49", "v48", "v49", "v52")
        a(f"v_add_f32 v49, {f32hex(1e-5)}, v49"); self.bf16_round("v49", "v49", "v52")
        a("v_sqrt_f32 v49, v49"); self.bf16_round("v49", "v49", "v52"); a("v_rcp_f32 v49, v49")
        for k in range(4): a(f"v_sub_f32 v{44+k}, v{44+k}, v48")
        self.round4(44, "v52")
        for k in range(4): a(f"v_mul_f32 v{44+k}, v{44+k}, v49")
        self.round4(44, "v52")
        self.stamp(1, "pre")
        self.poll([(8 + 4 * t, 4, "v50", WS_MOD, 256 * t) for t in range(3)] + [(20 + 4 * t, 4, "v50", WS_MOD + 9 * 768, 256 * t) for t in range(3)],
                  active=lanes(48), sleep=p.SL_A, presleep=p.PS_A)
        self.stamp(2, "pre")
        self.sum_rows4([8, 12, 16]); self.sum_rows4([20, 24, 28])
        self.round4(8, "v52"); self.round4(20, "v53")
        for k in range(4): a(f"v_add_f32 v{20+k}, 1.0, v{20+k}")
        self.round4(20, "v52")
        for k in range(4): a(f"v_mul_f32 v{44+k}, v{44+k}, v{20+k}")
        self.round4(44, "v52")
        for k in range(4): a(f"v_add_f32 v{44+k}, v{44+k}, v{8+k}")
        for k in range(4): a(f"v_cvt_pk_bf16_f32 v{44+k}, v{44+k}, v{44+k}")
        a("ds_write_b128 v51, v[44:47]")
        a("s_mov_b64 exec, -1")
        a.label("L_unit_gemv")
        self.taddr_r("v2", 24)
        self.tread(16, 6, "v2")
        self.gemv(24, 0, list(range(16, 40)), 40, waits={0: 20, 4: 16, 8: 12, 12: 8, 16: 4, 20: 0})
        self.stamp(3, "pre")
        a(f"v_lshrrev_b32 v2, 4, {vLANE}"); a("v_lshlrev_b32 v2, 7, v2"); a(f"v_and_b32 v8, 7, {vLANE}"); a("v_lshl_add_u32 v2, v8, 4, v2")
        for r in range(4): a(f"v_mov_b32 v{44+r}, v{40+r}")
        for r in range(4): a(f"v_permlane32_swap_b32 v{40+r}, v{44+r}")
        for r in range(4): a(f"v_add_f32_dpp v{40+r}, v{44+r}, v{40+r} row_ror:8 row_mask:0xf bank_mask:0xf")
        for r in range(4): a(f"v_bfi_b32 v{40+r}, {sFF}, {vTAG}, v{40+r}")
        self.setexec(0x00FF00FF)
        a(f"buffer_store_dwordx4 v[40:43], v2, {srd(SRD_WS)}, {sR2} offen sc1")
        a("s_mov_b64 exec, -1")
        if p.STAMPS and p.MODE == "pre":
            a("s_waitcnt vmcnt(0)")
        self.stamp(7, "pre")
        a("s_branch L_pre_done")
        a.label("L_nounit")
        a("s_barrier")
        self.get_tag()
        a.label("L_pre_done")
        a(f"s_cmp_lg_u32 {sHW}, 3"); a("s_cbranch_scc1 L_noq")
        a(f"s_lshr_b32 {sT0}, s2, 3"); a(f"s_mul_i32 {sT0}, {sT0}, {2*768}"); a(f"s_add_u32 {sR0}, {sT0}, {WS_Q}")
        a(f"v_lshrrev_b32 v8, 4, {vLANE}"); a("v_mul_u32_u24 v2, 768, v8"); a(f"v_and_b32 v9, 15, {vLANE}"); a("v_lshl_add_u32 v2, v9, 4, v2")
        a("v_lshlrev_b32 v8, 6, v8"); a(f"v_bfe_u32 v9, {vLANE}, 3, 1"); a("v_lshl_add_u32 v8, v9, 5, v8")
        a(f"v_and_b32 v9, 7, {vLANE}"); a("v_add_u32 v8, v8, v9"); a("v_lshlrev_b32 v24, 1, v8")
        if p.PS_QG > 127: a("s_sleep 127")
        self.poll([(8 + 4 * t, 4, "v2", sR0, 256 * t) for t in range(3)], active=lanes(32), sleep=p.QSLEEP, presleep=(p.PS_QG - 127 if p.PS_QG > 127 else p.PS_QG))
        self.sum_rows4([8, 12, 16])
        a("v_cvt_pk_bf16_f32 v12, v8, v9"); a("v_cvt_pk_bf16_f32 v13, v10, v11")
        a(f"ds_write_b16 v24, v12 offset:{L_Q}"); a(f"ds_write_b16_d16_hi v24, v12 offset:{L_Q + 16}")
        a(f"ds_write_b16 v24, v13 offset:{L_Q + 32}"); a(f"ds_write_b16_d16_hi v24, v13 offset:{L_Q + 48}")
        a("s_waitcnt lgkmcnt(0)")
        a("s_mov_b64 exec, 1")
        a(f"v_mov_b32 v8, {L_QFLAG}"); a("v_mov_b32 v9, 1"); a("ds_write_b32 v8, v9")
        a("s_mov_b64 exec, -1")
        if p.MODE != "fine": self.stamp(4, "all")
        a.label("L_noq")
        self.tail()

    def piece_off(self, dst, gam_v, tmp):
        a = self.a
        a(f"v_lshrrev_b32 {tmp}, 1, {gam_v}"); a(f"v_mul_u32_u24 {tmp}, 768, {tmp}")
        a(f"v_and_b32 {dst}, 1, {gam_v}"); a(f"v_lshl_add_u32 {tmp}, {dst}, 7, {tmp}")
        a(f"v_and_b32 {dst}, 7, {vLANE}"); a(f"v_lshl_add_u32 {dst}, {dst}, 4, {tmp}")
    def gather_mod(self, vecs, voff, dsts, active, tmp0=8, sleep=16):
        a = self.a
        loads = []
        for i, v in enumerate(vecs):
            for t in range(3): loads.append((tmp0 + 12 * i + 4 * t, 4, voff, WS_MOD + 9 * v * 768, 256 * t))
        self.poll(loads, active=active, sleep=sleep)
        for i, v in enumerate(vecs):
            b = tmp0 + 12 * i
            self.sum_rows4([b, b + 4, b + 8]); self.round4(b, "v61")
            for r in range(4): a(f"v_mov_b32 v{dsts[i]+r}, v{b+r}")
    def half_add(self, D, T):
        a = self.a
        for r in range(4): a(f"v_mov_b32 v{T+r}, v{D+r}")
        for r in range(4): a(f"v_permlane32_swap_b32 v{D+r}, v{T+r}")
        for r in range(4): a(f"v_add_f32_dpp v{D+r}, v{T+r}, v{D+r} row_ror:8 row_mask:0xf bank_mask:0xf")
    def dpiece_addr(self, vaddr, vt, base, rowbytes):
        a = self.a
        a(f"v_lshrrev_b32 {vaddr}, 5, {vLANE}"); a(f"v_mul_u32_u24 {vaddr}, {rowbytes}, {vaddr}")
        a(f"v_bfe_u32 {vt}, {vLANE}, 4, 1"); a(f"v_lshl_add_u32 {vaddr}, {vt}, 7, {vaddr}")
        a(f"v_and_b32 {vt}, 7, {vLANE}"); a(f"v_lshl_add_u32 {vaddr}, {vt}, 4, {vaddr}")
        a(f"s_mul_i32 {sT0}, {sHW}, {2*rowbytes}"); a(f"s_add_u32 {sT0}, {sT0}, {base}")
        a(f"v_add_u32 {vaddr}, {sT0}, {vaddr}")

    def tail(self):
        a = self.a; p = self.p
        L24 = lanes(24)
        UX, UGA, UC1, USB = 64, 68, 72, 76
        vUT, vUR, vUP, vUA = "v80", "v81", "v82", "v83"
        FX, FGA, FGB = 84, 88, 92
        MS = 72 * 6 * 256
        a.label("L_tail")
        a("s_setprio 0")
        self.lds_spin(L_QFLAG, target=1, sleep=8)
        a("s_cmp_lt_u32 s2, 72"); a("s_cbranch_scc1 L_wo")
        a("s_cmp_ge_u32 s2, 252"); a("s_cbranch_scc1 L_hexit")
        a("s_cmp_ge_u32 s2, 216"); a("s_cbranch_scc1 L_dbl")
        a(f"s_sub_u32 {sT2}, s2, 72"); self.div3("s6", "s7", sT2)
        a("s_branch L_uprep")
        a.label("L_dbl")
        a(f"s_sub_u32 {sT2}, s2, 216"); self.div3("s6", "s7", sT2); a("s_lshl_b32 s6, s6, 1"); a("s_add_u32 s6, s6, 48")
        a.label("L_uprep")
        a(f"s_lshr_b32 {sT0}, {sHW}, 1"); a("s_lshl_b32 s7, s7, 1"); a(f"s_add_u32 s7, s7, {sT0}")
        a(f"s_and_b32 s8, {sHW}, 1")
        a("s_mul_i32 s9, s7, 3")
        a(f"v_lshrrev_b32 v8, 3, {vLANE}"); a("v_add_u32 v8, s9, v8")
        self.piece_off("v2", "v8", "v9")
        a(f"v_lshlrev_b32 {vUA}, 7, v8"); a(f"v_and_b32 v9, 7, {vLANE}"); a(f"v_lshl_add_u32 {vUA}, v9, 4, {vUA}"); a(f"v_add_u32 {vUA}, {WS_ATT}, {vUA}")
        self.set_srd(SRD_B, sX, size=1152)
        a("v_lshlrev_b32 v8, 5, v8"); a("v_add_u32 v8, v8, v9"); a("v_lshlrev_b32 v8, 1, v8")
        for r in range(4): a(f"buffer_load_ushort v{UX+r}, v8, {srd(SRD_B)}, 0 offen offset:{16*r}")
        self.gather_mod([2, 4, 3], "v2", [UGA, UC1, USB], L24, sleep=4)
        a("s_mov_b64 exec, -1")
        for r in range(4): a(f"v_lshlrev_b32 v{UX+r}, 16, v{UX+r}")
        for r in range(4): a(f"v_add_f32 v{UC1+r}, 1.0, v{UC1+r}")
        self.round4(UC1, "v8")
        a(f"s_mul_i32 {sT0}, {sHW}, {TBLW}"); a(f"s_add_u32 {sT0}, {sT0}, {L_TBL}")
        a(f"v_and_b32 v8, 7, {vLANE}"); a(f"v_mul_u32_u24 {vUT}, 48, v8"); a(f"v_lshrrev_b32 v9, 3, {vLANE}"); a(f"v_lshl_add_u32 {vUT}, v9, 4, {vUT}"); a(f"v_add_u32 {vUT}, {sT0}, {vUT}")
        a(f"v_mul_u32_u24 {vUR}, 48, v9"); a(f"v_add_u32 {vUR}, {sT0}, {vUR}")
        a(f"v_lshrrev_b32 {vUP}, 4, {vLANE}"); a(f"v_lshlrev_b32 {vUP}, 7, {vUP}"); a(f"v_lshl_add_u32 {vUP}, v8, 4, {vUP}")
        a("s_mul_i32 s10, s8, 72"); a("s_add_u32 s10, s10, s6"); a("s_mul_i32 s10, s10, 6"); a("s_add_u32 s10, s10, s7"); a("s_lshl_b32 s10, s10, 8")
        a("s_cmp_eq_u32 s8, 0"); a(f"s_cselect_b32 s12, s{sWG}, s{sWU}"); a(f"s_cselect_b32 s13, s{sWG+1}, s{sWU+1}")
        a(f"s_lshl_b32 {sT2}, s6, 7")
        self.set_srd(SRD_C, 12, off=sT2, size_minus_off=576 * 9216)
        a("s_mul_i32 s11, s7, 96"); a(f"v_lshrrev_b32 v56, 3, {vLANE}"); a("v_add_u32 v56, s11, v56"); a("v_mul_u32_u24 v56, 9216, v56")
        a(f"v_and_b32 v8, 7, {vLANE}"); a("v_lshl_add_u32 v56, v8, 4, v56")
        a("s_cmp_ge_u32 s2, 216"); a("s_cbranch_scc1 L_finprep")
        a(f"s_sub_u32 s14, s2, 72")
        a(f"s_mul_i32 {sT2}, s14, {32*1152}"); self.set_srd(SRD_A, sWD, off=sT2, size=32 * 1152)
        a(f"s_lshl_b32 {sT0}, {sHW}, 3")
        a(f"v_lshrrev_b32 v57, 3, {vLANE}"); a(f"v_add_u32 v57, {sT0}, v57"); a("v_mul_u32_u24 v57, 1152, v57")
        a(f"v_and_b32 v8, 7, {vLANE}"); a("v_lshl_add_u32 v57, v8, 4, v57")
        a("s_lshr_b32 s15, s14, 1"); a("s_mul_i32 s15, s15, 1536"); a(f"s_and_b32 {sT0}, s14, 1"); a(f"s_lshl_b32 {sT0}, {sT0}, 7"); a(f"s_add_u32 s15, s15, {sT0}")
        a(f"s_lshl_b32 {sT0}, {sHW}, 2"); a(f"s_add_u32 s15, s15, {sT0}")
        a(f"v_and_b32 v8, 7, {vLANE}"); a("v_min_u32 v8, 5, v8"); a("v_lshlrev_b32 v58, 8, v8"); a(f"v_lshrrev_b32 v9, 3, {vLANE}"); a("v_lshl_add_u32 v58, v9, 4, v58"); a("v_add_u32 v58, s15, v58")
        a("v_lshlrev_b32 v59, 7, v8"); a(f"v_add_u32 v59, {WS_ST}, v59")
        self.dpiece_addr(f"v{FX}", "v8", L_DOWN, 2304)
        a(f"s_mul_i32 {sT0}, {sHW}, 48"); a(f"v_add_u32 v{FX+1}, {sT0}, {vLANE}"); a(f"v_lshlrev_b32 v{FX+1}, 4, v{FX+1}")
        a("s_mul_i32 s15, s14, 2304"); a(f"s_add_u32 s15, s15, {WS_OUT}")
        a("s_branch L_late")
        a.label("L_finprep")
        a("s_cmp_ge_u32 s2, 234"); a("s_cbranch_scc1 L_late")
        a(f"s_sub_u32 s14, s2, 216")
        self.set_srd(SRD_B, sX, size=1152)
        a(f"v_and_b32 v46, 7, {vLANE}")
        a("s_lshl_b32 s15, s14, 6"); a("v_lshlrev_b32 v8, 1, v46")
        for r in range(4): a(f"buffer_load_ushort v{FX+r}, v8, {srd(SRD_B)}, s15 offen offset:{16*r}")
        a("v_mov_b32 v8, s14"); self.piece_off("v2", "v8", "v9")
        self.gather_mod([2, 5], "v2", [FGA, FGB], FULL, sleep=4)
        for r in range(4): a(f"v_lshlrev_b32 v{FX+r}, 16, v{FX+r}")
        a.label("L_late")
        self.lds_spin(L_WCNT if p.WTRIG == "issued" else L_OCNT, target=4, sleep=2)
        self.stamp(5)
        a(f"s_mov_b32 {sT0}, 0")
        for t in range(12):
            a(f"buffer_load_dwordx4 a[{4*t}:{4*t+3}], v56, {srd(SRD_C)}, {sT0} offen nt")
            if t < 11: a(f"s_add_u32 {sT0}, {sT0}, {8*9216}")
        a("s_cmp_ge_u32 s2, 216"); a("s_cbranch_scc1 L_late2")
        for cb in range(9):
            a(f"buffer_load_dwordx4 a[{48+4*cb}:{51+4*cb}], v57, {srd(SRD_A)}, 0 offen offset:{128*cb} nt")
        a("s_setprio 3")
        a("s_waitcnt vmcnt(9)")
        a("s_branch L_unit")
        a.label("L_late2")
        a(f"s_mov_b32 {sT0}, 128")
        for t in range(12):
            a(f"buffer_load_dwordx4 a[{48+4*t}:{51+4*t}], v56, {srd(SRD_C)}, {sT0} offen nt")
            if t < 11: a(f"s_add_u32 {sT0}, {sT0}, {8*9216}")
        a("s_setprio 3")
        a("s_waitcnt vmcnt(0)")
        a.label("L_unit")
        cnt = [0]
        def unit_pass(src4, area):
            cnt[0] += 1; L = f"L_up{cnt[0]}"
            for k in range(4): a(f"v_cvt_pk_bf16_f32 v{8+k}, v{src4+k}, v{src4+k}")
            self.setexec(L24); a(f"ds_write_b128 {vUT}, v[8:11]"); a("s_mov_b64 exec, -1")
            self.tread(16, 3, vUR)
            for st_ in range(2):
                if st_ == 1:
                    a("s_cmp_lt_u32 s2, 216"); a(f"s_cbranch_scc1 {L}")
                self.gemv(12, 48 * st_, list(range(16, 28)), 36)
                self.half_add(36, 40)
                for r in range(4): a(f"v_bfi_b32 v{36+r}, {sFF}, {vTAG}, v{36+r}")
                a(f"s_add_u32 {sT0}, s10, {area + 1536 * st_}")
                self.setexec(0x00FF00FF); a(f"buffer_store_dwordx4 v[36:39], {vUP}, {srd(SRD_WS)}, {sT0} offen sc1"); a("s_mov_b64 exec, -1")
            a.label(L)
        unit_pass(UC1, WS_C)
        unit_pass(USB, WS_C + 2 * MS)
        self.stamp(1, "fine")
        loads = [(8 + 4 * k, 4, vUA, None if k < 2 else (k & ~1) * 2304, (k & 1) * 2304) for k in range(8)]
        self.poll(loads, active=L24)
        self.stamp(6)
        self.sum_rows4([8 + 4 * k for k in range(8)])
        a(f"v_pk_fma_f32 v[{UX}:{UX+1}], v[8:9], v[{UGA}:{UGA+1}], v[{UX}:{UX+1}]"); a(f"v_pk_fma_f32 v[{UX+2}:{UX+3}], v[10:11], v[{UGA+2}:{UGA+3}], v[{UX+2}:{UX+3}]")
        a(f"v_pk_mul_f32 v[{UC1}:{UC1+1}], v[{UX}:{UX+1}], v[{UC1}:{UC1+1}]"); a(f"v_pk_mul_f32 v[{UC1+2}:{UC1+3}], v[{UX+2}:{UX+3}], v[{UC1+2}:{UC1+3}]")
        a("s_mov_b64 exec, -1")
        unit_pass(UC1, WS_G)
        self.stamp(2, "fine")
        a("s_or_b32 s11, s6, s8"); a("s_cmp_lg_u32 s11, 0"); a("s_cbranch_scc1 L_nostat")
        a("v_mov_b32 v12, 0"); a("v_mov_b32 v13, 0")
        self.setexec(L24)
        a(f"v_pk_add_f32 v[14:15], v[{UX}:{UX+1}], v[{UX+2}:{UX+3}]"); a(f"v_pk_mul_f32 v[16:17], v[{UX}:{UX+1}], v[{UX}:{UX+1}]")
        a(f"v_pk_fma_f32 v[16:17], v[{UX+2}:{UX+3}], v[{UX+2}:{UX+3}], v[16:17]")
        a("v_add_f32 v12, v14, v15"); a("v_add_f32 v13, v16, v17")
        a("s_mov_b64 exec, -1")
        self.allreduceN("v_add_f32", [("v12", "v14"), ("v13", "v15")], ["q1", "q2", "r4", "r8", "p16"])
        a("v_mov_b32 v14, 0"); a("v_mov_b32 v15, 0")
        for c in range(4): a(f"v_bfi_b32 v{12+c}, {sFF}, {vTAG}, v{12+c}")
        a("s_lshl_b32 s11, s7, 7"); a(f"s_add_u32 s11, s11, {WS_ST}")
        a("s_mov_b64 exec, 1"); a(f"buffer_store_dwordx4 v[12:15], off, {srd(SRD_WS)}, s11 sc1"); a("s_mov_b64 exec, -1")
        a.label("L_nostat")
        a("s_cmp_ge_u32 s2, 234"); a("s_cbranch_scc1 L_hexit")
        a("s_cmp_ge_u32 s2, 216"); a("s_cbranch_scc1 L_fin")
        self.poll([(20, 1, "v58", WS_C, 0), (21, 1, "v58", WS_C + 2 * MS, 0), (22, 1, "v58", WS_C + MS, 0), (23, 1, "v58", WS_C + 3 * MS, 0)])
        self.lane6_reduce([20, 21, 22, 23], 12)
        self.poll([(8, 1, "v58", WS_G, 0), (9, 1, "v58", WS_G + MS, 0), (10, 4, "v59", None, 0)], presleep=p.PS_G)
        self.stamp(3, "fine")
        self.lane6_reduce([8, 9, 10, 11], 14)
        a(f"v_mul_f32 v10, {f32hex(1/576)}, v10"); a(f"v_mul_f32 v11, {f32hex(1/576)}, v11")
        a("v_fma_f32 v11, -v10, v10, v11"); a(f"v_add_f32 v11, {f32hex(1e-5)}, v11"); a("v_rsq_f32 v11, v11")
        a("v_fma_f32 v8, -v10, v20, v8"); a("v_fma_f32 v9, -v10, v22, v9")
        a("v_fma_f32 v8, v8, v11, v21"); a("v_fma_f32 v9, v9, v11, v23")
        self.sigmoid("v12", "v8", "v12")
        a("v_mul_f32 v8, v12, v9")
        a("v_cvt_pk_bf16_f32 v8, v8, v8")
        for r in range(4): a(f"v_and_b32 v{12+r}, v8, v{vM[r]}")
        for cb in range(9):
            d = 16 + 4 * cb
            a(f"v_mfma_f32_16x16x32_bf16 v[{d}:{d+3}], a[{48+4*cb}:{51+4*cb}], v[12:15], 0")
        self.setexec(self.VALID)
        for cb in range(9): a(f"ds_write_b128 v{FX}, v[{16+4*cb}:{19+4*cb}] offset:{256*cb}")
        a("s_mov_b64 exec, -1")
        a("s_waitcnt lgkmcnt(0)")
        a("s_barrier")
        a(f"s_cmp_ge_u32 {sHW}, 3"); a("s_cbranch_scc1 L_hexit")
        self.setexec(lanes(48))
        for k in range(8): a(f"ds_read_b128 v[{8+4*k}:{11+4*k}], v{FX+1} offset:{L_DOWN + 2304*k}")
        a("s_waitcnt lgkmcnt(0)")
        self.sum_rows4([8 + 4 * k for k in range(8)])
        for c in range(4): a(f"v_bfi_b32 v{8+c}, {sFF}, {vTAG}, v{8+c}")
        a(f"buffer_store_dwordx4 v[8:11], v{FX+1}, {srd(SRD_WS)}, s15 offen sc1")
        self.stamp(7)
        a("s_branch L_hexit")
        a.label("L_fin")
        a(f"v_and_b32 v46, 7, {vLANE}")
        a("s_lshl_b32 s15, s14, 7"); a("v_lshlrev_b32 v47, 4, v46"); a("v_add_u32 v47, s15, v47")
        a(f"v_lshrrev_b32 v8, 3, {vLANE}"); a("v_mul_u32_u24 v42, 2304, v8"); a("v_add_u32 v42, v42, v47"); a(f"v_add_u32 v42, {WS_ATT}, v42")
        a(f"s_mul_i32 {sT0}, {sHW}, 36"); a(f"v_add_u32 v8, {sT0}, v8"); a("v_mul_u32_u24 v43, 2304, v8"); a("v_add_u32 v43, v43, v47"); a(f"v_add_u32 v43, {WS_OUT}, v43")
        a(f"v_add_u32 v44, {4*8*2304}, v43"); a(f"v_cmp_gt_u32 vcc, 32, {vLANE}"); a("v_cndmask_b32 v44, v43, v44, vcc")
        a(f"s_lshl_b32 {sT0}, {sHW}, 7"); a(f"s_add_u32 {sT0}, {sT0}, {L_FIN}"); a("v_lshlrev_b32 v45, 4, v46"); a(f"v_add_u32 v40, {sT0}, v45")
        self.poll([(8, 4, "v42", None, 0)], sleep=1)
        self.allreduceN("v_add_f32", [(f"v{8+c}", f"v{12+c}") for c in range(4)], ["r8", "p16", "p32"])
        a(f"v_pk_fma_f32 v[{FX}:{FX+1}], v[8:9], v[{FGA}:{FGA+1}], v[{FX}:{FX+1}]"); a(f"v_pk_fma_f32 v[{FX+2}:{FX+3}], v[10:11], v[{FGA+2}:{FGA+3}], v[{FX+2}:{FX+3}]")
        self.set_srd(SRD_B, sOUT, size=1152)
        a("s_lshl_b32 s15, s14, 6"); a("v_lshlrev_b32 v49, 1, v46")
        self.stamp(3, "fine")
        self.poll([(8, 4, "v43", None, 0), (12, 4, "v43", 8*2304, 0), (16, 4, "v43", 16*2304, 0), (20, 4, "v43", 24*2304, 0), (24, 4, "v44", None, 0)], presleep=p.PS_OUT)
        a(f"v_cmp_gt_u32 vcc, 32, {vLANE}")
        self.sum_rows4([8, 12, 16, 20])
        for c in range(4): a(f"v_cndmask_b32 v{24+c}, 0, v{24+c}, vcc")
        self.sum_rows4([8, 24])
        self.allreduceN("v_add_f32", [(f"v{8+c}", f"v{12+c}") for c in range(4)], ["r8", "p16", "p32"])
        self.setexec(0xFF)
        a("ds_write_b128 v40, v[8:11]")
        a("s_mov_b64 exec, -1")
        a("s_waitcnt lgkmcnt(0)")
        a("s_barrier")
        a(f"s_cmp_lg_u32 {sHW}, 0"); a("s_cbranch_scc1 L_hexit")
        self.setexec(0xFF)
        for w in range(4): a(f"ds_read_b128 v[{8+4*w}:{11+4*w}], v45 offset:{L_FIN + 128*w}")
        a("s_waitcnt lgkmcnt(0)")
        self.sum_rows4([8, 12, 16, 20])
        a(f"v_pk_fma_f32 v[8:9], v[8:9], v[{FGB}:{FGB+1}], v[{FX}:{FX+1}]"); a(f"v_pk_fma_f32 v[10:11], v[10:11], v[{FGB+2}:{FGB+3}], v[{FX+2}:{FX+3}]")
        a("v_cvt_pk_bf16_f32 v12, v8, v9"); a("v_cvt_pk_bf16_f32 v13, v10, v11")
        a(f"buffer_store_short v12, v49, {srd(SRD_B)}, s15 offen"); a(f"buffer_store_short_d16_hi v12, v49, {srd(SRD_B)}, s15 offen offset:16")
        a(f"buffer_store_short v13, v49, {srd(SRD_B)}, s15 offen offset:32"); a(f"buffer_store_short_d16_hi v13, v49, {srd(SRD_B)}, s15 offen offset:48")
        self.stamp(7)
        a("s_cmp_lg_u32 s14, 0"); a("s_cbranch_scc1 L_hexit")
        a("s_mov_b64 exec, 1")
        a(f"v_mov_b32 v8, {sTAG}")
        a(f"buffer_store_dword v8, off, {srd(SRD_WS)}, 0 sc1")
        a("s_branch L_hexit")
        a.label("L_wo")
        a(f"s_and_b32 {sR0}, s2, 7"); a(f"s_lshr_b32 {sR1}, s2, 3")
        a(f"s_lshl_b32 {sT2}, {sR1}, 7")
        self.set_srd(SRD_A, sWO, off=sT2, size_minus_off=4096 * 1152)
        a(f"s_lshl_b32 {sR2}, {sR0}, 2"); a(f"s_add_u32 {sR2}, {sR2}, {sHW}")
        a(f"s_lshl_b32 {sT0}, {sR2}, 7")
        a(f"v_lshrrev_b32 v1, 3, {vLANE}"); a(f"v_add_u32 v1, {sT0}, v1"); a("v_mul_u32_u24 v1, 1152, v1")
        a(f"v_and_b32 v2, 7, {vLANE}"); a("v_lshl_add_u32 v1, v2, 4, v1")
        if p.WOEARLY:
            a(f"s_cmp_lg_u32 {sHW}, 0"); a("s_cbranch_scc1 L_wo_have")
        a(f"s_mov_b32 {sT0}, 0")
        for t in range(16):
            if t >= p.WOPACE: a(f"s_waitcnt vmcnt({p.WOPACE-1})")
            a(f"buffer_load_dwordx4 a[{96+4*t}:{99+4*t}], v1, {srd(SRD_A)}, {sT0} offen nt")
            if t < 15: a(f"s_add_u32 {sT0}, {sT0}, 9216")
        a.label("L_wo_have")
        a(f"s_mul_i32 s4, {sR2}, {8*OSLOT}"); a("s_add_u32 s4, s4, " + str(WS_O))
        a(f"s_mul_i32 {sT0}, {sR0}, 2304"); a(f"s_lshl_b32 {sT1}, {sR1}, 8"); a(f"s_add_u32 {sT0}, {sT0}, {sT1}"); a(f"s_add_u32 s5, {sT0}, {WS_ATT}")
        a(f"v_and_b32 v41, 7, {vLANE}"); a(f"v_mul_u32_u24 v41, {OSLOT}, v41")
        a(f"v_lshlrev_b32 v40, 3, {vLANE}")
        a(f"v_and_b32 v8, 3, {vLANE}"); a("v_mul_u32_u24 v8, 160, v8"); a(f"v_lshrrev_b32 v42, 2, {vLANE}"); a("v_lshl_add_u32 v42, v42, 2, v8")
        a(f"s_mul_i32 {sT0}, {sHW}, {TBLW}"); a(f"s_add_u32 {sT0}, {sT0}, {L_TBL}"); a(f"v_add_u32 v42, {sT0}, v42")
        self.taddr_r("v43", 20)
        self.dpiece_addr("v44", "v8", L_PART, 256)
        a(f"v_lshlrev_b32 v45, 4, {vLANE}")
        a("s_add_u32 s15, s4, 3200")
        self.poll([(8, 4, "v41", "s4", 512)], sleep=32)
        a(f"v_and_b32 v8, {sFFFF0000}, v8")
        a("v_mov_b32 v10, v8")
        self.allreduce("v_max_f32", "v10", "v11", ["q1", "q2", "hm"])
        a("v_sub_f32 v11, v8, v10"); a(f"v_mul_f32 v11, 0x{LOG2E:08x}, v11"); a("v_exp_f32 v11, v11")
        a("v_mul_f32 v12, v11, v9")
        self.allreduce("v_add_f32", "v12", "v13", ["q1", "q2", "hm"])
        a("v_rcp_f32 v12, v12"); a("v_mul_f32 v11, v11, v12")
        for s_ in range(8): a(f"v_mov_b32_dpp v{48+s_}, v11 row_newbcast:{s_} row_mask:0xf bank_mask:0xf")
        self.lds_spin(L_WCNT, target=4, sleep=2)
        a("s_setprio 3")
        self.stamp(5)
        self.poll([(8 + 2 * s_, 2, "v40", "s4" if s_ < 6 else "s15", s_ * OSLOT if s_ < 6 else (s_ - 5) * OSLOT) for s_ in range(8)])
        self.stamp(6, "wo")
        a("v_pk_mul_f32 v[24:25], v[8:9], v[48:49] op_sel_hi:[1,0]")
        a("v_pk_mul_f32 v[26:27], v[10:11], v[48:49] op_sel:[0,1]")
        for s_ in range(2, 8):
            d = 24 + 2 * (s_ & 1); w = 48 + (s_ & ~1)
            sel = "op_sel_hi:[1,0,1]" if (s_ & 1) == 0 else "op_sel:[0,1,0]"
            a(f"v_pk_fma_f32 v[{d}:{d+1}], v[{8+2*s_}:{9+2*s_}], v[{w}:{w+1}], v[{d}:{d+1}] {sel}")
        self.pk_add(24, 24, 26)
        a("v_cvt_pk_bf16_f32 v24, v24, v24"); a("v_cvt_pk_bf16_f32 v25, v25, v25")
        a("ds_write_b32 v42, v24"); a("ds_write_b32 v42, v25 offset:80")
        self.tread(16, 4, "v43")
        self.stamp(1, "wo")
        self.gemv(16, 96, list(range(16, 32)), 36)
        self.stamp(2, "wo")
        self.setexec(self.VALID); a("ds_write_b128 v44, v[36:39]"); a("s_mov_b64 exec, -1")
        a("s_waitcnt lgkmcnt(0)")
        a("s_barrier")
        self.stamp(3, "wo")
        a(f"s_cmp_lg_u32 {sHW}, 0"); a("s_cbranch_scc1 L_hexit")
        self.setexec(0xFFFF)
        for k in range(8): a(f"ds_read_b128 v[{8+4*k}:{11+4*k}], v45 offset:{L_PART + 256*k}")
        a("s_waitcnt lgkmcnt(0)")
        self.sum_rows4([8 + 4 * k for k in range(8)])
        for c in range(4): a(f"v_bfi_b32 v{8+c}, {sFF}, {vTAG}, v{8+c}")
        a(f"buffer_store_dwordx4 v[8:11], v45, {srd(SRD_WS)}, s5 offen sc1")
        self.stamp(7, "wo")
        a.label("L_hexit")
        self.dump_stamps()
        a("s_endpgm")

    def lane6_reduce(self, regs, T):
        a = self.a
        a(f"v_and_b32 v{T}, 7, {vLANE}"); a(f"v_cmp_gt_u32 vcc, 6, v{T}")
        for r in regs: a(f"v_cndmask_b32 v{r}, 0, v{r}, vcc")
        self.allreduceN("v_add_f32", [(f"v{r}", f"v{T}") for r in regs], ["q1", "q2", "hm"])

    def build(self):
        self.prologue(); self.swave(); self.hwave()
        self.a.label("L_exit"); self.a("s_endpgm")
        return autonop(self.a.lines)

HEADER = open("adaLN_cond__mha_block_cached__glu_gated_glu__decode.s.ref").read().split("; Override launch geometry")[0]

def make(p=P):
    body = Gen(p).build()
    txt = HEADER + "; Override launch geometry by editing the next line (default: block=256,\n; grid=ceil(out_elems/256), lds=0). Harness parses it; keep it on one line.\n"
    txt += f"; @launch grid=(256,1,1) block=(512,1,1) lds={LDS_BYTES}\n"
    txt += f""".amdgcn_target "amdgcn-amd-amdhsa--gfx950"
.text
.globl {KNAME}
.p2align 8
.type {KNAME},@function
{KNAME}:
"""
    txt += "\n".join(("" if l.endswith(":") else "    ") + l for l in body) + "\n"
    txt += f""".section .rodata,"a"
.p2align 6
.amdhsa_kernel {KNAME}
  .amdhsa_next_free_vgpr 256
  .amdhsa_next_free_sgpr 102
  .amdhsa_accum_offset {NVGPR}
  .amdhsa_group_segment_fixed_size 0
  .amdhsa_kernarg_size 112
  .amdhsa_user_sgpr_count 2
  .amdhsa_user_sgpr_kernarg_segment_ptr 1
  .amdhsa_system_sgpr_workgroup_id_x 1
.end_amdhsa_kernel
"""
    return txt

def report_h(pr, hw, mode):
    if mode == "pre":
        qs = hw[:192, 0]; mc = hw[192:246, 0]; mn = hw[72:180, 1]
        pr("H start", hw[:, :, 0])
        pr("modc: tag", mc[:, 1]); pr("modc: silu done", mc[:, 2]); pr("modc: gemv done", mc[:, 3]); pr("modc: pub complete", mc[:, 7])
        pr("modn: gemv done", mn[:, 3]); pr("modn: pub complete", mn[:, 7])
        pr("q: poll start", qs[:, 1]); pr("q: pollA done", qs[:, 2]); pr("q: gemv done", qs[:, 3]); pr("q: pub complete", qs[:, 7])
        pr("q gathered (H3)", hw[:, 3, 4])
    elif mode == "wo":
        w = hw[:72]
        pr("wo: poll start", w[:, :, 5]); pr("wo: gathered", w[:, :, 6]); pr("wo: tbl-gath", w[:, :, 1] - w[:, :, 6]); pr("wo: gemv", w[:, :, 2] - w[:, :, 1]); pr("wo: barrier passed", w[:, :, 3]); pr("wo: published", w[:, 0, 7])
    elif mode == "fine":
        u = hw[72:252]
        pr("late trigger", u[:, :, 5]); pr("unit: C done", u[:, :, 1]); pr("unit: attn gathered", u[:, :, 6]); pr("unit: G published", u[:, :, 2])
        pr("down: G gathered", hw[72:216, :, 3]); pr("down: published", hw[72:216, :3, 7]); pr("fin: x1", hw[216:234, :, 3]); pr("fin: done", hw[216:234, 0, 7])
    else:
        u = hw[72:252]
        pr("q gathered (H3)", hw[:, 3, 4])
        pr("late trigger", u[:, :, 5]); pr("unit: attn gathered", u[:, :, 6]); pr("down: published", hw[72:216, :3, 7]); pr("fin: done", hw[216:234, 0, 7])
def end_time(hw): return hw[216:234, 0, 7].max()

if __name__ == "__main__":
    out = sys.argv[1] if len(sys.argv) > 1 else "adaLN_cond__mha_block_cached__glu_gated_glu__decode.s"
    open(out, "w").write(make())
    print("wrote", out)
```

```python
import sys
from asmlib import Asm, autonop

KNAME = "adaLN_cond__mha_block_cached__glu_gated_glu__decode_kernel"

WS_EPOCH = 0
WS_O = 0x10000
OSLOT = 640
WS_ATT = 0x40000
WS_MOD = 0x80000
WS_Q = 0x90000
WS_OUT = 0xA0000
WS_G = 0x100000
WS_C = 0x140000
WS_ST = 0x1B0000
WS_DBG = 0x200000
WS_SIZE = 0x300000

L_QFLAG = 0
L_WCNT = 4
L_MLCNT = 8
L_OCNT = 12
L_Q = 0x40
L_ML = 0x180
L_STAT = 0x1C0
L_TBL = 0x200
TBLW = 768
L_PART = 0x1000
L_OPART = 0x1800
L_FIN = 0x2000
L_DOWN = 0x3000
L_KRING = 0x8000
LDS_BYTES = 0x8000 + 4 * 24 * 1024

LOG2E = 0x3FB8AA3B
SCALE = 0x3DB504F3
SPIN_MAX = 200000
NVGPR = 96

class P:
    R = 44
    D = 6
    NP = 44
    STAMPS = False
    MODE = "tail"
    QSLEEP = 16
    WTRIG = 'done'
    FULLCHECK = True
    LATEMOD = False
    WOEARLY = True
    MAP2 = False
    WOLATE = True
    DOWNLATER = True
    WOTGT = 4
    HPRIO0 = 1
    HDELAY = 0
    KLDS = True
    PS_A = 60
    SL_A = 16
    PS_QG = 240
    PS_G = 0
    PS_OUT = 0
    PS_Q = 0
    DEND = 10
    DENDAT = 32
    D2 = 0
    NEARLY = 0
    EPACE = 1
    WTHR = 0
    SPRIO = 2
    WOPACE = 2

def f32hex(x):
    import struct
    return "0x%08x" % struct.unpack("<I", struct.pack("<f", x))[0]

sWAVE = "s3"
sX, sK, sV, sWQ, sWO, sWG, sWU, sWD, sC, sWM, sOUT, sDBG, sWS = 16, 18, 20, 22, 24, 28, 30, 32, 34, 36, 38, 40, 42
SRD_A, SRD_B, SRD_WS, SRD_C = 44, 48, 52, 56
sTAG = "s64"
sT0, sT1, sT2, sT3 = "s65", "s66", "s67", "s68"
sSPIN = "s69"
sSAVE = 72
sHW = "s76"
sR0, sR1, sR2, sR3 = "s77", "s78", "s79", "s83"
sFFFF0000 = "s80"
sFF = "s81"
sSTAMP = 84
def srd(b): return f"s[{b}:{b+3}]"
def sp(b): return f"s[{b}:{b+1}]"
vLANE = "v3"
vM = [4, 5, 6, 7]
vTAG = "v60"
FULL = (1 << 64) - 1
def lanes(n): return (1 << n) - 1

class Gen:
    def __init__(self, p=P):
        self.a = Asm(); self.p = p

    def mask64(self, sreg, val):
        self.a(f"s_mov_b32 s{sreg}, 0x{val & 0xffffffff:08x}"); self.a(f"s_mov_b32 s{sreg+1}, 0x{(val >> 32) & 0xffffffff:08x}")
    def setexec(self, val):
        a = self.a
        if val == FULL: a("s_mov_b64 exec, -1")
        elif val <= 64: a(f"s_mov_b64 exec, {val}")
        elif val < (1 << 32): a(f"s_mov_b64 exec, 0x{val:x}")
        else:
            a(f"s_mov_b32 exec_lo, 0x{val & 0xffffffff:08x}"); a(f"s_mov_b32 exec_hi, 0x{(val >> 32) & 0xffffffff:08x}")
    def stamp(self, idx, mode="tail"):
        if self.p.STAMPS and (mode == self.p.MODE or mode == "all" or (mode == "tail" and self.p.MODE == "fine")):
            self.a(f"s_memrealtime s[{sSTAMP+2*idx}:{sSTAMP+2*idx+1}]")
    def dump_stamps(self, n=8):
        if not self.p.STAMPS: return
        a = self.a
        a("s_waitcnt lgkmcnt(0)")
        a("s_mov_b64 exec, -1")
        a(f"s_lshl_b32 {sT0}, s2, 3"); a(f"s_add_u32 {sT0}, {sT0}, {sWAVE}"); a(f"s_lshl_b32 {sT0}, {sT0}, 7")
        a(f"s_add_u32 {sT0}, {sT0}, {WS_DBG}")
        for i in range(2 * n): a(f"v_writelane_b32 v8, s{sSTAMP+i}, {i}")
        a(f"v_lshlrev_b32 v9, 2, {vLANE}")
        a("s_mov_b64 exec, 0xffff")
        a(f"buffer_store_dword v8, v9, {srd(SRD_WS)}, {sT0} offen")
    def lds_spin(self, addr, target=1, vtmp="v61", vaddr="v62", sleep=1):
        a = self.a; L = a.uid("Lspin"); E = a.uid("Lspun")
        a(f"v_mov_b32 {vaddr}, {addr}")
        a(f"s_mov_b32 {sSPIN}, 0")
        a.label(L)
        a(f"ds_read_b32 {vtmp}, {vaddr}")
        a("s_waitcnt lgkmcnt(0)")
        a(f"v_readfirstlane_b32 {sT3}, {vtmp}")
        a(f"s_cmp_ge_u32 {sT3}, {target}")
        a(f"s_cbranch_scc1 {E}")
        if sleep: a(f"s_sleep {sleep}")
        a(f"s_add_u32 {sSPIN}, {sSPIN}, 1")
        a(f"s_cmp_lt_u32 {sSPIN}, {SPIN_MAX * 4}")
        a(f"s_cbranch_scc1 {L}")
        a.label(E)
    def lds_add1(self, addr, va, vb):
        a = self.a
        a("s_mov_b64 exec, 1")
        a(f"v_mov_b32 {va}, {addr}"); a(f"v_mov_b32 {vb}, 1"); a(f"ds_add_u32 {va}, {vb}")
        a("s_mov_b64 exec, -1")
    def poll(self, loads, active=None, sleep=0, tmps=("v61", "v62", "v63"), presleep=0):
        a = self.a; L = a.uid("Lpoll"); E = a.uid("Lpolled")
        t0, t1, t2 = tmps
        sMISS = "s70"
        if active is not None: self.setexec(active)
        if presleep: a(f"s_sleep {presleep}")
        def issue(ld):
            (dst, n, voff, soff, imm) = ld
            op = {1: "buffer_load_dword", 2: "buffer_load_dwordx2", 4: "buffer_load_dwordx4"}[n]
            r = f"v{dst}" if n == 1 else f"v[{dst}:{dst+n-1}]"
            if soff is not None and not str(soff).startswith("s"):
                a(f"s_mov_b32 {sT3}, {soff}"); so = sT3
            else: so = soff if soff is not None else "0"
            a(f"{op} {r}, {voff}, {srd(SRD_WS)}, {so} offen offset:{imm} sc1")
        def check(counted):
            nl = len(loads); pend = []
            first = True
            for li, ld in enumerate(loads):
                if counted: a(f"s_waitcnt vmcnt({nl-1-li})")
                full = self.p.FULLCHECK
                rr = [ld[0] + k for k in range(ld[1] if full else 1)]
                for r in rr:
                    if first: a(f"v_xor_b32 {t0}, {vTAG}, v{r}"); first = False
                    else:
                        pend.append(r)
                        if len(pend) == 2:
                            a(f"v_xor_b32 {t1}, {vTAG}, v{pend[0]}"); a(f"v_xor_b32 {t2}, {vTAG}, v{pend[1]}"); a(f"v_or3_b32 {t0}, {t0}, {t1}, {t2}"); pend = []
            if pend: a(f"v_xor_b32 {t1}, {vTAG}, v{pend[0]}"); a(f"v_or_b32 {t0}, {t0}, {t1}")
            a(f"v_and_b32 {t0}, 0xff, {t0}")
            a(f"v_cmp_ne_u32 vcc, 0, {t0}")
            a(f"s_cbranch_vccz {E}")
        for ld in loads: issue(ld)
        check(True)
        a(f"s_mov_b32 {sMISS}, {(1 << len(loads)) - 1}")
        a(f"s_mov_b32 {sSPIN}, 0")
        a.label(L)
        if len(loads) > 1:
            for li, ld in enumerate(loads):
                Lk = a.uid("Lk")
                a(f"v_xor_b32 {t0}, {vTAG}, v{ld[0]}")
                for k in range(1, ld[1]):
                    a(f"v_xor_b32 {t1}, {vTAG}, v{ld[0]+k}"); a(f"v_or_b32 {t0}, {t0}, {t1}")
                a(f"v_and_b32 {t0}, 0xff, {t0}")
                a(f"v_cmp_ne_u32 vcc, 0, {t0}")
                a(f"s_cbranch_vccnz {Lk}")
                a(f"s_bitset0_b32 {sMISS}, {li}")
                a.label(Lk)
        if sleep: a(f"s_sleep {sleep}")
        for li, ld in enumerate(loads):
            if len(loads) > 1:
                Lk = a.uid("Ls")
                a(f"s_bitcmp1_b32 {sMISS}, {li}"); a(f"s_cbranch_scc0 {Lk}")
                issue(ld); a.label(Lk)
            else: issue(ld)
        a("s_waitcnt vmcnt(0)")
        a(f"s_add_u32 {sSPIN}, {sSPIN}, 1")
        a(f"s_cmp_ge_u32 {sSPIN}, {SPIN_MAX}"); a(f"s_cbranch_scc1 {E}")
        check(False)
        a(f"s_branch {L}")
        a.label(E)
    def bf16_round(self, dst, src, tmp):
        self.a(f"v_cvt_pk_bf16_f32 {tmp}, {src}, {src}"); self.a(f"v_lshlrev_b32 {dst}, 16, {tmp}")
    def bf16_round2(self, d0, d1, s0, s1, tmp):
        a = self.a
        a(f"v_cvt_pk_bf16_f32 {tmp}, {s0}, {s1}"); a(f"v_lshlrev_b32 {d0}, 16, {tmp}"); a(f"v_and_b32 {d1}, {sFFFF0000}, {tmp}")
    def allreduce(self, op, v, t, steps):
        self.allreduceN(op, [(v, t)], steps)
    def allreduceN(self, op, vts, steps):
        a = self.a
        dpp = {"q1": "quad_perm:[1,0,3,2]", "q2": "quad_perm:[2,3,0,1]", "hm": "row_half_mirror", "r4": "row_ror:4", "r8": "row_ror:8"}
        for s in steps:
            if s in dpp:
                for (v, t) in vts: a(f"{op}_dpp {v}, {v}, {v} {dpp[s]} row_mask:0xf bank_mask:0xf")
            else:
                ins = "v_permlane16_swap_b32" if s == "p16" else "v_permlane32_swap_b32"
                for (v, t) in vts: a(f"v_mov_b32 {t}, {v}")
                for (v, t) in vts: a(f"{ins} {v}, {t}")
                for (v, t) in vts: a(f"{op} {v}, {v}, {t}")
    def pk_add(self, d, x, y): self.a(f"v_pk_add_f32 v[{d}:{d+1}], v[{x}:{x+1}], v[{y}:{y+1}]")
    def sum_rows4(self, bases):
        b = list(bases)
        while len(b) > 1:
            nb = []
            for i in range(0, len(b) - 1, 2):
                self.pk_add(b[i], b[i], b[i+1]); self.pk_add(b[i] + 2, b[i] + 2, b[i+1] + 2); nb.append(b[i])
            if len(b) % 2: nb.append(b[-1])
            b = nb
    def gemv(self, ntiles, abase, xx, D, bsets=(8, 12), waits=None):
        a = self.a
        def mkB(t):
            b = bsets[t & 1]
            for r in range(4): a(f"v_and_b32 v{b+r}, v{xx[t]}, v{vM[r]}")
        mkB(0)
        for t in range(ntiles):
            if t + 1 < ntiles: mkB(t + 1)
            if waits and t in waits: a(f"s_waitcnt vmcnt({waits[t]})")
            b = bsets[t & 1]
            c = "0" if t == 0 else f"v[{D}:{D+3}]"
            a(f"v_mfma_f32_16x16x32_bf16 v[{D}:{D+3}], a[{abase+4*t}:{abase+4*t+3}], v[{b}:{b+3}], {c}")
    def taddr_w(self, vaddr, vt, TS):
        a = self.a
        a(f"v_and_b32 {vt}, 1, {vLANE}"); a(f"v_mul_u32_u24 {vt}, {TS*16}, {vt}")
        a(f"v_lshrrev_b32 {vaddr}, 1, {vLANE}"); a(f"v_lshl_add_u32 {vaddr}, {vaddr}, 2, {vt}")
        a(f"s_mul_i32 {sT0}, {sHW}, {TBLW}"); a(f"s_add_u32 {sT0}, {sT0}, {L_TBL}")
        a(f"v_add_u32 {vaddr}, {sT0}, {vaddr}")
    def taddr_r(self, vaddr, TS):
        a = self.a
        a(f"v_lshrrev_b32 {vaddr}, 3, {vLANE}"); a(f"v_mul_u32_u24 {vaddr}, {TS*4}, {vaddr}")
        a(f"s_mul_i32 {sT0}, {sHW}, {TBLW}"); a(f"s_add_u32 {sT0}, {sT0}, {L_TBL}")
        a(f"v_add_u32 {vaddr}, {sT0}, {vaddr}")
    def twrite4(self, regs, vaddr, TS):
        for k in range(4): self.a(f"ds_write_b32 {vaddr}, v{regs[k]} offset:{k*TS*4}")
    def tread(self, first, nb128, vaddr):
        a = self.a
        a("s_waitcnt lgkmcnt(0)")
        for i in range(nb128): a(f"ds_read_b128 v[{first+4*i}:{first+4*i+3}], {vaddr} offset:{16*i}")
        a("s_waitcnt lgkmcnt(0)")
    VALID = 0xFF00FF0000FF00FF
    def paddr(self, vaddr, vt, base, rowlen):
        a = self.a
        a(f"v_lshrrev_b32 {vaddr}, 5, {vLANE}"); a(f"v_mul_u32_u24 {vaddr}, {rowlen*4}, {vaddr}")
        a(f"v_bfe_u32 {vt}, {vLANE}, 4, 1"); a(f"v_lshl_add_u32 {vaddr}, {vt}, 7, {vaddr}")
        a(f"v_and_b32 {vt}, 7, {vLANE}"); a(f"v_lshl_add_u32 {vaddr}, {vt}, 2, {vaddr}")
        a(f"s_mul_i32 {sT0}, {sHW}, {2*rowlen*4}"); a(f"s_add_u32 {sT0}, {sT0}, {base}")
        a(f"v_add_u32 {vaddr}, {sT0}, {vaddr}")
    def pwrite(self, D, vaddr, off=0):
        for r in range(4): self.a(f"ds_write_b32 {vaddr}, v{D+r} offset:{off + r*32}")
    def sigmoid(self, dst, v, t):
        a = self.a
        a(f"v_mul_f32 {t}, 0x{(LOG2E | 0x80000000):08x}, {v}"); a(f"v_exp_f32 {t}, {t}")
        a(f"v_add_f32 {t}, 1.0, {t}"); a(f"v_rcp_f32 {dst}, {t}")
    def unpack4(self, dst, src):
        a = self.a
        a(f"v_lshlrev_b32 v{dst}, 16, v{src}"); a(f"v_and_b32 v{dst+1}, {sFFFF0000}, v{src}")
        a(f"v_lshlrev_b32 v{dst+2}, 16, v{src+1}"); a(f"v_and_b32 v{dst+3}, {sFFFF0000}, v{src+1}")
    def round4(self, X, tmp):
        for k in (0, 2): self.bf16_round2(f"v{X+k}", f"v{X+k+1}", f"v{X+k}", f"v{X+k+1}", tmp)
    def set_srd(self, s, base, off=None, size=None, size_minus_off=None):
        a = self.a
        if off is None:
            a(f"s_mov_b32 s{s}, s{base}"); a(f"s_mov_b32 s{s+1}, s{base+1}")
        else:
            a(f"s_add_u32 s{s}, s{base}, {off}"); a(f"s_addc_u32 s{s+1}, s{base+1}, 0")
        if size_minus_off is not None: a(f"s_sub_u32 s{s+2}, {size_minus_off}, {off}")
        else: a(f"s_mov_b32 s{s+2}, {size}")
        a(f"s_mov_b32 s{s+3}, 0x20000")
    def div3(self, q, r, x):
        a = self.a
        a(f"s_mul_i32 {q}, {x}, 0x5556"); a(f"s_lshr_b32 {q}, {q}, 16")
        a(f"s_mul_i32 {r}, {q}, 3"); a(f"s_sub_u32 {r}, {x}, {r}")

    def prologue(self):
        a = self.a
        a("s_cmp_ge_u32 s2, 256"); a("s_cbranch_scc1 L_exit")
        self.stamp(0, "all")
        a("s_load_dwordx16 s[16:31], s[0:1], 0")
        a("s_load_dwordx8 s[32:39], s[0:1], 64")
        a("s_load_dwordx4 s[40:43], s[0:1], 96")
        a("v_lshrrev_b32 v1, 6, v0")
        a(f"v_and_b32 {vLANE}, 63, v0")
        a(f"v_readfirstlane_b32 {sWAVE}, v1")
        a(f"v_and_b32 v8, 1, {vLANE}"); a("v_cmp_eq_u32 vcc, 1, v8")
        a("v_mov_b32 v9, 0xffff"); a("v_mov_b32 v10, 0xffff0000")
        a("v_cndmask_b32 v9, v9, v10, vcc")
        a(f"v_bfe_u32 v8, {vLANE}, 1, 2")
        for r in range(4):
            a(f"v_cmp_eq_u32 vcc, {r}, v8"); a(f"v_cndmask_b32 v{vM[r]}, 0, v9, vcc")
        a(f"s_mov_b32 {sFFFF0000}, 0xffff0000"); a(f"s_mov_b32 {sFF}, 0xff")
        a("s_waitcnt lgkmcnt(0)")
        a(f"s_load_dword {sTAG}, s[{sWS}:{sWS+1}], 0")
        self.set_srd(SRD_WS, sWS, size=WS_SIZE)
        for q in (SRD_A, SRD_B, SRD_C): self.set_srd(q, sWS, size=0)
        a(f"s_cmp_ge_u32 {sWAVE}, 4"); a("s_cbranch_scc1 L_helper")
    def get_tag(self):
        a = self.a
        a("s_waitcnt lgkmcnt(0)")
        a(f"s_add_u32 {sTAG}, {sTAG}, 1")
        a(f"s_and_b32 {sT3}, {sTAG}, 0xff")
        a(f"v_mov_b32 {vTAG}, {sT3}")

    def swave(self):
        a = self.a; p = self.p
        R, D, NP = p.R, max(p.D, p.D2), p.NP
        Dlo = p.D
        vK, vV = "v1", "v2"
        B_T = 8; S = 24; DQ = (40, 44); DO = 48; T = 52
        vm, vl, vf = "v56", "v57", "v58"
        vOW, vPUB = "v64", "v65"
        if p.SPRIO: a(f"s_setprio {p.SPRIO}")
        a(f"s_lshl_b32 {sT0}, s2, 18")
        self.set_srd(SRD_A, sK, off=sT0, size=0x40000); self.set_srd(SRD_B, sV, off=sT0, size=0x40000)
        a(f"s_lshl_b32 {sT0}, {sWAVE}, 10")
        a(f"v_lshrrev_b32 v8, 4, {vLANE}"); a("v_lshlrev_b32 v8, 6, v8")
        a(f"v_bfe_u32 v9, {vLANE}, 2, 2"); a("v_lshl_add_u32 v8, v9, 8, v8")
        a(f"v_and_b32 v9, 3, {vLANE}"); a("v_lshl_add_u32 v8, v9, 4, v8")
        a(f"v_add_u32 {vK}, {sT0}, v8")
        a(f"v_lshlrev_b32 v9, 4, {vLANE}"); a(f"v_add_u32 {vV}, {sT0}, v9")
        N = 128
        def slot(i):
            if p.KLDS:
                k = i if i < 64 else (i - 64) % 40
                return f"a[{4*k}:{4*k+3}]"
            k = i % R
            return f"a[{4*k}:{4*k+3}]" if k < 40 else f"v[{68+4*(k-40)}:{71+4*(k-40)}]"
        st = dict(issued=0)
        KL = p.KLDS
        RK = R if not KL else 40
        def issue(throttle=True):
            nonlocal D, Dlo
            i = st["issued"]
            if p.DEND and i >= 64 + p.DENDAT: D = Dlo = p.DEND
            if throttle and i >= Dlo and D != Dlo:
                L = a.uid("Lthr")
                a(f"s_cbranch_vccnz {L}"); a(f"s_waitcnt vmcnt({Dlo-1})"); a.label(L)
            if throttle and i >= D: a(f"s_waitcnt vmcnt({D-1})")
            a(f"s_mov_b32 {sT1}, {(i % 64) * 4096}")
            s_, v_ = (SRD_A, vK) if i < 64 else (SRD_B, vV)
            if KL and RK <= i < 64:
                a(f"s_add_u32 m0, s60, {(i - RK) * 1024}")
                a("s_nop 0")
                a(f"buffer_load_dwordx4 {v_}, {srd(s_)}, {sT1} offen nt lds")
            else:
                a(f"buffer_load_dwordx4 {slot(i)}, {v_}, {srd(s_)}, {sT1} offen nt")
            st["issued"] = i + 1
            if i == N - 1: self.lds_add1(L_WCNT, f"v{T}", f"v{T+1}")
        def need(tile): a(f"s_waitcnt vmcnt({st['issued'] - 1 - tile})")
        if D != Dlo:
            a("s_mov_b64 vcc, 0"); a("s_cmp_lt_u32 s2, 72"); a("s_cbranch_scc1 L_vset"); a("s_cmp_ge_u32 s2, 216"); a("s_cbranch_scc1 L_vset")
            a("s_mov_b64 vcc, -1"); a.label("L_vset")
        self.stamp(3, "start")
        for _ in range(min(Dlo, NP)): issue(False)
        self.stamp(4, "start")
        a("s_barrier")
        self.stamp(5, "start")
        if p.STAMPS and p.MODE == "start":
            a(f"s_waitcnt vmcnt({D-1})"); self.stamp(6, "start")
        a(f"v_lshrrev_b32 v8, 4, {vLANE}"); a("v_lshlrev_b32 v8, 7, v8")
        a(f"v_and_b32 v9, 7, {vLANE}"); a("v_lshl_add_u32 v8, v9, 2, v8")
        a(f"s_lshl_b32 {sT0}, {sWAVE}, 9"); a(f"s_add_u32 {sT0}, {sT0}, {L_OPART}")
        a(f"v_add_u32 {vOW}, {sT0}, v8")
        a(f"v_lshlrev_b32 {vPUB}, 4, {vLANE}")
        if p.KLDS:
            a(f"s_mul_i32 s60, {sWAVE}, {24*1024}"); a(f"s_add_u32 s60, s60, {L_KRING}")
            a(f"v_lshlrev_b32 v66, 4, {vLANE}"); a("v_add_u32 v66, s60, v66")
        mT = [6, 8, 10, 12]; m1, m3, m23 = 14, 4, 62
        for t in range(4): self.mask64(mT[t], 0x000F000F000F000F << (4 * t))
        self.mask64(m1, 0x2222222222222222); self.mask64(m3, 0x8888888888888888); self.mask64(m23, 0xCCCCCCCCCCCCCCCC)
        while st["issued"] < (64 if p.KLDS else NP): issue()
        self.stamp(1, "all")
        self.get_tag()
        self.lds_spin(L_QFLAG)
        self.stamp(2, "all")
        a(f"v_lshrrev_b32 v{T}, 4, {vLANE}"); a(f"v_lshlrev_b32 v{T}, 6, v{T}")
        a(f"v_and_b32 v{T+1}, 3, {vLANE}"); a(f"v_lshl_add_u32 v{T}, v{T+1}, 4, v{T}")
        a(f"ds_read_b128 v[{T+4}:{T+7}], v{T} offset:{L_Q}")
        a("s_waitcnt lgkmcnt(0)")
        for t in range(4):
            for k in range(4): a(f"v_cndmask_b32 v{B_T+4*t+k}, 0, v{T+4+k}, {sp(mT[t])}")
        STG = (68, 84)
        def stage(g):
            b = 68
            for t in range(4):
                a(f"ds_read_b128 v[{b+4*t}:{b+4*t+3}], v66 offset:{(4*g+t-RK)*1024}")
        def qk_mfma(g):
            d = DQ[g & 1]
            lds = KL and 4 * g >= RK
            if lds: a("s_waitcnt lgkmcnt(0)")
            else: need(4 * g + 3)
            for t in range(4):
                c = "0" if t == 0 else f"v[{d}:{d+3}]"
                b = 68
                src = f"v[{b+4*t}:{b+4*t+3}]" if lds else slot(4*g+t)
                a(f"v_mfma_f32_16x16x32_bf16 v[{d}:{d+3}], {src}, v[{B_T+4*t}:{B_T+4*t+3}], {c}")
        def qk_post(g):
            d = DQ[g & 1]
            a(f"v_cndmask_b32 v{T}, v{d}, v{d+1}, {sp(m1)}")
            a(f"v_cndmask_b32 v{T+1}, v{d+2}, v{d+3}, {sp(m3)}")
            a(f"v_cndmask_b32 v{T}, v{T}, v{T+1}, {sp(m23)}")
            a(f"v_add_f32_dpp v{T+1}, v{T}, v{T} quad_perm:[1,0,3,2] row_mask:0xf bank_mask:0xf")
            a(f"v_add_f32_dpp v{S+g}, v{T+1}, v{T+1} quad_perm:[2,3,0,1] row_mask:0xf bank_mask:0xf")
        g = 0
        if KL:
            while g < 16:
                if 4 * (g + 1) >= RK and g + 1 < 16 and False: pass
                if 4 * g >= RK:
                    need(4 * g + 3); stage(g)
                qk_mfma(g)
                if g > 0: qk_post(g - 1)
                g += 1
                free = min(4 * g, RK) - (st["issued"] - 64)
                nissue = 2 if g <= 3 else 1
                for _ in range(max(0, min(nissue, free))):
                    if st["issued"] < N: issue()
        else:
            while g < 16:
                lag = st["issued"] - 4 * g
                qk_mfma(g)
                if g > 0: qk_post(g - 1)
                g += 1
                free = 4 * g + R - st["issued"]
                nissue = (1 if (g % 3 == 0) else 0) if lag > D + 8 else 4
                for _ in range(min(nissue, free)):
                    if st["issued"] < N: issue()
        qk_post(15)
        self.stamp(3, "tail")
        for _ in range(3): issue(False)
        a(f"s_mov_b32 {sT0}, 0x{SCALE:08x}")
        for k in range(0, 16, 2):
            x, y = f"v{S+k}", f"v{S+k+1}"; t = f"v{T + (k // 2) % 4}"
            a(f"v_cvt_pk_bf16_f32 {t}, {x}, {y}")
            a(f"v_lshlrev_b32 {x}, 16, {t}"); a(f"v_and_b32 {y}, {sFFFF0000}, {t}")
            a(f"v_mul_f32 {x}, {sT0}, {x}"); a(f"v_mul_f32 {y}, {sT0}, {y}")
            a(f"v_cvt_pk_bf16_f32 {t}, {x}, {y}")
            a(f"v_lshlrev_b32 {x}, 16, {t}"); a(f"v_and_b32 {y}, {sFFFF0000}, {t}")
        a(f"v_max3_f32 {vm}, v{S}, v{S+1}, v{S+2}")
        for k in range(3, 15, 2): a(f"v_max3_f32 {vm}, {vm}, v{S+k}, v{S+k+1}")
        a(f"v_max_f32 {vm}, {vm}, v{S+15}")
        self.allreduce("v_max_f32", vm, f"v{T}", ["r4", "r8", "p16", "p32"])
        a(f"s_mov_b32 {sT0}, 0x{LOG2E:08x}")
        a(f"v_mul_f32 v{T+3}, {sT0}, {vm}")
        for k in range(16): a(f"v_fma_f32 v{S+k}, v{S+k}, {sT0}, -v{T+3}")
        for k in range(16): a(f"v_exp_f32 v{S+k}, v{S+k}")
        a(f"v_add_f32 {vl}, v{S}, v{S+1}")
        for k in range(2, 16): a(f"v_add_f32 {vl}, {vl}, v{S+k}")
        for k in range(16): a(f"v_cvt_pk_bf16_f32 v{S+k}, v{S+k}, v{S+k}")
        self.allreduce("v_add_f32", vl, f"v{T}", ["r4", "r8", "p16", "p32"])
        a("s_mov_b64 exec, 1")
        a(f"s_lshl_b32 {sT0}, {sWAVE}, 3"); a(f"s_add_u32 {sT0}, {sT0}, {L_ML}")
        a(f"v_mov_b32 v{T}, {sT0}"); a(f"ds_write_b64 v{T}, v[56:57]")
        a(f"v_mov_b32 v{T}, {L_MLCNT}"); a(f"v_mov_b32 v{T+1}, 1"); a(f"ds_add_u32 v{T}, v{T+1}")
        a("s_mov_b64 exec, -1")
        self.stamp(4, "tail")
        BV = (8, 12)
        def mkB(vi):
            g_, t_ = vi >> 2, vi & 3; b = BV[vi & 1]
            for r in range(4): a(f"v_and_b32_dpp v{b+r}, v{S+g_}, v{vM[r]} row_newbcast:{4*t_} row_mask:0xf bank_mask:0xf")
        def ml_exchange():
            self.lds_spin(L_MLCNT, target=4)
            a(f"v_mov_b32 v16, {L_ML}")
            a("ds_read_b128 v[20:23], v16"); a("ds_read_b128 v[40:43], v16 offset:16")
            a("s_waitcnt lgkmcnt(0)")
            a("v_max3_f32 v16, v20, v22, v40"); a("v_max_f32 v16, v16, v42")
            a(f"s_mov_b32 {sT0}, 0x{LOG2E:08x}")
            a(f"v_sub_f32 {vf}, {vm}, v16"); a(f"v_mul_f32 {vf}, {sT0}, {vf}"); a(f"v_exp_f32 {vf}, {vf}")
            L = a.uid("Lnoml")
            a(f"s_cmp_lg_u32 {sWAVE}, 0"); a(f"s_cbranch_scc1 {L}")
            for i, r in enumerate((20, 22, 40, 42)):
                a(f"v_sub_f32 v{r}, v{r}, v16"); a(f"v_mul_f32 v{r}, {sT0}, v{r}"); a(f"v_exp_f32 v{r}, v{r}")
            a("v_mul_f32 v17, v20, v21"); a("v_fmac_f32 v17, v22, v23"); a("v_fmac_f32 v17, v40, v41"); a("v_fmac_f32 v17, v42, v43")
            a("v_mov_b32 v18, 0"); a("v_mov_b32 v19, 0")
            for c in range(4): a(f"v_bfi_b32 v{16+c}, {sFF}, {vTAG}, v{16+c}")
            a(f"s_mul_i32 {sT0}, s2, {OSLOT}"); a(f"s_add_u32 {sT0}, {sT0}, {WS_O + 512}")
            a("s_mov_b64 exec, 1")
            a(f"buffer_store_dwordx4 v[16:19], off, {srd(SRD_WS)}, {sT0} sc1")
            a("s_mov_b64 exec, -1")
            st["extra_wave0"] = True
            a.label(L)
        mkB(0)
        for vi in range(64):
            if vi + 1 < 64: mkB(vi + 1)
            tile = 64 + vi
            while st["issued"] < N and st["issued"] - tile < (p.DEND if (p.DEND and st["issued"] >= 64 + p.DENDAT) else D) + 1: issue()
            need(tile)
            b = BV[vi & 1]
            c = "0" if vi == 0 else f"v[{DO}:{DO+3}]"
            a(f"v_mfma_f32_16x16x32_bf16 v[{DO}:{DO+3}], {slot(tile)}, v[{b}:{b+3}], {c}")
            if vi == 12:
                ml_exchange()
        self.stamp(5, "tail")
        for r in range(4): a(f"v_mul_f32 v{DO+r}, {vf}, v{DO+r}")
        self.setexec(0x00FF00FF00FF00FF)
        for r in range(4): a(f"ds_write_b32 {vOW}, v{DO+r} offset:{32*r}")
        a("s_mov_b64 exec, 1")
        a(f"v_mov_b32 v8, {L_OCNT}"); a("v_mov_b32 v9, 1"); a("ds_add_rtn_u32 v9, v8, v9")
        a(f"s_mul_i32 {sT0}, s2, {OSLOT}"); a(f"s_add_u32 {sT0}, {sT0}, {WS_O}")
        a("s_waitcnt lgkmcnt(0)")
        a(f"v_readfirstlane_b32 {sT1}, v9")
        a(f"s_cmp_lg_u32 {sT1}, 3"); a("s_cbranch_scc1 L_sdone")
        self.setexec(lanes(32))
        for w in range(4): a(f"ds_read_b128 v[{12+4*w}:{15+4*w}], {vPUB} offset:{L_OPART + 512*w}")
        a("s_waitcnt lgkmcnt(0)")
        self.sum_rows4([12, 16, 20, 24])
        for c in range(4): a(f"v_bfi_b32 v{12+c}, {sFF}, {vTAG}, v{12+c}")
        a(f"buffer_store_dwordx4 v[12:15], {vPUB}, {srd(SRD_WS)}, {sT0} offen sc1")
        self.stamp(6, "tail")
        a.label("L_sdone")
        self.dump_stamps()
        a("s_endpgm")

    def unit_loads(self, stride_s, tau_s):
        a = self.a
        a(f"s_mul_i32 {sT0}, {tau_s}, 192")
        a(f"v_lshrrev_b32 v1, 3, {vLANE}"); a(f"v_add_u32 v1, {sT0}, v1")
        a(f"v_mul_lo_u32 v1, v1, {stride_s}")
        a(f"v_and_b32 v2, 7, {vLANE}"); a("v_lshl_add_u32 v1, v2, 4, v1")
        a(f"s_lshl_b32 {sT1}, {stride_s}, 3"); a(f"s_mov_b32 {sT0}, 0")
        for t in range(24):
            a(f"buffer_load_dwordx4 a[{4*t}:{4*t+3}], v1, {srd(SRD_A)}, {sT0} offen nt")
            if t < 23: a(f"s_add_u32 {sT0}, {sT0}, {sT1}")

    def hwave(self):
        a = self.a; p = self.p
        a.label("L_helper")
        a(f"s_setprio {p.HPRIO0}")
        a(f"s_sub_u32 {sHW}, {sWAVE}, 4")
        a("s_mov_b32 s71, 0")
        a(f"s_cmp_lg_u32 {sHW}, 2"); a("s_cbranch_scc1 L_noinit")
        a(f"v_lshlrev_b32 v8, 2, {vLANE}"); a("v_mov_b32 v9, 0")
        self.setexec(0xFFFF); a("ds_write_b32 v8, v9"); a("s_mov_b64 exec, -1"); a("s_waitcnt lgkmcnt(0)")
        a.label("L_noinit")
        a("s_barrier")
        if p.HDELAY: a(f"s_sleep {p.HDELAY}")
        for r in list(range(40, 60)) + list(range(80, 90)): a(f"v_mov_b32 v{r}, 0")
        if p.WOEARLY and not p.WOLATE:
            a("s_cmp_ge_u32 s2, 72"); a("s_cbranch_scc1 L_nowoearly")
            if not p.MAP2: a(f"s_cmp_eq_u32 {sHW}, 0"); a("s_cbranch_scc1 L_nowoearly")
            a(f"s_and_b32 {sT0}, s2, 7"); a(f"s_lshr_b32 {sT1}, s2, 3"); a(f"s_lshl_b32 {sT2}, {sT1}, 7")
            self.set_srd(SRD_C, sWO, off=sT2, size_minus_off=4096 * 1152)
            a(f"s_lshl_b32 {sT0}, {sT0}, 2"); a(f"s_add_u32 {sT0}, {sT0}, {sHW}"); a(f"s_lshl_b32 {sT0}, {sT0}, 7")
            a(f"v_lshrrev_b32 v1, 3, {vLANE}"); a(f"v_add_u32 v1, {sT0}, v1"); a("v_mul_u32_u24 v1, 1152, v1")
            a(f"v_and_b32 v2, 7, {vLANE}"); a("v_lshl_add_u32 v1, v2, 4, v1")
            a("s_setprio 0")
            a(f"s_mov_b32 {sT0}, 0")
            for t in range(16):
                a(f"buffer_load_dwordx4 a[{96+4*t}:{99+4*t}], v1, {srd(SRD_C)}, {sT0} offen nt")
                if t < 15: a(f"s_add_u32 {sT0}, {sT0}, 9216")
            a(f"s_setprio {p.HPRIO0}")
            a.label("L_nowoearly")
        a(f"s_cmp_eq_u32 {sHW}, 0"); a("s_cbranch_scc1 L_h0")
        a(f"s_cmp_eq_u32 {sHW}, 1"); a("s_cbranch_scc1 L_h1")
        a("s_branch L_nounit")
        a.label("L_h0")
        if p.MAP2:
            a("s_cmp_lt_u32 s2, 72"); a("s_cbranch_scc1 L_nounit")
            a("s_sub_u32 s62, s2, 72"); a("s_branch L_qunit")
            a.label("L_h1")
            a("s_cmp_lt_u32 s2, 72"); a("s_cbranch_scc1 L_nounit")
            a("s_cmp_ge_u32 s2, 242"); a("s_cbranch_scc1 L_nounit")
            a("s_add_u32 s62, s2, 112"); a("s_cmp_lt_u32 s2, 80"); a("s_cbranch_scc1 L_qunit")
            a(f"s_sub_u32 {sT2}, s2, 80"); self.div3(sR0, sR1, sT2)
        else:
            a("s_mov_b32 s62, s2")
            a("s_cmp_lt_u32 s2, 192"); a("s_cbranch_scc1 L_qunit")
            a("s_cmp_ge_u32 s2, 246"); a("s_cbranch_scc1 L_nounit")
            a(f"s_sub_u32 {sT2}, s2, 192"); self.div3(sR0, sR1, sT2)
            a("s_branch L_munit")
            a.label("L_h1")
            a("s_cmp_lt_u32 s2, 72"); a("s_cbranch_scc1 L_nounit")
            a("s_cmp_ge_u32 s2, 180"); a("s_cbranch_scc1 L_nounit")
            a(f"s_sub_u32 {sT2}, s2, 72"); self.div3(sR0, sR1, sT2); a(f"s_add_u32 {sR0}, {sR0}, 18")
        if p.LATEMOD:
            self.lds_spin(L_QFLAG, target=1, sleep=8)
            a("s_setprio 0")
            a("s_mov_b32 s71, 1")
        a.label("L_munit")
        a(f"s_lshl_b32 {sT2}, {sR0}, 7")
        self.set_srd(SRD_A, sWM, off=sT2, size_minus_off=576 * 6912)
        self.set_srd(SRD_B, sC, size=1152)
        a(f"s_mul_i32 {sT0}, {sR1}, 384"); a(f"v_lshlrev_b32 v8, 3, {vLANE}")
        a(f"buffer_load_dwordx2 v[40:41], v8, {srd(SRD_B)}, {sT0} offen")
        a(f"s_mov_b32 {sR2}, 6912")
        self.unit_loads(sR2, sR1)
        self.get_tag()
        self.stamp(1, "pre")
        a(f"s_mul_i32 {sR2}, {sR0}, 3"); a(f"s_add_u32 {sR2}, {sR2}, {sR1}"); a(f"s_lshl_b32 {sR2}, {sR2}, 8"); a(f"s_add_u32 {sR2}, {sR2}, {WS_MOD}")
        self.taddr_w("v2", "v8", 24)
        a("s_waitcnt vmcnt(24)")
        self.unpack4(44, 40)
        for k in range(4): self.sigmoid(f"v{48+k}", f"v{44+k}", f"v{48+k}")
        for k in range(4): a(f"v_mul_f32 v{44+k}, v{44+k}, v{48+k}")
        for k in range(4): a(f"v_cvt_pk_bf16_f32 v{44+k}, v{44+k}, v{44+k}")
        self.setexec(lanes(48)); self.twrite4([44, 45, 46, 47], "v2", 24); a("s_mov_b64 exec, -1")
        self.stamp(2, "pre")
        a("s_branch L_unit_gemv")
        a.label("L_qunit")
        self.div3(sR0, sR1, "s62")
        a(f"s_lshl_b32 {sT2}, {sR0}, 7")
        self.set_srd(SRD_A, sWQ, off=sT2, size_minus_off=576 * 8192)
        self.set_srd(SRD_B, sX, size=1152)
        a(f"v_lshrrev_b32 v8, 3, {vLANE}"); a("v_lshlrev_b32 v8, 5, v8"); a(f"v_and_b32 v9, 7, {vLANE}"); a("v_add_u32 v8, v8, v9"); a("v_lshlrev_b32 v8, 1, v8")
        a(f"s_mul_i32 {sT0}, {sR1}, 384")
        for r in range(4): a(f"buffer_load_ushort v{44+r}, v8, {srd(SRD_B)}, {sT0} offen offset:{16*r}")
        a(f"v_lshlrev_b32 v9, 5, {vLANE}")
        a(f"buffer_load_dwordx4 v[16:19], v9, {srd(SRD_B)}, 0 offen")
        a(f"buffer_load_dwordx4 v[20:23], v9, {srd(SRD_B)}, 0 offen offset:16")
        a(f"s_mov_b32 {sR2}, 8192")
        self.unit_loads(sR2, sR1)
        self.get_tag()
        a(f"s_mul_i32 {sR2}, {sR0}, 3"); a(f"s_add_u32 {sR2}, {sR2}, {sR1}"); a(f"s_lshl_b32 {sR2}, {sR2}, 8"); a(f"s_add_u32 {sR2}, {sR2}, {WS_Q}")
        a(f"s_mul_i32 {sT0}, {sR1}, 6"); a(f"v_lshrrev_b32 v8, 3, {vLANE}"); a(f"v_add_u32 v8, {sT0}, v8")
        a("v_lshrrev_b32 v9, 1, v8"); a("v_mul_u32_u24 v9, 768, v9")
        a("v_and_b32 v8, 1, v8"); a("v_lshl_add_u32 v9, v8, 7, v9")
        a(f"v_and_b32 v8, 7, {vLANE}"); a("v_lshl_add_u32 v50, v8, 4, v9")
        a(f"v_mul_u32_u24 v51, 96, v8"); a(f"v_lshrrev_b32 v9, 3, {vLANE}"); a("v_lshl_add_u32 v51, v9, 4, v51")
        a(f"s_mul_i32 {sT0}, {sHW}, {TBLW}"); a(f"s_add_u32 {sT0}, {sT0}, {L_TBL}"); a(f"v_add_u32 v51, {sT0}, v51")
        a("s_waitcnt vmcnt(24)")
        for r in range(4): a(f"v_lshlrev_b32 v{44+r}, 16, v{44+r}")
        for i in range(8):
            a(f"v_lshlrev_b32 v{24+2*i}, 16, v{16+i}"); a(f"v_and_b32 v{25+2*i}, {sFFFF0000}, v{16+i}")
        a("v_add_f32 v48, v24, v25")
        for i in range(2, 16): a(f"v_add_f32 v48, v48, v{24+i}")
        self.allreduce("v_add_f32", "v48", "v49", ["q1", "q2", "r4", "r8", "p16", "p32"])
        a(f"v_mul_f32 v48, {f32hex(1/576)}, v48")
        for i in range(16): a(f"v_sub_f32 v{24+i}, v{24+i}, v48")
        a("v_mul_f32 v49, v24, v24")
        for i in range(1, 16): a(f"v_fmac_f32 v49, v{24+i}, v{24+i}")
        a(f"v_cmp_gt_u32 vcc, 36, {vLANE}"); a("v_cndmask_b32 v49, 0, v49, vcc")
        self.allreduce("v_add_f32", "v49", "v52", ["q1", "q2", "r4", "r8", "p16", "p32"])
        a(f"v_mul_f32 v49, {f32hex(1/576)}, v49")
        self.bf16_round2("v48", "v49", "v48", "v49", "v52")
        a(f"v_add_f32 v49, {f32hex(1e-5)}, v49"); self.bf16_round("v49", "v49", "v52")
        a("v_sqrt_f32 v49, v49"); self.bf16_round("v49", "v49", "v52"); a("v_rcp_f32 v49, v49")
        for k in range(4): a(f"v_sub_f32 v{44+k}, v{44+k}, v48")
        self.round4(44, "v52")
        for k in range(4): a(f"v_mul_f32 v{44+k}, v{44+k}, v49")
        self.round4(44, "v52")
        self.stamp(1, "pre")
        self.poll([(8 + 4 * t, 4, "v50", WS_MOD, 256 * t) for t in range(3)] + [(20 + 4 * t, 4, "v50", WS_MOD + 9 * 768, 256 * t) for t in range(3)],
                  active=lanes(48), sleep=p.SL_A, presleep=p.PS_A)
        self.stamp(2, "pre")
        self.sum_rows4([8, 12, 16]); self.sum_rows4([20, 24, 28])
        self.round4(8, "v52"); self.round4(20, "v53")
        for k in range(4): a(f"v_add_f32 v{20+k}, 1.0, v{20+k}")
        self.round4(20, "v52")
        for k in range(4): a(f"v_mul_f32 v{44+k}, v{44+k}, v{20+k}")
        self.round4(44, "v52")
        for k in range(4): a(f"v_add_f32 v{44+k}, v{44+k}, v{8+k}")
        for k in range(4): a(f"v_cvt_pk_bf16_f32 v{44+k}, v{44+k}, v{44+k}")
        a("ds_write_b128 v51, v[44:47]")
        a("s_mov_b64 exec, -1")
        a.label("L_unit_gemv")
        self.taddr_r("v2", 24)
        self.tread(16, 6, "v2")
        self.gemv(24, 0, list(range(16, 40)), 40, waits={0: 20, 4: 16, 8: 12, 12: 8, 16: 4, 20: 0})
        self.stamp(3, "pre")
        a(f"v_lshrrev_b32 v2, 4, {vLANE}"); a("v_lshlrev_b32 v2, 7, v2"); a(f"v_and_b32 v8, 7, {vLANE}"); a("v_lshl_add_u32 v2, v8, 4, v2")
        for r in range(4): a(f"v_mov_b32 v{44+r}, v{40+r}")
        for r in range(4): a(f"v_permlane32_swap_b32 v{40+r}, v{44+r}")
        for r in range(4): a(f"v_add_f32_dpp v{40+r}, v{44+r}, v{40+r} row_ror:8 row_mask:0xf bank_mask:0xf")
        for r in range(4): a(f"v_bfi_b32 v{40+r}, {sFF}, {vTAG}, v{40+r}")
        self.setexec(0x00FF00FF)
        a(f"buffer_store_dwordx4 v[40:43], v2, {srd(SRD_WS)}, {sR2} offen sc1")
        a("s_mov_b64 exec, -1")
        if p.STAMPS and p.MODE == "pre":
            a("s_waitcnt vmcnt(0)")
        self.stamp(7, "pre")
        a("s_branch L_pre_done")
        a.label("L_nounit")
        self.get_tag()
        a.label("L_pre_done")
        a(f"s_cmp_lg_u32 {sHW}, 3"); a("s_cbranch_scc1 L_noq")
        a(f"s_lshr_b32 {sT0}, s2, 3"); a(f"s_mul_i32 {sT0}, {sT0}, {2*768}"); a(f"s_add_u32 {sR0}, {sT0}, {WS_Q}")
        a(f"v_lshrrev_b32 v8, 4, {vLANE}"); a("v_mul_u32_u24 v2, 768, v8"); a(f"v_and_b32 v9, 15, {vLANE}"); a("v_lshl_add_u32 v2, v9, 4, v2")
        a("v_lshlrev_b32 v8, 6, v8"); a(f"v_bfe_u32 v9, {vLANE}, 3, 1"); a("v_lshl_add_u32 v8, v9, 5, v8")
        a(f"v_and_b32 v9, 7, {vLANE}"); a("v_add_u32 v8, v8, v9"); a("v_lshlrev_b32 v24, 1, v8")
        if p.PS_QG > 127: a("s_sleep 127")
        self.poll([(8 + 4 * t, 4, "v2", sR0, 256 * t) for t in range(3)], active=lanes(32), sleep=p.QSLEEP, presleep=(p.PS_QG - 127 if p.PS_QG > 127 else p.PS_QG))
        self.sum_rows4([8, 12, 16])
        a("v_cvt_pk_bf16_f32 v12, v8, v9"); a("v_cvt_pk_bf16_f32 v13, v10, v11")
        a(f"ds_write_b16 v24, v12 offset:{L_Q}"); a(f"ds_write_b16_d16_hi v24, v12 offset:{L_Q + 16}")
        a(f"ds_write_b16 v24, v13 offset:{L_Q + 32}"); a(f"ds_write_b16_d16_hi v24, v13 offset:{L_Q + 48}")
        a("s_waitcnt lgkmcnt(0)")
        a("s_mov_b64 exec, 1")
        a(f"v_mov_b32 v8, {L_QFLAG}"); a("v_mov_b32 v9, 1"); a("ds_write_b32 v8, v9")
        a("s_mov_b64 exec, -1")
        if p.MODE != "fine": self.stamp(4, "all")
        a.label("L_noq")
        self.tail()

    def piece_off(self, dst, gam_v, tmp):
        a = self.a
        a(f"v_lshrrev_b32 {tmp}, 1, {gam_v}"); a(f"v_mul_u32_u24 {tmp}, 768, {tmp}")
        a(f"v_and_b32 {dst}, 1, {gam_v}"); a(f"v_lshl_add_u32 {tmp}, {dst}, 7, {tmp}")
        a(f"v_and_b32 {dst}, 7, {vLANE}"); a(f"v_lshl_add_u32 {dst}, {dst}, 4, {tmp}")
    def gather_mod(self, vecs, voff, dsts, active, tmp0=8, sleep=16):
        a = self.a
        loads = []
        for i, v in enumerate(vecs):
            for t in range(3): loads.append((tmp0 + 12 * i + 4 * t, 4, voff, WS_MOD + 9 * v * 768, 256 * t))
        self.poll(loads, active=active, sleep=sleep)
        for i, v in enumerate(vecs):
            b = tmp0 + 12 * i
            self.sum_rows4([b, b + 4, b + 8]); self.round4(b, "v61")
            for r in range(4): a(f"v_mov_b32 v{dsts[i]+r}, v{b+r}")
    def half_add(self, D, T):
        a = self.a
        for r in range(4): a(f"v_mov_b32 v{T+r}, v{D+r}")
        for r in range(4): a(f"v_permlane32_swap_b32 v{D+r}, v{T+r}")
        for r in range(4): a(f"v_add_f32_dpp v{D+r}, v{T+r}, v{D+r} row_ror:8 row_mask:0xf bank_mask:0xf")
    def dpiece_addr(self, vaddr, vt, base, rowbytes):
        a = self.a
        a(f"v_lshrrev_b32 {vaddr}, 5, {vLANE}"); a(f"v_mul_u32_u24 {vaddr}, {rowbytes}, {vaddr}")
        a(f"v_bfe_u32 {vt}, {vLANE}, 4, 1"); a(f"v_lshl_add_u32 {vaddr}, {vt}, 7, {vaddr}")
        a(f"v_and_b32 {vt}, 7, {vLANE}"); a(f"v_lshl_add_u32 {vaddr}, {vt}, 4, {vaddr}")
        a(f"s_mul_i32 {sT0}, {sHW}, {2*rowbytes}"); a(f"s_add_u32 {sT0}, {sT0}, {base}")
        a(f"v_add_u32 {vaddr}, {sT0}, {vaddr}")

    def tail(self):
        a = self.a; p = self.p
        L24 = lanes(24)
        UX, UGA, UC1, USB = 64, 68, 72, 76
        vUT, vUR, vUP, vUA = "v80", "v81", "v82", "v83"
        FX, FGA, FGB = 84, 88, 92
        MS = 72 * 6 * 256
        a.label("L_tail")
        a("s_setprio 0")
        self.lds_spin(L_QFLAG, target=1, sleep=8)
        a("s_cmp_lt_u32 s2, 72"); a("s_cbranch_scc1 L_wo")
        a("s_cmp_ge_u32 s2, 252"); a("s_cbranch_scc1 L_hexit")
        a("s_cmp_ge_u32 s2, 216"); a("s_cbranch_scc1 L_dbl")
        a(f"s_sub_u32 {sT2}, s2, 72"); self.div3("s6", "s7", sT2)
        a("s_branch L_uprep")
        a.label("L_dbl")
        a(f"s_sub_u32 {sT2}, s2, 216"); self.div3("s6", "s7", sT2); a("s_lshl_b32 s6, s6, 1"); a("s_add_u32 s6, s6, 48")
        a.label("L_uprep")
        a(f"s_lshr_b32 {sT0}, {sHW}, 1"); a("s_lshl_b32 s7, s7, 1"); a(f"s_add_u32 s7, s7, {sT0}")
        a(f"s_and_b32 s8, {sHW}, 1")
        a("s_mul_i32 s9, s7, 3")
        a(f"v_lshrrev_b32 v8, 3, {vLANE}"); a("v_add_u32 v8, s9, v8")
        self.piece_off("v2", "v8", "v9")
        a(f"v_lshlrev_b32 {vUA}, 7, v8"); a(f"v_and_b32 v9, 7, {vLANE}"); a(f"v_lshl_add_u32 {vUA}, v9, 4, {vUA}"); a(f"v_add_u32 {vUA}, {WS_ATT}, {vUA}")
        self.set_srd(SRD_B, sX, size=1152)
        a("v_lshlrev_b32 v8, 5, v8"); a("v_add_u32 v8, v8, v9"); a("v_lshlrev_b32 v8, 1, v8")
        for r in range(4): a(f"buffer_load_ushort v{UX+r}, v8, {srd(SRD_B)}, 0 offen offset:{16*r}")
        self.gather_mod([2, 4, 3], "v2", [UGA, UC1, USB], L24, sleep=4)
        a("s_mov_b64 exec, -1")
        for r in range(4): a(f"v_lshlrev_b32 v{UX+r}, 16, v{UX+r}")
        for r in range(4): a(f"v_add_f32 v{UC1+r}, 1.0, v{UC1+r}")
        self.round4(UC1, "v8")
        a(f"s_mul_i32 {sT0}, {sHW}, {TBLW}"); a(f"s_add_u32 {sT0}, {sT0}, {L_TBL}")
        a(f"v_and_b32 v8, 7, {vLANE}"); a(f"v_mul_u32_u24 {vUT}, 48, v8"); a(f"v_lshrrev_b32 v9, 3, {vLANE}"); a(f"v_lshl_add_u32 {vUT}, v9, 4, {vUT}"); a(f"v_add_u32 {vUT}, {sT0}, {vUT}")
        a(f"v_mul_u32_u24 {vUR}, 48, v9"); a(f"v_add_u32 {vUR}, {sT0}, {vUR}")
        a(f"v_lshrrev_b32 {vUP}, 4, {vLANE}"); a(f"v_lshlrev_b32 {vUP}, 7, {vUP}"); a(f"v_lshl_add_u32 {vUP}, v8, 4, {vUP}")
        a("s_mul_i32 s10, s8, 72"); a("s_add_u32 s10, s10, s6"); a("s_mul_i32 s10, s10, 6"); a("s_add_u32 s10, s10, s7"); a("s_lshl_b32 s10, s10, 8")
        a("s_cmp_eq_u32 s8, 0"); a(f"s_cselect_b32 s12, s{sWG}, s{sWU}"); a(f"s_cselect_b32 s13, s{sWG+1}, s{sWU+1}")
        a(f"s_lshl_b32 {sT2}, s6, 7")
        self.set_srd(SRD_C, 12, off=sT2, size_minus_off=576 * 9216)
        a("s_mul_i32 s11, s7, 96"); a(f"v_lshrrev_b32 v56, 3, {vLANE}"); a("v_add_u32 v56, s11, v56"); a("v_mul_u32_u24 v56, 9216, v56")
        a(f"v_and_b32 v8, 7, {vLANE}"); a("v_lshl_add_u32 v56, v8, 4, v56")
        a("s_cmp_ge_u32 s2, 216"); a("s_cbranch_scc1 L_finprep")
        a(f"s_sub_u32 s14, s2, 72")
        a(f"s_mul_i32 {sT2}, s14, {32*1152}"); self.set_srd(SRD_A, sWD, off=sT2, size=32 * 1152)
        a(f"s_lshl_b32 {sT0}, {sHW}, 3")
        a(f"v_lshrrev_b32 v57, 3, {vLANE}"); a(f"v_add_u32 v57, {sT0}, v57"); a("v_mul_u32_u24 v57, 1152, v57")
        a(f"v_and_b32 v8, 7, {vLANE}"); a("v_lshl_add_u32 v57, v8, 4, v57")
        a("s_lshr_b32 s15, s14, 1"); a("s_mul_i32 s15, s15, 1536"); a(f"s_and_b32 {sT0}, s14, 1"); a(f"s_lshl_b32 {sT0}, {sT0}, 7"); a(f"s_add_u32 s15, s15, {sT0}")
        a(f"s_lshl_b32 {sT0}, {sHW}, 2"); a(f"s_add_u32 s15, s15, {sT0}")
        a(f"v_and_b32 v8, 7, {vLANE}"); a("v_min_u32 v8, 5, v8"); a("v_lshlrev_b32 v58, 8, v8"); a(f"v_lshrrev_b32 v9, 3, {vLANE}"); a("v_lshl_add_u32 v58, v9, 4, v58"); a("v_add_u32 v58, s15, v58")
        a("v_lshlrev_b32 v59, 7, v8"); a(f"v_add_u32 v59, {WS_ST}, v59")
        self.dpiece_addr(f"v{FX}", "v8", L_DOWN, 2304)
        a(f"s_mul_i32 {sT0}, {sHW}, 48"); a(f"v_add_u32 v{FX+1}, {sT0}, {vLANE}"); a(f"v_lshlrev_b32 v{FX+1}, 4, v{FX+1}")
        a("s_mul_i32 s15, s14, 2304"); a(f"s_add_u32 s15, s15, {WS_OUT}")
        a("s_branch L_late")
        a.label("L_finprep")
        a("s_cmp_ge_u32 s2, 234"); a("s_cbranch_scc1 L_late")
        a(f"s_sub_u32 s14, s2, 216")
        self.set_srd(SRD_B, sX, size=1152)
        a(f"v_and_b32 v46, 7, {vLANE}")
        a("s_lshl_b32 s15, s14, 6"); a("v_lshlrev_b32 v8, 1, v46")
        for r in range(4): a(f"buffer_load_ushort v{FX+r}, v8, {srd(SRD_B)}, s15 offen offset:{16*r}")
        a("v_mov_b32 v8, s14"); self.piece_off("v2", "v8", "v9")
        self.gather_mod([2, 5], "v2", [FGA, FGB], FULL, sleep=4)
        for r in range(4): a(f"v_lshlrev_b32 v{FX+r}, 16, v{FX+r}")
        a.label("L_late")
        self.lds_spin(L_WCNT if p.WTRIG == "issued" else L_OCNT, target=4, sleep=2)
        self.stamp(5)
        a(f"s_mov_b32 {sT0}, 0")
        for t in range(12):
            a(f"buffer_load_dwordx4 a[{4*t}:{4*t+3}], v56, {srd(SRD_C)}, {sT0} offen nt")
            if t < 11: a(f"s_add_u32 {sT0}, {sT0}, {8*9216}")
        a("s_cmp_ge_u32 s2, 216"); a("s_cbranch_scc1 L_late2")
        if p.DOWNLATER: a("s_waitcnt vmcnt(0)")
        for cb in range(9):
            a(f"buffer_load_dwordx4 a[{48+4*cb}:{51+4*cb}], v57, {srd(SRD_A)}, 0 offen offset:{128*cb} nt")
        a("s_setprio 3")
        if not p.DOWNLATER: a("s_waitcnt vmcnt(9)")
        a("s_branch L_unit")
        a.label("L_late2")
        a(f"s_mov_b32 {sT0}, 128")
        for t in range(12):
            a(f"buffer_load_dwordx4 a[{48+4*t}:{51+4*t}], v56, {srd(SRD_C)}, {sT0} offen nt")
            if t < 11: a(f"s_add_u32 {sT0}, {sT0}, {8*9216}")
        a("s_setprio 3")
        a("s_waitcnt vmcnt(0)")
        a.label("L_unit")
        cnt = [0]
        def unit_pass(src4, area):
            cnt[0] += 1; L = f"L_up{cnt[0]}"
            for k in range(4): a(f"v_cvt_pk_bf16_f32 v{8+k}, v{src4+k}, v{src4+k}")
            self.setexec(L24); a(f"ds_write_b128 {vUT}, v[8:11]"); a("s_mov_b64 exec, -1")
            self.tread(16, 3, vUR)
            for st_ in range(2):
                if st_ == 1:
                    a("s_cmp_lt_u32 s2, 216"); a(f"s_cbranch_scc1 {L}")
                self.gemv(12, 48 * st_, list(range(16, 28)), 36)
                self.half_add(36, 40)
                for r in range(4): a(f"v_bfi_b32 v{36+r}, {sFF}, {vTAG}, v{36+r}")
                a(f"s_add_u32 {sT0}, s10, {area + 1536 * st_}")
                self.setexec(0x00FF00FF); a(f"buffer_store_dwordx4 v[36:39], {vUP}, {srd(SRD_WS)}, {sT0} offen sc1"); a("s_mov_b64 exec, -1")
            a.label(L)
        unit_pass(UC1, WS_C)
        unit_pass(USB, WS_C + 2 * MS)
        self.stamp(1, "fine")
        loads = [(8 + 4 * k, 4, vUA, None if k < 2 else (k & ~1) * 2304, (k & 1) * 2304) for k in range(8)]
        self.poll(loads, active=L24)
        self.stamp(6)
        self.sum_rows4([8 + 4 * k for k in range(8)])
        a(f"v_pk_fma_f32 v[{UX}:{UX+1}], v[8:9], v[{UGA}:{UGA+1}], v[{UX}:{UX+1}]"); a(f"v_pk_fma_f32 v[{UX+2}:{UX+3}], v[10:11], v[{UGA+2}:{UGA+3}], v[{UX+2}:{UX+3}]")
        a(f"v_pk_mul_f32 v[{UC1}:{UC1+1}], v[{UX}:{UX+1}], v[{UC1}:{UC1+1}]"); a(f"v_pk_mul_f32 v[{UC1+2}:{UC1+3}], v[{UX+2}:{UX+3}], v[{UC1+2}:{UC1+3}]")
        a("s_mov_b64 exec, -1")
        unit_pass(UC1, WS_G)
        self.stamp(2, "fine")
        a("s_or_b32 s11, s6, s8"); a("s_cmp_lg_u32 s11, 0"); a("s_cbranch_scc1 L_nostat")
        a("v_mov_b32 v12, 0"); a("v_mov_b32 v13, 0")
        self.setexec(L24)
        a(f"v_pk_add_f32 v[14:15], v[{UX}:{UX+1}], v[{UX+2}:{UX+3}]"); a(f"v_pk_mul_f32 v[16:17], v[{UX}:{UX+1}], v[{UX}:{UX+1}]")
        a(f"v_pk_fma_f32 v[16:17], v[{UX+2}:{UX+3}], v[{UX+2}:{UX+3}], v[16:17]")
        a("v_add_f32 v12, v14, v15"); a("v_add_f32 v13, v16, v17")
        a("s_mov_b64 exec, -1")
        self.allreduceN("v_add_f32", [("v12", "v14"), ("v13", "v15")], ["q1", "q2", "r4", "r8", "p16"])
        a("v_mov_b32 v14, 0"); a("v_mov_b32 v15, 0")
        for c in range(4): a(f"v_bfi_b32 v{12+c}, {sFF}, {vTAG}, v{12+c}")
        a("s_lshl_b32 s11, s7, 7"); a(f"s_add_u32 s11, s11, {WS_ST}")
        a("s_mov_b64 exec, 1"); a(f"buffer_store_dwordx4 v[12:15], off, {srd(SRD_WS)}, s11 sc1"); a("s_mov_b64 exec, -1")
        a.label("L_nostat")
        a("s_cmp_ge_u32 s2, 234"); a("s_cbranch_scc1 L_hexit")
        a("s_cmp_ge_u32 s2, 216"); a("s_cbranch_scc1 L_fin")
        self.poll([(20, 1, "v58", WS_C, 0), (21, 1, "v58", WS_C + 2 * MS, 0), (22, 1, "v58", WS_C + MS, 0), (23, 1, "v58", WS_C + 3 * MS, 0)])
        self.lane6_reduce([20, 21, 22, 23], 12)
        self.poll([(8, 1, "v58", WS_G, 0), (9, 1, "v58", WS_G + MS, 0), (10, 4, "v59", None, 0)], presleep=p.PS_G)
        self.stamp(3, "fine")
        self.lane6_reduce([8, 9, 10, 11], 14)
        a(f"v_mul_f32 v10, {f32hex(1/576)}, v10"); a(f"v_mul_f32 v11, {f32hex(1/576)}, v11")
        a("v_fma_f32 v11, -v10, v10, v11"); a(f"v_add_f32 v11, {f32hex(1e-5)}, v11"); a("v_rsq_f32 v11, v11")
        a("v_fma_f32 v8, -v10, v20, v8"); a("v_fma_f32 v9, -v10, v22, v9")
        a("v_fma_f32 v8, v8, v11, v21"); a("v_fma_f32 v9, v9, v11, v23")
        self.sigmoid("v12", "v8", "v12")
        a("v_mul_f32 v8, v12, v9")
        a("v_cvt_pk_bf16_f32 v8, v8, v8")
        for r in range(4): a(f"v_and_b32 v{12+r}, v8, v{vM[r]}")
        for cb in range(9):
            d = 16 + 4 * cb
            a(f"v_mfma_f32_16x16x32_bf16 v[{d}:{d+3}], a[{48+4*cb}:{51+4*cb}], v[12:15], 0")
        self.setexec(self.VALID)
        for cb in range(9): a(f"ds_write_b128 v{FX}, v[{16+4*cb}:{19+4*cb}] offset:{256*cb}")
        a("s_mov_b64 exec, -1")
        a("s_waitcnt lgkmcnt(0)")
        a("s_barrier")
        a(f"s_cmp_ge_u32 {sHW}, 3"); a("s_cbranch_scc1 L_hexit")
        self.setexec(lanes(48))
        for k in range(8): a(f"ds_read_b128 v[{8+4*k}:{11+4*k}], v{FX+1} offset:{L_DOWN + 2304*k}")
        a("s_waitcnt lgkmcnt(0)")
        self.sum_rows4([8 + 4 * k for k in range(8)])
        for c in range(4): a(f"v_bfi_b32 v{8+c}, {sFF}, {vTAG}, v{8+c}")
        a(f"buffer_store_dwordx4 v[8:11], v{FX+1}, {srd(SRD_WS)}, s15 offen sc1")
        self.stamp(7)
        a("s_branch L_hexit")
        a.label("L_fin")
        a(f"v_and_b32 v46, 7, {vLANE}")
        a("s_lshl_b32 s15, s14, 7"); a("v_lshlrev_b32 v47, 4, v46"); a("v_add_u32 v47, s15, v47")
        a(f"v_lshrrev_b32 v8, 3, {vLANE}"); a("v_mul_u32_u24 v42, 2304, v8"); a("v_add_u32 v42, v42, v47"); a(f"v_add_u32 v42, {WS_ATT}, v42")
        a(f"s_mul_i32 {sT0}, {sHW}, 36"); a(f"v_add_u32 v8, {sT0}, v8"); a("v_mul_u32_u24 v43, 2304, v8"); a("v_add_u32 v43, v43, v47"); a(f"v_add_u32 v43, {WS_OUT}, v43")
        a(f"v_add_u32 v44, {4*8*2304}, v43"); a(f"v_cmp_gt_u32 vcc, 32, {vLANE}"); a("v_cndmask_b32 v44, v43, v44, vcc")
        a(f"s_lshl_b32 {sT0}, {sHW}, 7"); a(f"s_add_u32 {sT0}, {sT0}, {L_FIN}"); a("v_lshlrev_b32 v45, 4, v46"); a(f"v_add_u32 v40, {sT0}, v45")
        self.poll([(8, 4, "v42", None, 0)], sleep=1)
        self.allreduceN("v_add_f32", [(f"v{8+c}", f"v{12+c}") for c in range(4)], ["r8", "p16", "p32"])
        a(f"v_pk_fma_f32 v[{FX}:{FX+1}], v[8:9], v[{FGA}:{FGA+1}], v[{FX}:{FX+1}]"); a(f"v_pk_fma_f32 v[{FX+2}:{FX+3}], v[10:11], v[{FGA+2}:{FGA+3}], v[{FX+2}:{FX+3}]")
        self.set_srd(SRD_B, sOUT, size=1152)
        a("s_lshl_b32 s15, s14, 6"); a("v_lshlrev_b32 v49, 1, v46")
        self.stamp(3, "fine")
        self.poll([(8, 4, "v43", None, 0), (12, 4, "v43", 8*2304, 0), (16, 4, "v43", 16*2304, 0), (20, 4, "v43", 24*2304, 0), (24, 4, "v44", None, 0)], presleep=p.PS_OUT)
        a(f"v_cmp_gt_u32 vcc, 32, {vLANE}")
        self.sum_rows4([8, 12, 16, 20])
        for c in range(4): a(f"v_cndmask_b32 v{24+c}, 0, v{24+c}, vcc")
        self.sum_rows4([8, 24])
        self.allreduceN("v_add_f32", [(f"v{8+c}", f"v{12+c}") for c in range(4)], ["r8", "p16", "p32"])
        self.setexec(0xFF)
        a("ds_write_b128 v40, v[8:11]")
        a("s_mov_b64 exec, -1")
        a("s_waitcnt lgkmcnt(0)")
        a("s_barrier")
        a(f"s_cmp_lg_u32 {sHW}, 0"); a("s_cbranch_scc1 L_hexit")
        self.setexec(0xFF)
        for w in range(4): a(f"ds_read_b128 v[{8+4*w}:{11+4*w}], v45 offset:{L_FIN + 128*w}")
        a("s_waitcnt lgkmcnt(0)")
        self.sum_rows4([8, 12, 16, 20])
        a(f"v_pk_fma_f32 v[8:9], v[8:9], v[{FGB}:{FGB+1}], v[{FX}:{FX+1}]"); a(f"v_pk_fma_f32 v[10:11], v[10:11], v[{FGB+2}:{FGB+3}], v[{FX+2}:{FX+3}]")
        a("v_cvt_pk_bf16_f32 v12, v8, v9"); a("v_cvt_pk_bf16_f32 v13, v10, v11")
        a(f"buffer_store_short v12, v49, {srd(SRD_B)}, s15 offen"); a(f"buffer_store_short_d16_hi v12, v49, {srd(SRD_B)}, s15 offen offset:16")
        a(f"buffer_store_short v13, v49, {srd(SRD_B)}, s15 offen offset:32"); a(f"buffer_store_short_d16_hi v13, v49, {srd(SRD_B)}, s15 offen offset:48")
        self.stamp(7)
        a("s_cmp_lg_u32 s14, 0"); a("s_cbranch_scc1 L_hexit")
        a("s_mov_b64 exec, 1")
        a(f"v_mov_b32 v8, {sTAG}")
        a(f"buffer_store_dword v8, off, {srd(SRD_WS)}, 0 sc1")
        a("s_branch L_hexit")
        a.label("L_wo")
        a(f"s_and_b32 {sR0}, s2, 7"); a(f"s_lshr_b32 {sR1}, s2, 3")
        a(f"s_lshl_b32 {sT2}, {sR1}, 7")
        self.set_srd(SRD_A, sWO, off=sT2, size_minus_off=4096 * 1152)
        a(f"s_lshl_b32 {sR2}, {sR0}, 2"); a(f"s_add_u32 {sR2}, {sR2}, {sHW}")
        a(f"s_lshl_b32 {sT0}, {sR2}, 7")
        a(f"v_lshrrev_b32 v1, 3, {vLANE}"); a(f"v_add_u32 v1, {sT0}, v1"); a("v_mul_u32_u24 v1, 1152, v1")
        a(f"v_and_b32 v2, 7, {vLANE}"); a("v_lshl_add_u32 v1, v2, 4, v1")
        if p.WOLATE: a("s_branch L_wo_have")
        elif p.WOEARLY:
            if p.MAP2: a("s_branch L_wo_have")
            else: a(f"s_cmp_lg_u32 {sHW}, 0"); a("s_cbranch_scc1 L_wo_have")
        a(f"s_mov_b32 {sT0}, 0")
        for t in range(16):
            if t >= p.WOPACE: a(f"s_waitcnt vmcnt({p.WOPACE-1})")
            a(f"buffer_load_dwordx4 a[{96+4*t}:{99+4*t}], v1, {srd(SRD_A)}, {sT0} offen nt")
            if t < 15: a(f"s_add_u32 {sT0}, {sT0}, 9216")
        a.label("L_wo_have")
        a(f"s_mul_i32 s4, {sR2}, {8*OSLOT}"); a("s_add_u32 s4, s4, " + str(WS_O))
        a(f"s_mul_i32 {sT0}, {sR0}, 2304"); a(f"s_lshl_b32 {sT1}, {sR1}, 8"); a(f"s_add_u32 {sT0}, {sT0}, {sT1}"); a(f"s_add_u32 s5, {sT0}, {WS_ATT}")
        a(f"v_and_b32 v41, 7, {vLANE}"); a(f"v_mul_u32_u24 v41, {OSLOT}, v41")
        a(f"v_lshlrev_b32 v40, 3, {vLANE}")
        a(f"v_and_b32 v8, 3, {vLANE}"); a("v_mul_u32_u24 v8, 160, v8"); a(f"v_lshrrev_b32 v42, 2, {vLANE}"); a("v_lshl_add_u32 v42, v42, 2, v8")
        a(f"s_mul_i32 {sT0}, {sHW}, {TBLW}"); a(f"s_add_u32 {sT0}, {sT0}, {L_TBL}"); a(f"v_add_u32 v42, {sT0}, v42")
        self.taddr_r("v43", 20)
        self.dpiece_addr("v44", "v8", L_PART, 256)
        a(f"v_lshlrev_b32 v45, 4, {vLANE}")
        a("s_add_u32 s15, s4, 3200")
        self.poll([(8, 4, "v41", "s4", 512)], sleep=32)
        a(f"v_and_b32 v8, {sFFFF0000}, v8")
        a("v_mov_b32 v10, v8")
        self.allreduce("v_max_f32", "v10", "v11", ["q1", "q2", "hm"])
        a("v_sub_f32 v11, v8, v10"); a(f"v_mul_f32 v11, 0x{LOG2E:08x}, v11"); a("v_exp_f32 v11, v11")
        a("v_mul_f32 v12, v11, v9")
        self.allreduce("v_add_f32", "v12", "v13", ["q1", "q2", "hm"])
        a("v_rcp_f32 v12, v12"); a("v_mul_f32 v11, v11, v12")
        for s_ in range(8): a(f"v_mov_b32_dpp v{48+s_}, v11 row_newbcast:{s_} row_mask:0xf bank_mask:0xf")
        self.lds_spin(L_WCNT, target=p.WOTGT, sleep=2)
        if p.WOLATE:
            a(f"s_mov_b32 {sT0}, 0")
            for t in range(16):
                a(f"buffer_load_dwordx4 a[{96+4*t}:{99+4*t}], v1, {srd(SRD_A)}, {sT0} offen nt")
                if t < 15: a(f"s_add_u32 {sT0}, {sT0}, 9216")
        a("s_setprio 3")
        self.stamp(5)
        self.poll([(8 + 2 * s_, 2, "v40", "s4" if s_ < 6 else "s15", s_ * OSLOT if s_ < 6 else (s_ - 5) * OSLOT) for s_ in range(8)])
        self.stamp(6, "wo")
        a("v_pk_mul_f32 v[24:25], v[8:9], v[48:49] op_sel_hi:[1,0]")
        a("v_pk_mul_f32 v[26:27], v[10:11], v[48:49] op_sel:[0,1]")
        for s_ in range(2, 8):
            d = 24 + 2 * (s_ & 1); w = 48 + (s_ & ~1)
            sel = "op_sel_hi:[1,0,1]" if (s_ & 1) == 0 else "op_sel:[0,1,0]"
            a(f"v_pk_fma_f32 v[{d}:{d+1}], v[{8+2*s_}:{9+2*s_}], v[{w}:{w+1}], v[{d}:{d+1}] {sel}")
        self.pk_add(24, 24, 26)
        a("v_cvt_pk_bf16_f32 v24, v24, v24"); a("v_cvt_pk_bf16_f32 v25, v25, v25")
        a("ds_write_b32 v42, v24"); a("ds_write_b32 v42, v25 offset:80")
        self.tread(16, 4, "v43")
        self.stamp(1, "wo")
        self.gemv(16, 96, list(range(16, 32)), 36)
        self.stamp(2, "wo")
        self.setexec(self.VALID); a("ds_write_b128 v44, v[36:39]"); a("s_mov_b64 exec, -1")
        a("s_waitcnt lgkmcnt(0)")
        a("s_barrier")
        self.stamp(3, "wo")
        a(f"s_cmp_lg_u32 {sHW}, 0"); a("s_cbranch_scc1 L_hexit")
        self.setexec(0xFFFF)
        for k in range(8): a(f"ds_read_b128 v[{8+4*k}:{11+4*k}], v45 offset:{L_PART + 256*k}")
        a("s_waitcnt lgkmcnt(0)")
        self.sum_rows4([8 + 4 * k for k in range(8)])
        for c in range(4): a(f"v_bfi_b32 v{8+c}, {sFF}, {vTAG}, v{8+c}")
        a(f"buffer_store_dwordx4 v[8:11], v45, {srd(SRD_WS)}, s5 offen sc1")
        self.stamp(7, "wo")
        a.label("L_hexit")
        self.dump_stamps()
        a("s_endpgm")

    def lane6_reduce(self, regs, T):
        a = self.a
        a(f"v_and_b32 v{T}, 7, {vLANE}"); a(f"v_cmp_gt_u32 vcc, 6, v{T}")
        for r in regs: a(f"v_cndmask_b32 v{r}, 0, v{r}, vcc")
        self.allreduceN("v_add_f32", [(f"v{r}", f"v{T}") for r in regs], ["q1", "q2", "hm"])

    def build(self):
        self.prologue(); self.swave(); self.hwave()
        self.a.label("L_exit"); self.a("s_endpgm")
        return autonop(self.a.lines)

HEADER = open("adaLN_cond__mha_block_cached__glu_gated_glu__decode.s.ref").read().split("; Override launch geometry")[0]

def make(p=P):
    body = Gen(p).build()
    txt = HEADER + "; Override launch geometry by editing the next line (default: block=256,\n; grid=ceil(out_elems/256), lds=0). Harness parses it; keep it on one line.\n"
    txt += f"; @launch grid=(256,1,1) block=(512,1,1) lds={LDS_BYTES}\n"
    txt += f""".amdgcn_target "amdgcn-amd-amdhsa--gfx950"
.text
.globl {KNAME}
.p2align 8
.type {KNAME},@function
{KNAME}:
"""
    txt += "\n".join(("" if l.endswith(":") else "    ") + l for l in body) + "\n"
    txt += f""".section .rodata,"a"
.p2align 6
.amdhsa_kernel {KNAME}
  .amdhsa_next_free_vgpr 256
  .amdhsa_next_free_sgpr 102
  .amdhsa_accum_offset {NVGPR}
  .amdhsa_group_segment_fixed_size 0
  .amdhsa_kernarg_size 112
  .amdhsa_user_sgpr_count 2
  .amdhsa_user_sgpr_kernarg_segment_ptr 1
  .amdhsa_system_sgpr_workgroup_id_x 1
.end_amdhsa_kernel
"""
    return txt

def report_h(pr, hw, mode):
    if mode == "pre":
        qs = hw[72:, 0]; mc = hw[80:134, 1]; mn = hw[134:242, 1]
        pr("H start", hw[:, :, 0])
        pr("modc: tag", mc[:, 1]); pr("modc: silu done", mc[:, 2]); pr("modc: gemv done", mc[:, 3]); pr("modc: pub complete", mc[:, 7])
        pr("modn: gemv done", mn[:, 3]); pr("modn: pub complete", mn[:, 7])
        pr("q: poll start", qs[:, 1]); pr("q: pollA done", qs[:, 2]); pr("q: gemv done", qs[:, 3]); pr("q: pub complete", qs[:, 7])
        pr("q gathered (H3)", hw[:, 3, 4])
    elif mode == "wo":
        w = hw[:72]
        pr("wo: poll start", w[:, :, 5]); pr("wo: gathered", w[:, :, 6]); pr("wo: tbl-gath", w[:, :, 1] - w[:, :, 6]); pr("wo: gemv", w[:, :, 2] - w[:, :, 1]); pr("wo: barrier passed", w[:, :, 3]); pr("wo: published", w[:, 0, 7])
    elif mode == "fine":
        u = hw[72:252]
        pr("late trigger", u[:, :, 5]); pr("unit: C done", u[:, :, 1]); pr("unit: attn gathered", u[:, :, 6]); pr("unit: G published", u[:, :, 2])
        pr("down: G gathered", hw[72:216, :, 3]); pr("down: published", hw[72:216, :3, 7]); pr("fin: x1", hw[216:234, :, 3]); pr("fin: done", hw[216:234, 0, 7])
    else:
        u = hw[72:252]
        pr("q gathered (H3)", hw[:, 3, 4])
        pr("late trigger", u[:, :, 5]); pr("unit: attn gathered", u[:, :, 6]); pr("down: published", hw[72:216, :3, 7]); pr("fin: done", hw[216:234, 0, 7])
def end_time(hw): return hw[216:234, 0, 7].max()

if __name__ == "__main__":
    out = sys.argv[1] if len(sys.argv) > 1 else "adaLN_cond__mha_block_cached__glu_gated_glu__decode.s"
    open(out, "w").write(make())
    print("wrote", out)
```

```python
import sys
from asmlib import Asm, autonop

KNAME = "adaLN_cond__mha_block_cached__glu_gated_glu__decode_kernel"

WS_EPOCH = 0
WS_O = 0x10000
OSLOT = 640
WS_ATT = 0x40000
WS_MOD = 0x80000
WS_Q = 0x90000
WS_OUT = 0xA0000
WS_G = 0x100000
WS_C = 0x140000
WS_ST = 0x1B0000
WS_DBG = 0x200000
WS_SIZE = 0x300000

L_QFLAG = 0
L_WCNT = 4
L_MLCNT = 8
L_OCNT = 12
L_TICK = 16
L_GRP = 20
L_Q = 0x40
L_ML = 0x180
L_STAT = 0x1C0
L_TBL = 0x200
TBLW = 768
L_PART = 0x1000
L_OPART = 0x1800
L_FIN = 0x2000
L_DOWN = 0x3000
L_KRING = 0x8000
LDS_BYTES = 0x8000 + 4 * 24 * 1024

LOG2E = 0x3FB8AA3B
SCALE = 0x3DB504F3
SPIN_MAX = 200000
NVGPR = 96

class P:
    R = 44
    D = 5
    NP = 44
    STAMPS = False
    MODE = "tail"
    QSLEEP = 16
    WTRIG = 'done'
    FULLCHECK = False
    LATEMOD = False
    WOEARLY = True
    MAP2 = False
    WOLATE = True
    DYN = False
    DOWNAFTERC = False
    LPACE = 0
    LPACE_T = 150
    NOTAIL = False
    MAPKV = 0
    DBLEARLY = True
    CMERGE = True
    GSYNC = 0
    MLAT = 12
    SL_GW = 8
    TKAT = 1
    SL_C = 2
    SL_O = 0
    CGATE = False
    CTGT = 256
    PS_ATT = 60
    CGATE_O = False
    CTGT_O = 256
    PS_O = 10
    SL_ATT = 0
    SL_G = 0
    SL_OUT = 0
    KVPOL = 'nt'
    WPOL = 'nt'
    DOWNLATER = True
    WOTGT = 4
    HPRIO0 = 1
    HDELAY = 0
    KLDS = True
    PS_A = 60
    SL_A = 16
    PS_QG = 240
    PS_G = 0
    PS_OUT = 0
    PS_Q = 0
    DEND = 10
    DENDAT = 32
    D2 = 0
    NEARLY = 0
    EPACE = 1
    WTHR = 0
    SPRIO = 2
    WOPACE = 2

def f32hex(x):
    import struct
    return "0x%08x" % struct.unpack("<I", struct.pack("<f", x))[0]

sWAVE = "s3"
sX, sK, sV, sWQ, sWO, sWG, sWU, sWD, sC, sWM, sOUT, sDBG, sWS = 16, 18, 20, 22, 24, 28, 30, 32, 34, 36, 38, 40, 42
SRD_A, SRD_B, SRD_WS, SRD_C = 44, 48, 52, 56
sTAG = "s64"
sT0, sT1, sT2, sT3 = "s65", "s66", "s67", "s68"
sSPIN = "s69"
sSAVE = 72
sHW = "s76"
sR0, sR1, sR2, sR3 = "s77", "s78", "s79", "s83"
sFFFF0000 = "s80"
sFF = "s81"
sSTAMP = 84
def srd(b): return f"s[{b}:{b+3}]"
def sp(b): return f"s[{b}:{b+1}]"
vLANE = "v3"
vM = [4, 5, 6, 7]
vTAG = "v60"
FULL = (1 << 64) - 1
def lanes(n): return (1 << n) - 1

class Gen:
    def __init__(self, p=P):
        self.a = Asm(); self.p = p

    def mask64(self, sreg, val):
        self.a(f"s_mov_b32 s{sreg}, 0x{val & 0xffffffff:08x}"); self.a(f"s_mov_b32 s{sreg+1}, 0x{(val >> 32) & 0xffffffff:08x}")
    def setexec(self, val):
        a = self.a
        if val == FULL: a("s_mov_b64 exec, -1")
        elif val <= 64: a(f"s_mov_b64 exec, {val}")
        elif val < (1 << 32): a(f"s_mov_b64 exec, 0x{val:x}")
        else:
            a(f"s_mov_b32 exec_lo, 0x{val & 0xffffffff:08x}"); a(f"s_mov_b32 exec_hi, 0x{(val >> 32) & 0xffffffff:08x}")
    def stamp(self, idx, mode="tail"):
        if self.p.STAMPS and (mode == self.p.MODE or mode == "all" or (mode == "tail" and self.p.MODE in ("fine", "fin"))):
            self.a(f"s_memrealtime s[{sSTAMP+2*idx}:{sSTAMP+2*idx+1}]")
    def dump_stamps(self, n=8, extra=None):
        if not self.p.STAMPS: return
        a = self.a
        a("s_waitcnt lgkmcnt(0)")
        a("s_mov_b64 exec, -1")
        a(f"s_lshl_b32 {sT0}, s2, 3"); a(f"s_add_u32 {sT0}, {sT0}, {sWAVE}"); a(f"s_lshl_b32 {sT0}, {sT0}, 7")
        a(f"s_add_u32 {sT0}, {sT0}, {WS_DBG}")
        for i in range(2 * n): a(f"v_writelane_b32 v8, s{sSTAMP+i}, {i}")
        if extra: a(f"v_writelane_b32 v8, {extra}, 16")
        a(f"v_lshlrev_b32 v9, 2, {vLANE}")
        a("s_mov_b64 exec, 0x1ffff")
        a(f"buffer_store_dword v8, v9, {srd(SRD_WS)}, {sT0} offen")
    def lds_spin(self, addr, target=1, vtmp="v61", vaddr="v62", sleep=1):
        a = self.a; L = a.uid("Lspin"); E = a.uid("Lspun")
        a(f"v_mov_b32 {vaddr}, {addr}")
        a(f"s_mov_b32 {sSPIN}, 0")
        a.label(L)
        a(f"ds_read_b32 {vtmp}, {vaddr}")
        a("s_waitcnt lgkmcnt(0)")
        a(f"v_readfirstlane_b32 {sT3}, {vtmp}")
        a(f"s_cmp_ge_u32 {sT3}, {target}")
        a(f"s_cbranch_scc1 {E}")
        if sleep: a(f"s_sleep {sleep}")
        a(f"s_add_u32 {sSPIN}, {sSPIN}, 1")
        a(f"s_cmp_lt_u32 {sSPIN}, {SPIN_MAX * 4}")
        a(f"s_cbranch_scc1 {L}")
        a.label(E)
    def lds_add1(self, addr, va, vb):
        a = self.a
        a("s_mov_b64 exec, 1")
        a(f"v_mov_b32 {va}, {addr}"); a(f"v_mov_b32 {vb}, 1"); a(f"ds_add_u32 {va}, {vb}")
        a("s_mov_b64 exec, -1")
    def poll(self, loads, active=None, sleep=0, tmps=("v61", "v62", "v63"), presleep=0, strong=()):
        a = self.a; L = a.uid("Lpoll"); E = a.uid("Lpolled")
        t0, t1, t2 = tmps
        sMISS = "s70"
        if active is not None: self.setexec(active)
        if presleep: a(f"s_sleep {presleep}")
        n = len(loads)
        def issue(ld):
            (dst, k, voff, soff, imm) = ld
            op = {1: "buffer_load_dword", 2: "buffer_load_dwordx2", 4: "buffer_load_dwordx4"}[k]
            r = f"v{dst}" if k == 1 else f"v[{dst}:{dst+k-1}]"
            if soff is not None and not str(soff).startswith("s"):
                a(f"s_mov_b32 {sT3}, {soff}"); so = sT3
            else: so = soff if soff is not None else "0"
            a(f"{op} {r}, {voff}, {srd(SRD_WS)}, {so} offen offset:{imm} sc1")
        def test(li, ld):
            if li in strong or self.p.FULLCHECK:
                a(f"v_xor_b32 {t0}, {vTAG}, v{ld[0]}")
                k = 1
                while k < ld[1]:
                    if k + 1 < ld[1]:
                        a(f"v_xor_b32 {t1}, {vTAG}, v{ld[0]+k}"); a(f"v_xor_b32 {t2}, {vTAG}, v{ld[0]+k+1}"); a(f"v_or3_b32 {t0}, {t0}, {t1}, {t2}"); k += 2
                    else:
                        a(f"v_xor_b32 {t1}, {vTAG}, v{ld[0]+k}"); a(f"v_or_b32 {t0}, {t0}, {t1}"); k += 1
                a(f"v_cmp_ne_u32_sdwa vcc, 0, {t0} src0_sel:DWORD src1_sel:BYTE_0") if False else (a(f"v_and_b32 {t0}, 0xff, {t0}"), a(f"v_cmp_ne_u32 vcc, 0, {t0}"))
            else:
                a(f"v_cmp_ne_u32_sdwa vcc, {vTAG}, v{ld[0]} src0_sel:BYTE_0 src1_sel:BYTE_0")
        if n == 1:
            a(f"s_mov_b32 {sSPIN}, 0")
            a.label(L)
            issue(loads[0]); a("s_waitcnt vmcnt(0)")
            test(0, loads[0])
            a(f"s_cbranch_vccz {E}")
            if sleep: a(f"s_sleep {sleep}")
            a(f"s_add_u32 {sSPIN}, {sSPIN}, 1"); a(f"s_cmp_lt_u32 {sSPIN}, {SPIN_MAX}"); a(f"s_cbranch_scc1 {L}")
            a.label(E)
            return
        for ld in loads: issue(ld)
        a(f"s_mov_b32 {sMISS}, 0")
        for li, ld in enumerate(loads):
            Lk = a.uid("Lk")
            a(f"s_waitcnt vmcnt({n-1-li})")
            test(li, ld)
            a(f"s_cbranch_vccz {Lk}")
            a(f"s_bitset1_b32 {sMISS}, {li}")
            a.label(Lk)
        a(f"s_cmp_eq_u32 {sMISS}, 0"); a(f"s_cbranch_scc1 {E}")
        a(f"s_mov_b32 {sSPIN}, 0")
        a.label(L)
        if sleep: a(f"s_sleep {sleep}")
        for li, ld in enumerate(loads):
            Lk = a.uid("Ls")
            a(f"s_bitcmp1_b32 {sMISS}, {li}"); a(f"s_cbranch_scc0 {Lk}")
            issue(ld); a.label(Lk)
        a("s_waitcnt vmcnt(0)")
        for li, ld in enumerate(loads):
            Lk = a.uid("Lt")
            a(f"s_bitcmp1_b32 {sMISS}, {li}"); a(f"s_cbranch_scc0 {Lk}")
            test(li, ld)
            a(f"s_cbranch_vccnz {Lk}")
            a(f"s_bitset0_b32 {sMISS}, {li}")
            a.label(Lk)
        a(f"s_cmp_eq_u32 {sMISS}, 0"); a(f"s_cbranch_scc1 {E}")
        a(f"s_add_u32 {sSPIN}, {sSPIN}, 1"); a(f"s_cmp_lt_u32 {sSPIN}, {SPIN_MAX}"); a(f"s_cbranch_scc1 {L}")
        a.label(E)
    def bf16_round(self, dst, src, tmp):
        self.a(f"v_cvt_pk_bf16_f32 {tmp}, {src}, {src}"); self.a(f"v_lshlrev_b32 {dst}, 16, {tmp}")
    def bf16_round2(self, d0, d1, s0, s1, tmp):
        a = self.a
        a(f"v_cvt_pk_bf16_f32 {tmp}, {s0}, {s1}"); a(f"v_lshlrev_b32 {d0}, 16, {tmp}"); a(f"v_and_b32 {d1}, {sFFFF0000}, {tmp}")
    def allreduce(self, op, v, t, steps):
        self.allreduceN(op, [(v, t)], steps)
    def allreduceN(self, op, vts, steps):
        a = self.a
        dpp = {"q1": "quad_perm:[1,0,3,2]", "q2": "quad_perm:[2,3,0,1]", "hm": "row_half_mirror", "r4": "row_ror:4", "r8": "row_ror:8"}
        for s in steps:
            if s in dpp:
                for (v, t) in vts: a(f"{op}_dpp {v}, {v}, {v} {dpp[s]} row_mask:0xf bank_mask:0xf")
            else:
                ins = "v_permlane16_swap_b32" if s == "p16" else "v_permlane32_swap_b32"
                for (v, t) in vts: a(f"v_mov_b32 {t}, {v}")
                for (v, t) in vts: a(f"{ins} {v}, {t}")
                for (v, t) in vts: a(f"{op} {v}, {v}, {t}")
    def pk_add(self, d, x, y): self.a(f"v_pk_add_f32 v[{d}:{d+1}], v[{x}:{x+1}], v[{y}:{y+1}]")
    def sum_rows4(self, bases):
        b = list(bases)
        while len(b) > 1:
            nb = []
            for i in range(0, len(b) - 1, 2):
                self.pk_add(b[i], b[i], b[i+1]); self.pk_add(b[i] + 2, b[i] + 2, b[i+1] + 2); nb.append(b[i])
            if len(b) % 2: nb.append(b[-1])
            b = nb
    def gemv(self, ntiles, abase, xx, D, bsets=(8, 12), waits=None):
        a = self.a
        def mkB(t):
            b = bsets[t & 1]
            for r in range(4): a(f"v_and_b32 v{b+r}, v{xx[t]}, v{vM[r]}")
        mkB(0)
        for t in range(ntiles):
            if t + 1 < ntiles: mkB(t + 1)
            if waits and t in waits: a(f"s_waitcnt vmcnt({waits[t]})")
            b = bsets[t & 1]
            c = "0" if t == 0 else f"v[{D}:{D+3}]"
            a(f"v_mfma_f32_16x16x32_bf16 v[{D}:{D+3}], a[{abase+4*t}:{abase+4*t+3}], v[{b}:{b+3}], {c}")
    def taddr_w(self, vaddr, vt, TS):
        a = self.a
        a(f"v_and_b32 {vt}, 1, {vLANE}"); a(f"v_mul_u32_u24 {vt}, {TS*16}, {vt}")
        a(f"v_lshrrev_b32 {vaddr}, 1, {vLANE}"); a(f"v_lshl_add_u32 {vaddr}, {vaddr}, 2, {vt}")
        a(f"s_mul_i32 {sT0}, {sHW}, {TBLW}"); a(f"s_add_u32 {sT0}, {sT0}, {L_TBL}")
        a(f"v_add_u32 {vaddr}, {sT0}, {vaddr}")
    def taddr_r(self, vaddr, TS):
        a = self.a
        a(f"v_lshrrev_b32 {vaddr}, 3, {vLANE}"); a(f"v_mul_u32_u24 {vaddr}, {TS*4}, {vaddr}")
        a(f"s_mul_i32 {sT0}, {sHW}, {TBLW}"); a(f"s_add_u32 {sT0}, {sT0}, {L_TBL}")
        a(f"v_add_u32 {vaddr}, {sT0}, {vaddr}")
    def twrite4(self, regs, vaddr, TS):
        for k in range(4): self.a(f"ds_write_b32 {vaddr}, v{regs[k]} offset:{k*TS*4}")
    def tread(self, first, nb128, vaddr):
        a = self.a
        for i in range(nb128): a(f"ds_read_b128 v[{first+4*i}:{first+4*i+3}], {vaddr} offset:{16*i}")
        a("s_waitcnt lgkmcnt(0)")
    VALID = 0xFF00FF0000FF00FF
    def paddr(self, vaddr, vt, base, rowlen):
        a = self.a
        a(f"v_lshrrev_b32 {vaddr}, 5, {vLANE}"); a(f"v_mul_u32_u24 {vaddr}, {rowlen*4}, {vaddr}")
        a(f"v_bfe_u32 {vt}, {vLANE}, 4, 1"); a(f"v_lshl_add_u32 {vaddr}, {vt}, 7, {vaddr}")
        a(f"v_and_b32 {vt}, 7, {vLANE}"); a(f"v_lshl_add_u32 {vaddr}, {vt}, 2, {vaddr}")
        a(f"s_mul_i32 {sT0}, {sHW}, {2*rowlen*4}"); a(f"s_add_u32 {sT0}, {sT0}, {base}")
        a(f"v_add_u32 {vaddr}, {sT0}, {vaddr}")
    def pwrite(self, D, vaddr, off=0):
        for r in range(4): self.a(f"ds_write_b32 {vaddr}, v{D+r} offset:{off + r*32}")
    def sigmoid(self, dst, v, t):
        a = self.a
        a(f"v_mul_f32 {t}, 0x{(LOG2E | 0x80000000):08x}, {v}"); a(f"v_exp_f32 {t}, {t}")
        a(f"v_add_f32 {t}, 1.0, {t}"); a(f"v_rcp_f32 {dst}, {t}")
    def unpack4(self, dst, src):
        a = self.a
        a(f"v_lshlrev_b32 v{dst}, 16, v{src}"); a(f"v_and_b32 v{dst+1}, {sFFFF0000}, v{src}")
        a(f"v_lshlrev_b32 v{dst+2}, 16, v{src+1}"); a(f"v_and_b32 v{dst+3}, {sFFFF0000}, v{src+1}")
    def round4(self, X, tmp):
        for k in (0, 2): self.bf16_round2(f"v{X+k}", f"v{X+k+1}", f"v{X+k}", f"v{X+k+1}", tmp)
    def set_srd(self, s, base, off=None, size=None, size_minus_off=None):
        a = self.a
        if off is None:
            a(f"s_mov_b32 s{s}, s{base}"); a(f"s_mov_b32 s{s+1}, s{base+1}")
        else:
            a(f"s_add_u32 s{s}, s{base}, {off}"); a(f"s_addc_u32 s{s+1}, s{base+1}, 0")
        if size_minus_off is not None: a(f"s_sub_u32 s{s+2}, {size_minus_off}, {off}")
        else: a(f"s_mov_b32 s{s+2}, {size}")
        a(f"s_mov_b32 s{s+3}, 0x20000")
    def div3(self, q, r, x):
        a = self.a
        a(f"s_mul_i32 {q}, {x}, 0x5556"); a(f"s_lshr_b32 {q}, {q}, 16")
        a(f"s_mul_i32 {r}, {q}, 3"); a(f"s_sub_u32 {r}, {x}, {r}")

    def prologue(self):
        a = self.a
        a("s_cmp_ge_u32 s2, 256"); a("s_cbranch_scc1 L_exit")
        self.stamp(0, "all")
        a("s_load_dwordx16 s[16:31], s[0:1], 0")
        a("s_load_dwordx8 s[32:39], s[0:1], 64")
        a("s_load_dwordx4 s[40:43], s[0:1], 96")
        a("v_lshrrev_b32 v1, 6, v0")
        a(f"v_and_b32 {vLANE}, 63, v0")
        a(f"v_readfirstlane_b32 {sWAVE}, v1")
        a(f"v_and_b32 v8, 1, {vLANE}"); a("v_cmp_eq_u32 vcc, 1, v8")
        a("v_mov_b32 v9, 0xffff"); a("v_mov_b32 v10, 0xffff0000")
        a("v_cndmask_b32 v9, v9, v10, vcc")
        a(f"v_bfe_u32 v8, {vLANE}, 1, 2")
        for r in range(4):
            a(f"v_cmp_eq_u32 vcc, {r}, v8"); a(f"v_cndmask_b32 v{vM[r]}, 0, v9, vcc")
        a(f"s_mov_b32 {sFFFF0000}, 0xffff0000"); a(f"s_mov_b32 {sFF}, 0xff")
        if self.p.MAPKV == 0: a("s_mov_b32 s100, s2")
        elif self.p.MAPKV == 1:
            a("s_and_b32 s100, s2, 31"); a("s_lshl_b32 s100, s100, 3"); a("s_lshr_b32 s101, s2, 5"); a("s_add_u32 s100, s100, s101")
        else:
            a("s_lshr_b32 s101, s2, 3"); a("s_xor_b32 s101, s101, s2"); a("s_and_b32 s101, s101, 7"); a("s_andn2_b32 s100, s2, 7"); a("s_or_b32 s100, s100, s101")
        a("s_waitcnt lgkmcnt(0)")
        a(f"s_load_dword {sTAG}, s[{sWS}:{sWS+1}], 0")
        self.set_srd(SRD_WS, sWS, size=WS_SIZE)
        for q in (SRD_A, SRD_B, SRD_C): self.set_srd(q, sWS, size=0)
        a(f"s_cmp_ge_u32 {sWAVE}, 4"); a("s_cbranch_scc1 L_helper")
    def get_tag(self):
        a = self.a
        a("s_waitcnt lgkmcnt(0)")
        a(f"s_add_u32 {sTAG}, {sTAG}, 1")
        a(f"s_and_b32 {sT3}, {sTAG}, 0xff")
        a(f"v_mov_b32 {vTAG}, {sT3}")

    def swave(self):
        a = self.a; p = self.p
        R, D, NP = p.R, max(p.D, p.D2), p.NP
        Dlo = p.D
        vK, vV = "v1", "v2"
        B_T = 8; S = 24; DQ = (40, 44); DO = 48; T = 52
        vm, vl, vf = "v56", "v57", "v58"
        vOW, vPUB = "v64", "v65"
        if p.SPRIO: a(f"s_setprio {p.SPRIO}")
        a(f"s_lshl_b32 {sT0}, s100, 18")
        self.set_srd(SRD_A, sK, off=sT0, size=0x40000); self.set_srd(SRD_B, sV, off=sT0, size=0x40000)
        a(f"s_lshl_b32 {sT0}, {sWAVE}, 10")
        a(f"v_lshrrev_b32 v8, 4, {vLANE}"); a("v_lshlrev_b32 v8, 6, v8")
        a(f"v_bfe_u32 v9, {vLANE}, 2, 2"); a("v_lshl_add_u32 v8, v9, 8, v8")
        a(f"v_and_b32 v9, 3, {vLANE}"); a("v_lshl_add_u32 v8, v9, 4, v8")
        a(f"v_add_u32 {vK}, {sT0}, v8")
        a(f"v_lshlrev_b32 v9, 4, {vLANE}"); a(f"v_add_u32 {vV}, {sT0}, v9")
        N = 128
        def slot(i):
            if p.KLDS:
                k = i if i < 64 else (i - 64) % 40
                return f"a[{4*k}:{4*k+3}]"
            k = i % R
            return f"a[{4*k}:{4*k+3}]" if k < 40 else f"v[{68+4*(k-40)}:{71+4*(k-40)}]"
        st = dict(issued=0)
        KL = p.KLDS
        RK = R if not KL else 40
        def issue(throttle=True):
            nonlocal D, Dlo
            i = st["issued"]
            if p.DEND and i >= 64 + p.DENDAT: D = Dlo = p.DEND
            if throttle and i >= Dlo and D != Dlo:
                L = a.uid("Lthr")
                a(f"s_cbranch_vccnz {L}"); a(f"s_waitcnt vmcnt({Dlo-1})"); a.label(L)
            if throttle and i >= D: a(f"s_waitcnt vmcnt({D-1})")
            a(f"s_mov_b32 {sT1}, {(i % 64) * 4096}")
            s_, v_ = (SRD_A, vK) if i < 64 else (SRD_B, vV)
            if KL and RK <= i < 64:
                a(f"s_add_u32 m0, s60, {(i - RK) * 1024}")
                a("s_nop 0")
                a(f"buffer_load_dwordx4 {v_}, {srd(s_)}, {sT1} offen {p.KVPOL} lds")
            else:
                a(f"buffer_load_dwordx4 {slot(i)}, {v_}, {srd(s_)}, {sT1} offen {p.KVPOL}")
            st["issued"] = i + 1
            if i == N - 1: self.lds_add1(L_WCNT, f"v{T}", f"v{T+1}")
        def need(tile): a(f"s_waitcnt vmcnt({st['issued'] - 1 - tile})")
        if D != Dlo:
            a("s_mov_b64 vcc, 0"); a("s_cmp_lt_u32 s2, 72"); a("s_cbranch_scc1 L_vset"); a("s_cmp_ge_u32 s2, 216"); a("s_cbranch_scc1 L_vset")
            a("s_mov_b64 vcc, -1"); a.label("L_vset")
        self.stamp(3, "start")
        for _ in range(min(Dlo, NP)): issue(False)
        self.stamp(4, "start")
        a("s_barrier")
        self.stamp(5, "start")
        if p.STAMPS and p.MODE == "start":
            a(f"s_waitcnt vmcnt({D-1})"); self.stamp(6, "start")
        a(f"v_lshrrev_b32 v8, 4, {vLANE}"); a("v_lshlrev_b32 v8, 7, v8")
        a(f"v_and_b32 v9, 7, {vLANE}"); a("v_lshl_add_u32 v8, v9, 2, v8")
        a(f"s_lshl_b32 {sT0}, {sWAVE}, 9"); a(f"s_add_u32 {sT0}, {sT0}, {L_OPART}")
        a(f"v_add_u32 {vOW}, {sT0}, v8")
        a(f"v_lshlrev_b32 {vPUB}, 4, {vLANE}")
        if p.KLDS:
            a(f"s_mul_i32 s60, {sWAVE}, {24*1024}"); a(f"s_add_u32 s60, s60, {L_KRING}")
            a(f"v_lshlrev_b32 v66, 4, {vLANE}"); a("v_add_u32 v66, s60, v66")
        mT = [6, 8, 10, 12]; m1, m3, m23 = 14, 4, 62
        for t in range(4): self.mask64(mT[t], 0x000F000F000F000F << (4 * t))
        self.mask64(m1, 0x2222222222222222); self.mask64(m3, 0x8888888888888888); self.mask64(m23, 0xCCCCCCCCCCCCCCCC)
        while st["issued"] < (64 if p.KLDS else NP): issue()
        self.stamp(1, "all")
        self.get_tag()
        self.lds_spin(L_QFLAG)
        self.stamp(2, "all")
        a(f"v_lshrrev_b32 v{T}, 4, {vLANE}"); a(f"v_lshlrev_b32 v{T}, 6, v{T}")
        a(f"v_and_b32 v{T+1}, 3, {vLANE}"); a(f"v_lshl_add_u32 v{T}, v{T+1}, 4, v{T}")
        a(f"ds_read_b128 v[{T+4}:{T+7}], v{T} offset:{L_Q}")
        a("s_waitcnt lgkmcnt(0)")
        for t in range(4):
            for k in range(4): a(f"v_cndmask_b32 v{B_T+4*t+k}, 0, v{T+4+k}, {sp(mT[t])}")
        STG = (68, 84)
        def stage(g):
            b = 68
            for t in range(4):
                a(f"ds_read_b128 v[{b+4*t}:{b+4*t+3}], v66 offset:{(4*g+t-RK)*1024}")
        def qk_mfma(g):
            d = DQ[g & 1]
            lds = KL and 4 * g >= RK
            if lds: a("s_waitcnt lgkmcnt(0)")
            else: need(4 * g + 3)
            for t in range(4):
                c = "0" if t == 0 else f"v[{d}:{d+3}]"
                b = 68
                src = f"v[{b+4*t}:{b+4*t+3}]" if lds else slot(4*g+t)
                a(f"v_mfma_f32_16x16x32_bf16 v[{d}:{d+3}], {src}, v[{B_T+4*t}:{B_T+4*t+3}], {c}")
        def qk_post(g):
            d = DQ[g & 1]
            a(f"v_cndmask_b32 v{T}, v{d}, v{d+1}, {sp(m1)}")
            a(f"v_cndmask_b32 v{T+1}, v{d+2}, v{d+3}, {sp(m3)}")
            a(f"v_cndmask_b32 v{T}, v{T}, v{T+1}, {sp(m23)}")
            a(f"v_add_f32_dpp v{T+1}, v{T}, v{T} quad_perm:[1,0,3,2] row_mask:0xf bank_mask:0xf")
            a(f"v_add_f32_dpp v{S+g}, v{T+1}, v{T+1} quad_perm:[2,3,0,1] row_mask:0xf bank_mask:0xf")
        g = 0
        if KL:
            while g < 16:
                if 4 * (g + 1) >= RK and g + 1 < 16 and False: pass
                if 4 * g >= RK:
                    need(4 * g + 3); stage(g)
                qk_mfma(g)
                if g > 0: qk_post(g - 1)
                g += 1
                free = min(4 * g, RK) - (st["issued"] - 64)
                nissue = 2 if g <= 3 else 1
                for _ in range(max(0, min(nissue, free))):
                    if st["issued"] < N: issue()
        else:
            while g < 16:
                lag = st["issued"] - 4 * g
                qk_mfma(g)
                if g > 0: qk_post(g - 1)
                g += 1
                free = 4 * g + R - st["issued"]
                nissue = (1 if (g % 3 == 0) else 0) if lag > D + 8 else 4
                for _ in range(min(nissue, free)):
                    if st["issued"] < N: issue()
        qk_post(15)
        self.stamp(3, "tail")
        for _ in range(3): issue(False)
        a(f"s_mov_b32 {sT0}, 0x{SCALE:08x}")
        for k in range(0, 16, 2):
            x, y = f"v{S+k}", f"v{S+k+1}"; t = f"v{T + (k // 2) % 4}"
            a(f"v_cvt_pk_bf16_f32 {t}, {x}, {y}")
            a(f"v_lshlrev_b32 {x}, 16, {t}"); a(f"v_and_b32 {y}, {sFFFF0000}, {t}")
            a(f"v_mul_f32 {x}, {sT0}, {x}"); a(f"v_mul_f32 {y}, {sT0}, {y}")
            a(f"v_cvt_pk_bf16_f32 {t}, {x}, {y}")
            a(f"v_lshlrev_b32 {x}, 16, {t}"); a(f"v_and_b32 {y}, {sFFFF0000}, {t}")
        a(f"v_max3_f32 {vm}, v{S}, v{S+1}, v{S+2}")
        for k in range(3, 15, 2): a(f"v_max3_f32 {vm}, {vm}, v{S+k}, v{S+k+1}")
        a(f"v_max_f32 {vm}, {vm}, v{S+15}")
        self.allreduce("v_max_f32", vm, f"v{T}", ["r4", "r8", "p16", "p32"])
        a(f"s_mov_b32 {sT0}, 0x{LOG2E:08x}")
        a(f"v_mul_f32 v{T+3}, {sT0}, {vm}")
        for k in range(16): a(f"v_fma_f32 v{S+k}, v{S+k}, {sT0}, -v{T+3}")
        for k in range(16): a(f"v_exp_f32 v{S+k}, v{S+k}")
        a(f"v_add_f32 {vl}, v{S}, v{S+1}")
        for k in range(2, 16): a(f"v_add_f32 {vl}, {vl}, v{S+k}")
        for k in range(16): a(f"v_cvt_pk_bf16_f32 v{S+k}, v{S+k}, v{S+k}")
        self.allreduce("v_add_f32", vl, f"v{T}", ["r4", "r8", "p16", "p32"])
        a("s_mov_b64 exec, 1")
        a(f"s_lshl_b32 {sT0}, {sWAVE}, 3"); a(f"s_add_u32 {sT0}, {sT0}, {L_ML}")
        a(f"v_mov_b32 v{T}, {sT0}"); a(f"ds_write_b64 v{T}, v[56:57]")
        a(f"v_mov_b32 v{T}, {L_MLCNT}"); a(f"v_mov_b32 v{T+1}, 1"); a(f"ds_add_u32 v{T}, v{T+1}")
        a("s_mov_b64 exec, -1")
        self.stamp(4, "tail")
        BV = (8, 12)
        def mkB(vi):
            g_, t_ = vi >> 2, vi & 3; b = BV[vi & 1]
            for r in range(4): a(f"v_and_b32_dpp v{b+r}, v{S+g_}, v{vM[r]} row_newbcast:{4*t_} row_mask:0xf bank_mask:0xf")
        def ml_exchange():
            self.lds_spin(L_MLCNT, target=4)
            a(f"v_mov_b32 v16, {L_ML}")
            a("ds_read_b128 v[20:23], v16"); a("ds_read_b128 v[40:43], v16 offset:16")
            a("s_waitcnt lgkmcnt(0)")
            a("v_max3_f32 v16, v20, v22, v40"); a("v_max_f32 v16, v16, v42")
            a(f"s_mov_b32 {sT0}, 0x{LOG2E:08x}")
            a(f"v_sub_f32 {vf}, {vm}, v16"); a(f"v_mul_f32 {vf}, {sT0}, {vf}"); a(f"v_exp_f32 {vf}, {vf}")
            L = a.uid("Lnoml")
            a(f"s_cmp_lg_u32 {sWAVE}, 0"); a(f"s_cbranch_scc1 {L}")
            for i, r in enumerate((20, 22, 40, 42)):
                a(f"v_sub_f32 v{r}, v{r}, v16"); a(f"v_mul_f32 v{r}, {sT0}, v{r}"); a(f"v_exp_f32 v{r}, v{r}")
            a("v_mul_f32 v17, v20, v21"); a("v_fmac_f32 v17, v22, v23"); a("v_fmac_f32 v17, v40, v41"); a("v_fmac_f32 v17, v42, v43")
            a("v_mov_b32 v18, 0"); a("v_mov_b32 v19, 0")
            for c in range(4): a(f"v_bfi_b32 v{16+c}, {sFF}, {vTAG}, v{16+c}")
            a(f"s_mul_i32 {sT0}, s100, {OSLOT}"); a(f"s_add_u32 {sT0}, {sT0}, {WS_O + 512}")
            a("s_mov_b64 exec, 1")
            a(f"buffer_store_dwordx4 v[16:19], off, {srd(SRD_WS)}, {sT0} sc1")
            a("s_mov_b64 exec, -1")
            st["extra_wave0"] = True
            a.label(L)
        mkB(0)
        for vi in range(64):
            if vi + 1 < 64: mkB(vi + 1)
            tile = 64 + vi
            while st["issued"] < N and st["issued"] - tile < (p.DEND if (p.DEND and st["issued"] >= 64 + p.DENDAT) else D) + 1: issue()
            need(tile)
            b = BV[vi & 1]
            c = "0" if vi == 0 else f"v[{DO}:{DO+3}]"
            a(f"v_mfma_f32_16x16x32_bf16 v[{DO}:{DO+3}], {slot(tile)}, v[{b}:{b+3}], {c}")
            if vi == p.MLAT:
                ml_exchange()
            if p.GSYNC and vi == p.GSYNC:
                self.lds_spin(L_GRP, target=1, sleep=2)
        self.stamp(5, "tail")
        for r in range(4): a(f"v_mul_f32 v{DO+r}, {vf}, v{DO+r}")
        self.setexec(0x00FF00FF00FF00FF)
        for r in range(4): a(f"ds_write_b32 {vOW}, v{DO+r} offset:{32*r}")
        a("s_mov_b64 exec, 1")
        a(f"v_mov_b32 v8, {L_OCNT}"); a("v_mov_b32 v9, 1"); a("ds_add_rtn_u32 v9, v8, v9")
        a(f"s_mul_i32 {sT0}, s100, {OSLOT}"); a(f"s_add_u32 {sT0}, {sT0}, {WS_O}")
        a("s_waitcnt lgkmcnt(0)")
        a(f"v_readfirstlane_b32 {sT1}, v9")
        a(f"s_cmp_lg_u32 {sT1}, 3"); a("s_cbranch_scc1 L_sdone")
        self.setexec(lanes(32))
        for w in range(4): a(f"ds_read_b128 v[{12+4*w}:{15+4*w}], {vPUB} offset:{L_OPART + 512*w}")
        a("s_waitcnt lgkmcnt(0)")
        self.sum_rows4([12, 16, 20, 24])
        for c in range(4): a(f"v_bfi_b32 v{12+c}, {sFF}, {vTAG}, v{12+c}")
        a(f"buffer_store_dwordx4 v[12:15], {vPUB}, {srd(SRD_WS)}, {sT0} offen sc1")
        self.stamp(6, "tail")
        a.label("L_sdone")
        self.dump_stamps()
        a("s_endpgm")

    def unit_loads(self, stride_s, tau_s):
        a = self.a
        a(f"s_mul_i32 {sT0}, {tau_s}, 192")
        a(f"v_lshrrev_b32 v1, 3, {vLANE}"); a(f"v_add_u32 v1, {sT0}, v1")
        a(f"v_mul_lo_u32 v1, v1, {stride_s}")
        a(f"v_and_b32 v2, 7, {vLANE}"); a("v_lshl_add_u32 v1, v2, 4, v1")
        a(f"s_lshl_b32 {sT1}, {stride_s}, 3"); a(f"s_mov_b32 {sT0}, 0")
        for t in range(24):
            a(f"buffer_load_dwordx4 a[{4*t}:{4*t+3}], v1, {srd(SRD_A)}, {sT0} offen nt")
            if t < 23: a(f"s_add_u32 {sT0}, {sT0}, {sT1}")

    def hwave(self):
        a = self.a; p = self.p
        a.label("L_helper")
        a(f"s_setprio {p.HPRIO0}")
        a(f"s_sub_u32 {sHW}, {sWAVE}, 4")
        a("s_mov_b32 s71, 0")
        a(f"s_cmp_lg_u32 {sHW}, 2"); a("s_cbranch_scc1 L_noinit")
        a(f"v_lshlrev_b32 v8, 2, {vLANE}"); a("v_mov_b32 v9, 0")
        self.setexec(0xFFFF); a("ds_write_b32 v8, v9"); a("s_mov_b64 exec, -1"); a("s_waitcnt lgkmcnt(0)")
        a.label("L_noinit")
        a("s_barrier")
        if p.HDELAY: a(f"s_sleep {p.HDELAY}")
        for r in list(range(40, 60)) + list(range(80, 90)): a(f"v_mov_b32 v{r}, 0")
        if p.WOEARLY and not p.WOLATE:
            a("s_cmp_ge_u32 s2, 72"); a("s_cbranch_scc1 L_nowoearly")
            if not p.MAP2: a(f"s_cmp_eq_u32 {sHW}, 0"); a("s_cbranch_scc1 L_nowoearly")
            a(f"s_and_b32 {sT0}, s2, 7"); a(f"s_lshr_b32 {sT1}, s2, 3"); a(f"s_lshl_b32 {sT2}, {sT1}, 7")
            self.set_srd(SRD_C, sWO, off=sT2, size_minus_off=4096 * 1152)
            a(f"s_lshl_b32 {sT0}, {sT0}, 2"); a(f"s_add_u32 {sT0}, {sT0}, {sHW}"); a(f"s_lshl_b32 {sT0}, {sT0}, 7")
            a(f"v_lshrrev_b32 v1, 3, {vLANE}"); a(f"v_add_u32 v1, {sT0}, v1"); a("v_mul_u32_u24 v1, 1152, v1")
            a(f"v_and_b32 v2, 7, {vLANE}"); a("v_lshl_add_u32 v1, v2, 4, v1")
            a("s_setprio 0")
            a(f"s_mov_b32 {sT0}, 0")
            for t in range(16):
                a(f"buffer_load_dwordx4 a[{96+4*t}:{99+4*t}], v1, {srd(SRD_C)}, {sT0} offen nt")
                if t < 15: a(f"s_add_u32 {sT0}, {sT0}, 9216")
            a(f"s_setprio {p.HPRIO0}")
            a.label("L_nowoearly")
        a(f"s_cmp_eq_u32 {sHW}, 0"); a("s_cbranch_scc1 L_h0")
        a(f"s_cmp_eq_u32 {sHW}, 1"); a("s_cbranch_scc1 L_h1")
        a("s_branch L_nounit")
        a.label("L_h0")
        if p.MAP2:
            a("s_cmp_lt_u32 s2, 72"); a("s_cbranch_scc1 L_nounit")
            a("s_sub_u32 s62, s2, 72"); a("s_branch L_qunit")
            a.label("L_h1")
            a("s_cmp_lt_u32 s2, 72"); a("s_cbranch_scc1 L_nounit")
            a("s_cmp_ge_u32 s2, 242"); a("s_cbranch_scc1 L_nounit")
            a("s_add_u32 s62, s2, 112"); a("s_cmp_lt_u32 s2, 80"); a("s_cbranch_scc1 L_qunit")
            a(f"s_sub_u32 {sT2}, s2, 80"); self.div3(sR0, sR1, sT2)
        else:
            a("s_mov_b32 s62, s2")
            a("s_cmp_lt_u32 s2, 192"); a("s_cbranch_scc1 L_qunit")
            a("s_cmp_ge_u32 s2, 246"); a("s_cbranch_scc1 L_nounit")
            a(f"s_sub_u32 {sT2}, s2, 192"); self.div3(sR0, sR1, sT2)
            a("s_branch L_munit")
            a.label("L_h1")
            a("s_cmp_lt_u32 s2, 72"); a("s_cbranch_scc1 L_nounit")
            a("s_cmp_ge_u32 s2, 180"); a("s_cbranch_scc1 L_nounit")
            a(f"s_sub_u32 {sT2}, s2, 72"); self.div3(sR0, sR1, sT2); a(f"s_add_u32 {sR0}, {sR0}, 18")
        if p.LATEMOD:
            self.lds_spin(L_QFLAG, target=1, sleep=8)
            a("s_setprio 0")
            a("s_mov_b32 s71, 1")
        a.label("L_munit")
        a(f"s_lshl_b32 {sT2}, {sR0}, 7")
        self.set_srd(SRD_A, sWM, off=sT2, size_minus_off=576 * 6912)
        self.set_srd(SRD_B, sC, size=1152)
        a(f"s_mul_i32 {sT0}, {sR1}, 384"); a(f"v_lshlrev_b32 v8, 3, {vLANE}")
        a(f"buffer_load_dwordx2 v[40:41], v8, {srd(SRD_B)}, {sT0} offen")
        a(f"s_mov_b32 {sR2}, 6912")
        self.unit_loads(sR2, sR1)
        self.get_tag()
        self.stamp(1, "pre")
        a(f"s_mul_i32 {sR2}, {sR0}, 3"); a(f"s_add_u32 {sR2}, {sR2}, {sR1}"); a(f"s_lshl_b32 {sR2}, {sR2}, 8"); a(f"s_add_u32 {sR2}, {sR2}, {WS_MOD}")
        self.taddr_w("v2", "v8", 24)
        a("s_waitcnt vmcnt(24)")
        self.unpack4(44, 40)
        for k in range(4): self.sigmoid(f"v{48+k}", f"v{44+k}", f"v{48+k}")
        for k in range(4): a(f"v_mul_f32 v{44+k}, v{44+k}, v{48+k}")
        for k in range(4): a(f"v_cvt_pk_bf16_f32 v{44+k}, v{44+k}, v{44+k}")
        self.setexec(lanes(48)); self.twrite4([44, 45, 46, 47], "v2", 24); a("s_mov_b64 exec, -1")
        self.stamp(2, "pre")
        a("s_branch L_unit_gemv")
        a.label("L_qunit")
        self.div3(sR0, sR1, "s62")
        a(f"s_lshl_b32 {sT2}, {sR0}, 7")
        self.set_srd(SRD_A, sWQ, off=sT2, size_minus_off=576 * 8192)
        self.set_srd(SRD_B, sX, size=1152)
        a(f"v_lshrrev_b32 v8, 3, {vLANE}"); a("v_lshlrev_b32 v8, 5, v8"); a(f"v_and_b32 v9, 7, {vLANE}"); a("v_add_u32 v8, v8, v9"); a("v_lshlrev_b32 v8, 1, v8")
        a(f"s_mul_i32 {sT0}, {sR1}, 384")
        for r in range(4): a(f"buffer_load_ushort v{44+r}, v8, {srd(SRD_B)}, {sT0} offen offset:{16*r}")
        a(f"v_lshlrev_b32 v9, 5, {vLANE}")
        a(f"buffer_load_dwordx4 v[16:19], v9, {srd(SRD_B)}, 0 offen")
        a(f"buffer_load_dwordx4 v[20:23], v9, {srd(SRD_B)}, 0 offen offset:16")
        a(f"s_mov_b32 {sR2}, 8192")
        self.unit_loads(sR2, sR1)
        self.get_tag()
        a(f"s_mul_i32 {sR2}, {sR0}, 3"); a(f"s_add_u32 {sR2}, {sR2}, {sR1}"); a(f"s_lshl_b32 {sR2}, {sR2}, 8"); a(f"s_add_u32 {sR2}, {sR2}, {WS_Q}")
        a(f"s_mul_i32 {sT0}, {sR1}, 6"); a(f"v_lshrrev_b32 v8, 3, {vLANE}"); a(f"v_add_u32 v8, {sT0}, v8")
        a("v_lshrrev_b32 v9, 1, v8"); a("v_mul_u32_u24 v9, 768, v9")
        a("v_and_b32 v8, 1, v8"); a("v_lshl_add_u32 v9, v8, 7, v9")
        a(f"v_and_b32 v8, 7, {vLANE}"); a("v_lshl_add_u32 v50, v8, 4, v9")
        a(f"v_mul_u32_u24 v51, 96, v8"); a(f"v_lshrrev_b32 v9, 3, {vLANE}"); a("v_lshl_add_u32 v51, v9, 4, v51")
        a(f"s_mul_i32 {sT0}, {sHW}, {TBLW}"); a(f"s_add_u32 {sT0}, {sT0}, {L_TBL}"); a(f"v_add_u32 v51, {sT0}, v51")
        a("s_waitcnt vmcnt(24)")
        for r in range(4): a(f"v_lshlrev_b32 v{44+r}, 16, v{44+r}")
        for i in range(8):
            a(f"v_lshlrev_b32 v{24+2*i}, 16, v{16+i}"); a(f"v_and_b32 v{25+2*i}, {sFFFF0000}, v{16+i}")
        a("v_add_f32 v48, v24, v25")
        for i in range(2, 16): a(f"v_add_f32 v48, v48, v{24+i}")
        self.allreduce("v_add_f32", "v48", "v49", ["q1", "q2", "r4", "r8", "p16", "p32"])
        a(f"v_mul_f32 v48, {f32hex(1/576)}, v48")
        for i in range(16): a(f"v_sub_f32 v{24+i}, v{24+i}, v48")
        a("v_mul_f32 v49, v24, v24")
        for i in range(1, 16): a(f"v_fmac_f32 v49, v{24+i}, v{24+i}")
        a(f"v_cmp_gt_u32 vcc, 36, {vLANE}"); a("v_cndmask_b32 v49, 0, v49, vcc")
        self.allreduce("v_add_f32", "v49", "v52", ["q1", "q2", "r4", "r8", "p16", "p32"])
        a(f"v_mul_f32 v49, {f32hex(1/576)}, v49")
        self.bf16_round2("v48", "v49", "v48", "v49", "v52")
        a(f"v_add_f32 v49, {f32hex(1e-5)}, v49"); self.bf16_round("v49", "v49", "v52")
        a("v_sqrt_f32 v49, v49"); self.bf16_round("v49", "v49", "v52"); a("v_rcp_f32 v49, v49")
        for k in range(4): a(f"v_sub_f32 v{44+k}, v{44+k}, v48")
        self.round4(44, "v52")
        for k in range(4): a(f"v_mul_f32 v{44+k}, v{44+k}, v49")
        self.round4(44, "v52")
        self.stamp(1, "pre")
        self.poll([(8 + 4 * t, 4, "v50", WS_MOD, 256 * t) for t in range(3)] + [(20 + 4 * t, 4, "v50", WS_MOD + 9 * 768, 256 * t) for t in range(3)],
                  active=lanes(48), sleep=p.SL_A, presleep=p.PS_A)
        self.stamp(2, "pre")
        self.sum_rows4([8, 12, 16]); self.sum_rows4([20, 24, 28])
        self.round4(8, "v52"); self.round4(20, "v53")
        for k in range(4): a(f"v_add_f32 v{20+k}, 1.0, v{20+k}")
        self.round4(20, "v52")
        for k in range(4): a(f"v_mul_f32 v{44+k}, v{44+k}, v{20+k}")
        self.round4(44, "v52")
        for k in range(4): a(f"v_add_f32 v{44+k}, v{44+k}, v{8+k}")
        for k in range(4): a(f"v_cvt_pk_bf16_f32 v{44+k}, v{44+k}, v{44+k}")
        a("ds_write_b128 v51, v[44:47]")
        a("s_mov_b64 exec, -1")
        a.label("L_unit_gemv")
        self.taddr_r("v2", 24)
        self.tread(16, 6, "v2")
        self.gemv(24, 0, list(range(16, 40)), 40, waits={0: 20, 4: 16, 8: 12, 12: 8, 16: 4, 20: 0})
        self.stamp(3, "pre")
        a(f"v_lshrrev_b32 v2, 4, {vLANE}"); a("v_lshlrev_b32 v2, 7, v2"); a(f"v_and_b32 v8, 7, {vLANE}"); a("v_lshl_add_u32 v2, v8, 4, v2")
        for r in range(4): a(f"v_mov_b32 v{44+r}, v{40+r}")
        for r in range(4): a(f"v_permlane32_swap_b32 v{40+r}, v{44+r}")
        for r in range(4): a(f"v_add_f32_dpp v{40+r}, v{44+r}, v{40+r} row_ror:8 row_mask:0xf bank_mask:0xf")
        for r in range(4): a(f"v_bfi_b32 v{40+r}, {sFF}, {vTAG}, v{40+r}")
        self.setexec(0x00FF00FF)
        a(f"buffer_store_dwordx4 v[40:43], v2, {srd(SRD_WS)}, {sR2} offen sc1")
        a("s_mov_b64 exec, -1")
        if p.STAMPS and p.MODE == "pre":
            a("s_waitcnt vmcnt(0)")
        self.stamp(7, "pre")
        a("s_branch L_pre_done")
        a.label("L_nounit")
        self.get_tag()
        a.label("L_pre_done")
        a(f"s_cmp_lg_u32 {sHW}, 3"); a("s_cbranch_scc1 L_noq")
        a(f"s_lshr_b32 {sT0}, s100, 3"); a(f"s_mul_i32 {sT0}, {sT0}, {2*768}"); a(f"s_add_u32 {sR0}, {sT0}, {WS_Q}")
        a(f"v_lshrrev_b32 v8, 4, {vLANE}"); a("v_mul_u32_u24 v2, 768, v8"); a(f"v_and_b32 v9, 15, {vLANE}"); a("v_lshl_add_u32 v2, v9, 4, v2")
        a("v_lshlrev_b32 v8, 6, v8"); a(f"v_bfe_u32 v9, {vLANE}, 3, 1"); a("v_lshl_add_u32 v8, v9, 5, v8")
        a(f"v_and_b32 v9, 7, {vLANE}"); a("v_add_u32 v8, v8, v9"); a("v_lshlrev_b32 v24, 1, v8")
        if p.PS_QG > 127: a("s_sleep 127")
        self.poll([(8 + 4 * t, 4, "v2", sR0, 256 * t) for t in range(3)], active=lanes(32), sleep=p.QSLEEP, presleep=(p.PS_QG - 127 if p.PS_QG > 127 else p.PS_QG))
        self.sum_rows4([8, 12, 16])
        a("v_cvt_pk_bf16_f32 v12, v8, v9"); a("v_cvt_pk_bf16_f32 v13, v10, v11")
        a(f"ds_write_b16 v24, v12 offset:{L_Q}"); a(f"ds_write_b16_d16_hi v24, v12 offset:{L_Q + 16}")
        a(f"ds_write_b16 v24, v13 offset:{L_Q + 32}"); a(f"ds_write_b16_d16_hi v24, v13 offset:{L_Q + 48}")
        a("s_waitcnt lgkmcnt(0)")
        a("s_mov_b64 exec, 1")
        a(f"v_mov_b32 v8, {L_QFLAG}"); a("v_mov_b32 v9, 1"); a("ds_write_b32 v8, v9")
        a("s_mov_b64 exec, -1")
        if p.MODE != "fine": self.stamp(4, "all")
        a.label("L_noq")
        if p.NOTAIL:
            self.dump_stamps(); a("s_endpgm")
        elif p.DYN: self.tail_dyn()
        else: self.tail()

    def piece_off(self, dst, gam_v, tmp):
        a = self.a
        a(f"v_lshrrev_b32 {tmp}, 1, {gam_v}"); a(f"v_mul_u32_u24 {tmp}, 768, {tmp}")
        a(f"v_and_b32 {dst}, 1, {gam_v}"); a(f"v_lshl_add_u32 {tmp}, {dst}, 7, {tmp}")
        a(f"v_and_b32 {dst}, 7, {vLANE}"); a(f"v_lshl_add_u32 {dst}, {dst}, 4, {tmp}")
    def gather_mod(self, vecs, voff, dsts, active, tmp0=8, sleep=16):
        a = self.a
        loads = []
        for i, v in enumerate(vecs):
            for t in range(3): loads.append((tmp0 + 12 * i + 4 * t, 4, voff, WS_MOD + 9 * v * 768, 256 * t))
        self.poll(loads, active=active, sleep=sleep)
        for i, v in enumerate(vecs):
            b = tmp0 + 12 * i
            self.sum_rows4([b, b + 4, b + 8]); self.round4(b, "v61")
            for r in range(4): a(f"v_mov_b32 v{dsts[i]+r}, v{b+r}")
    def half_add(self, D, T):
        a = self.a
        for r in range(4): a(f"v_mov_b32 v{T+r}, v{D+r}")
        for r in range(4): a(f"v_permlane32_swap_b32 v{D+r}, v{T+r}")
        for r in range(4): a(f"v_add_f32_dpp v{D+r}, v{T+r}, v{D+r} row_ror:8 row_mask:0xf bank_mask:0xf")
    def dpiece_addr(self, vaddr, vt, base, rowbytes):
        a = self.a
        a(f"v_lshrrev_b32 {vaddr}, 5, {vLANE}"); a(f"v_mul_u32_u24 {vaddr}, {rowbytes}, {vaddr}")
        a(f"v_bfe_u32 {vt}, {vLANE}, 4, 1"); a(f"v_lshl_add_u32 {vaddr}, {vt}, 7, {vaddr}")
        a(f"v_and_b32 {vt}, 7, {vLANE}"); a(f"v_lshl_add_u32 {vaddr}, {vt}, 4, {vaddr}")
        a(f"s_mul_i32 {sT0}, {sHW}, {2*rowbytes}"); a(f"s_add_u32 {sT0}, {sT0}, {base}")
        a(f"v_add_u32 {vaddr}, {sT0}, {vaddr}")

    def tail(self):
        a = self.a; p = self.p
        L24 = lanes(24)
        UX, UGA, UC1, USB = 64, 68, 72, 76
        vUT, vUR, vUP, vUA = "v80", "v81", "v82", "v83"
        FX, FGA, FGB = 84, 88, 92
        MS = 72 * 6 * 256
        a.label("L_tail")
        a("s_setprio 0")
        self.lds_spin(L_QFLAG, target=1, sleep=8)
        self.group_watch()
        a("s_cmp_lt_u32 s2, 72"); a("s_cbranch_scc1 L_wo")
        a("s_cmp_ge_u32 s2, 252"); a("s_cbranch_scc1 L_hexit")
        a("s_cmp_ge_u32 s2, 216"); a("s_cbranch_scc1 L_dbl")
        a(f"s_sub_u32 {sT2}, s2, 72"); self.div3("s6", "s7", sT2)
        a("s_branch L_uprep")
        a.label("L_dbl")
        a(f"s_sub_u32 {sT2}, s2, 216"); self.div3("s6", "s7", sT2); a("s_lshl_b32 s6, s6, 1"); a("s_add_u32 s6, s6, 48")
        a.label("L_uprep")
        a(f"s_lshr_b32 {sT0}, {sHW}, 1"); a("s_lshl_b32 s7, s7, 1"); a(f"s_add_u32 s7, s7, {sT0}")
        a(f"s_and_b32 s8, {sHW}, 1")
        a("s_mul_i32 s9, s7, 3")
        a(f"v_lshrrev_b32 v8, 3, {vLANE}"); a("v_add_u32 v8, s9, v8")
        self.piece_off("v2", "v8", "v9")
        a(f"v_lshlrev_b32 {vUA}, 7, v8"); a(f"v_and_b32 v9, 7, {vLANE}"); a(f"v_lshl_add_u32 {vUA}, v9, 4, {vUA}"); a(f"v_add_u32 {vUA}, {WS_ATT}, {vUA}")
        self.set_srd(SRD_B, sX, size=1152)
        a("v_lshlrev_b32 v8, 5, v8"); a("v_add_u32 v8, v8, v9"); a("v_lshlrev_b32 v8, 1, v8")
        for r in range(4): a(f"buffer_load_ushort v{UX+r}, v8, {srd(SRD_B)}, 0 offen offset:{16*r}")
        self.gather_mod([2, 4, 3], "v2", [UGA, UC1, USB], L24, sleep=4)
        a("s_mov_b64 exec, -1")
        for r in range(4): a(f"v_lshlrev_b32 v{UX+r}, 16, v{UX+r}")
        for r in range(4): a(f"v_add_f32 v{UC1+r}, 1.0, v{UC1+r}")
        self.round4(UC1, "v8")
        a(f"s_mul_i32 {sT0}, {sHW}, {TBLW}"); a(f"s_add_u32 {sT0}, {sT0}, {L_TBL}")
        a(f"v_and_b32 v8, 7, {vLANE}"); a(f"v_mul_u32_u24 {vUT}, 48, v8"); a(f"v_lshrrev_b32 v9, 3, {vLANE}"); a(f"v_lshl_add_u32 {vUT}, v9, 4, {vUT}"); a(f"v_add_u32 {vUT}, {sT0}, {vUT}")
        a(f"v_mul_u32_u24 {vUR}, 48, v9"); a(f"v_add_u32 {vUR}, {sT0}, {vUR}")
        a(f"v_lshrrev_b32 {vUP}, 4, {vLANE}"); a(f"v_lshlrev_b32 {vUP}, 7, {vUP}"); a(f"v_lshl_add_u32 {vUP}, v8, 4, {vUP}")
        a("s_mul_i32 s10, s8, 72"); a("s_add_u32 s10, s10, s6"); a("s_mul_i32 s10, s10, 6"); a("s_add_u32 s10, s10, s7"); a("s_lshl_b32 s10, s10, 8")
        a("s_cmp_eq_u32 s8, 0"); a(f"s_cselect_b32 s12, s{sWG}, s{sWU}"); a(f"s_cselect_b32 s13, s{sWG+1}, s{sWU+1}")
        a(f"s_lshl_b32 {sT2}, s6, 7")
        self.set_srd(SRD_C, 12, off=sT2, size_minus_off=576 * 9216)
        a("s_mul_i32 s11, s7, 96"); a(f"v_lshrrev_b32 v56, 3, {vLANE}"); a("v_add_u32 v56, s11, v56"); a("v_mul_u32_u24 v56, 9216, v56")
        a(f"v_and_b32 v8, 7, {vLANE}"); a("v_lshl_add_u32 v56, v8, 4, v56")
        if p.DBLEARLY:
            a("s_cmp_lt_u32 s2, 216"); a("s_cbranch_scc1 L_noearly2")
            a(f"s_mov_b32 {sT0}, 128")
            for t_ in range(12):
                if t_ >= p.WOPACE: a(f"s_waitcnt vmcnt({p.WOPACE-1})")
                a(f"buffer_load_dwordx4 a[{48+4*t_}:{51+4*t_}], v56, {srd(SRD_C)}, {sT0} offen nt")
                if t_ < 11: a(f"s_add_u32 {sT0}, {sT0}, {8*9216}")
            a.label("L_noearly2")
        a("s_cmp_ge_u32 s2, 216"); a("s_cbranch_scc1 L_finprep")
        a(f"s_sub_u32 s14, s2, 72")
        a(f"s_mul_i32 {sT2}, s14, {32*1152}"); self.set_srd(SRD_A, sWD, off=sT2, size=32 * 1152)
        a(f"s_lshl_b32 {sT0}, {sHW}, 3")
        a(f"v_lshrrev_b32 v57, 3, {vLANE}"); a(f"v_add_u32 v57, {sT0}, v57"); a("v_mul_u32_u24 v57, 1152, v57")
        a(f"v_and_b32 v8, 7, {vLANE}"); a("v_lshl_add_u32 v57, v8, 4, v57")
        a("s_lshr_b32 s15, s14, 1"); a("s_mul_i32 s15, s15, 1536"); a(f"s_and_b32 {sT0}, s14, 1"); a(f"s_lshl_b32 {sT0}, {sT0}, 7"); a(f"s_add_u32 s15, s15, {sT0}")
        a(f"s_lshl_b32 {sT0}, {sHW}, 2"); a(f"s_add_u32 s15, s15, {sT0}")
        a(f"v_and_b32 v8, 7, {vLANE}"); a("v_min_u32 v8, 5, v8"); a("v_lshlrev_b32 v58, 8, v8"); a(f"v_lshrrev_b32 v9, 3, {vLANE}"); a("v_lshl_add_u32 v58, v9, 4, v58"); a("v_add_u32 v58, s15, v58")
        a("v_lshlrev_b32 v59, 7, v8"); a(f"v_add_u32 v59, {WS_ST}, v59")
        self.dpiece_addr(f"v{FX}", "v8", L_DOWN, 2304)
        a(f"s_mul_i32 {sT0}, {sHW}, 48"); a(f"v_add_u32 v{FX+1}, {sT0}, {vLANE}"); a(f"v_lshlrev_b32 v{FX+1}, 4, v{FX+1}")
        a("s_mul_i32 s15, s14, 2304"); a(f"s_add_u32 s15, s15, {WS_OUT}")
        a("s_branch L_late")
        a.label("L_finprep")
        a("s_cmp_ge_u32 s2, 234"); a("s_cbranch_scc1 L_late")
        a(f"s_sub_u32 s14, s2, 216")
        self.set_srd(SRD_B, sX, size=1152)
        a(f"v_and_b32 v46, 7, {vLANE}")
        a("s_lshl_b32 s15, s14, 6"); a("v_lshlrev_b32 v8, 1, v46")
        for r in range(4): a(f"buffer_load_ushort v{FX+r}, v8, {srd(SRD_B)}, s15 offen offset:{16*r}")
        a("v_mov_b32 v8, s14"); self.piece_off("v2", "v8", "v9")
        self.gather_mod([2, 5], "v2", [FGA, FGB], FULL, sleep=4)
        for r in range(4): a(f"v_lshlrev_b32 v{FX+r}, 16, v{FX+r}")
        a.label("L_late")
        if p.LPACE:
            self.lds_spin(L_WCNT, target=1, sleep=2)
            self.read_ticket()
        self.lds_spin(L_WCNT if p.WTRIG == "issued" else L_OCNT, target=4, sleep=2)
        self.stamp(5)
        if p.LPACE:
            a(f"s_cmp_ge_u32 s63, {p.LPACE_T}"); a("s_cbranch_scc1 L_ufast")
            a(f"s_mov_b32 {sT0}, 0")
            for t in range(12):
                if t >= p.LPACE: a(f"s_waitcnt vmcnt({p.LPACE-1})")
                a(f"buffer_load_dwordx4 a[{4*t}:{4*t+3}], v56, {srd(SRD_C)}, {sT0} offen nt")
                if t < 11: a(f"s_add_u32 {sT0}, {sT0}, {8*9216}")
            a("s_branch L_uissued")
            a.label("L_ufast")
        a(f"s_mov_b32 {sT0}, 0")
        for t in range(12):
            a(f"buffer_load_dwordx4 a[{4*t}:{4*t+3}], v56, {srd(SRD_C)}, {sT0} offen nt")
            if t < 11: a(f"s_add_u32 {sT0}, {sT0}, {8*9216}")
        a.label("L_uissued")
        a("s_cmp_ge_u32 s2, 216"); a("s_cbranch_scc1 L_late2")
        if p.DOWNLATER: a("s_waitcnt vmcnt(0)")
        for cb in range(9 if not p.DOWNAFTERC else 0):
            a(f"buffer_load_dwordx4 a[{48+4*cb}:{51+4*cb}], v57, {srd(SRD_A)}, 0 offen offset:{128*cb} nt")
        a("s_setprio 3")
        if not p.DOWNLATER: a("s_waitcnt vmcnt(9)")
        a("s_branch L_unit")
        a.label("L_late2")
        if not p.DBLEARLY:
            a(f"s_mov_b32 {sT0}, 128")
            for t in range(12):
                a(f"buffer_load_dwordx4 a[{48+4*t}:{51+4*t}], v56, {srd(SRD_C)}, {sT0} offen nt")
                if t < 11: a(f"s_add_u32 {sT0}, {sT0}, {8*9216}")
        a("s_setprio 3")
        a("s_waitcnt vmcnt(0)")
        a.label("L_unit")
        cnt = [0]
        def unit_pass(src4, area):
            cnt[0] += 1; L = f"L_up{cnt[0]}"
            for k in range(4): a(f"v_cvt_pk_bf16_f32 v{8+k}, v{src4+k}, v{src4+k}")
            self.setexec(L24); a(f"ds_write_b128 {vUT}, v[8:11]"); a("s_mov_b64 exec, -1")
            self.tread(16, 3, vUR)
            for st_ in range(2):
                if st_ == 1:
                    a("s_cmp_lt_u32 s2, 216"); a(f"s_cbranch_scc1 {L}")
                self.gemv(12, 48 * st_, list(range(16, 28)), 36)
                self.half_add(36, 40)
                for r in range(4): a(f"v_bfi_b32 v{36+r}, {sFF}, {vTAG}, v{36+r}")
                a(f"s_add_u32 {sT0}, s10, {area + 1536 * st_}")
                self.setexec(0x00FF00FF); a(f"buffer_store_dwordx4 v[36:39], {vUP}, {srd(SRD_WS)}, {sT0} offen sc1"); a("s_mov_b64 exec, -1")
            a.label(L)
        if p.CMERGE:
            for k in range(4): a(f"v_cvt_pk_bf16_f32 v{8+k}, v{UC1+k}, v{UC1+k}")
            for k in range(4): a(f"v_cvt_pk_bf16_f32 v{12+k}, v{USB+k}, v{USB+k}")
            self.setexec(L24); a(f"ds_write_b128 {vUT}, v[8:11]"); a(f"ds_write_b128 {vUT}, v[12:15] offset:384"); a("s_mov_b64 exec, -1")
            for i_ in range(3): a(f"ds_read_b128 v[{16+4*i_}:{19+4*i_}], {vUR} offset:{16*i_}")
            for i_ in range(3): a(f"ds_read_b128 v[{28+4*i_}:{31+4*i_}], {vUR} offset:{384+16*i_}")
            a("s_waitcnt lgkmcnt(0)")
            for st_ in range(2):
                if st_ == 1:
                    a("s_cmp_lt_u32 s2, 216"); a("s_cbranch_scc1 L_c1done")
                def mk(tt):
                    for r in range(4): a(f"v_and_b32 v{8+r}, v{16+tt}, v{vM[r]}")
                def mk2(tt):
                    for r in range(4): a(f"v_and_b32 v{12+r}, v{28+tt}, v{vM[r]}")
                mk(0)
                for tt in range(12):
                    A_ = f"a[{48*st_+4*tt}:{48*st_+4*tt+3}]"
                    mk2(tt)
                    a(f"v_mfma_f32_16x16x32_bf16 v[40:43], {A_}, v[8:11], {'0' if tt == 0 else 'v[40:43]'}")
                    if tt + 1 < 12: mk(tt + 1)
                    a(f"v_mfma_f32_16x16x32_bf16 v[44:47], {A_}, v[12:15], {'0' if tt == 0 else 'v[44:47]'}")
                for r in range(8): a(f"v_mov_b32 v{48+r}, v{40+r}")
                for r in range(8): a(f"v_permlane32_swap_b32 v{40+r}, v{48+r}")
                for r in range(8): a(f"v_add_f32_dpp v{40+r}, v{48+r}, v{40+r} row_ror:8 row_mask:0xf bank_mask:0xf")
                for r in range(8): a(f"v_bfi_b32 v{40+r}, {sFF}, {vTAG}, v{40+r}")
                a(f"s_add_u32 {sT0}, s10, {WS_C + 1536 * st_}"); a(f"s_add_u32 {sT1}, s10, {WS_C + 2 * MS + 1536 * st_}")
                self.setexec(0x00FF00FF)
                a(f"buffer_store_dwordx4 v[40:43], {vUP}, {srd(SRD_WS)}, {sT0} offen sc1"); a(f"buffer_store_dwordx4 v[44:47], {vUP}, {srd(SRD_WS)}, {sT1} offen sc1")
                a("s_mov_b64 exec, -1")
            a.label("L_c1done")
        else:
            unit_pass(UC1, WS_C)
            unit_pass(USB, WS_C + 2 * MS)
        if p.DOWNAFTERC:
            a("s_cmp_ge_u32 s2, 216"); a("s_cbranch_scc1 L_nodl")
            for cb in range(9):
                a(f"buffer_load_dwordx4 a[{48+4*cb}:{51+4*cb}], v57, {srd(SRD_A)}, 0 offen offset:{128*cb} nt")
            a.label("L_nodl")
        self.stamp(1, "fine")
        loads = [(8 + 4 * k, 4, vUA, None if k < 2 else (k & ~1) * 2304, (k & 1) * 2304) for k in range(8)]
        self.poll(loads, active=L24)
        self.stamp(6)
        self.sum_rows4([8 + 4 * k for k in range(8)])
        a(f"v_pk_fma_f32 v[{UX}:{UX+1}], v[8:9], v[{UGA}:{UGA+1}], v[{UX}:{UX+1}]"); a(f"v_pk_fma_f32 v[{UX+2}:{UX+3}], v[10:11], v[{UGA+2}:{UGA+3}], v[{UX+2}:{UX+3}]")
        a(f"v_pk_mul_f32 v[{UC1}:{UC1+1}], v[{UX}:{UX+1}], v[{UC1}:{UC1+1}]"); a(f"v_pk_mul_f32 v[{UC1+2}:{UC1+3}], v[{UX+2}:{UX+3}], v[{UC1+2}:{UC1+3}]")
        a("s_mov_b64 exec, -1")
        unit_pass(UC1, WS_G)
        self.stamp(2, "fine")
        a("s_or_b32 s11, s6, s8"); a("s_cmp_lg_u32 s11, 0"); a("s_cbranch_scc1 L_nostat")
        a("v_mov_b32 v12, 0"); a("v_mov_b32 v13, 0")
        self.setexec(L24)
        a(f"v_pk_add_f32 v[14:15], v[{UX}:{UX+1}], v[{UX+2}:{UX+3}]"); a(f"v_pk_mul_f32 v[16:17], v[{UX}:{UX+1}], v[{UX}:{UX+1}]")
        a(f"v_pk_fma_f32 v[16:17], v[{UX+2}:{UX+3}], v[{UX+2}:{UX+3}], v[16:17]")
        a("v_add_f32 v12, v14, v15"); a("v_add_f32 v13, v16, v17")
        a("s_mov_b64 exec, -1")
        self.allreduceN("v_add_f32", [("v12", "v14"), ("v13", "v15")], ["q1", "q2", "r4", "r8", "p16"])
        a("v_mov_b32 v14, 0"); a("v_mov_b32 v15, 0")
        for c in range(4): a(f"v_bfi_b32 v{12+c}, {sFF}, {vTAG}, v{12+c}")
        a("s_lshl_b32 s11, s7, 7"); a(f"s_add_u32 s11, s11, {WS_ST}")
        a("s_mov_b64 exec, 1"); a(f"buffer_store_dwordx4 v[12:15], off, {srd(SRD_WS)}, s11 sc1"); a("s_mov_b64 exec, -1")
        a.label("L_nostat")
        a("s_cmp_ge_u32 s2, 234"); a("s_cbranch_scc1 L_hexit")
        a("s_cmp_ge_u32 s2, 216"); a("s_cbranch_scc1 L_fin")
        K6 = 0x3F3F3F3F3F3F3F3F
        for r in (8, 9, 10, 11, 20, 21, 22, 23): a(f"v_mov_b32 v{r}, 0")
        self.poll([(20, 1, "v58", WS_C, 0), (21, 1, "v58", WS_C + 2 * MS, 0), (22, 1, "v58", WS_C + MS, 0), (23, 1, "v58", WS_C + 3 * MS, 0)], active=K6)
        a("s_mov_b64 exec, -1")
        self.allreduceN("v_add_f32", [(f"v{r}", "v12") for r in (20, 21, 22, 23)], ["q1", "q2", "hm"])
        self.poll([(8, 1, "v58", WS_G, 0), (9, 1, "v58", WS_G + MS, 0), (10, 4, "v59", None, 0)], presleep=p.PS_G, strong=(2,), active=K6)
        a("s_mov_b64 exec, -1")
        self.stamp(3, "fine")
        self.allreduceN("v_add_f32", [(f"v{r}", "v14") for r in (8, 9, 10, 11)], ["q1", "q2", "hm"])
        a(f"v_mul_f32 v10, {f32hex(1/576)}, v10"); a(f"v_mul_f32 v11, {f32hex(1/576)}, v11")
        a("v_fma_f32 v11, -v10, v10, v11"); a(f"v_add_f32 v11, {f32hex(1e-5)}, v11"); a("v_rsq_f32 v11, v11")
        a("v_fma_f32 v8, -v10, v20, v8"); a("v_fma_f32 v9, -v10, v22, v9")
        a("v_fma_f32 v8, v8, v11, v21"); a("v_fma_f32 v9, v9, v11, v23")
        self.sigmoid("v12", "v8", "v12")
        a("v_mul_f32 v8, v12, v9")
        a("v_cvt_pk_bf16_f32 v8, v8, v8")
        for r in range(4): a(f"v_and_b32 v{12+r}, v8, v{vM[r]}")
        for cb in range(9):
            d = 16 + 4 * cb
            a(f"v_mfma_f32_16x16x32_bf16 v[{d}:{d+3}], a[{48+4*cb}:{51+4*cb}], v[12:15], 0")
        self.setexec(self.VALID)
        for cb in range(9): a(f"ds_write_b128 v{FX}, v[{16+4*cb}:{19+4*cb}] offset:{256*cb}")
        a("s_mov_b64 exec, -1")
        a("s_waitcnt lgkmcnt(0)")
        a("s_barrier")
        a(f"s_cmp_ge_u32 {sHW}, 3"); a("s_cbranch_scc1 L_hexit")
        self.setexec(lanes(48))
        for k in range(8): a(f"ds_read_b128 v[{8+4*k}:{11+4*k}], v{FX+1} offset:{L_DOWN + 2304*k}")
        a("s_waitcnt lgkmcnt(0)")
        self.sum_rows4([8 + 4 * k for k in range(8)])
        for c in range(4): a(f"v_bfi_b32 v{8+c}, {sFF}, {vTAG}, v{8+c}")
        a(f"buffer_store_dwordx4 v[8:11], v{FX+1}, {srd(SRD_WS)}, s15 offen sc1")
        self.stamp(7)
        if p.STAMPS and p.MODE == "fin":
            a("s_waitcnt vmcnt(0)"); self.stamp(6, "fin")
        a("s_branch L_hexit")
        a.label("L_fin")
        a(f"v_and_b32 v46, 7, {vLANE}")
        a("s_lshl_b32 s15, s14, 7"); a("v_lshlrev_b32 v47, 4, v46"); a("v_add_u32 v47, s15, v47")
        a(f"v_lshrrev_b32 v8, 3, {vLANE}"); a("v_mul_u32_u24 v42, 2304, v8"); a("v_add_u32 v42, v42, v47"); a(f"v_add_u32 v42, {WS_ATT}, v42")
        a(f"s_mul_i32 {sT0}, {sHW}, 36"); a(f"v_add_u32 v8, {sT0}, v8"); a("v_mul_u32_u24 v43, 2304, v8"); a("v_add_u32 v43, v43, v47"); a(f"v_add_u32 v43, {WS_OUT}, v43")
        a(f"v_add_u32 v44, {4*8*2304}, v43"); a(f"v_cmp_gt_u32 vcc, 32, {vLANE}"); a("v_cndmask_b32 v44, v43, v44, vcc")
        a(f"s_lshl_b32 {sT0}, {sHW}, 7"); a(f"s_add_u32 {sT0}, {sT0}, {L_FIN}"); a("v_lshlrev_b32 v45, 4, v46"); a(f"v_add_u32 v40, {sT0}, v45")
        self.poll([(8, 4, "v42", None, 0)], sleep=1)
        self.allreduceN("v_add_f32", [(f"v{8+c}", f"v{12+c}") for c in range(4)], ["r8", "p16", "p32"])
        a(f"v_pk_fma_f32 v[{FX}:{FX+1}], v[8:9], v[{FGA}:{FGA+1}], v[{FX}:{FX+1}]"); a(f"v_pk_fma_f32 v[{FX+2}:{FX+3}], v[10:11], v[{FGA+2}:{FGA+3}], v[{FX+2}:{FX+3}]")
        self.set_srd(SRD_B, sOUT, size=1152)
        a("s_lshl_b32 s15, s14, 6"); a("v_lshlrev_b32 v49, 1, v46")
        self.stamp(3, "fine")
        self.poll([(8, 4, "v43", None, 0), (12, 4, "v43", 8*2304, 0), (16, 4, "v43", 16*2304, 0), (20, 4, "v43", 24*2304, 0), (24, 4, "v44", None, 0)], presleep=p.PS_OUT)
        self.stamp(1, "fin")
        a(f"v_cmp_gt_u32 vcc, 32, {vLANE}")
        self.sum_rows4([8, 12, 16, 20])
        for c in range(4): a(f"v_cndmask_b32 v{24+c}, 0, v{24+c}, vcc")
        self.sum_rows4([8, 24])
        self.allreduceN("v_add_f32", [(f"v{8+c}", f"v{12+c}") for c in range(4)], ["r8", "p16", "p32"])
        self.setexec(0xFF)
        a("ds_write_b128 v40, v[8:11]")
        a("s_mov_b64 exec, -1")
        a("s_waitcnt lgkmcnt(0)")
        self.stamp(2, "fin")
        a("s_barrier")
        self.stamp(3, "fin")
        a(f"s_cmp_lg_u32 {sHW}, 0"); a("s_cbranch_scc1 L_hexit")
        self.setexec(0xFF)
        for w in range(4): a(f"ds_read_b128 v[{8+4*w}:{11+4*w}], v45 offset:{L_FIN + 128*w}")
        a("s_waitcnt lgkmcnt(0)")
        self.sum_rows4([8, 12, 16, 20])
        a(f"v_pk_fma_f32 v[8:9], v[8:9], v[{FGB}:{FGB+1}], v[{FX}:{FX+1}]"); a(f"v_pk_fma_f32 v[10:11], v[10:11], v[{FGB+2}:{FGB+3}], v[{FX+2}:{FX+3}]")
        a("v_cvt_pk_bf16_f32 v12, v8, v9"); a("v_cvt_pk_bf16_f32 v13, v10, v11")
        a(f"buffer_store_short v12, v49, {srd(SRD_B)}, s15 offen"); a(f"buffer_store_short_d16_hi v12, v49, {srd(SRD_B)}, s15 offen offset:16")
        a(f"buffer_store_short v13, v49, {srd(SRD_B)}, s15 offen offset:32"); a(f"buffer_store_short_d16_hi v13, v49, {srd(SRD_B)}, s15 offen offset:48")
        self.stamp(7)
        a("s_cmp_lg_u32 s14, 0"); a("s_cbranch_scc1 L_hexit")
        a("s_mov_b64 exec, 1")
        a(f"v_mov_b32 v8, {sTAG}")
        a(f"buffer_store_dword v8, off, {srd(SRD_WS)}, 0 sc1")
        a("s_branch L_hexit")
        a.label("L_wo")
        a(f"s_and_b32 {sR0}, s2, 7"); a(f"s_lshr_b32 {sR1}, s2, 3")
        a(f"s_lshl_b32 {sT2}, {sR1}, 7")
        self.set_srd(SRD_A, sWO, off=sT2, size_minus_off=4096 * 1152)
        a(f"s_lshl_b32 {sR2}, {sR0}, 2"); a(f"s_add_u32 {sR2}, {sR2}, {sHW}")
        a(f"s_lshl_b32 {sT0}, {sR2}, 7")
        a(f"v_lshrrev_b32 v1, 3, {vLANE}"); a(f"v_add_u32 v1, {sT0}, v1"); a("v_mul_u32_u24 v1, 1152, v1")
        a(f"v_and_b32 v2, 7, {vLANE}"); a("v_lshl_add_u32 v1, v2, 4, v1")
        if p.WOLATE: a("s_branch L_wo_have")
        elif p.WOEARLY:
            if p.MAP2: a("s_branch L_wo_have")
            else: a(f"s_cmp_lg_u32 {sHW}, 0"); a("s_cbranch_scc1 L_wo_have")
        a(f"s_mov_b32 {sT0}, 0")
        for t in range(16):
            if t >= p.WOPACE: a(f"s_waitcnt vmcnt({p.WOPACE-1})")
            a(f"buffer_load_dwordx4 a[{96+4*t}:{99+4*t}], v1, {srd(SRD_A)}, {sT0} offen nt")
            if t < 15: a(f"s_add_u32 {sT0}, {sT0}, 9216")
        a.label("L_wo_have")
        a(f"s_mul_i32 s4, {sR2}, {8*OSLOT}"); a("s_add_u32 s4, s4, " + str(WS_O))
        a(f"s_mul_i32 {sT0}, {sR0}, 2304"); a(f"s_lshl_b32 {sT1}, {sR1}, 8"); a(f"s_add_u32 {sT0}, {sT0}, {sT1}"); a(f"s_add_u32 s5, {sT0}, {WS_ATT}")
        a(f"v_and_b32 v41, 7, {vLANE}"); a(f"v_mul_u32_u24 v41, {OSLOT}, v41")
        a(f"v_lshlrev_b32 v40, 3, {vLANE}")
        a(f"v_and_b32 v8, 3, {vLANE}"); a("v_mul_u32_u24 v8, 160, v8"); a(f"v_lshrrev_b32 v42, 2, {vLANE}"); a("v_lshl_add_u32 v42, v42, 2, v8")
        a(f"s_mul_i32 {sT0}, {sHW}, {TBLW}"); a(f"s_add_u32 {sT0}, {sT0}, {L_TBL}"); a(f"v_add_u32 v42, {sT0}, v42")
        self.taddr_r("v43", 20)
        self.dpiece_addr("v44", "v8", L_PART, 256)
        a(f"v_lshlrev_b32 v45, 4, {vLANE}")
        a("s_add_u32 s15, s4, 3200")
        self.poll([(8, 4, "v41", "s4", 512)], sleep=32, strong=(0,))
        a(f"v_and_b32 v8, {sFFFF0000}, v8")
        a("v_mov_b32 v10, v8")
        self.allreduce("v_max_f32", "v10", "v11", ["q1", "q2", "hm"])
        a("v_sub_f32 v11, v8, v10"); a(f"v_mul_f32 v11, 0x{LOG2E:08x}, v11"); a("v_exp_f32 v11, v11")
        a("v_mul_f32 v12, v11, v9")
        self.allreduce("v_add_f32", "v12", "v13", ["q1", "q2", "hm"])
        a("v_rcp_f32 v12, v12"); a("v_mul_f32 v11, v11, v12")
        for s_ in range(8): a(f"v_mov_b32_dpp v{48+s_}, v11 row_newbcast:{s_} row_mask:0xf bank_mask:0xf")
        if p.LPACE and p.WOLATE:
            self.lds_spin(L_WCNT, target=1, sleep=2)
            self.read_ticket()
        self.lds_spin(L_WCNT, target=p.WOTGT, sleep=2)
        if p.WOLATE:
            if p.LPACE:
                a(f"s_cmp_ge_u32 s63, {p.LPACE_T}"); a("s_cbranch_scc1 L_wfast")
                a(f"s_mov_b32 {sT0}, 0")
                for t in range(16):
                    if t >= p.LPACE: a(f"s_waitcnt vmcnt({p.LPACE-1})")
                    a(f"buffer_load_dwordx4 a[{96+4*t}:{99+4*t}], v1, {srd(SRD_A)}, {sT0} offen nt")
                    if t < 15: a(f"s_add_u32 {sT0}, {sT0}, 9216")
                a("s_branch L_wissued")
                a.label("L_wfast")
            a(f"s_mov_b32 {sT0}, 0")
            for t in range(16):
                a(f"buffer_load_dwordx4 a[{96+4*t}:{99+4*t}], v1, {srd(SRD_A)}, {sT0} offen nt")
                if t < 15: a(f"s_add_u32 {sT0}, {sT0}, 9216")
            a.label("L_wissued")
        a("s_setprio 3")
        self.stamp(5)
        self.poll([(8 + 2 * s_, 2, "v40", "s4" if s_ < 6 else "s15", s_ * OSLOT if s_ < 6 else (s_ - 5) * OSLOT) for s_ in range(8)])
        self.stamp(6, "wo")
        a("v_pk_mul_f32 v[24:25], v[8:9], v[48:49] op_sel_hi:[1,0]")
        a("v_pk_mul_f32 v[26:27], v[10:11], v[48:49] op_sel:[0,1]")
        for s_ in range(2, 8):
            d = 24 + 2 * (s_ & 1); w = 48 + (s_ & ~1)
            sel = "op_sel_hi:[1,0,1]" if (s_ & 1) == 0 else "op_sel:[0,1,0]"
            a(f"v_pk_fma_f32 v[{d}:{d+1}], v[{8+2*s_}:{9+2*s_}], v[{w}:{w+1}], v[{d}:{d+1}] {sel}")
        self.pk_add(24, 24, 26)
        a("v_cvt_pk_bf16_f32 v24, v24, v24"); a("v_cvt_pk_bf16_f32 v25, v25, v25")
        a("ds_write_b32 v42, v24"); a("ds_write_b32 v42, v25 offset:80")
        self.tread(16, 4, "v43")
        self.stamp(1, "wo")
        self.gemv(16, 96, list(range(16, 32)), 36)
        self.stamp(2, "wo")
        self.setexec(self.VALID); a("ds_write_b128 v44, v[36:39]"); a("s_mov_b64 exec, -1")
        a("s_waitcnt lgkmcnt(0)")
        a("s_barrier")
        self.stamp(3, "wo")
        a(f"s_cmp_lg_u32 {sHW}, 0"); a("s_cbranch_scc1 L_hexit")
        self.setexec(0xFFFF)
        for k in range(8): a(f"ds_read_b128 v[{8+4*k}:{11+4*k}], v45 offset:{L_PART + 256*k}")
        a("s_waitcnt lgkmcnt(0)")
        self.sum_rows4([8 + 4 * k for k in range(8)])
        for c in range(4): a(f"v_bfi_b32 v{8+c}, {sFF}, {vTAG}, v{8+c}")
        a(f"buffer_store_dwordx4 v[8:11], v45, {srd(SRD_WS)}, s5 offen sc1")
        self.stamp(7, "wo")
        a.label("L_hexit")
        self.dump_stamps()
        a("s_endpgm")

    def tail_dyn(self):
        a = self.a; p = self.p
        L24 = lanes(24)
        UX, UGA, UC1, USB = 64, 68, 72, 76
        vUT, vUR, vUP, vUA = "v80", "v81", "v82", "v83"
        FX, FGA, FGB = 84, 88, 92
        MS = 72 * 6 * 256
        sTK = "s63"; sDBL = "s62"
        def down_prep():
            a(f"s_mul_i32 {sT2}, s14, {32*1152}"); self.set_srd(SRD_A, sWD, off=sT2, size=32 * 1152)
            a(f"s_lshl_b32 {sT0}, {sHW}, 3")
            a(f"v_lshrrev_b32 v57, 3, {vLANE}"); a(f"v_add_u32 v57, {sT0}, v57"); a("v_mul_u32_u24 v57, 1152, v57")
            a(f"v_and_b32 v8, 7, {vLANE}"); a("v_lshl_add_u32 v57, v8, 4, v57")
            for cb in range(9):
                a(f"buffer_load_dwordx4 a[{48+4*cb}:{51+4*cb}], v57, {srd(SRD_A)}, 0 offen offset:{128*cb} nt")
            a("s_lshr_b32 s15, s14, 1"); a("s_mul_i32 s15, s15, 1536"); a(f"s_and_b32 {sT0}, s14, 1"); a(f"s_lshl_b32 {sT0}, {sT0}, 7"); a(f"s_add_u32 s15, s15, {sT0}")
            a(f"s_lshl_b32 {sT0}, {sHW}, 2"); a(f"s_add_u32 s15, s15, {sT0}")
            a(f"v_and_b32 v8, 7, {vLANE}"); a("v_min_u32 v8, 5, v8"); a("v_lshlrev_b32 v58, 8, v8"); a(f"v_lshrrev_b32 v9, 3, {vLANE}"); a("v_lshl_add_u32 v58, v9, 4, v58"); a("v_add_u32 v58, s15, v58")
            a("v_lshlrev_b32 v59, 7, v8"); a(f"v_add_u32 v59, {WS_ST}, v59")
            self.dpiece_addr(f"v{FX}", "v8", L_DOWN, 2304)
            a(f"s_mul_i32 {sT0}, {sHW}, 48"); a(f"v_add_u32 v{FX+1}, {sT0}, {vLANE}"); a(f"v_lshlrev_b32 v{FX+1}, 4, v{FX+1}")
            a("s_mul_i32 s15, s14, 2304"); a(f"s_add_u32 s15, s15, {WS_OUT}")
        a.label("L_tail")
        a("s_setprio 0")
        self.lds_spin(L_QFLAG, target=1, sleep=8)
        a(f"s_cmp_lg_u32 {sHW}, 2"); a("s_cbranch_scc1 L_tkwait")
        self.lds_spin(L_WCNT, target=p.TKAT, sleep=2)
        self.set_srd(SRD_B, sDBG, size=256)
        a("s_mov_b64 exec, 1")
        a("v_mov_b32 v8, 1")
        a(f"buffer_atomic_add v8, off, {srd(SRD_B)}, 0 sc0")
        a("s_waitcnt vmcnt(0)")
        a(f"v_add_u32 v8, 1, v8"); a(f"v_mov_b32 v9, {L_TICK}"); a("ds_write_b32 v9, v8")
        a("s_mov_b64 exec, -1")
        a.label("L_tkwait")
        self.lds_spin(L_TICK, target=1, sleep=2)
        a(f"s_sub_u32 {sTK}, {sT3}, 1")
        a(f"s_setprio 2")
        self.stamp(4, "fine")
        a(f"s_cmp_ge_u32 {sTK}, 234"); a("s_cbranch_scc1 L_hexit")
        a(f"s_cmp_lt_u32 {sTK}, 72"); a("s_cbranch_scc1 L_wo")
        a(f"s_cmp_ge_u32 {sTK}, 126"); a("s_cbranch_scc1 L_sgl")
        a(f"s_sub_u32 {sT2}, {sTK}, 72"); self.div3("s6", "s7", sT2); a("s_lshl_b32 s6, s6, 1"); a(f"s_mov_b32 {sDBL}, 1")
        a("s_branch L_uprep")
        a.label("L_sgl")
        a(f"s_sub_u32 {sT2}, {sTK}, 126"); self.div3("s6", "s7", sT2); a("s_add_u32 s6, s6, 36"); a(f"s_mov_b32 {sDBL}, 0")
        a.label("L_uprep")
        a(f"s_lshr_b32 {sT0}, {sHW}, 1"); a("s_lshl_b32 s7, s7, 1"); a(f"s_add_u32 s7, s7, {sT0}")
        a(f"s_and_b32 s8, {sHW}, 1")
        a("s_cmp_eq_u32 s8, 0"); a(f"s_cselect_b32 s12, s{sWG}, s{sWU}"); a(f"s_cselect_b32 s13, s{sWG+1}, s{sWU+1}")
        a(f"s_lshl_b32 {sT2}, s6, 7")
        self.set_srd(SRD_C, 12, off=sT2, size_minus_off=576 * 9216)
        a("s_mul_i32 s11, s7, 96"); a(f"v_lshrrev_b32 v56, 3, {vLANE}"); a("v_add_u32 v56, s11, v56"); a("v_mul_u32_u24 v56, 9216, v56")
        a(f"v_and_b32 v8, 7, {vLANE}"); a("v_lshl_add_u32 v56, v8, 4, v56")
        self.lds_spin(L_WCNT if p.WTRIG == "issued" else L_OCNT, target=4, sleep=1)
        self.stamp(5)
        a(f"s_mov_b32 {sT0}, 0")
        for t in range(12):
            a(f"buffer_load_dwordx4 a[{4*t}:{4*t+3}], v56, {srd(SRD_C)}, {sT0} offen nt")
            if t < 11: a(f"s_add_u32 {sT0}, {sT0}, {8*9216}")
        a(f"s_cmp_eq_u32 {sDBL}, 0"); a("s_cbranch_scc1 L_one")
        a(f"s_mov_b32 {sT0}, 128")
        for t in range(12):
            a(f"buffer_load_dwordx4 a[{48+4*t}:{51+4*t}], v56, {srd(SRD_C)}, {sT0} offen nt")
            if t < 11: a(f"s_add_u32 {sT0}, {sT0}, {8*9216}")
        a.label("L_one")
        a("s_mul_i32 s9, s7, 3")
        a(f"v_lshrrev_b32 v8, 3, {vLANE}"); a("v_add_u32 v8, s9, v8")
        self.piece_off("v2", "v8", "v9")
        a(f"v_lshlrev_b32 {vUA}, 7, v8"); a(f"v_and_b32 v9, 7, {vLANE}"); a(f"v_lshl_add_u32 {vUA}, v9, 4, {vUA}"); a(f"v_add_u32 {vUA}, {WS_ATT}, {vUA}")
        self.set_srd(SRD_B, sX, size=1152)
        a("v_lshlrev_b32 v8, 5, v8"); a("v_add_u32 v8, v8, v9"); a("v_lshlrev_b32 v8, 1, v8")
        for r in range(4): a(f"buffer_load_ushort v{UX+r}, v8, {srd(SRD_B)}, 0 offen offset:{16*r}")
        a(f"s_mul_i32 {sT0}, {sHW}, {TBLW}"); a(f"s_add_u32 {sT0}, {sT0}, {L_TBL}")
        a(f"v_and_b32 v8, 7, {vLANE}"); a(f"v_mul_u32_u24 {vUT}, 48, v8"); a(f"v_lshrrev_b32 v9, 3, {vLANE}"); a(f"v_lshl_add_u32 {vUT}, v9, 4, {vUT}"); a(f"v_add_u32 {vUT}, {sT0}, {vUT}")
        a(f"v_mul_u32_u24 {vUR}, 48, v9"); a(f"v_add_u32 {vUR}, {sT0}, {vUR}")
        a(f"v_lshrrev_b32 {vUP}, 4, {vLANE}"); a(f"v_lshlrev_b32 {vUP}, 7, {vUP}"); a(f"v_lshl_add_u32 {vUP}, v8, 4, {vUP}")
        a("s_mul_i32 s10, s8, 72"); a("s_add_u32 s10, s10, s6"); a("s_mul_i32 s10, s10, 6"); a("s_add_u32 s10, s10, s7"); a("s_lshl_b32 s10, s10, 8")
        self.gather_mod([2, 4, 3], "v2", [UGA, UC1, USB], L24, sleep=2)
        a("s_mov_b64 exec, -1")
        for r in range(4): a(f"v_lshlrev_b32 v{UX+r}, 16, v{UX+r}")
        for r in range(4): a(f"v_add_f32 v{UC1+r}, 1.0, v{UC1+r}")
        self.round4(UC1, "v8")
        a(f"s_mov_b32 s61, 0")
        a(f"s_sub_u32 s14, {sTK}, 54"); a(f"s_sub_u32 {sT2}, {sTK}, 126"); a(f"s_cmp_ge_u32 {sT2}, 72"); a("s_cbranch_scc1 L_nodown")
        a("s_mov_b32 s61, 1")
        down_prep()
        a.label("L_nodown")
        a("s_setprio 3")
        for k in range(4): a(f"v_cvt_pk_bf16_f32 v{8+k}, v{UC1+k}, v{UC1+k}")
        for k in range(4): a(f"v_cvt_pk_bf16_f32 v{12+k}, v{USB+k}, v{USB+k}")
        self.setexec(L24); a(f"ds_write_b128 {vUT}, v[8:11]"); a(f"ds_write_b128 {vUT}, v[12:15] offset:384"); a("s_mov_b64 exec, -1")
        for i in range(3): a(f"ds_read_b128 v[{16+4*i}:{19+4*i}], {vUR} offset:{16*i}")
        for i in range(3): a(f"ds_read_b128 v[{28+4*i}:{31+4*i}], {vUR} offset:{384+16*i}")
        a("s_waitcnt lgkmcnt(0)")
        for st_ in range(2):
            if st_ == 1:
                a(f"s_cmp_eq_u32 {sDBL}, 0"); a("s_cbranch_scc1 L_c1done")
            def mk(t):
                for r in range(4): a(f"v_and_b32 v{8+r}, v{16+t}, v{vM[r]}")
            def mk2(t):
                for r in range(4): a(f"v_and_b32 v{12+r}, v{28+t}, v{vM[r]}")
            mk(0)
            for t in range(12):
                A_ = f"a[{48*st_+4*t}:{48*st_+4*t+3}]"
                mk2(t)
                a(f"v_mfma_f32_16x16x32_bf16 v[40:43], {A_}, v[8:11], {'0' if t == 0 else 'v[40:43]'}")
                if t + 1 < 12: mk(t + 1)
                a(f"v_mfma_f32_16x16x32_bf16 v[44:47], {A_}, v[12:15], {'0' if t == 0 else 'v[44:47]'}")
            for r in range(8): a(f"v_mov_b32 v{48+r}, v{40+r}")
            for r in range(8): a(f"v_permlane32_swap_b32 v{40+r}, v{48+r}")
            for r in range(8): a(f"v_add_f32_dpp v{40+r}, v{48+r}, v{40+r} row_ror:8 row_mask:0xf bank_mask:0xf")
            for r in range(8): a(f"v_bfi_b32 v{40+r}, {sFF}, {vTAG}, v{40+r}")
            a(f"s_add_u32 {sT0}, s10, {WS_C + 1536 * st_}"); a(f"s_add_u32 {sT1}, s10, {WS_C + 2 * MS + 1536 * st_}")
            self.setexec(0x00FF00FF)
            a(f"buffer_store_dwordx4 v[40:43], {vUP}, {srd(SRD_WS)}, {sT0} offen sc1"); a(f"buffer_store_dwordx4 v[44:47], {vUP}, {srd(SRD_WS)}, {sT1} offen sc1")
            a("s_mov_b64 exec, -1")
        a.label("L_c1done")
        self.stamp(1, "fine")
        loads = [(8 + 4 * k, 4, vUA, None if k < 2 else (k & ~1) * 2304, (k & 1) * 2304) for k in range(8)]
        if p.CGATE: self.cnt_gate(p.CTGT, p.PS_ATT)
        self.poll(loads, active=L24, sleep=p.SL_ATT)
        self.stamp(6)
        self.sum_rows4([8 + 4 * k for k in range(8)])
        a(f"v_pk_fma_f32 v[{UX}:{UX+1}], v[8:9], v[{UGA}:{UGA+1}], v[{UX}:{UX+1}]"); a(f"v_pk_fma_f32 v[{UX+2}:{UX+3}], v[10:11], v[{UGA+2}:{UGA+3}], v[{UX+2}:{UX+3}]")
        a(f"v_pk_mul_f32 v[{UC1}:{UC1+1}], v[{UX}:{UX+1}], v[{UC1}:{UC1+1}]"); a(f"v_pk_mul_f32 v[{UC1+2}:{UC1+3}], v[{UX+2}:{UX+3}], v[{UC1+2}:{UC1+3}]")
        for k in range(4): a(f"v_cvt_pk_bf16_f32 v{8+k}, v{UC1+k}, v{UC1+k}")
        a(f"ds_write_b128 {vUT}, v[8:11]"); a("s_mov_b64 exec, -1")
        self.tread(16, 3, vUR)
        for st_ in range(2):
            if st_ == 1:
                a(f"s_cmp_eq_u32 {sDBL}, 0"); a("s_cbranch_scc1 L_zdone")
            self.gemv(12, 48 * st_, list(range(16, 28)), 36)
            self.half_add(36, 40)
            for r in range(4): a(f"v_bfi_b32 v{36+r}, {sFF}, {vTAG}, v{36+r}")
            a(f"s_add_u32 {sT0}, s10, {WS_G + 1536 * st_}")
            self.setexec(0x00FF00FF); a(f"buffer_store_dwordx4 v[36:39], {vUP}, {srd(SRD_WS)}, {sT0} offen sc1"); a("s_mov_b64 exec, -1")
        a.label("L_zdone")
        self.stamp(2, "fine")
        a("s_or_b32 s11, s6, s8"); a("s_cmp_lg_u32 s11, 0"); a("s_cbranch_scc1 L_nostat")
        a("v_mov_b32 v12, 0"); a("v_mov_b32 v13, 0")
        self.setexec(L24)
        a(f"v_pk_add_f32 v[14:15], v[{UX}:{UX+1}], v[{UX+2}:{UX+3}]"); a(f"v_pk_mul_f32 v[16:17], v[{UX}:{UX+1}], v[{UX}:{UX+1}]")
        a(f"v_pk_fma_f32 v[16:17], v[{UX+2}:{UX+3}], v[{UX+2}:{UX+3}], v[16:17]")
        a("v_add_f32 v12, v14, v15"); a("v_add_f32 v13, v16, v17")
        a("s_mov_b64 exec, -1")
        self.allreduceN("v_add_f32", [("v12", "v14"), ("v13", "v15")], ["q1", "q2", "r4", "r8", "p16"])
        a("v_mov_b32 v14, 0"); a("v_mov_b32 v15, 0")
        for c in range(4): a(f"v_bfi_b32 v{12+c}, {sFF}, {vTAG}, v{12+c}")
        a("s_lshl_b32 s11, s7, 7"); a(f"s_add_u32 s11, s11, {WS_ST}")
        a("s_mov_b64 exec, 1"); a(f"buffer_store_dwordx4 v[12:15], off, {srd(SRD_WS)}, s11 sc1"); a("s_mov_b64 exec, -1")
        a.label("L_nostat")
        a(f"s_cmp_lt_u32 {sTK}, 90"); a("s_cbranch_scc1 L_fin")
        a("s_cmp_eq_u32 s61, 0"); a("s_cbranch_scc1 L_hexit")
        a.label("L_down")
        self.poll([(20, 1, "v58", WS_C, 0), (21, 1, "v58", WS_C + 2 * MS, 0), (22, 1, "v58", WS_C + MS, 0), (23, 1, "v58", WS_C + 3 * MS, 0)], sleep=p.SL_C)
        self.lane6_reduce([20, 21, 22, 23], 12)
        self.poll([(8, 1, "v58", WS_G, 0), (9, 1, "v58", WS_G + MS, 0), (10, 4, "v59", None, 0)], presleep=p.PS_G, sleep=p.SL_G, strong=(2,))
        self.stamp(3, "fine")
        self.lane6_reduce([8, 9, 10, 11], 14)
        a(f"v_mul_f32 v10, {f32hex(1/576)}, v10"); a(f"v_mul_f32 v11, {f32hex(1/576)}, v11")
        a("v_fma_f32 v11, -v10, v10, v11"); a(f"v_add_f32 v11, {f32hex(1e-5)}, v11"); a("v_rsq_f32 v11, v11")
        a("v_fma_f32 v8, -v10, v20, v8"); a("v_fma_f32 v9, -v10, v22, v9")
        a("v_fma_f32 v8, v8, v11, v21"); a("v_fma_f32 v9, v9, v11, v23")
        self.sigmoid("v12", "v8", "v12")
        a("v_mul_f32 v8, v12, v9")
        a("v_cvt_pk_bf16_f32 v8, v8, v8")
        for r in range(4): a(f"v_and_b32 v{12+r}, v8, v{vM[r]}")
        for cb in range(9):
            d = 16 + 4 * cb
            a(f"v_mfma_f32_16x16x32_bf16 v[{d}:{d+3}], a[{48+4*cb}:{51+4*cb}], v[12:15], 0")
        self.setexec(self.VALID)
        for cb in range(9): a(f"ds_write_b128 v{FX}, v[{16+4*cb}:{19+4*cb}] offset:{256*cb}")
        a("s_mov_b64 exec, -1")
        a("s_waitcnt lgkmcnt(0)")
        a("s_barrier")
        a(f"s_cmp_ge_u32 {sHW}, 3"); a("s_cbranch_scc1 L_hexit")
        self.setexec(lanes(48))
        for k in range(8): a(f"ds_read_b128 v[{8+4*k}:{11+4*k}], v{FX+1} offset:{L_DOWN + 2304*k}")
        a("s_waitcnt lgkmcnt(0)")
        self.sum_rows4([8 + 4 * k for k in range(8)])
        for c in range(4): a(f"v_bfi_b32 v{8+c}, {sFF}, {vTAG}, v{8+c}")
        a(f"buffer_store_dwordx4 v[8:11], v{FX+1}, {srd(SRD_WS)}, s15 offen sc1")
        self.stamp(7)
        a("s_branch L_hexit")
        a.label("L_fin")
        a(f"s_sub_u32 s14, {sTK}, 72")
        self.set_srd(SRD_B, sX, size=1152)
        a(f"v_and_b32 v46, 7, {vLANE}")
        a("s_lshl_b32 s15, s14, 6"); a("v_lshlrev_b32 v8, 1, v46")
        for r in range(4): a(f"buffer_load_ushort v{FX+r}, v8, {srd(SRD_B)}, s15 offen offset:{16*r}")
        a("v_mov_b32 v8, s14"); self.piece_off("v2", "v8", "v9")
        self.gather_mod([2, 5], "v2", [FGA, FGB], FULL, sleep=2)
        for r in range(4): a(f"v_lshlrev_b32 v{FX+r}, 16, v{FX+r}")
        a("s_lshl_b32 s15, s14, 7"); a("v_lshlrev_b32 v47, 4, v46"); a("v_add_u32 v47, s15, v47")
        a(f"v_lshrrev_b32 v8, 3, {vLANE}"); a("v_mul_u32_u24 v42, 2304, v8"); a("v_add_u32 v42, v42, v47"); a(f"v_add_u32 v42, {WS_ATT}, v42")
        a(f"s_mul_i32 {sT0}, {sHW}, 36"); a(f"v_add_u32 v8, {sT0}, v8"); a("v_mul_u32_u24 v43, 2304, v8"); a("v_add_u32 v43, v43, v47"); a(f"v_add_u32 v43, {WS_OUT}, v43")
        a(f"v_add_u32 v44, {4*8*2304}, v43"); a(f"v_cmp_gt_u32 vcc, 32, {vLANE}"); a("v_cndmask_b32 v44, v43, v44, vcc")
        a(f"s_lshl_b32 {sT0}, {sHW}, 7"); a(f"s_add_u32 {sT0}, {sT0}, {L_FIN}"); a("v_lshlrev_b32 v45, 4, v46"); a(f"v_add_u32 v40, {sT0}, v45")
        self.poll([(8, 4, "v42", None, 0)], sleep=1)
        self.allreduceN("v_add_f32", [(f"v{8+c}", f"v{12+c}") for c in range(4)], ["r8", "p16", "p32"])
        a(f"v_pk_fma_f32 v[{FX}:{FX+1}], v[8:9], v[{FGA}:{FGA+1}], v[{FX}:{FX+1}]"); a(f"v_pk_fma_f32 v[{FX+2}:{FX+3}], v[10:11], v[{FGA+2}:{FGA+3}], v[{FX+2}:{FX+3}]")
        self.set_srd(SRD_B, sOUT, size=1152)
        a("s_lshl_b32 s15, s14, 6"); a("v_lshlrev_b32 v49, 1, v46")
        self.stamp(3, "fine")
        self.poll([(8, 4, "v43", None, 0), (12, 4, "v43", 8*2304, 0), (16, 4, "v43", 16*2304, 0), (20, 4, "v43", 24*2304, 0), (24, 4, "v44", None, 0)], presleep=p.PS_OUT, sleep=p.SL_OUT)
        a(f"v_cmp_gt_u32 vcc, 32, {vLANE}")
        self.sum_rows4([8, 12, 16, 20])
        for c in range(4): a(f"v_cndmask_b32 v{24+c}, 0, v{24+c}, vcc")
        self.sum_rows4([8, 24])
        self.allreduceN("v_add_f32", [(f"v{8+c}", f"v{12+c}") for c in range(4)], ["r8", "p16", "p32"])
        self.setexec(0xFF)
        a("ds_write_b128 v40, v[8:11]")
        a("s_mov_b64 exec, -1")
        a("s_waitcnt lgkmcnt(0)")
        a("s_barrier")
        a(f"s_cmp_lg_u32 {sHW}, 0"); a("s_cbranch_scc1 L_hexit")
        self.setexec(0xFF)
        for w in range(4): a(f"ds_read_b128 v[{8+4*w}:{11+4*w}], v45 offset:{L_FIN + 128*w}")
        a("s_waitcnt lgkmcnt(0)")
        self.sum_rows4([8, 12, 16, 20])
        a(f"v_pk_fma_f32 v[8:9], v[8:9], v[{FGB}:{FGB+1}], v[{FX}:{FX+1}]"); a(f"v_pk_fma_f32 v[10:11], v[10:11], v[{FGB+2}:{FGB+3}], v[{FX+2}:{FX+3}]")
        a("v_cvt_pk_bf16_f32 v12, v8, v9"); a("v_cvt_pk_bf16_f32 v13, v10, v11")
        a(f"buffer_store_short v12, v49, {srd(SRD_B)}, s15 offen"); a(f"buffer_store_short_d16_hi v12, v49, {srd(SRD_B)}, s15 offen offset:16")
        a(f"buffer_store_short v13, v49, {srd(SRD_B)}, s15 offen offset:32"); a(f"buffer_store_short_d16_hi v13, v49, {srd(SRD_B)}, s15 offen offset:48")
        self.stamp(7)
        a("s_cmp_lg_u32 s14, 0"); a("s_cbranch_scc1 L_hexit")
        a("s_mov_b64 exec, 1")
        a(f"v_mov_b32 v8, {sTAG}")
        a(f"buffer_store_dword v8, off, {srd(SRD_WS)}, 0 sc1")
        a("s_branch L_hexit")
        a.label("L_wo")
        a(f"s_and_b32 {sR0}, {sTK}, 7"); a(f"s_lshr_b32 {sR1}, {sTK}, 3")
        a(f"s_lshl_b32 {sT2}, {sR1}, 7")
        self.set_srd(SRD_A, sWO, off=sT2, size_minus_off=4096 * 1152)
        a(f"s_lshl_b32 {sR2}, {sR0}, 2"); a(f"s_add_u32 {sR2}, {sR2}, {sHW}")
        a(f"s_lshl_b32 {sT0}, {sR2}, 7")
        a(f"v_lshrrev_b32 v1, 3, {vLANE}"); a(f"v_add_u32 v1, {sT0}, v1"); a("v_mul_u32_u24 v1, 1152, v1")
        a(f"v_and_b32 v2, 7, {vLANE}"); a("v_lshl_add_u32 v1, v2, 4, v1")
        self.lds_spin(L_WCNT, target=4, sleep=1)
        self.stamp(5)
        a(f"s_mov_b32 {sT0}, 0")
        for t in range(16):
            a(f"buffer_load_dwordx4 a[{96+4*t}:{99+4*t}], v1, {srd(SRD_A)}, {sT0} offen nt")
            if t < 15: a(f"s_add_u32 {sT0}, {sT0}, 9216")
        a(f"s_mul_i32 s4, {sR2}, {8*OSLOT}"); a("s_add_u32 s4, s4, " + str(WS_O))
        a(f"s_mul_i32 {sT0}, {sR0}, 2304"); a(f"s_lshl_b32 {sT1}, {sR1}, 8"); a(f"s_add_u32 {sT0}, {sT0}, {sT1}"); a(f"s_add_u32 s5, {sT0}, {WS_ATT}")
        a(f"v_and_b32 v41, 7, {vLANE}"); a(f"v_mul_u32_u24 v41, {OSLOT}, v41")
        a(f"v_lshlrev_b32 v40, 3, {vLANE}")
        a(f"v_and_b32 v8, 3, {vLANE}"); a("v_mul_u32_u24 v8, 160, v8"); a(f"v_lshrrev_b32 v42, 2, {vLANE}"); a("v_lshl_add_u32 v42, v42, 2, v8")
        a(f"s_mul_i32 {sT0}, {sHW}, {TBLW}"); a(f"s_add_u32 {sT0}, {sT0}, {L_TBL}"); a(f"v_add_u32 v42, {sT0}, v42")
        self.taddr_r("v43", 20)
        self.dpiece_addr("v44", "v8", L_PART, 256)
        a(f"v_lshlrev_b32 v45, 4, {vLANE}")
        a("s_add_u32 s15, s4, 3200")
        self.poll([(8, 4, "v41", "s4", 512)], sleep=4, strong=(0,))
        a(f"v_and_b32 v8, {sFFFF0000}, v8")
        a("v_mov_b32 v10, v8")
        self.allreduce("v_max_f32", "v10", "v11", ["q1", "q2", "hm"])
        a("v_sub_f32 v11, v8, v10"); a(f"v_mul_f32 v11, 0x{LOG2E:08x}, v11"); a("v_exp_f32 v11, v11")
        a("v_mul_f32 v12, v11, v9")
        self.allreduce("v_add_f32", "v12", "v13", ["q1", "q2", "hm"])
        a("v_rcp_f32 v12, v12"); a("v_mul_f32 v11, v11, v12")
        for s_ in range(8): a(f"v_mov_b32_dpp v{48+s_}, v11 row_newbcast:{s_} row_mask:0xf bank_mask:0xf")
        a("s_setprio 3")
        if p.CGATE_O: self.cnt_gate(p.CTGT_O, p.PS_O)
        self.poll([(8 + 2 * s_, 2, "v40", "s4" if s_ < 6 else "s15", s_ * OSLOT if s_ < 6 else (s_ - 5) * OSLOT) for s_ in range(8)], sleep=p.SL_O)
        self.stamp(6, "wo")
        a("v_pk_mul_f32 v[24:25], v[8:9], v[48:49] op_sel_hi:[1,0]")
        a("v_pk_mul_f32 v[26:27], v[10:11], v[48:49] op_sel:[0,1]")
        for s_ in range(2, 8):
            d = 24 + 2 * (s_ & 1); w = 48 + (s_ & ~1)
            sel = "op_sel_hi:[1,0,1]" if (s_ & 1) == 0 else "op_sel:[0,1,0]"
            a(f"v_pk_fma_f32 v[{d}:{d+1}], v[{8+2*s_}:{9+2*s_}], v[{w}:{w+1}], v[{d}:{d+1}] {sel}")
        self.pk_add(24, 24, 26)
        a("v_cvt_pk_bf16_f32 v24, v24, v24"); a("v_cvt_pk_bf16_f32 v25, v25, v25")
        a("ds_write_b32 v42, v24"); a("ds_write_b32 v42, v25 offset:80")
        self.tread(16, 4, "v43")
        self.gemv(16, 96, list(range(16, 32)), 36)
        self.setexec(self.VALID); a("ds_write_b128 v44, v[36:39]"); a("s_mov_b64 exec, -1")
        a("s_waitcnt lgkmcnt(0)")
        a("s_barrier")
        a(f"s_cmp_lg_u32 {sHW}, 0"); a("s_cbranch_scc1 L_wo_done")
        self.setexec(0xFFFF)
        for k in range(8): a(f"ds_read_b128 v[{8+4*k}:{11+4*k}], v45 offset:{L_PART + 256*k}")
        a("s_waitcnt lgkmcnt(0)")
        self.sum_rows4([8 + 4 * k for k in range(8)])
        for c in range(4): a(f"v_bfi_b32 v{8+c}, {sFF}, {vTAG}, v{8+c}")
        a(f"buffer_store_dwordx4 v[8:11], v45, {srd(SRD_WS)}, s5 offen sc1")
        a("s_mov_b64 exec, -1")
        self.stamp(1, "wo")
        a.label("L_wo_done")
        a(f"s_mov_b32 s14, {sTK}")
        down_prep()
        a("s_branch L_down")
        a.label("L_hexit")
        self.dump_stamps(extra=sTK)
        a("s_endpgm")

    def group_watch(self):
        a = self.a; p = self.p
        if not p.GSYNC: return
        a(f"s_cmp_lg_u32 {sHW}, 2"); a("s_cbranch_scc1 L_nogw")
        self.lds_spin(L_MLCNT, target=4, sleep=8)
        a(f"s_lshr_b32 {sT0}, s100, 3"); a(f"s_mul_i32 s4, {sT0}, {8*OSLOT}"); a("s_add_u32 s4, s4, " + str(WS_O))
        a(f"v_and_b32 v41, 7, {vLANE}"); a(f"v_mul_u32_u24 v41, {OSLOT}, v41")
        self.poll([(8, 4, "v41", "s4", 512)], active=0xFF, sleep=p.SL_GW, strong=(0,))
        a("s_mov_b64 exec, 1")
        a(f"v_mov_b32 v8, {L_GRP}"); a("v_mov_b32 v9, 1"); a("ds_write_b32 v8, v9")
        a("s_mov_b64 exec, -1")
        a.label("L_nogw")

    def read_ticket(self):
        a = self.a; L = a.uid("Ltk")
        a(f"s_cmp_lg_u32 {sHW}, 0"); a(f"s_cbranch_scc1 {L}")
        self.set_srd(SRD_B, sDBG, size=256)
        a("s_mov_b64 exec, 1")
        a("v_mov_b32 v8, 1")
        a(f"buffer_atomic_add v8, off, {srd(SRD_B)}, 0 sc0")
        a("s_waitcnt vmcnt(0)")
        a(f"v_add_u32 v8, 1, v8"); a(f"v_mov_b32 v9, {L_TICK}"); a("ds_write_b32 v9, v8")
        a("s_mov_b64 exec, -1")
        a.label(L)
        self.lds_spin(L_TICK, target=1, sleep=1)
        a(f"s_sub_u32 s63, {sT3}, 1")

    def cnt_gate(self, target, presleep):
        a = self.a; L = a.uid("Lcg"); E = a.uid("Lcge")
        self.set_srd(SRD_B, sDBG, size=256)
        a(f"s_mov_b32 {sSPIN}, 0")
        a.label(L)
        a(f"buffer_load_dword v61, off, {srd(SRD_B)}, 0 sc1")
        a("s_waitcnt vmcnt(0)")
        a(f"v_readfirstlane_b32 {sT3}, v61")
        a(f"s_cmp_ge_u32 {sT3}, {target}"); a(f"s_cbranch_scc1 {E}")
        a("s_sleep 6")
        a(f"s_add_u32 {sSPIN}, {sSPIN}, 1"); a(f"s_cmp_lt_u32 {sSPIN}, {SPIN_MAX}"); a(f"s_cbranch_scc1 {L}")
        a.label(E)
        n = presleep
        while n > 0:
            a(f"s_sleep {min(n, 127)}"); n -= 127

    def lane6_reduce(self, regs, T):
        a = self.a
        a(f"v_and_b32 v{T}, 7, {vLANE}"); a(f"v_cmp_gt_u32 vcc, 6, v{T}")
        for r in regs: a(f"v_cndmask_b32 v{r}, 0, v{r}, vcc")
        self.allreduceN("v_add_f32", [(f"v{r}", f"v{T}") for r in regs], ["q1", "q2", "hm"])

    def build(self):
        self.prologue(); self.swave(); self.hwave()
        self.a.label("L_exit"); self.a("s_endpgm")
        return autonop(self.a.lines)

HEADER = open("adaLN_cond__mha_block_cached__glu_gated_glu__decode.s.ref").read().split("; Override launch geometry")[0]

def make(p=P):
    body = Gen(p).build()
    txt = HEADER + "; Override launch geometry by editing the next line (default: block=256,\n; grid=ceil(out_elems/256), lds=0). Harness parses it; keep it on one line.\n"
    txt += f"; @launch grid=(256,1,1) block=(512,1,1) lds={LDS_BYTES}\n"
    txt += f""".amdgcn_target "amdgcn-amd-amdhsa--gfx950"
.text
.globl {KNAME}
.p2align 8
.type {KNAME},@function
{KNAME}:
"""
    txt += "\n".join(("" if l.endswith(":") else "    ") + l for l in body) + "\n"
    txt += f""".section .rodata,"a"
.p2align 6
.amdhsa_kernel {KNAME}
  .amdhsa_next_free_vgpr 256
  .amdhsa_next_free_sgpr 102
  .amdhsa_accum_offset {NVGPR}
  .amdhsa_group_segment_fixed_size 0
  .amdhsa_kernarg_size 112
  .amdhsa_user_sgpr_count 2
  .amdhsa_user_sgpr_kernarg_segment_ptr 1
  .amdhsa_system_sgpr_workgroup_id_x 1
.end_amdhsa_kernel
"""
    return txt

def report_h(pr, hw, mode, dyn=True):
    if not dyn:
        u = hw[72:252]
        if mode == "fine":
            pr("late trigger", u[:, :, 5]); pr("unit: C done", u[:, :, 1]); pr("unit: attn gathered", u[:, :, 6]); pr("unit: G published", u[:, :, 2])
            pr("down: G gathered", hw[72:216, :, 3]); pr("down: published", hw[72:216, :3, 7]); pr("fin: x1", hw[216:234, :, 3]); pr("fin: done", hw[216:234, 0, 7])
        elif mode == "fin":
            f = hw[216:234]
            pr("down: published", hw[72:216, :3, 7]); pr("down: store acked", hw[72:216, :3, 6]); pr("fin: OUT gathered", f[:, :, 1]); pr("fin: before barrier", f[:, :, 2]); pr("fin: after barrier", f[:, :, 3]); pr("fin: done", f[:, 0, 7])
        elif mode == "wo":
            w = hw[:72]; pr("wo: gathered", w[:, :, 6]); pr("wo: barrier passed", w[:, :, 3]); pr("wo: published", w[:, 0, 7])
        return
    if mode == "pre":
        qs = hw[:192, 0]; mc = hw[192:246, 0]; mn = hw[72:180, 1]
        pr("q gathered (H3)", hw[:, 3, 4])
    elif mode == "wo":
        w = hw[:72]
        pr("wo: trigger", w[:, :, 5]); pr("wo: gathered", w[:, :, 6]); pr("wo: published", w[:, 0, 1])
    elif mode == "fine":
        u = hw[72:234]
        pr("ticket known", hw[:234, :, 4]); pr("ticket W", hw[:72, :, 4]); pr("ticket D", hw[72:126, :, 4]); pr("ticket S", hw[126:234, :, 4])
        pr("unit trigger", u[:, :, 5]); pr("unit: C done D", hw[72:126, :, 1]); pr("unit: C done S", hw[126:234, :, 1]); pr("unit: attn gathered D", hw[72:126, :, 6]); pr("unit: attn gathered S+dn", hw[126:198, :, 6]); pr("unit: attn gathered S", hw[198:234, :, 6])
        pr("G published D", hw[72:126, :, 2]); pr("G published S+dn", hw[126:198, :, 2]); pr("G published S", hw[198:234, :, 2])
        print("   attn gathered by wave:", [round(float(u[:, w, 6].mean()), 2) for w in range(4)], "max", [round(float(u[:, w, 6].max()), 2) for w in range(4)])
        late = np.argsort(u[:, :, 6].max(1))[-6:]; print("   latest attn gathers (ticket, times, Cdone):", [(int(72 + k), u[k, :, 6].round(2).tolist(), u[k, :, 1].round(2).tolist()) for k in late])
        dn = np.concatenate([hw[:72], hw[126:198]])
        pr("down: G gathered", dn[:, :, 3]); pr("down: published", dn[:, :3, 7]); pr("fin: x1", hw[72:90, :, 3]); pr("fin: done", hw[72:90, 0, 7])
    else:
        u = hw[72:234]
        pr("unit trigger", u[:, :, 5]); pr("unit: attn gathered", u[:, :, 6]); pr("fin: done", hw[72:90, 0, 7])
def end_time(hw, dyn=True): return hw[72:90, 0, 7].max() if dyn else hw[216:234, 0, 7].max()
def order_h(hw, tickets):
    o = np.argsort(tickets, kind="stable")
    return hw[o]
import numpy as np

if __name__ == "__main__":
    out = sys.argv[1] if len(sys.argv) > 1 else "adaLN_cond__mha_block_cached__glu_gated_glu__decode.s"
    open(out, "w").write(make())
    print("wrote", out)
```

```python
import sys
from asmlib import Asm, autonop

KNAME = "adaLN_cond__mha_block_cached__glu_gated_glu__decode_kernel"

WS_EPOCH = 0
WS_O = 0x10000
OSLOT = 640
WS_ATT = 0x40000
WS_MOD = 0x80000
WS_Q = 0x90000
WS_OUT = 0xA0000
WS_G = 0x100000
WS_C = 0x140000
WS_ST = 0x1B0000
WS_DBG = 0x200000
WS_SIZE = 0x300000

L_QFLAG = 0
L_WCNT = 4
L_MLCNT = 8
L_OCNT = 12
L_TICK = 16
L_GRP = 20
L_W2 = 24
L_GO = 28
L_SENT = 32
L_Q = 0x40
L_ML = 0x180
L_STAT = 0x1C0
L_TBL = 0x200
TBLW = 768
L_PART = 0x1000
L_OPART = 0x1800
L_FIN = 0x2000
L_DOWN = 0x3000
L_KRING = 0x8000
LDS_BYTES = 0x8000 + 4 * 24 * 1024

LOG2E = 0x3FB8AA3B
SCALE = 0x3DB504F3
SPIN_MAX = 200000
NVGPR = 96

class P:
    R = 44
    D = 5
    NP = 44
    STAMPS = False
    MODE = "tail"
    QSLEEP = 16
    WTRIG = 'done'
    FULLCHECK = False
    LATEMOD = False
    WOEARLY = True
    MAP2 = False
    WOLATE = True
    DYN = False
    DOWNAFTERC = False
    LPACE = 0
    LPACE_T = 150
    NOTAIL = False
    MAPKV = 0
    DBLEARLY = True
    CMERGE = True
    GSYNC = 0
    MLAT = 12
    SL_GW = 8
    TKAT = 1
    SL_C = 2
    SL_O = 0
    CGATE = False
    CTGT = 256
    PS_ATT = 60
    CGATE_O = False
    CTGT_O = 256
    PS_O = 10
    SL_ATT = 0
    SL_G = 0
    SL_OUT = 0
    KVPOL = 'nt'
    WPOL = 'nt'
    DOWNLATER = True
    WOTGT = 4
    WOAT = 0
    TOUTDBG = False
    SENT_ATT = 8
    SENT1 = False
    AD_O = None
    STREP = False
    SL_FA = 1
    SENT_K = 0
    GT = 0
    GT_W = False
    GSL = 8
    DUP_G = 0
    DUP_OUT = 0
    DUP_O = 0
    UEARLY = False
    UPACE = 2
    UAT = 0
    PRETOUCH = False
    HPRIO0 = 1
    HDELAY = 0
    KLDS = True
    PS_A = 60
    SL_A = 16
    PS_QG = 240
    PS_G = 0
    PS_OUT = 0
    PS_Q = 0
    DEND = 10
    DENDAT = 32
    D2 = 0
    NEARLY = 0
    EPACE = 1
    WTHR = 0
    SPRIO = 2
    WOPACE = 2

def f32hex(x):
    import struct
    return "0x%08x" % struct.unpack("<I", struct.pack("<f", x))[0]

sWAVE = "s3"
sX, sK, sV, sWQ, sWO, sWG, sWU, sWD, sC, sWM, sOUT, sDBG, sWS = 16, 18, 20, 22, 24, 28, 30, 32, 34, 36, 38, 40, 42
SRD_A, SRD_B, SRD_WS, SRD_C = 44, 48, 52, 56
sTAG = "s64"
sT0, sT1, sT2, sT3 = "s65", "s66", "s67", "s68"
sSPIN = "s69"
sSAVE = 72
sHW = "s76"
sR0, sR1, sR2, sR3 = "s77", "s78", "s79", "s83"
sFFFF0000 = "s80"
sFF = "s81"
sSTAMP = 84
def srd(b): return f"s[{b}:{b+3}]"
def sp(b): return f"s[{b}:{b+1}]"
vLANE = "v3"
vM = [4, 5, 6, 7]
vTAG = "v60"
FULL = (1 << 64) - 1
def lanes(n): return (1 << n) - 1

class Gen:
    def __init__(self, p=P):
        self.a = Asm(); self.p = p

    def mask64(self, sreg, val):
        self.a(f"s_mov_b32 s{sreg}, 0x{val & 0xffffffff:08x}"); self.a(f"s_mov_b32 s{sreg+1}, 0x{(val >> 32) & 0xffffffff:08x}")
    def setexec(self, val):
        a = self.a
        if val == FULL: a("s_mov_b64 exec, -1")
        elif val <= 64: a(f"s_mov_b64 exec, {val}")
        elif val < (1 << 32): a(f"s_mov_b64 exec, 0x{val:x}")
        else:
            a(f"s_mov_b32 exec_lo, 0x{val & 0xffffffff:08x}"); a(f"s_mov_b32 exec_hi, 0x{(val >> 32) & 0xffffffff:08x}")
    def stamp(self, idx, mode="tail"):
        if self.p.STAMPS and (mode == self.p.MODE or mode == "all" or (mode == "tail" and self.p.MODE in ("fine", "fin", "wo"))):
            self.a(f"s_memrealtime s[{sSTAMP+2*idx}:{sSTAMP+2*idx+1}]")
    def dump_stamps(self, n=8, extra=None):
        if not self.p.STAMPS: return
        a = self.a
        a("s_waitcnt lgkmcnt(0)")
        a("s_mov_b64 exec, -1")
        a(f"s_lshl_b32 {sT0}, s2, 3"); a(f"s_add_u32 {sT0}, {sT0}, {sWAVE}"); a(f"s_lshl_b32 {sT0}, {sT0}, 7")
        a(f"s_add_u32 {sT0}, {sT0}, {WS_DBG}")
        for i in range(2 * n): a(f"v_writelane_b32 v8, s{sSTAMP+i}, {i}")
        if extra: a(f"v_writelane_b32 v8, {extra}, 16")
        a(f"v_lshlrev_b32 v9, 2, {vLANE}")
        a("s_mov_b64 exec, 0x1ffff")
        a(f"buffer_store_dword v8, v9, {srd(SRD_WS)}, {sT0} offen")
    def tout(self, site):
        if not self.p.TOUTDBG: return
        a = self.a
        self.site = getattr(self, "site", 0) + 1
        self.sites = getattr(self, "sites", {}); self.sites[self.site] = site
        a("s_mov_b64 s[96:97], exec"); a("s_mov_b64 exec, 1")
        a(f"s_lshl_b32 s98, s2, 3"); a(f"s_add_u32 s98, s98, {sWAVE}"); a("s_lshl_b32 s98, s98, 2"); a(f"s_add_u32 s98, s98, {WS_DBG + 0x10000}")
        a(f"v_mov_b32 v63, {self.site}")
        a(f"buffer_store_dword v63, off, {srd(SRD_WS)}, s98 sc1")
        a("s_mov_b64 exec, s[96:97]")
    def lds_spin(self, addr, target=1, vtmp="v61", vaddr="v62", sleep=1):
        a = self.a; L = a.uid("Lspin"); E = a.uid("Lspun")
        a(f"v_mov_b32 {vaddr}, {addr}")
        a(f"s_mov_b32 {sSPIN}, 0")
        a.label(L)
        a(f"ds_read_b32 {vtmp}, {vaddr}")
        a("s_waitcnt lgkmcnt(0)")
        a(f"v_readfirstlane_b32 {sT3}, {vtmp}")
        a(f"s_cmp_ge_u32 {sT3}, {target}")
        a(f"s_cbranch_scc1 {E}")
        if sleep: a(f"s_sleep {sleep}")
        a(f"s_add_u32 {sSPIN}, {sSPIN}, 1")
        a(f"s_cmp_lt_u32 {sSPIN}, {SPIN_MAX * 4}")
        a(f"s_cbranch_scc1 {L}")
        self.tout(f"lds_spin addr={addr} target={target}")
        a.label(E)
    def lds_add1(self, addr, va, vb):
        a = self.a
        a("s_mov_b64 exec, 1")
        a(f"v_mov_b32 {va}, {addr}"); a(f"v_mov_b32 {vb}, 1"); a(f"ds_add_u32 {va}, {vb}")
        a("s_mov_b64 exec, -1")
    def poll(self, loads, active=None, sleep=0, tmps=("v61", "v62", "v63"), presleep=0, strong=(), adapt=None):
        a = self.a; L = a.uid("Lpoll"); E = a.uid("Lpolled")
        t0, t1, t2 = tmps
        sMISS = "s70"
        if active is not None: self.setexec(active)
        if presleep: a(f"s_sleep {presleep}")
        n = len(loads)
        def issue(ld):
            (dst, k, voff, soff, imm) = ld
            op = {1: "buffer_load_dword", 2: "buffer_load_dwordx2", 4: "buffer_load_dwordx4"}[k]
            r = f"v{dst}" if k == 1 else f"v[{dst}:{dst+k-1}]"
            if soff is not None and not str(soff).startswith("s"):
                a(f"s_mov_b32 {sT3}, {soff}"); so = sT3
            else: so = soff if soff is not None else "0"
            a(f"{op} {r}, {voff}, {srd(SRD_WS)}, {so} offen offset:{imm} sc1")
        def test(li, ld):
            if li in strong or self.p.FULLCHECK:
                a(f"v_xor_b32 {t0}, {vTAG}, v{ld[0]}")
                k = 1
                while k < ld[1]:
                    if k + 1 < ld[1]:
                        a(f"v_xor_b32 {t1}, {vTAG}, v{ld[0]+k}"); a(f"v_xor_b32 {t2}, {vTAG}, v{ld[0]+k+1}"); a(f"v_or3_b32 {t0}, {t0}, {t1}, {t2}"); k += 2
                    else:
                        a(f"v_xor_b32 {t1}, {vTAG}, v{ld[0]+k}"); a(f"v_or_b32 {t0}, {t0}, {t1}"); k += 1
                a(f"v_cmp_ne_u32_sdwa vcc, 0, {t0} src0_sel:DWORD src1_sel:BYTE_0") if False else (a(f"v_and_b32 {t0}, 0xff, {t0}"), a(f"v_cmp_ne_u32 vcc, 0, {t0}"))
            else:
                a(f"v_cmp_ne_u32_sdwa vcc, {vTAG}, v{ld[0]} src0_sel:BYTE_0 src1_sel:BYTE_0")
        if n == 1:
            a(f"s_mov_b32 {sSPIN}, 0")
            a.label(L)
            issue(loads[0]); a("s_waitcnt vmcnt(0)")
            test(0, loads[0])
            a(f"s_cbranch_vccz {E}")
            if sleep: a(f"s_sleep {sleep}")
            a(f"s_add_u32 {sSPIN}, {sSPIN}, 1"); a(f"s_cmp_lt_u32 {sSPIN}, {SPIN_MAX}"); a(f"s_cbranch_scc1 {L}")
            self.tout(f"poll1 {loads[0]}")
            a.label(E)
            return
        for ld in loads: issue(ld)
        a(f"s_mov_b32 {sMISS}, 0")
        for li, ld in enumerate(loads):
            Lk = a.uid("Lk")
            a(f"s_waitcnt vmcnt({n-1-li})")
            test(li, ld)
            a(f"s_cbranch_vccz {Lk}")
            a(f"s_bitset1_b32 {sMISS}, {li}")
            a.label(Lk)
        a(f"s_cmp_eq_u32 {sMISS}, 0"); a(f"s_cbranch_scc1 {E}")
        a(f"s_mov_b32 {sSPIN}, 0")
        a.label(L)
        if sleep: a(f"s_sleep {sleep}")
        if adapt:
            Lk = a.uid("La")
            a(f"s_bcnt1_i32_b32 {sT3}, {sMISS}"); a(f"s_cmp_lt_u32 {sT3}, {adapt[0]}"); a(f"s_cbranch_scc1 {Lk}")
            a(f"s_sleep {adapt[1]}"); a.label(Lk)
        for li, ld in enumerate(loads):
            Lk = a.uid("Ls")
            a(f"s_bitcmp1_b32 {sMISS}, {li}"); a(f"s_cbranch_scc0 {Lk}")
            issue(ld); a.label(Lk)
        a("s_waitcnt vmcnt(0)")
        for li, ld in enumerate(loads):
            Lk = a.uid("Lt")
            a(f"s_bitcmp1_b32 {sMISS}, {li}"); a(f"s_cbranch_scc0 {Lk}")
            test(li, ld)
            a(f"s_cbranch_vccnz {Lk}")
            a(f"s_bitset0_b32 {sMISS}, {li}")
            a.label(Lk)
        a(f"s_cmp_eq_u32 {sMISS}, 0"); a(f"s_cbranch_scc1 {E}")
        a(f"s_add_u32 {sSPIN}, {sSPIN}, 1"); a(f"s_cmp_lt_u32 {sSPIN}, {SPIN_MAX}"); a(f"s_cbranch_scc1 {L}")
        self.tout(f"pollN n={n} first={loads[0]}")
        a.label(E)
    def poll_dup(self, loads, bdst, gap, active=None, strong=(), tmps=("v61", "v62", "v63")):
        a = self.a; L = a.uid("Lpd"); E = a.uid("Lpde"); B = a.uid("Lpdb")
        t0, t1, t2 = tmps
        if active is not None: self.setexec(active)
        n = len(loads)
        def issue(ld, dst):
            (_, k, voff, soff, imm) = ld
            op = {1: "buffer_load_dword", 2: "buffer_load_dwordx2", 4: "buffer_load_dwordx4"}[k]
            r = f"v{dst}" if k == 1 else f"v[{dst}:{dst+k-1}]"
            if soff is not None and not str(soff).startswith("s"):
                a(f"s_mov_b32 {sT3}, {soff}"); so = sT3
            else: so = soff if soff is not None else "0"
            a(f"{op} {r}, {voff}, {srd(SRD_WS)}, {so} offen offset:{imm} sc1")
        def test(dsts):
            regs = []
            for li, (ld, d) in enumerate(zip(loads, dsts)):
                regs += [d + k for k in range(ld[1])] if li in strong else [d]
            a(f"v_xor_b32 {t0}, {vTAG}, v{regs[0]}")
            k = 1
            while k < len(regs):
                if k + 1 < len(regs):
                    a(f"v_xor_b32 {t1}, {vTAG}, v{regs[k]}"); a(f"v_xor_b32 {t2}, {vTAG}, v{regs[k+1]}"); a(f"v_or3_b32 {t0}, {t0}, {t1}, {t2}"); k += 2
                else:
                    a(f"v_xor_b32 {t1}, {vTAG}, v{regs[k]}"); a(f"v_or_b32 {t0}, {t0}, {t1}"); k += 1
            a(f"v_cmp_ne_u32_sdwa vcc, 0, {t0} src0_sel:DWORD src1_sel:BYTE_0")
        adst = [ld[0] for ld in loads]
        a(f"s_mov_b32 {sSPIN}, 0")
        a.label(L)
        for ld in loads: issue(ld, ld[0])
        a(f"s_sleep {gap}")
        for ld, d in zip(loads, bdst): issue(ld, d)
        a(f"s_waitcnt vmcnt({n})")
        test(adst)
        a(f"s_cbranch_vccz {E}")
        a("s_waitcnt vmcnt(0)")
        test(bdst)
        a(f"s_cbranch_vccz {B}")
        a(f"s_add_u32 {sSPIN}, {sSPIN}, 1"); a(f"s_cmp_lt_u32 {sSPIN}, {SPIN_MAX}"); a(f"s_cbranch_scc1 {L}")
        a.label(B)
        for ld, d in zip(loads, bdst):
            for k in range(ld[1]): a(f"v_mov_b32 v{ld[0]+k}, v{d+k}")
        a.label(E)

    def bf16_round(self, dst, src, tmp):
        self.a(f"v_cvt_pk_bf16_f32 {tmp}, {src}, {src}"); self.a(f"v_lshlrev_b32 {dst}, 16, {tmp}")
    def bf16_round2(self, d0, d1, s0, s1, tmp):
        a = self.a
        a(f"v_cvt_pk_bf16_f32 {tmp}, {s0}, {s1}"); a(f"v_lshlrev_b32 {d0}, 16, {tmp}"); a(f"v_and_b32 {d1}, {sFFFF0000}, {tmp}")
    def allreduce(self, op, v, t, steps):
        self.allreduceN(op, [(v, t)], steps)
    def allreduceN(self, op, vts, steps):
        a = self.a
        dpp = {"q1": "quad_perm:[1,0,3,2]", "q2": "quad_perm:[2,3,0,1]", "hm": "row_half_mirror", "r4": "row_ror:4", "r8": "row_ror:8"}
        for s in steps:
            if s in dpp:
                for (v, t) in vts: a(f"{op}_dpp {v}, {v}, {v} {dpp[s]} row_mask:0xf bank_mask:0xf")
            else:
                ins = "v_permlane16_swap_b32" if s == "p16" else "v_permlane32_swap_b32"
                for (v, t) in vts: a(f"v_mov_b32 {t}, {v}")
                for (v, t) in vts: a(f"{ins} {v}, {t}")
                for (v, t) in vts: a(f"{op} {v}, {v}, {t}")
    def pk_add(self, d, x, y): self.a(f"v_pk_add_f32 v[{d}:{d+1}], v[{x}:{x+1}], v[{y}:{y+1}]")
    def sum_rows4(self, bases):
        b = list(bases)
        while len(b) > 1:
            nb = []
            for i in range(0, len(b) - 1, 2):
                self.pk_add(b[i], b[i], b[i+1]); self.pk_add(b[i] + 2, b[i] + 2, b[i+1] + 2); nb.append(b[i])
            if len(b) % 2: nb.append(b[-1])
            b = nb
    def gemv(self, ntiles, abase, xx, D, bsets=(8, 12), waits=None):
        a = self.a
        def mkB(t):
            b = bsets[t & 1]
            for r in range(4): a(f"v_and_b32 v{b+r}, v{xx[t]}, v{vM[r]}")
        mkB(0)
        for t in range(ntiles):
            if t + 1 < ntiles: mkB(t + 1)
            if waits and t in waits: a(f"s_waitcnt vmcnt({waits[t]})")
            b = bsets[t & 1]
            c = "0" if t == 0 else f"v[{D}:{D+3}]"
            a(f"v_mfma_f32_16x16x32_bf16 v[{D}:{D+3}], a[{abase+4*t}:{abase+4*t+3}], v[{b}:{b+3}], {c}")
    def taddr_w(self, vaddr, vt, TS):
        a = self.a
        a(f"v_and_b32 {vt}, 1, {vLANE}"); a(f"v_mul_u32_u24 {vt}, {TS*16}, {vt}")
        a(f"v_lshrrev_b32 {vaddr}, 1, {vLANE}"); a(f"v_lshl_add_u32 {vaddr}, {vaddr}, 2, {vt}")
        a(f"s_mul_i32 {sT0}, {sHW}, {TBLW}"); a(f"s_add_u32 {sT0}, {sT0}, {L_TBL}")
        a(f"v_add_u32 {vaddr}, {sT0}, {vaddr}")
    def taddr_r(self, vaddr, TS):
        a = self.a
        a(f"v_lshrrev_b32 {vaddr}, 3, {vLANE}"); a(f"v_mul_u32_u24 {vaddr}, {TS*4}, {vaddr}")
        a(f"s_mul_i32 {sT0}, {sHW}, {TBLW}"); a(f"s_add_u32 {sT0}, {sT0}, {L_TBL}")
        a(f"v_add_u32 {vaddr}, {sT0}, {vaddr}")
    def twrite4(self, regs, vaddr, TS):
        for k in range(4): self.a(f"ds_write_b32 {vaddr}, v{regs[k]} offset:{k*TS*4}")
    def tread(self, first, nb128, vaddr):
        a = self.a
        for i in range(nb128): a(f"ds_read_b128 v[{first+4*i}:{first+4*i+3}], {vaddr} offset:{16*i}")
        a("s_waitcnt lgkmcnt(0)")
    VALID = 0xFF00FF0000FF00FF
    def paddr(self, vaddr, vt, base, rowlen):
        a = self.a
        a(f"v_lshrrev_b32 {vaddr}, 5, {vLANE}"); a(f"v_mul_u32_u24 {vaddr}, {rowlen*4}, {vaddr}")
        a(f"v_bfe_u32 {vt}, {vLANE}, 4, 1"); a(f"v_lshl_add_u32 {vaddr}, {vt}, 7, {vaddr}")
        a(f"v_and_b32 {vt}, 7, {vLANE}"); a(f"v_lshl_add_u32 {vaddr}, {vt}, 2, {vaddr}")
        a(f"s_mul_i32 {sT0}, {sHW}, {2*rowlen*4}"); a(f"s_add_u32 {sT0}, {sT0}, {base}")
        a(f"v_add_u32 {vaddr}, {sT0}, {vaddr}")
    def pwrite(self, D, vaddr, off=0):
        for r in range(4): self.a(f"ds_write_b32 {vaddr}, v{D+r} offset:{off + r*32}")
    def sigmoid(self, dst, v, t):
        a = self.a
        a(f"v_mul_f32 {t}, 0x{(LOG2E | 0x80000000):08x}, {v}"); a(f"v_exp_f32 {t}, {t}")
        a(f"v_add_f32 {t}, 1.0, {t}"); a(f"v_rcp_f32 {dst}, {t}")
    def unpack4(self, dst, src):
        a = self.a
        a(f"v_lshlrev_b32 v{dst}, 16, v{src}"); a(f"v_and_b32 v{dst+1}, {sFFFF0000}, v{src}")
        a(f"v_lshlrev_b32 v{dst+2}, 16, v{src+1}"); a(f"v_and_b32 v{dst+3}, {sFFFF0000}, v{src+1}")
    def round4(self, X, tmp):
        for k in (0, 2): self.bf16_round2(f"v{X+k}", f"v{X+k+1}", f"v{X+k}", f"v{X+k+1}", tmp)
    def set_srd(self, s, base, off=None, size=None, size_minus_off=None):
        a = self.a
        if off is None:
            a(f"s_mov_b32 s{s}, s{base}"); a(f"s_mov_b32 s{s+1}, s{base+1}")
        else:
            a(f"s_add_u32 s{s}, s{base}, {off}"); a(f"s_addc_u32 s{s+1}, s{base+1}, 0")
        if size_minus_off is not None: a(f"s_sub_u32 s{s+2}, {size_minus_off}, {off}")
        else: a(f"s_mov_b32 s{s+2}, {size}")
        a(f"s_mov_b32 s{s+3}, 0x20000")
    def div3(self, q, r, x):
        a = self.a
        a(f"s_mul_i32 {q}, {x}, 0x5556"); a(f"s_lshr_b32 {q}, {q}, 16")
        a(f"s_mul_i32 {r}, {q}, 3"); a(f"s_sub_u32 {r}, {x}, {r}")

    def prologue(self):
        a = self.a
        a("s_cmp_ge_u32 s2, 256"); a("s_cbranch_scc1 L_exit")
        self.stamp(0, "all")
        a("s_load_dwordx16 s[16:31], s[0:1], 0")
        a("s_load_dwordx8 s[32:39], s[0:1], 64")
        a("s_load_dwordx4 s[40:43], s[0:1], 96")
        a("v_lshrrev_b32 v1, 6, v0")
        a(f"v_and_b32 {vLANE}, 63, v0")
        a(f"v_readfirstlane_b32 {sWAVE}, v1")
        a(f"v_and_b32 v8, 1, {vLANE}"); a("v_cmp_eq_u32 vcc, 1, v8")
        a("v_mov_b32 v9, 0xffff"); a("v_mov_b32 v10, 0xffff0000")
        a("v_cndmask_b32 v9, v9, v10, vcc")
        a(f"v_bfe_u32 v8, {vLANE}, 1, 2")
        for r in range(4):
            a(f"v_cmp_eq_u32 vcc, {r}, v8"); a(f"v_cndmask_b32 v{vM[r]}, 0, v9, vcc")
        a(f"s_mov_b32 {sFFFF0000}, 0xffff0000"); a(f"s_mov_b32 {sFF}, 0xff")
        if self.p.MAPKV == 0: a("s_mov_b32 s100, s2")
        elif self.p.MAPKV == 1:
            a("s_and_b32 s100, s2, 31"); a("s_lshl_b32 s100, s100, 3"); a("s_lshr_b32 s101, s2, 5"); a("s_add_u32 s100, s100, s101")
        else:
            a("s_lshr_b32 s101, s2, 3"); a("s_xor_b32 s101, s101, s2"); a("s_and_b32 s101, s101, 7"); a("s_andn2_b32 s100, s2, 7"); a("s_or_b32 s100, s100, s101")
        a(f"s_lshl_b32 {sT0}, {sWAVE}, 10")
        a(f"v_lshrrev_b32 v8, 4, {vLANE}"); a("v_lshlrev_b32 v8, 6, v8")
        a(f"v_bfe_u32 v9, {vLANE}, 2, 2"); a("v_lshl_add_u32 v8, v9, 8, v8")
        a(f"v_and_b32 v9, 3, {vLANE}"); a("v_lshl_add_u32 v8, v9, 4, v8")
        a(f"v_add_u32 v1, {sT0}, v8")
        a(f"v_lshlrev_b32 v9, 4, {vLANE}"); a(f"v_add_u32 v2, {sT0}, v9")
        a(f"s_lshl_b32 {sT2}, s100, 18")
        a(f"s_cmp_ge_u32 {sWAVE}, 4")
        a("s_waitcnt lgkmcnt(0)")
        a("s_cbranch_scc1 L_helper")
    def common_setup(self):
        a = self.a
        a(f"s_load_dword {sTAG}, s[{sWS}:{sWS+1}], 0")
        self.set_srd(SRD_WS, sWS, size=WS_SIZE)
    def get_tag(self):
        a = self.a
        a("s_waitcnt lgkmcnt(0)")
        a(f"s_add_u32 {sTAG}, {sTAG}, 1")
        a(f"s_and_b32 {sT3}, {sTAG}, 0xff")
        a(f"v_mov_b32 {vTAG}, {sT3}")

    def swave(self):
        a = self.a; p = self.p
        R, D, NP = p.R, max(p.D, p.D2), p.NP
        Dlo = p.D
        vK, vV = "v1", "v2"
        B_T = 8; S = 24; DQ = (40, 44); DO = 48; T = 52
        vm, vl, vf = "v56", "v57", "v58"
        vOW, vPUB = "v64", "v65"
        self.set_srd(SRD_A, sK, off=sT2, size=0x40000)
        N = 128
        def slot(i):
            if p.KLDS:
                k = i if i < 64 else (i - 64) % 40
                return f"a[{4*k}:{4*k+3}]"
            k = i % R
            return f"a[{4*k}:{4*k+3}]" if k < 40 else f"v[{68+4*(k-40)}:{71+4*(k-40)}]"
        st = dict(issued=0)
        KL = p.KLDS
        RK = R if not KL else 40
        def issue(throttle=True):
            nonlocal D, Dlo
            i = st["issued"]
            if p.DEND and i >= 64 + p.DENDAT: D = Dlo = p.DEND
            if throttle and i >= Dlo and D != Dlo:
                L = a.uid("Lthr")
                a(f"s_cbranch_vccnz {L}"); a(f"s_waitcnt vmcnt({Dlo-1})"); a.label(L)
            if throttle and i >= D: a(f"s_waitcnt vmcnt({D-1})")
            a(f"s_mov_b32 {sT1}, {(i % 64) * 4096}")
            s_, v_ = (SRD_A, vK) if i < 64 else (SRD_B, vV)
            if KL and RK <= i < 64:
                a(f"s_add_u32 m0, s60, {(i - RK) * 1024}")
                a("s_nop 0")
                a(f"buffer_load_dwordx4 {v_}, {srd(s_)}, {sT1} offen {p.KVPOL} lds")
            else:
                a(f"buffer_load_dwordx4 {slot(i)}, {v_}, {srd(s_)}, {sT1} offen {p.KVPOL}")
            st["issued"] = i + 1
            if i == N - 1: self.lds_add1(L_WCNT, f"v{T}", f"v{T+1}")
            if (p.WOAT and i == 64 + p.WOAT) or (p.UAT and i == 64 + p.UAT): self.lds_add1(L_W2, f"v{T}", f"v{T+1}")
        def need(tile): a(f"s_waitcnt vmcnt({st['issued'] - 1 - tile})")
        if D != Dlo:
            a("s_mov_b64 vcc, 0"); a("s_cmp_lt_u32 s2, 72"); a("s_cbranch_scc1 L_vset"); a("s_cmp_ge_u32 s2, 216"); a("s_cbranch_scc1 L_vset")
            a("s_mov_b64 vcc, -1"); a.label("L_vset")
        self.stamp(3, "start")
        for _ in range(min(Dlo, NP)): issue(False)
        if p.SPRIO: a(f"s_setprio {p.SPRIO}")
        self.set_srd(SRD_B, sV, off=sT2, size=0x40000)
        self.common_setup()
        self.stamp(4, "start")
        a("s_barrier")
        self.stamp(5, "start")
        if p.STAMPS and p.MODE == "start":
            a(f"s_waitcnt vmcnt({D-1})"); self.stamp(6, "start")
        a(f"v_lshrrev_b32 v8, 4, {vLANE}"); a("v_lshlrev_b32 v8, 7, v8")
        a(f"v_and_b32 v9, 7, {vLANE}"); a("v_lshl_add_u32 v8, v9, 2, v8")
        a(f"s_lshl_b32 {sT0}, {sWAVE}, 9"); a(f"s_add_u32 {sT0}, {sT0}, {L_OPART}")
        a(f"v_add_u32 {vOW}, {sT0}, v8")
        a(f"v_lshlrev_b32 {vPUB}, 4, {vLANE}")
        if p.KLDS:
            a(f"s_mul_i32 s60, {sWAVE}, {24*1024}"); a(f"s_add_u32 s60, s60, {L_KRING}")
            a(f"v_lshlrev_b32 v66, 4, {vLANE}"); a("v_add_u32 v66, s60, v66")
        mT = [6, 8, 10, 12]; m1, m3, m23 = 14, 4, 62
        for t in range(4): self.mask64(mT[t], 0x000F000F000F000F << (4 * t))
        self.mask64(m1, 0x2222222222222222); self.mask64(m3, 0x8888888888888888); self.mask64(m23, 0xCCCCCCCCCCCCCCCC)
        while st["issued"] < (64 if p.KLDS else NP): issue()
        self.stamp(1, "all")
        self.get_tag()
        self.lds_spin(L_QFLAG)
        self.stamp(2, "all")
        a(f"v_lshrrev_b32 v{T}, 4, {vLANE}"); a(f"v_lshlrev_b32 v{T}, 6, v{T}")
        a(f"v_and_b32 v{T+1}, 3, {vLANE}"); a(f"v_lshl_add_u32 v{T}, v{T+1}, 4, v{T}")
        a(f"ds_read_b128 v[{T+4}:{T+7}], v{T} offset:{L_Q}")
        a("s_waitcnt lgkmcnt(0)")
        for t in range(4):
            for k in range(4): a(f"v_cndmask_b32 v{B_T+4*t+k}, 0, v{T+4+k}, {sp(mT[t])}")
        STG = (68, 84)
        def stage(g):
            b = 68
            for t in range(4):
                a(f"ds_read_b128 v[{b+4*t}:{b+4*t+3}], v66 offset:{(4*g+t-RK)*1024}")
        def qk_mfma(g):
            d = DQ[g & 1]
            lds = KL and 4 * g >= RK
            if lds: a("s_waitcnt lgkmcnt(0)")
            else: need(4 * g + 3)
            for t in range(4):
                c = "0" if t == 0 else f"v[{d}:{d+3}]"
                b = 68
                src = f"v[{b+4*t}:{b+4*t+3}]" if lds else slot(4*g+t)
                a(f"v_mfma_f32_16x16x32_bf16 v[{d}:{d+3}], {src}, v[{B_T+4*t}:{B_T+4*t+3}], {c}")
        def qk_post(g):
            d = DQ[g & 1]
            a(f"v_cndmask_b32 v{T}, v{d}, v{d+1}, {sp(m1)}")
            a(f"v_cndmask_b32 v{T+1}, v{d+2}, v{d+3}, {sp(m3)}")
            a(f"v_cndmask_b32 v{T}, v{T}, v{T+1}, {sp(m23)}")
            a(f"v_add_f32_dpp v{T+1}, v{T}, v{T} quad_perm:[1,0,3,2] row_mask:0xf bank_mask:0xf")
            a(f"v_add_f32_dpp v{S+g}, v{T+1}, v{T+1} quad_perm:[2,3,0,1] row_mask:0xf bank_mask:0xf")
        g = 0
        if KL:
            while g < 16:
                if 4 * (g + 1) >= RK and g + 1 < 16 and False: pass
                if 4 * g >= RK:
                    need(4 * g + 3); stage(g)
                qk_mfma(g)
                if g > 0: qk_post(g - 1)
                g += 1
                free = min(4 * g, RK) - (st["issued"] - 64)
                nissue = 2 if g <= 3 else 1
                for _ in range(max(0, min(nissue, free))):
                    if st["issued"] < N: issue()
        else:
            while g < 16:
                lag = st["issued"] - 4 * g
                qk_mfma(g)
                if g > 0: qk_post(g - 1)
                g += 1
                free = 4 * g + R - st["issued"]
                nissue = (1 if (g % 3 == 0) else 0) if lag > D + 8 else 4
                for _ in range(min(nissue, free)):
                    if st["issued"] < N: issue()
        qk_post(15)
        self.stamp(3, "tail")
        for _ in range(3): issue(False)
        a(f"s_mov_b32 {sT0}, 0x{SCALE:08x}")
        for k in range(0, 16, 2):
            x, y = f"v{S+k}", f"v{S+k+1}"; t = f"v{T + (k // 2) % 4}"
            a(f"v_cvt_pk_bf16_f32 {t}, {x}, {y}")
            a(f"v_lshlrev_b32 {x}, 16, {t}"); a(f"v_and_b32 {y}, {sFFFF0000}, {t}")
            a(f"v_mul_f32 {x}, {sT0}, {x}"); a(f"v_mul_f32 {y}, {sT0}, {y}")
            a(f"v_cvt_pk_bf16_f32 {t}, {x}, {y}")
            a(f"v_lshlrev_b32 {x}, 16, {t}"); a(f"v_and_b32 {y}, {sFFFF0000}, {t}")
        a(f"v_max3_f32 {vm}, v{S}, v{S+1}, v{S+2}")
        for k in range(3, 15, 2): a(f"v_max3_f32 {vm}, {vm}, v{S+k}, v{S+k+1}")
        a(f"v_max_f32 {vm}, {vm}, v{S+15}")
        self.allreduce("v_max_f32", vm, f"v{T}", ["r4", "r8", "p16", "p32"])
        a(f"s_mov_b32 {sT0}, 0x{LOG2E:08x}")
        a(f"v_mul_f32 v{T+3}, {sT0}, {vm}")
        for k in range(16): a(f"v_fma_f32 v{S+k}, v{S+k}, {sT0}, -v{T+3}")
        for k in range(16): a(f"v_exp_f32 v{S+k}, v{S+k}")
        a(f"v_add_f32 {vl}, v{S}, v{S+1}")
        for k in range(2, 16): a(f"v_add_f32 {vl}, {vl}, v{S+k}")
        for k in range(16): a(f"v_cvt_pk_bf16_f32 v{S+k}, v{S+k}, v{S+k}")
        self.allreduce("v_add_f32", vl, f"v{T}", ["r4", "r8", "p16", "p32"])
        a("s_mov_b64 exec, 1")
        a(f"s_lshl_b32 {sT0}, {sWAVE}, 3"); a(f"s_add_u32 {sT0}, {sT0}, {L_ML}")
        a(f"v_mov_b32 v{T}, {sT0}"); a(f"ds_write_b64 v{T}, v[56:57]")
        a(f"v_mov_b32 v{T}, {L_MLCNT}"); a(f"v_mov_b32 v{T+1}, 1"); a(f"ds_add_u32 v{T}, v{T+1}")
        a("s_mov_b64 exec, -1")
        self.stamp(4, "tail")
        BV = (8, 12)
        def mkB(vi):
            g_, t_ = vi >> 2, vi & 3; b = BV[vi & 1]
            for r in range(4): a(f"v_and_b32_dpp v{b+r}, v{S+g_}, v{vM[r]} row_newbcast:{4*t_} row_mask:0xf bank_mask:0xf")
        def ml_exchange():
            self.lds_spin(L_MLCNT, target=4)
            a(f"v_mov_b32 v16, {L_ML}")
            a("ds_read_b128 v[20:23], v16"); a("ds_read_b128 v[40:43], v16 offset:16")
            a("s_waitcnt lgkmcnt(0)")
            a("v_max3_f32 v16, v20, v22, v40"); a("v_max_f32 v16, v16, v42")
            a(f"s_mov_b32 {sT0}, 0x{LOG2E:08x}")
            a(f"v_sub_f32 {vf}, {vm}, v16"); a(f"v_mul_f32 {vf}, {sT0}, {vf}"); a(f"v_exp_f32 {vf}, {vf}")
            L = a.uid("Lnoml")
            a(f"s_cmp_lg_u32 {sWAVE}, 0"); a(f"s_cbranch_scc1 {L}")
            for i, r in enumerate((20, 22, 40, 42)):
                a(f"v_sub_f32 v{r}, v{r}, v16"); a(f"v_mul_f32 v{r}, {sT0}, v{r}"); a(f"v_exp_f32 v{r}, v{r}")
            a("v_mul_f32 v17, v20, v21"); a("v_fmac_f32 v17, v22, v23"); a("v_fmac_f32 v17, v40, v41"); a("v_fmac_f32 v17, v42, v43")
            a("v_mov_b32 v18, 0"); a("v_mov_b32 v19, 0")
            for c in range(4): a(f"v_bfi_b32 v{16+c}, {sFF}, {vTAG}, v{16+c}")
            a(f"s_mul_i32 {sT0}, s100, {OSLOT}"); a(f"s_add_u32 {sT0}, {sT0}, {WS_O + 512}")
            a("s_mov_b64 exec, 1")
            a(f"buffer_store_dwordx4 v[16:19], off, {srd(SRD_WS)}, {sT0} sc1")
            a("s_mov_b64 exec, -1")
            st["extra_wave0"] = True
            a.label(L)
        mkB(0)
        for vi in range(64):
            if vi + 1 < 64: mkB(vi + 1)
            tile = 64 + vi
            while st["issued"] < N and st["issued"] - tile < (p.DEND if (p.DEND and st["issued"] >= 64 + p.DENDAT) else D) + 1: issue()
            need(tile)
            b = BV[vi & 1]
            c = "0" if vi == 0 else f"v[{DO}:{DO+3}]"
            a(f"v_mfma_f32_16x16x32_bf16 v[{DO}:{DO+3}], {slot(tile)}, v[{b}:{b+3}], {c}")
            if vi == p.MLAT:
                ml_exchange()
            if p.GSYNC and vi == p.GSYNC:
                self.lds_spin(L_GRP, target=1, sleep=2)
        self.stamp(5, "tail")
        for r in range(4): a(f"v_mul_f32 v{DO+r}, {vf}, v{DO+r}")
        self.setexec(0x00FF00FF00FF00FF)
        for r in range(4): a(f"ds_write_b32 {vOW}, v{DO+r} offset:{32*r}")
        a("s_mov_b64 exec, 1")
        a(f"v_mov_b32 v8, {L_OCNT}"); a("v_mov_b32 v9, 1"); a("ds_add_rtn_u32 v9, v8, v9")
        a(f"s_mul_i32 {sT0}, s100, {OSLOT}"); a(f"s_add_u32 {sT0}, {sT0}, {WS_O}")
        a("s_waitcnt lgkmcnt(0)")
        a(f"v_readfirstlane_b32 {sT1}, v9")
        a(f"s_cmp_lg_u32 {sT1}, 3"); a("s_cbranch_scc1 L_sdone")
        self.setexec(lanes(32))
        for w in range(4): a(f"ds_read_b128 v[{12+4*w}:{15+4*w}], {vPUB} offset:{L_OPART + 512*w}")
        a("s_waitcnt lgkmcnt(0)")
        self.sum_rows4([12, 16, 20, 24])
        for c in range(4): a(f"v_bfi_b32 v{12+c}, {sFF}, {vTAG}, v{12+c}")
        a(f"buffer_store_dwordx4 v[12:15], {vPUB}, {srd(SRD_WS)}, {sT0} offen sc1")
        self.stamp(6, "tail")
        a.label("L_sdone")
        self.dump_stamps()
        a("s_endpgm")

    def unit_loads(self, stride_s, tau_s):
        a = self.a
        a(f"s_mul_i32 {sT0}, {tau_s}, 192")
        a(f"v_lshrrev_b32 v1, 3, {vLANE}"); a(f"v_add_u32 v1, {sT0}, v1")
        a(f"v_mul_lo_u32 v1, v1, {stride_s}")
        a(f"v_and_b32 v2, 7, {vLANE}"); a("v_lshl_add_u32 v1, v2, 4, v1")
        a(f"s_lshl_b32 {sT1}, {stride_s}, 3"); a(f"s_mov_b32 {sT0}, 0")
        for t in range(24):
            a(f"buffer_load_dwordx4 a[{4*t}:{4*t+3}], v1, {srd(SRD_A)}, {sT0} offen nt")
            if t < 23: a(f"s_add_u32 {sT0}, {sT0}, {sT1}")

    def hwave(self):
        a = self.a; p = self.p
        a.label("L_helper")
        self.common_setup()
        for q in (SRD_A, SRD_B, SRD_C): self.set_srd(q, sWS, size=0)
        a(f"s_setprio {p.HPRIO0}")
        a(f"s_sub_u32 {sHW}, {sWAVE}, 4")
        a("s_mov_b32 s71, 0")
        a(f"s_cmp_lg_u32 {sHW}, 2"); a("s_cbranch_scc1 L_noinit")
        a(f"v_lshlrev_b32 v8, 2, {vLANE}"); a("v_mov_b32 v9, 0")
        self.setexec(0xFFFF); a("ds_write_b32 v8, v9"); a("s_mov_b64 exec, -1"); a("s_waitcnt lgkmcnt(0)")
        a.label("L_noinit")
        a("s_barrier")
        if p.PRETOUCH:
            a(f"s_cmp_lg_u32 {sHW}, 2"); a("s_cbranch_scc1 L_notouch")
            a(f"v_lshlrev_b32 v8, 21, {vLANE}")
            a(f"v_lshlrev_b32 v9, 16, {vLANE}")
            self.setexec(0xF)
            a(f"s_lshl_b32 {sT0}, s100, 18"); self.set_srd(SRD_A, sV, off=sT0, size=0x40000)
            a(f"buffer_load_dword v10, v9, {srd(SRD_A)}, 0 offen nt")
            for k, (ptr, sz) in enumerate(((sWO, 4096 * 1152), (sWG, 576 * 9216), (sWU, 576 * 9216), (sWD, 4608 * 1152))):
                self.set_srd(SRD_A, ptr, size=sz)
                a(f"buffer_load_dword v{11+k}, v8, {srd(SRD_A)}, 0 offen nt")
            a("s_mov_b64 exec, -1")
            self.set_srd(SRD_A, sWS, size=0)
            a.label("L_notouch")
        if p.HDELAY: a(f"s_sleep {p.HDELAY}")
        for r in list(range(40, 60)) + list(range(80, 90)): a(f"v_mov_b32 v{r}, 0")
        if p.WOEARLY and not p.WOLATE:
            a("s_cmp_ge_u32 s2, 72"); a("s_cbranch_scc1 L_nowoearly")
            if not p.MAP2: a(f"s_cmp_eq_u32 {sHW}, 0"); a("s_cbranch_scc1 L_nowoearly")
            a(f"s_and_b32 {sT0}, s2, 7"); a(f"s_lshr_b32 {sT1}, s2, 3"); a(f"s_lshl_b32 {sT2}, {sT1}, 7")
            self.set_srd(SRD_C, sWO, off=sT2, size_minus_off=4096 * 1152)
            a(f"s_lshl_b32 {sT0}, {sT0}, 2"); a(f"s_add_u32 {sT0}, {sT0}, {sHW}"); a(f"s_lshl_b32 {sT0}, {sT0}, 7")
            a(f"v_lshrrev_b32 v1, 3, {vLANE}"); a(f"v_add_u32 v1, {sT0}, v1"); a("v_mul_u32_u24 v1, 1152, v1")
            a(f"v_and_b32 v2, 7, {vLANE}"); a("v_lshl_add_u32 v1, v2, 4, v1")
            a("s_setprio 0")
            a(f"s_mov_b32 {sT0}, 0")
            for t in range(16):
                a(f"buffer_load_dwordx4 a[{96+4*t}:{99+4*t}], v1, {srd(SRD_C)}, {sT0} offen nt")
                if t < 15: a(f"s_add_u32 {sT0}, {sT0}, 9216")
            a(f"s_setprio {p.HPRIO0}")
            a.label("L_nowoearly")
        a(f"s_cmp_eq_u32 {sHW}, 0"); a("s_cbranch_scc1 L_h0")
        a(f"s_cmp_eq_u32 {sHW}, 1"); a("s_cbranch_scc1 L_h1")
        a("s_branch L_nounit")
        a.label("L_h0")
        if p.MAP2:
            a("s_cmp_lt_u32 s2, 72"); a("s_cbranch_scc1 L_nounit")
            a("s_sub_u32 s62, s2, 72"); a("s_branch L_qunit")
            a.label("L_h1")
            a("s_cmp_lt_u32 s2, 72"); a("s_cbranch_scc1 L_nounit")
            a("s_cmp_ge_u32 s2, 242"); a("s_cbranch_scc1 L_nounit")
            a("s_add_u32 s62, s2, 112"); a("s_cmp_lt_u32 s2, 80"); a("s_cbranch_scc1 L_qunit")
            a(f"s_sub_u32 {sT2}, s2, 80"); self.div3(sR0, sR1, sT2)
        else:
            a("s_mov_b32 s62, s2")
            a("s_cmp_lt_u32 s2, 192"); a("s_cbranch_scc1 L_qunit")
            a("s_cmp_ge_u32 s2, 246"); a("s_cbranch_scc1 L_nounit")
            a(f"s_sub_u32 {sT2}, s2, 192"); self.div3(sR0, sR1, sT2)
            a("s_branch L_munit")
            a.label("L_h1")
            a("s_cmp_lt_u32 s2, 72"); a("s_cbranch_scc1 L_nounit")
            a("s_cmp_ge_u32 s2, 180"); a("s_cbranch_scc1 L_nounit")
            a(f"s_sub_u32 {sT2}, s2, 72"); self.div3(sR0, sR1, sT2); a(f"s_add_u32 {sR0}, {sR0}, 18")
        if p.LATEMOD:
            self.lds_spin(L_QFLAG, target=1, sleep=8)
            a("s_setprio 0")
            a("s_mov_b32 s71, 1")
        a.label("L_munit")
        a(f"s_lshl_b32 {sT2}, {sR0}, 7")
        self.set_srd(SRD_A, sWM, off=sT2, size_minus_off=576 * 6912)
        self.set_srd(SRD_B, sC, size=1152)
        a(f"s_mul_i32 {sT0}, {sR1}, 384"); a(f"v_lshlrev_b32 v8, 3, {vLANE}")
        a(f"buffer_load_dwordx2 v[40:41], v8, {srd(SRD_B)}, {sT0} offen")
        a(f"s_mov_b32 {sR2}, 6912")
        self.unit_loads(sR2, sR1)
        self.get_tag()
        self.stamp(1, "pre")
        a(f"s_mul_i32 {sR2}, {sR0}, 3"); a(f"s_add_u32 {sR2}, {sR2}, {sR1}"); a(f"s_lshl_b32 {sR2}, {sR2}, 8"); a(f"s_add_u32 {sR2}, {sR2}, {WS_MOD}")
        self.taddr_w("v2", "v8", 24)
        a("s_waitcnt vmcnt(24)")
        self.unpack4(44, 40)
        for k in range(4): self.sigmoid(f"v{48+k}", f"v{44+k}", f"v{48+k}")
        for k in range(4): a(f"v_mul_f32 v{44+k}, v{44+k}, v{48+k}")
        for k in range(4): a(f"v_cvt_pk_bf16_f32 v{44+k}, v{44+k}, v{44+k}")
        self.setexec(lanes(48)); self.twrite4([44, 45, 46, 47], "v2", 24); a("s_mov_b64 exec, -1")
        self.stamp(2, "pre")
        a("s_branch L_unit_gemv")
        a.label("L_qunit")
        self.div3(sR0, sR1, "s62")
        a(f"s_lshl_b32 {sT2}, {sR0}, 7")
        self.set_srd(SRD_A, sWQ, off=sT2, size_minus_off=576 * 8192)
        self.set_srd(SRD_B, sX, size=1152)
        a(f"v_lshrrev_b32 v8, 3, {vLANE}"); a("v_lshlrev_b32 v8, 5, v8"); a(f"v_and_b32 v9, 7, {vLANE}"); a("v_add_u32 v8, v8, v9"); a("v_lshlrev_b32 v8, 1, v8")
        a(f"s_mul_i32 {sT0}, {sR1}, 384")
        for r in range(4): a(f"buffer_load_ushort v{44+r}, v8, {srd(SRD_B)}, {sT0} offen offset:{16*r}")
        a(f"v_lshlrev_b32 v9, 5, {vLANE}")
        a(f"buffer_load_dwordx4 v[16:19], v9, {srd(SRD_B)}, 0 offen")
        a(f"buffer_load_dwordx4 v[20:23], v9, {srd(SRD_B)}, 0 offen offset:16")
        a(f"s_mov_b32 {sR2}, 8192")
        self.unit_loads(sR2, sR1)
        self.get_tag()
        a(f"s_mul_i32 {sR2}, {sR0}, 3"); a(f"s_add_u32 {sR2}, {sR2}, {sR1}"); a(f"s_lshl_b32 {sR2}, {sR2}, 8"); a(f"s_add_u32 {sR2}, {sR2}, {WS_Q}")
        a(f"s_mul_i32 {sT0}, {sR1}, 6"); a(f"v_lshrrev_b32 v8, 3, {vLANE}"); a(f"v_add_u32 v8, {sT0}, v8")
        a("v_lshrrev_b32 v9, 1, v8"); a("v_mul_u32_u24 v9, 768, v9")
        a("v_and_b32 v8, 1, v8"); a("v_lshl_add_u32 v9, v8, 7, v9")
        a(f"v_and_b32 v8, 7, {vLANE}"); a("v_lshl_add_u32 v50, v8, 4, v9")
        a(f"v_mul_u32_u24 v51, 96, v8"); a(f"v_lshrrev_b32 v9, 3, {vLANE}"); a("v_lshl_add_u32 v51, v9, 4, v51")
        a(f"s_mul_i32 {sT0}, {sHW}, {TBLW}"); a(f"s_add_u32 {sT0}, {sT0}, {L_TBL}"); a(f"v_add_u32 v51, {sT0}, v51")
        a("s_waitcnt vmcnt(24)")
        for r in range(4): a(f"v_lshlrev_b32 v{44+r}, 16, v{44+r}")
        for i in range(8):
            a(f"v_lshlrev_b32 v{24+2*i}, 16, v{16+i}"); a(f"v_and_b32 v{25+2*i}, {sFFFF0000}, v{16+i}")
        a("v_add_f32 v48, v24, v25")
        for i in range(2, 16): a(f"v_add_f32 v48, v48, v{24+i}")
        self.allreduce("v_add_f32", "v48", "v49", ["q1", "q2", "r4", "r8", "p16", "p32"])
        a(f"v_mul_f32 v48, {f32hex(1/576)}, v48")
        for i in range(16): a(f"v_sub_f32 v{24+i}, v{24+i}, v48")
        a("v_mul_f32 v49, v24, v24")
        for i in range(1, 16): a(f"v_fmac_f32 v49, v{24+i}, v{24+i}")
        a(f"v_cmp_gt_u32 vcc, 36, {vLANE}"); a("v_cndmask_b32 v49, 0, v49, vcc")
        self.allreduce("v_add_f32", "v49", "v52", ["q1", "q2", "r4", "r8", "p16", "p32"])
        a(f"v_mul_f32 v49, {f32hex(1/576)}, v49")
        self.bf16_round2("v48", "v49", "v48", "v49", "v52")
        a(f"v_add_f32 v49, {f32hex(1e-5)}, v49"); self.bf16_round("v49", "v49", "v52")
        a("v_sqrt_f32 v49, v49"); self.bf16_round("v49", "v49", "v52"); a("v_rcp_f32 v49, v49")
        for k in range(4): a(f"v_sub_f32 v{44+k}, v{44+k}, v48")
        self.round4(44, "v52")
        for k in range(4): a(f"v_mul_f32 v{44+k}, v{44+k}, v49")
        self.round4(44, "v52")
        self.stamp(1, "pre")
        self.poll([(8 + 4 * t, 4, "v50", WS_MOD, 256 * t) for t in range(3)] + [(20 + 4 * t, 4, "v50", WS_MOD + 9 * 768, 256 * t) for t in range(3)],
                  active=lanes(48), sleep=p.SL_A, presleep=p.PS_A)
        self.stamp(2, "pre")
        self.sum_rows4([8, 12, 16]); self.sum_rows4([20, 24, 28])
        self.round4(8, "v52"); self.round4(20, "v53")
        for k in range(4): a(f"v_add_f32 v{20+k}, 1.0, v{20+k}")
        self.round4(20, "v52")
        for k in range(4): a(f"v_mul_f32 v{44+k}, v{44+k}, v{20+k}")
        self.round4(44, "v52")
        for k in range(4): a(f"v_add_f32 v{44+k}, v{44+k}, v{8+k}")
        for k in range(4): a(f"v_cvt_pk_bf16_f32 v{44+k}, v{44+k}, v{44+k}")
        a("ds_write_b128 v51, v[44:47]")
        a("s_mov_b64 exec, -1")
        a.label("L_unit_gemv")
        self.taddr_r("v2", 24)
        self.tread(16, 6, "v2")
        self.gemv(24, 0, list(range(16, 40)), 40, waits={0: 20, 4: 16, 8: 12, 12: 8, 16: 4, 20: 0})
        self.stamp(3, "pre")
        a(f"v_lshrrev_b32 v2, 4, {vLANE}"); a("v_lshlrev_b32 v2, 7, v2"); a(f"v_and_b32 v8, 7, {vLANE}"); a("v_lshl_add_u32 v2, v8, 4, v2")
        for r in range(4): a(f"v_mov_b32 v{44+r}, v{40+r}")
        for r in range(4): a(f"v_permlane32_swap_b32 v{40+r}, v{44+r}")
        for r in range(4): a(f"v_add_f32_dpp v{40+r}, v{44+r}, v{40+r} row_ror:8 row_mask:0xf bank_mask:0xf")
        for r in range(4): a(f"v_bfi_b32 v{40+r}, {sFF}, {vTAG}, v{40+r}")
        self.setexec(0x00FF00FF)
        a(f"buffer_store_dwordx4 v[40:43], v2, {srd(SRD_WS)}, {sR2} offen sc1")
        a("s_mov_b64 exec, -1")
        if p.STAMPS and p.MODE == "pre":
            a("s_waitcnt vmcnt(0)")
        self.stamp(7, "pre")
        a("s_branch L_pre_done")
        a.label("L_nounit")
        self.get_tag()
        a.label("L_pre_done")
        a(f"s_cmp_lg_u32 {sHW}, 3"); a("s_cbranch_scc1 L_noq")
        a(f"s_lshr_b32 {sT0}, s100, 3"); a(f"s_mul_i32 {sT0}, {sT0}, {2*768}"); a(f"s_add_u32 {sR0}, {sT0}, {WS_Q}")
        a(f"v_lshrrev_b32 v8, 4, {vLANE}"); a("v_mul_u32_u24 v2, 768, v8"); a(f"v_and_b32 v9, 15, {vLANE}"); a("v_lshl_add_u32 v2, v9, 4, v2")
        a("v_lshlrev_b32 v8, 6, v8"); a(f"v_bfe_u32 v9, {vLANE}, 3, 1"); a("v_lshl_add_u32 v8, v9, 5, v8")
        a(f"v_and_b32 v9, 7, {vLANE}"); a("v_add_u32 v8, v8, v9"); a("v_lshlrev_b32 v24, 1, v8")
        if p.PS_QG > 127: a("s_sleep 127")
        self.poll([(8 + 4 * t, 4, "v2", sR0, 256 * t) for t in range(3)], active=lanes(32), sleep=p.QSLEEP, presleep=(p.PS_QG - 127 if p.PS_QG > 127 else p.PS_QG))
        self.sum_rows4([8, 12, 16])
        a("v_cvt_pk_bf16_f32 v12, v8, v9"); a("v_cvt_pk_bf16_f32 v13, v10, v11")
        a(f"ds_write_b16 v24, v12 offset:{L_Q}"); a(f"ds_write_b16_d16_hi v24, v12 offset:{L_Q + 16}")
        a(f"ds_write_b16 v24, v13 offset:{L_Q + 32}"); a(f"ds_write_b16_d16_hi v24, v13 offset:{L_Q + 48}")
        a("s_waitcnt lgkmcnt(0)")
        a("s_mov_b64 exec, 1")
        a(f"v_mov_b32 v8, {L_QFLAG}"); a("v_mov_b32 v9, 1"); a("ds_write_b32 v8, v9")
        a("s_mov_b64 exec, -1")
        if p.MODE != "fine": self.stamp(4, "all")
        a.label("L_noq")
        if p.NOTAIL:
            self.dump_stamps(); a("s_endpgm")
        elif p.DYN: self.tail_dyn()
        else: self.tail()

    def piece_off(self, dst, gam_v, tmp):
        a = self.a
        a(f"v_lshrrev_b32 {tmp}, 1, {gam_v}"); a(f"v_mul_u32_u24 {tmp}, 768, {tmp}")
        a(f"v_and_b32 {dst}, 1, {gam_v}"); a(f"v_lshl_add_u32 {tmp}, {dst}, 7, {tmp}")
        a(f"v_and_b32 {dst}, 7, {vLANE}"); a(f"v_lshl_add_u32 {dst}, {dst}, 4, {tmp}")
    def gather_mod(self, vecs, voff, dsts, active, tmp0=8, sleep=16):
        a = self.a
        loads = []
        for i, v in enumerate(vecs):
            for t in range(3): loads.append((tmp0 + 12 * i + 4 * t, 4, voff, WS_MOD + 9 * v * 768, 256 * t))
        self.poll(loads, active=active, sleep=sleep)
        for i, v in enumerate(vecs):
            b = tmp0 + 12 * i
            self.sum_rows4([b, b + 4, b + 8]); self.round4(b, "v61")
            for r in range(4): a(f"v_mov_b32 v{dsts[i]+r}, v{b+r}")
    def half_add(self, D, T):
        a = self.a
        for r in range(4): a(f"v_mov_b32 v{T+r}, v{D+r}")
        for r in range(4): a(f"v_permlane32_swap_b32 v{D+r}, v{T+r}")
        for r in range(4): a(f"v_add_f32_dpp v{D+r}, v{T+r}, v{D+r} row_ror:8 row_mask:0xf bank_mask:0xf")
    def dpiece_addr(self, vaddr, vt, base, rowbytes):
        a = self.a
        a(f"v_lshrrev_b32 {vaddr}, 5, {vLANE}"); a(f"v_mul_u32_u24 {vaddr}, {rowbytes}, {vaddr}")
        a(f"v_bfe_u32 {vt}, {vLANE}, 4, 1"); a(f"v_lshl_add_u32 {vaddr}, {vt}, 7, {vaddr}")
        a(f"v_and_b32 {vt}, 7, {vLANE}"); a(f"v_lshl_add_u32 {vaddr}, {vt}, 4, {vaddr}")
        a(f"s_mul_i32 {sT0}, {sHW}, {2*rowbytes}"); a(f"s_add_u32 {sT0}, {sT0}, {base}")
        a(f"v_add_u32 {vaddr}, {sT0}, {vaddr}")

    def tail(self):
        a = self.a; p = self.p
        L24 = lanes(24)
        UX, UGA, UC1, USB = 64, 68, 72, 76
        vUT, vUR, vUP, vUA = "v80", "v81", "v82", "v83"
        FX, FGA, FGB = 84, 88, 92
        MS = 72 * 6 * 256
        a.label("L_tail")
        a("s_setprio 0")
        self.lds_spin(L_QFLAG, target=1, sleep=8)
        self.group_watch()
        a("s_cmp_lt_u32 s2, 72"); a("s_cbranch_scc1 L_wo")
        a("s_cmp_ge_u32 s2, 252"); a("s_cbranch_scc1 L_hexit")
        a("s_cmp_ge_u32 s2, 216"); a("s_cbranch_scc1 L_dbl")
        a(f"s_sub_u32 {sT2}, s2, 72"); self.div3("s6", "s7", sT2)
        a("s_branch L_uprep")
        a.label("L_dbl")
        a(f"s_sub_u32 {sT2}, s2, 216"); self.div3("s6", "s7", sT2); a("s_lshl_b32 s6, s6, 1"); a("s_add_u32 s6, s6, 48")
        a.label("L_uprep")
        a(f"s_lshr_b32 {sT0}, {sHW}, 1"); a("s_lshl_b32 s7, s7, 1"); a(f"s_add_u32 s7, s7, {sT0}")
        a(f"s_and_b32 s8, {sHW}, 1")
        a("s_mul_i32 s9, s7, 3")
        a(f"v_lshrrev_b32 v8, 3, {vLANE}"); a("v_add_u32 v8, s9, v8")
        self.piece_off("v2", "v8", "v9")
        a(f"v_lshlrev_b32 {vUA}, 7, v8"); a(f"v_and_b32 v9, 7, {vLANE}"); a(f"v_lshl_add_u32 {vUA}, v9, 4, {vUA}"); a(f"v_add_u32 {vUA}, {WS_ATT}, {vUA}")
        self.set_srd(SRD_B, sX, size=1152)
        a("v_lshlrev_b32 v8, 5, v8"); a("v_add_u32 v8, v8, v9"); a("v_lshlrev_b32 v8, 1, v8")
        for r in range(4): a(f"buffer_load_ushort v{UX+r}, v8, {srd(SRD_B)}, 0 offen offset:{16*r}")
        self.gather_mod([2, 4, 3], "v2", [UGA, UC1, USB], L24, sleep=4)
        a("s_mov_b64 exec, -1")
        for r in range(4): a(f"v_lshlrev_b32 v{UX+r}, 16, v{UX+r}")
        for r in range(4): a(f"v_add_f32 v{UC1+r}, 1.0, v{UC1+r}")
        self.round4(UC1, "v8")
        a(f"s_mul_i32 {sT0}, {sHW}, {TBLW}"); a(f"s_add_u32 {sT0}, {sT0}, {L_TBL}")
        a(f"v_and_b32 v8, 7, {vLANE}"); a(f"v_mul_u32_u24 {vUT}, 48, v8"); a(f"v_lshrrev_b32 v9, 3, {vLANE}"); a(f"v_lshl_add_u32 {vUT}, v9, 4, {vUT}"); a(f"v_add_u32 {vUT}, {sT0}, {vUT}")
        a(f"v_mul_u32_u24 {vUR}, 48, v9"); a(f"v_add_u32 {vUR}, {sT0}, {vUR}")
        a(f"v_lshrrev_b32 {vUP}, 4, {vLANE}"); a(f"v_lshlrev_b32 {vUP}, 7, {vUP}"); a(f"v_lshl_add_u32 {vUP}, v8, 4, {vUP}")
        a("s_mul_i32 s10, s8, 72"); a("s_add_u32 s10, s10, s6"); a("s_mul_i32 s10, s10, 6"); a("s_add_u32 s10, s10, s7"); a("s_lshl_b32 s10, s10, 8")
        a("s_cmp_eq_u32 s8, 0"); a(f"s_cselect_b32 s12, s{sWG}, s{sWU}"); a(f"s_cselect_b32 s13, s{sWG+1}, s{sWU+1}")
        a(f"s_lshl_b32 {sT2}, s6, 7")
        self.set_srd(SRD_C, 12, off=sT2, size_minus_off=576 * 9216)
        a("s_mul_i32 s11, s7, 96"); a(f"v_lshrrev_b32 v56, 3, {vLANE}"); a("v_add_u32 v56, s11, v56"); a("v_mul_u32_u24 v56, 9216, v56")
        a(f"v_and_b32 v8, 7, {vLANE}"); a("v_lshl_add_u32 v56, v8, 4, v56")
        if p.UEARLY:
            if p.UAT: self.lds_spin(L_W2, target=1, sleep=8)
            a(f"s_mov_b32 {sT0}, 0")
            for t_ in range(12):
                if t_ >= p.UPACE: a(f"s_waitcnt vmcnt({p.UPACE-1})")
                a(f"buffer_load_dwordx4 a[{4*t_}:{4*t_+3}], v56, {srd(SRD_C)}, {sT0} offen nt")
                if t_ < 11: a(f"s_add_u32 {sT0}, {sT0}, {8*9216}")
        if p.DBLEARLY:
            a("s_cmp_lt_u32 s2, 216"); a("s_cbranch_scc1 L_noearly2")
            a(f"s_mov_b32 {sT0}, 128")
            for t_ in range(12):
                if t_ >= p.WOPACE: a(f"s_waitcnt vmcnt({p.WOPACE-1})")
                a(f"buffer_load_dwordx4 a[{48+4*t_}:{51+4*t_}], v56, {srd(SRD_C)}, {sT0} offen nt")
                if t_ < 11: a(f"s_add_u32 {sT0}, {sT0}, {8*9216}")
            a.label("L_noearly2")
        a("s_cmp_ge_u32 s2, 216"); a("s_cbranch_scc1 L_finprep")
        a(f"s_sub_u32 s14, s2, 72")
        a(f"s_mul_i32 {sT2}, s14, {32*1152}"); self.set_srd(SRD_A, sWD, off=sT2, size=32 * 1152)
        a(f"s_lshl_b32 {sT0}, {sHW}, 3")
        a(f"v_lshrrev_b32 v57, 3, {vLANE}"); a(f"v_add_u32 v57, {sT0}, v57"); a("v_mul_u32_u24 v57, 1152, v57")
        a(f"v_and_b32 v8, 7, {vLANE}"); a("v_lshl_add_u32 v57, v8, 4, v57")
        a("s_lshr_b32 s15, s14, 1"); a("s_mul_i32 s15, s15, 1536"); a(f"s_and_b32 {sT0}, s14, 1"); a(f"s_lshl_b32 {sT0}, {sT0}, 7"); a(f"s_add_u32 s15, s15, {sT0}")
        a(f"s_lshl_b32 {sT0}, {sHW}, 2"); a(f"s_add_u32 s15, s15, {sT0}")
        a(f"v_and_b32 v8, 7, {vLANE}"); a("v_min_u32 v8, 5, v8"); a("v_lshlrev_b32 v58, 8, v8"); a(f"v_lshrrev_b32 v9, 3, {vLANE}"); a("v_lshl_add_u32 v58, v9, 4, v58"); a("v_add_u32 v58, s15, v58")
        a("v_lshlrev_b32 v59, 7, v8"); a(f"v_add_u32 v59, {WS_ST}, v59")
        if p.STREP:
            a(f"s_and_b32 {sT0}, s2, 7"); a(f"s_lshl_b32 {sT0}, {sT0}, 10"); a(f"v_add_u32 v59, {sT0}, v59")
        self.dpiece_addr(f"v{FX}", "v8", L_DOWN, 2304)
        a(f"s_mul_i32 {sT0}, {sHW}, 48"); a(f"v_add_u32 v{FX+1}, {sT0}, {vLANE}"); a(f"v_lshlrev_b32 v{FX+1}, 4, v{FX+1}")
        a("s_mul_i32 s15, s14, 2304"); a(f"s_add_u32 s15, s15, {WS_OUT}")
        a("s_branch L_late")
        a.label("L_finprep")
        a("s_cmp_ge_u32 s2, 234"); a("s_cbranch_scc1 L_late")
        a(f"s_sub_u32 s14, s2, 216")
        self.set_srd(SRD_B, sX, size=1152)
        a(f"v_and_b32 v46, 7, {vLANE}")
        a("s_lshl_b32 s15, s14, 6"); a("v_lshlrev_b32 v8, 1, v46")
        for r in range(4): a(f"buffer_load_ushort v{FX+r}, v8, {srd(SRD_B)}, s15 offen offset:{16*r}")
        a("v_mov_b32 v8, s14"); self.piece_off("v2", "v8", "v9")
        self.gather_mod([2, 5], "v2", [FGA, FGB], FULL, sleep=4)
        for r in range(4): a(f"v_lshlrev_b32 v{FX+r}, 16, v{FX+r}")
        a.label("L_late")
        if p.LPACE:
            self.lds_spin(L_WCNT, target=1, sleep=2)
            self.read_ticket()
        if p.GT:
            self.go_watch_u()
            self.lds_spin(L_GO, target=1, sleep=2)
        if not p.UEARLY: self.lds_spin(L_WCNT if p.WTRIG == "issued" else L_OCNT, target=4, sleep=2)
        self.stamp(5)
        if p.LPACE:
            a(f"s_cmp_ge_u32 s63, {p.LPACE_T}"); a("s_cbranch_scc1 L_ufast")
            a(f"s_mov_b32 {sT0}, 0")
            for t in range(12):
                if t >= p.LPACE: a(f"s_waitcnt vmcnt({p.LPACE-1})")
                a(f"buffer_load_dwordx4 a[{4*t}:{4*t+3}], v56, {srd(SRD_C)}, {sT0} offen nt")
                if t < 11: a(f"s_add_u32 {sT0}, {sT0}, {8*9216}")
            a("s_branch L_uissued")
            a.label("L_ufast")
        a(f"s_mov_b32 {sT0}, 0")
        for t in range(12 if not p.UEARLY else 0):
            a(f"buffer_load_dwordx4 a[{4*t}:{4*t+3}], v56, {srd(SRD_C)}, {sT0} offen nt")
            if t < 11: a(f"s_add_u32 {sT0}, {sT0}, {8*9216}")
        a.label("L_uissued")
        a("s_cmp_ge_u32 s2, 216"); a("s_cbranch_scc1 L_late2")
        if p.DOWNLATER: a("s_waitcnt vmcnt(0)")
        for cb in range(9 if not p.DOWNAFTERC else 0):
            a(f"buffer_load_dwordx4 a[{48+4*cb}:{51+4*cb}], v57, {srd(SRD_A)}, 0 offen offset:{128*cb} nt")
        a("s_setprio 3")
        if not p.DOWNLATER: a("s_waitcnt vmcnt(9)")
        a("s_branch L_unit")
        a.label("L_late2")
        if not p.DBLEARLY:
            a(f"s_mov_b32 {sT0}, 128")
            for t in range(12):
                a(f"buffer_load_dwordx4 a[{48+4*t}:{51+4*t}], v56, {srd(SRD_C)}, {sT0} offen nt")
                if t < 11: a(f"s_add_u32 {sT0}, {sT0}, {8*9216}")
        a("s_setprio 3")
        a("s_waitcnt vmcnt(0)")
        a.label("L_unit")
        cnt = [0]
        def unit_pass(src4, area):
            cnt[0] += 1; L = f"L_up{cnt[0]}"
            for k in range(4): a(f"v_cvt_pk_bf16_f32 v{8+k}, v{src4+k}, v{src4+k}")
            self.setexec(L24); a(f"ds_write_b128 {vUT}, v[8:11]"); a("s_mov_b64 exec, -1")
            self.tread(16, 3, vUR)
            for st_ in range(2):
                if st_ == 1:
                    a("s_cmp_lt_u32 s2, 216"); a(f"s_cbranch_scc1 {L}")
                self.gemv(12, 48 * st_, list(range(16, 28)), 36)
                self.half_add(36, 40)
                for r in range(4): a(f"v_bfi_b32 v{36+r}, {sFF}, {vTAG}, v{36+r}")
                a(f"s_add_u32 {sT0}, s10, {area + 1536 * st_}")
                self.setexec(0x00FF00FF); a(f"buffer_store_dwordx4 v[36:39], {vUP}, {srd(SRD_WS)}, {sT0} offen sc1"); a("s_mov_b64 exec, -1")
            a.label(L)
        if p.CMERGE:
            for k in range(4): a(f"v_cvt_pk_bf16_f32 v{8+k}, v{UC1+k}, v{UC1+k}")
            for k in range(4): a(f"v_cvt_pk_bf16_f32 v{12+k}, v{USB+k}, v{USB+k}")
            self.setexec(L24); a(f"ds_write_b128 {vUT}, v[8:11]"); a(f"ds_write_b128 {vUT}, v[12:15] offset:384"); a("s_mov_b64 exec, -1")
            for i_ in range(3): a(f"ds_read_b128 v[{16+4*i_}:{19+4*i_}], {vUR} offset:{16*i_}")
            for i_ in range(3): a(f"ds_read_b128 v[{28+4*i_}:{31+4*i_}], {vUR} offset:{384+16*i_}")
            a("s_waitcnt lgkmcnt(0)")
            for st_ in range(2):
                if st_ == 1:
                    a("s_cmp_lt_u32 s2, 216"); a("s_cbranch_scc1 L_c1done")
                def mk(tt):
                    for r in range(4): a(f"v_and_b32 v{8+r}, v{16+tt}, v{vM[r]}")
                def mk2(tt):
                    for r in range(4): a(f"v_and_b32 v{12+r}, v{28+tt}, v{vM[r]}")
                mk(0)
                for tt in range(12):
                    A_ = f"a[{48*st_+4*tt}:{48*st_+4*tt+3}]"
                    mk2(tt)
                    a(f"v_mfma_f32_16x16x32_bf16 v[40:43], {A_}, v[8:11], {'0' if tt == 0 else 'v[40:43]'}")
                    if tt + 1 < 12: mk(tt + 1)
                    a(f"v_mfma_f32_16x16x32_bf16 v[44:47], {A_}, v[12:15], {'0' if tt == 0 else 'v[44:47]'}")
                for r in range(8): a(f"v_mov_b32 v{48+r}, v{40+r}")
                for r in range(8): a(f"v_permlane32_swap_b32 v{40+r}, v{48+r}")
                for r in range(8): a(f"v_add_f32_dpp v{40+r}, v{48+r}, v{40+r} row_ror:8 row_mask:0xf bank_mask:0xf")
                for r in range(8): a(f"v_bfi_b32 v{40+r}, {sFF}, {vTAG}, v{40+r}")
                a(f"s_add_u32 {sT0}, s10, {WS_C + 1536 * st_}"); a(f"s_add_u32 {sT1}, s10, {WS_C + 2 * MS + 1536 * st_}")
                self.setexec(0x00FF00FF)
                a(f"buffer_store_dwordx4 v[40:43], {vUP}, {srd(SRD_WS)}, {sT0} offen sc1"); a(f"buffer_store_dwordx4 v[44:47], {vUP}, {srd(SRD_WS)}, {sT1} offen sc1")
                a("s_mov_b64 exec, -1")
            a.label("L_c1done")
        else:
            unit_pass(UC1, WS_C)
            unit_pass(USB, WS_C + 2 * MS)
        if p.DOWNAFTERC:
            if p.UEARLY: self.lds_spin(L_WCNT if p.WTRIG == "issued" else L_OCNT, target=4, sleep=2)
            a("s_cmp_ge_u32 s2, 216"); a("s_cbranch_scc1 L_nodl")
            for cb in range(9):
                a(f"buffer_load_dwordx4 a[{48+4*cb}:{51+4*cb}], v57, {srd(SRD_A)}, 0 offen offset:{128*cb} nt")
            a.label("L_nodl")
        self.stamp(1, "fine")
        loads = [(8 + 4 * k, 4, vUA, None if k < 2 else (k & ~1) * 2304, (k & 1) * 2304) for k in range(8)]
        if p.SENT_ATT:
            if p.SENT1:
                a(f"s_cmp_lg_u32 {sHW}, 0"); a("s_cbranch_scc1 L_sentw")
                self.poll([loads[p.SENT_K]], active=0xFF, sleep=p.SENT_ATT)
                a("s_mov_b64 exec, 1"); a(f"v_mov_b32 v61, {L_SENT}"); a("v_mov_b32 v62, 1"); a("ds_write_b32 v61, v62"); a("s_mov_b64 exec, -1")
                a.label("L_sentw")
                self.lds_spin(L_SENT, target=1, sleep=1)
            else:
                self.poll([loads[p.SENT_K]], active=L24, sleep=p.SENT_ATT)
        self.poll(loads, active=L24, sleep=p.SL_ATT)
        self.stamp(6)
        self.sum_rows4([8 + 4 * k for k in range(8)])
        a(f"v_pk_fma_f32 v[{UX}:{UX+1}], v[8:9], v[{UGA}:{UGA+1}], v[{UX}:{UX+1}]"); a(f"v_pk_fma_f32 v[{UX+2}:{UX+3}], v[10:11], v[{UGA+2}:{UGA+3}], v[{UX+2}:{UX+3}]")
        a(f"v_pk_mul_f32 v[{UC1}:{UC1+1}], v[{UX}:{UX+1}], v[{UC1}:{UC1+1}]"); a(f"v_pk_mul_f32 v[{UC1+2}:{UC1+3}], v[{UX+2}:{UX+3}], v[{UC1+2}:{UC1+3}]")
        a("s_mov_b64 exec, -1")
        unit_pass(UC1, WS_G)
        self.stamp(2, "fine")
        a("s_or_b32 s11, s6, s8"); a("s_cmp_lg_u32 s11, 0"); a("s_cbranch_scc1 L_nostat")
        a("v_mov_b32 v12, 0"); a("v_mov_b32 v13, 0")
        self.setexec(L24)
        a(f"v_pk_add_f32 v[14:15], v[{UX}:{UX+1}], v[{UX+2}:{UX+3}]"); a(f"v_pk_mul_f32 v[16:17], v[{UX}:{UX+1}], v[{UX}:{UX+1}]")
        a(f"v_pk_fma_f32 v[16:17], v[{UX+2}:{UX+3}], v[{UX+2}:{UX+3}], v[16:17]")
        a("v_add_f32 v12, v14, v15"); a("v_add_f32 v13, v16, v17")
        a("s_mov_b64 exec, -1")
        self.allreduceN("v_add_f32", [("v12", "v14"), ("v13", "v15")], ["q1", "q2", "r4", "r8", "p16"])
        a("v_mov_b32 v14, 0"); a("v_mov_b32 v15, 0")
        for c in range(4): a(f"v_bfi_b32 v{12+c}, {sFF}, {vTAG}, v{12+c}")
        a("s_lshl_b32 s11, s7, 7"); a(f"s_add_u32 s11, s11, {WS_ST}")
        if p.STREP:
            a(f"v_lshlrev_b32 v16, 10, {vLANE}")
            a("s_mov_b64 exec, 0xff"); a(f"buffer_store_dwordx4 v[12:15], v16, {srd(SRD_WS)}, s11 offen sc1"); a("s_mov_b64 exec, -1")
        else:
            a("s_mov_b64 exec, 1"); a(f"buffer_store_dwordx4 v[12:15], off, {srd(SRD_WS)}, s11 sc1"); a("s_mov_b64 exec, -1")
        a.label("L_nostat")
        a("s_cmp_ge_u32 s2, 234"); a("s_cbranch_scc1 L_hexit")
        a("s_cmp_ge_u32 s2, 216"); a("s_cbranch_scc1 L_fin")
        K6 = 0x3F3F3F3F3F3F3F3F
        for r in (8, 9, 10, 11, 20, 21, 22, 23): a(f"v_mov_b32 v{r}, 0")
        self.poll([(20, 1, "v58", WS_C, 0), (21, 1, "v58", WS_C + 2 * MS, 0), (22, 1, "v58", WS_C + MS, 0), (23, 1, "v58", WS_C + 3 * MS, 0)], active=K6)
        a("s_mov_b64 exec, -1")
        self.allreduceN("v_add_f32", [(f"v{r}", "v12") for r in (20, 21, 22, 23)], ["q1", "q2", "hm"])
        if p.DUP_G: self.poll_dup([(8, 1, "v58", WS_G, 0), (9, 1, "v58", WS_G + MS, 0), (10, 4, "v59", None, 0)], [86, 87, 88], p.DUP_G, strong=(2,), active=K6)
        else: self.poll([(8, 1, "v58", WS_G, 0), (9, 1, "v58", WS_G + MS, 0), (10, 4, "v59", None, 0)], presleep=p.PS_G, strong=(2,), active=K6)
        a("s_mov_b64 exec, -1")
        self.stamp(3, "fine")
        self.allreduceN("v_add_f32", [(f"v{r}", "v14") for r in (8, 9, 10, 11)], ["q1", "q2", "hm"])
        a(f"v_mul_f32 v10, {f32hex(1/576)}, v10"); a(f"v_mul_f32 v11, {f32hex(1/576)}, v11")
        a("v_fma_f32 v11, -v10, v10, v11"); a("v_max_f32 v11, 0, v11"); a(f"v_add_f32 v11, {f32hex(1e-5)}, v11"); a("v_rsq_f32 v11, v11")
        a("v_fma_f32 v8, -v10, v20, v8"); a("v_fma_f32 v9, -v10, v22, v9")
        a("v_fma_f32 v8, v8, v11, v21"); a("v_fma_f32 v9, v9, v11, v23")
        self.sigmoid("v12", "v8", "v12")
        a("v_mul_f32 v8, v12, v9")
        a("v_cvt_pk_bf16_f32 v8, v8, v8")
        for r in range(4): a(f"v_and_b32 v{12+r}, v8, v{vM[r]}")
        for cb in range(9):
            d = 16 + 4 * cb
            a(f"v_mfma_f32_16x16x32_bf16 v[{d}:{d+3}], a[{48+4*cb}:{51+4*cb}], v[12:15], 0")
        self.setexec(self.VALID)
        for cb in range(9): a(f"ds_write_b128 v{FX}, v[{16+4*cb}:{19+4*cb}] offset:{256*cb}")
        a("s_mov_b64 exec, -1")
        a("s_waitcnt lgkmcnt(0)")
        a("s_barrier")
        a(f"s_cmp_ge_u32 {sHW}, 3"); a("s_cbranch_scc1 L_hexit")
        self.setexec(lanes(48))
        for k in range(8): a(f"ds_read_b128 v[{8+4*k}:{11+4*k}], v{FX+1} offset:{L_DOWN + 2304*k}")
        a("s_waitcnt lgkmcnt(0)")
        self.sum_rows4([8 + 4 * k for k in range(8)])
        for c in range(4): a(f"v_bfi_b32 v{8+c}, {sFF}, {vTAG}, v{8+c}")
        a(f"buffer_store_dwordx4 v[8:11], v{FX+1}, {srd(SRD_WS)}, s15 offen sc1")
        self.stamp(7)
        if p.STAMPS and p.MODE == "fin":
            a("s_waitcnt vmcnt(0)"); self.stamp(6, "fin")
        a("s_branch L_hexit")
        a.label("L_fin")
        a(f"v_and_b32 v46, 7, {vLANE}")
        a("s_lshl_b32 s15, s14, 7"); a("v_lshlrev_b32 v47, 4, v46"); a("v_add_u32 v47, s15, v47")
        a(f"v_lshrrev_b32 v8, 3, {vLANE}"); a("v_mul_u32_u24 v42, 2304, v8"); a("v_add_u32 v42, v42, v47"); a(f"v_add_u32 v42, {WS_ATT}, v42")
        a(f"s_mul_i32 {sT0}, {sHW}, 36"); a(f"v_add_u32 v8, {sT0}, v8"); a("v_mul_u32_u24 v43, 2304, v8"); a("v_add_u32 v43, v43, v47"); a(f"v_add_u32 v43, {WS_OUT}, v43")
        a(f"v_add_u32 v44, {4*8*2304}, v43"); a(f"v_cmp_gt_u32 vcc, 32, {vLANE}"); a("v_cndmask_b32 v44, v43, v44, vcc")
        a(f"s_lshl_b32 {sT0}, {sHW}, 7"); a(f"s_add_u32 {sT0}, {sT0}, {L_FIN}"); a("v_lshlrev_b32 v45, 4, v46"); a(f"v_add_u32 v40, {sT0}, v45")
        self.poll([(8, 4, "v42", None, 0)], sleep=p.SL_FA)
        self.allreduceN("v_add_f32", [(f"v{8+c}", f"v{12+c}") for c in range(4)], ["r8", "p16", "p32"])
        a(f"v_pk_fma_f32 v[{FX}:{FX+1}], v[8:9], v[{FGA}:{FGA+1}], v[{FX}:{FX+1}]"); a(f"v_pk_fma_f32 v[{FX+2}:{FX+3}], v[10:11], v[{FGA+2}:{FGA+3}], v[{FX+2}:{FX+3}]")
        self.set_srd(SRD_B, sOUT, size=1152)
        a("s_lshl_b32 s15, s14, 6"); a("v_lshlrev_b32 v49, 1, v46")
        self.stamp(3, "fine")
        outl = [(8, 4, "v43", None, 0), (12, 4, "v43", 8*2304, 0), (16, 4, "v43", 16*2304, 0), (20, 4, "v43", 24*2304, 0), (24, 4, "v44", None, 0)]
        if p.DUP_OUT: self.poll_dup(outl, [28, 32, 36, 52, 56], p.DUP_OUT)
        else: self.poll(outl, presleep=p.PS_OUT)
        self.stamp(1, "fin")
        a(f"v_cmp_gt_u32 vcc, 32, {vLANE}")
        self.sum_rows4([8, 12, 16, 20])
        for c in range(4): a(f"v_cndmask_b32 v{24+c}, 0, v{24+c}, vcc")
        self.sum_rows4([8, 24])
        self.allreduceN("v_add_f32", [(f"v{8+c}", f"v{12+c}") for c in range(4)], ["r8", "p16", "p32"])
        self.setexec(0xFF)
        a("ds_write_b128 v40, v[8:11]")
        a("s_mov_b64 exec, -1")
        a("s_waitcnt lgkmcnt(0)")
        self.stamp(2, "fin")
        a("s_barrier")
        self.stamp(3, "fin")
        a(f"s_cmp_lg_u32 {sHW}, 0"); a("s_cbranch_scc1 L_hexit")
        self.setexec(0xFF)
        for w in range(4): a(f"ds_read_b128 v[{8+4*w}:{11+4*w}], v45 offset:{L_FIN + 128*w}")
        a("s_waitcnt lgkmcnt(0)")
        self.sum_rows4([8, 12, 16, 20])
        a(f"v_pk_fma_f32 v[8:9], v[8:9], v[{FGB}:{FGB+1}], v[{FX}:{FX+1}]"); a(f"v_pk_fma_f32 v[10:11], v[10:11], v[{FGB+2}:{FGB+3}], v[{FX+2}:{FX+3}]")
        a("v_cvt_pk_bf16_f32 v12, v8, v9"); a("v_cvt_pk_bf16_f32 v13, v10, v11")
        a(f"buffer_store_short v12, v49, {srd(SRD_B)}, s15 offen"); a(f"buffer_store_short_d16_hi v12, v49, {srd(SRD_B)}, s15 offen offset:16")
        a(f"buffer_store_short v13, v49, {srd(SRD_B)}, s15 offen offset:32"); a(f"buffer_store_short_d16_hi v13, v49, {srd(SRD_B)}, s15 offen offset:48")
        self.stamp(7)
        a("s_cmp_lg_u32 s14, 0"); a("s_cbranch_scc1 L_hexit")
        a("s_mov_b64 exec, 1")
        a(f"v_mov_b32 v8, {sTAG}")
        a(f"buffer_store_dword v8, off, {srd(SRD_WS)}, 0 sc1")
        a("s_branch L_hexit")
        a.label("L_wo")
        a(f"s_and_b32 {sR0}, s2, 7"); a(f"s_lshr_b32 {sR1}, s2, 3")
        a(f"s_lshl_b32 {sT2}, {sR1}, 7")
        self.set_srd(SRD_A, sWO, off=sT2, size_minus_off=4096 * 1152)
        a(f"s_lshl_b32 {sR2}, {sR0}, 2"); a(f"s_add_u32 {sR2}, {sR2}, {sHW}")
        a(f"s_lshl_b32 {sT0}, {sR2}, 7")
        a(f"v_lshrrev_b32 v1, 3, {vLANE}"); a(f"v_add_u32 v1, {sT0}, v1"); a("v_mul_u32_u24 v1, 1152, v1")
        a(f"v_and_b32 v2, 7, {vLANE}"); a("v_lshl_add_u32 v1, v2, 4, v1")
        if p.WOLATE: a("s_branch L_wo_have")
        elif p.WOEARLY:
            if p.MAP2: a("s_branch L_wo_have")
            else: a(f"s_cmp_lg_u32 {sHW}, 0"); a("s_cbranch_scc1 L_wo_have")
        a(f"s_mov_b32 {sT0}, 0")
        for t in range(16):
            if t >= p.WOPACE: a(f"s_waitcnt vmcnt({p.WOPACE-1})")
            a(f"buffer_load_dwordx4 a[{96+4*t}:{99+4*t}], v1, {srd(SRD_A)}, {sT0} offen nt")
            if t < 15: a(f"s_add_u32 {sT0}, {sT0}, 9216")
        a.label("L_wo_have")
        a(f"s_mul_i32 s4, {sR2}, {8*OSLOT}"); a("s_add_u32 s4, s4, " + str(WS_O))
        a(f"s_mul_i32 {sT0}, {sR0}, 2304"); a(f"s_lshl_b32 {sT1}, {sR1}, 8"); a(f"s_add_u32 {sT0}, {sT0}, {sT1}"); a(f"s_add_u32 s5, {sT0}, {WS_ATT}")
        a(f"v_and_b32 v41, 7, {vLANE}"); a(f"v_mul_u32_u24 v41, {OSLOT}, v41")
        a(f"v_lshlrev_b32 v40, 3, {vLANE}")
        a(f"v_and_b32 v8, 3, {vLANE}"); a("v_mul_u32_u24 v8, 160, v8"); a(f"v_lshrrev_b32 v42, 2, {vLANE}"); a("v_lshl_add_u32 v42, v42, 2, v8")
        a(f"s_mul_i32 {sT0}, {sHW}, {TBLW}"); a(f"s_add_u32 {sT0}, {sT0}, {L_TBL}"); a(f"v_add_u32 v42, {sT0}, v42")
        self.taddr_r("v43", 20)
        self.dpiece_addr("v44", "v8", L_PART, 256)
        a(f"v_lshlrev_b32 v45, 4, {vLANE}")
        a("s_add_u32 s15, s4, 3200")
        self.poll([(8, 4, "v41", "s4", 512)], sleep=32, strong=(0,))
        a(f"v_and_b32 v8, {sFFFF0000}, v8")
        a("v_mov_b32 v10, v8")
        self.allreduce("v_max_f32", "v10", "v11", ["q1", "q2", "hm"])
        a("v_sub_f32 v11, v8, v10"); a(f"v_mul_f32 v11, 0x{LOG2E:08x}, v11"); a("v_exp_f32 v11, v11")
        a("v_mul_f32 v12, v11, v9")
        self.allreduce("v_add_f32", "v12", "v13", ["q1", "q2", "hm"])
        a("v_rcp_f32 v12, v12"); a("v_mul_f32 v11, v11, v12")
        for s_ in range(8): a(f"v_mov_b32_dpp v{48+s_}, v11 row_newbcast:{s_} row_mask:0xf bank_mask:0xf")
        if p.LPACE and p.WOLATE:
            self.lds_spin(L_WCNT, target=1, sleep=2)
            self.read_ticket()
        if p.GT:
            self.go_watch_w()
            if p.GT_W: self.lds_spin(L_GO, target=1, sleep=2)
        self.lds_spin(L_W2 if p.WOAT else L_WCNT, target=p.WOTGT, sleep=2)
        if p.WOLATE:
            if p.LPACE:
                a(f"s_cmp_ge_u32 s63, {p.LPACE_T}"); a("s_cbranch_scc1 L_wfast")
                a(f"s_mov_b32 {sT0}, 0")
                for t in range(16):
                    if t >= p.LPACE: a(f"s_waitcnt vmcnt({p.LPACE-1})")
                    a(f"buffer_load_dwordx4 a[{96+4*t}:{99+4*t}], v1, {srd(SRD_A)}, {sT0} offen nt")
                    if t < 15: a(f"s_add_u32 {sT0}, {sT0}, 9216")
                a("s_branch L_wissued")
                a.label("L_wfast")
            a(f"s_mov_b32 {sT0}, 0")
            for t in range(16):
                a(f"buffer_load_dwordx4 a[{96+4*t}:{99+4*t}], v1, {srd(SRD_A)}, {sT0} offen nt")
                if t < 15: a(f"s_add_u32 {sT0}, {sT0}, 9216")
            a.label("L_wissued")
        a("s_setprio 3")
        self.stamp(5)
        if p.STAMPS and p.MODE == "wo":
            a("s_waitcnt vmcnt(0)"); self.stamp(2, "wo")
        ol = [(8 + 2 * s_, 2, "v40", "s4" if s_ < 6 else "s15", s_ * OSLOT if s_ < 6 else (s_ - 5) * OSLOT) for s_ in range(8)]
        if p.DUP_O: self.poll_dup(ol, [64 + 2 * s_ for s_ in range(8)], p.DUP_O)
        else: self.poll(ol, sleep=p.SL_O, adapt=p.AD_O)
        self.stamp(6, "wo")
        a("v_pk_mul_f32 v[24:25], v[8:9], v[48:49] op_sel_hi:[1,0]")
        a("v_pk_mul_f32 v[26:27], v[10:11], v[48:49] op_sel:[0,1]")
        for s_ in range(2, 8):
            d = 24 + 2 * (s_ & 1); w = 48 + (s_ & ~1)
            sel = "op_sel_hi:[1,0,1]" if (s_ & 1) == 0 else "op_sel:[0,1,0]"
            a(f"v_pk_fma_f32 v[{d}:{d+1}], v[{8+2*s_}:{9+2*s_}], v[{w}:{w+1}], v[{d}:{d+1}] {sel}")
        self.pk_add(24, 24, 26)
        a("v_cvt_pk_bf16_f32 v24, v24, v24"); a("v_cvt_pk_bf16_f32 v25, v25, v25")
        a("ds_write_b32 v42, v24"); a("ds_write_b32 v42, v25 offset:80")
        self.tread(16, 4, "v43")
        self.stamp(1, "wo")
        self.gemv(16, 96, list(range(16, 32)), 36)
        self.setexec(self.VALID); a("ds_write_b128 v44, v[36:39]"); a("s_mov_b64 exec, -1")
        a("s_waitcnt lgkmcnt(0)")
        a("s_barrier")
        self.stamp(3, "wo")
        a(f"s_cmp_lg_u32 {sHW}, 0"); a("s_cbranch_scc1 L_hexit")
        self.setexec(0xFFFF)
        for k in range(8): a(f"ds_read_b128 v[{8+4*k}:{11+4*k}], v45 offset:{L_PART + 256*k}")
        a("s_waitcnt lgkmcnt(0)")
        self.sum_rows4([8 + 4 * k for k in range(8)])
        for c in range(4): a(f"v_bfi_b32 v{8+c}, {sFF}, {vTAG}, v{8+c}")
        a(f"buffer_store_dwordx4 v[8:11], v45, {srd(SRD_WS)}, s5 offen sc1")
        self.stamp(7, "wo")
        a.label("L_hexit")
        self.dump_stamps()
        a("s_endpgm")

    def tail_dyn(self):
        a = self.a; p = self.p
        L24 = lanes(24)
        UX, UGA, UC1, USB = 64, 68, 72, 76
        vUT, vUR, vUP, vUA = "v80", "v81", "v82", "v83"
        FX, FGA, FGB = 84, 88, 92
        MS = 72 * 6 * 256
        sTK = "s63"; sDBL = "s62"
        def down_prep():
            a(f"s_mul_i32 {sT2}, s14, {32*1152}"); self.set_srd(SRD_A, sWD, off=sT2, size=32 * 1152)
            a(f"s_lshl_b32 {sT0}, {sHW}, 3")
            a(f"v_lshrrev_b32 v57, 3, {vLANE}"); a(f"v_add_u32 v57, {sT0}, v57"); a("v_mul_u32_u24 v57, 1152, v57")
            a(f"v_and_b32 v8, 7, {vLANE}"); a("v_lshl_add_u32 v57, v8, 4, v57")
            for cb in range(9):
                a(f"buffer_load_dwordx4 a[{48+4*cb}:{51+4*cb}], v57, {srd(SRD_A)}, 0 offen offset:{128*cb} nt")
            a("s_lshr_b32 s15, s14, 1"); a("s_mul_i32 s15, s15, 1536"); a(f"s_and_b32 {sT0}, s14, 1"); a(f"s_lshl_b32 {sT0}, {sT0}, 7"); a(f"s_add_u32 s15, s15, {sT0}")
            a(f"s_lshl_b32 {sT0}, {sHW}, 2"); a(f"s_add_u32 s15, s15, {sT0}")
            a(f"v_and_b32 v8, 7, {vLANE}"); a("v_min_u32 v8, 5, v8"); a("v_lshlrev_b32 v58, 8, v8"); a(f"v_lshrrev_b32 v9, 3, {vLANE}"); a("v_lshl_add_u32 v58, v9, 4, v58"); a("v_add_u32 v58, s15, v58")
            a("v_lshlrev_b32 v59, 7, v8"); a(f"v_add_u32 v59, {WS_ST}, v59")
            self.dpiece_addr(f"v{FX}", "v8", L_DOWN, 2304)
            a(f"s_mul_i32 {sT0}, {sHW}, 48"); a(f"v_add_u32 v{FX+1}, {sT0}, {vLANE}"); a(f"v_lshlrev_b32 v{FX+1}, 4, v{FX+1}")
            a("s_mul_i32 s15, s14, 2304"); a(f"s_add_u32 s15, s15, {WS_OUT}")
        a.label("L_tail")
        a("s_setprio 0")
        self.lds_spin(L_QFLAG, target=1, sleep=8)
        a(f"s_cmp_lg_u32 {sHW}, 2"); a("s_cbranch_scc1 L_tkwait")
        self.lds_spin(L_WCNT, target=p.TKAT, sleep=2)
        self.set_srd(SRD_B, sDBG, size=256)
        a("s_mov_b64 exec, 1")
        a("v_mov_b32 v8, 1")
        a(f"buffer_atomic_add v8, off, {srd(SRD_B)}, 0 sc0")
        a("s_waitcnt vmcnt(0)")
        a(f"v_add_u32 v8, 1, v8"); a(f"v_mov_b32 v9, {L_TICK}"); a("ds_write_b32 v9, v8")
        a("s_mov_b64 exec, -1")
        a.label("L_tkwait")
        self.lds_spin(L_TICK, target=1, sleep=2)
        a(f"s_sub_u32 {sTK}, {sT3}, 1")
        a(f"s_setprio 2")
        self.stamp(4, "fine")
        a(f"s_cmp_ge_u32 {sTK}, 234"); a("s_cbranch_scc1 L_hexit")
        a(f"s_cmp_lt_u32 {sTK}, 72"); a("s_cbranch_scc1 L_wo")
        a(f"s_cmp_ge_u32 {sTK}, 126"); a("s_cbranch_scc1 L_sgl")
        a(f"s_sub_u32 {sT2}, {sTK}, 72"); self.div3("s6", "s7", sT2); a("s_lshl_b32 s6, s6, 1"); a(f"s_mov_b32 {sDBL}, 1")
        a("s_branch L_uprep")
        a.label("L_sgl")
        a(f"s_sub_u32 {sT2}, {sTK}, 126"); self.div3("s6", "s7", sT2); a("s_add_u32 s6, s6, 36"); a(f"s_mov_b32 {sDBL}, 0")
        a.label("L_uprep")
        a(f"s_lshr_b32 {sT0}, {sHW}, 1"); a("s_lshl_b32 s7, s7, 1"); a(f"s_add_u32 s7, s7, {sT0}")
        a(f"s_and_b32 s8, {sHW}, 1")
        a("s_cmp_eq_u32 s8, 0"); a(f"s_cselect_b32 s12, s{sWG}, s{sWU}"); a(f"s_cselect_b32 s13, s{sWG+1}, s{sWU+1}")
        a(f"s_lshl_b32 {sT2}, s6, 7")
        self.set_srd(SRD_C, 12, off=sT2, size_minus_off=576 * 9216)
        a("s_mul_i32 s11, s7, 96"); a(f"v_lshrrev_b32 v56, 3, {vLANE}"); a("v_add_u32 v56, s11, v56"); a("v_mul_u32_u24 v56, 9216, v56")
        a(f"v_and_b32 v8, 7, {vLANE}"); a("v_lshl_add_u32 v56, v8, 4, v56")
        self.lds_spin(L_WCNT if p.WTRIG == "issued" else L_OCNT, target=4, sleep=1)
        self.stamp(5)
        a(f"s_mov_b32 {sT0}, 0")
        for t in range(12):
            a(f"buffer_load_dwordx4 a[{4*t}:{4*t+3}], v56, {srd(SRD_C)}, {sT0} offen nt")
            if t < 11: a(f"s_add_u32 {sT0}, {sT0}, {8*9216}")
        a(f"s_cmp_eq_u32 {sDBL}, 0"); a("s_cbranch_scc1 L_one")
        a(f"s_mov_b32 {sT0}, 128")
        for t in range(12):
            a(f"buffer_load_dwordx4 a[{48+4*t}:{51+4*t}], v56, {srd(SRD_C)}, {sT0} offen nt")
            if t < 11: a(f"s_add_u32 {sT0}, {sT0}, {8*9216}")
        a.label("L_one")
        a("s_mul_i32 s9, s7, 3")
        a(f"v_lshrrev_b32 v8, 3, {vLANE}"); a("v_add_u32 v8, s9, v8")
        self.piece_off("v2", "v8", "v9")
        a(f"v_lshlrev_b32 {vUA}, 7, v8"); a(f"v_and_b32 v9, 7, {vLANE}"); a(f"v_lshl_add_u32 {vUA}, v9, 4, {vUA}"); a(f"v_add_u32 {vUA}, {WS_ATT}, {vUA}")
        self.set_srd(SRD_B, sX, size=1152)
        a("v_lshlrev_b32 v8, 5, v8"); a("v_add_u32 v8, v8, v9"); a("v_lshlrev_b32 v8, 1, v8")
        for r in range(4): a(f"buffer_load_ushort v{UX+r}, v8, {srd(SRD_B)}, 0 offen offset:{16*r}")
        a(f"s_mul_i32 {sT0}, {sHW}, {TBLW}"); a(f"s_add_u32 {sT0}, {sT0}, {L_TBL}")
        a(f"v_and_b32 v8, 7, {vLANE}"); a(f"v_mul_u32_u24 {vUT}, 48, v8"); a(f"v_lshrrev_b32 v9, 3, {vLANE}"); a(f"v_lshl_add_u32 {vUT}, v9, 4, {vUT}"); a(f"v_add_u32 {vUT}, {sT0}, {vUT}")
        a(f"v_mul_u32_u24 {vUR}, 48, v9"); a(f"v_add_u32 {vUR}, {sT0}, {vUR}")
        a(f"v_lshrrev_b32 {vUP}, 4, {vLANE}"); a(f"v_lshlrev_b32 {vUP}, 7, {vUP}"); a(f"v_lshl_add_u32 {vUP}, v8, 4, {vUP}")
        a("s_mul_i32 s10, s8, 72"); a("s_add_u32 s10, s10, s6"); a("s_mul_i32 s10, s10, 6"); a("s_add_u32 s10, s10, s7"); a("s_lshl_b32 s10, s10, 8")
        self.gather_mod([2, 4, 3], "v2", [UGA, UC1, USB], L24, sleep=2)
        a("s_mov_b64 exec, -1")
        for r in range(4): a(f"v_lshlrev_b32 v{UX+r}, 16, v{UX+r}")
        for r in range(4): a(f"v_add_f32 v{UC1+r}, 1.0, v{UC1+r}")
        self.round4(UC1, "v8")
        a(f"s_mov_b32 s61, 0")
        a(f"s_sub_u32 s14, {sTK}, 54"); a(f"s_sub_u32 {sT2}, {sTK}, 126"); a(f"s_cmp_ge_u32 {sT2}, 72"); a("s_cbranch_scc1 L_nodown")
        a("s_mov_b32 s61, 1")
        down_prep()
        a.label("L_nodown")
        a("s_setprio 3")
        for k in range(4): a(f"v_cvt_pk_bf16_f32 v{8+k}, v{UC1+k}, v{UC1+k}")
        for k in range(4): a(f"v_cvt_pk_bf16_f32 v{12+k}, v{USB+k}, v{USB+k}")
        self.setexec(L24); a(f"ds_write_b128 {vUT}, v[8:11]"); a(f"ds_write_b128 {vUT}, v[12:15] offset:384"); a("s_mov_b64 exec, -1")
        for i in range(3): a(f"ds_read_b128 v[{16+4*i}:{19+4*i}], {vUR} offset:{16*i}")
        for i in range(3): a(f"ds_read_b128 v[{28+4*i}:{31+4*i}], {vUR} offset:{384+16*i}")
        a("s_waitcnt lgkmcnt(0)")
        for st_ in range(2):
            if st_ == 1:
                a(f"s_cmp_eq_u32 {sDBL}, 0"); a("s_cbranch_scc1 L_c1done")
            def mk(t):
                for r in range(4): a(f"v_and_b32 v{8+r}, v{16+t}, v{vM[r]}")
            def mk2(t):
                for r in range(4): a(f"v_and_b32 v{12+r}, v{28+t}, v{vM[r]}")
            mk(0)
            for t in range(12):
                A_ = f"a[{48*st_+4*t}:{48*st_+4*t+3}]"
                mk2(t)
                a(f"v_mfma_f32_16x16x32_bf16 v[40:43], {A_}, v[8:11], {'0' if t == 0 else 'v[40:43]'}")
                if t + 1 < 12: mk(t + 1)
                a(f"v_mfma_f32_16x16x32_bf16 v[44:47], {A_}, v[12:15], {'0' if t == 0 else 'v[44:47]'}")
            for r in range(8): a(f"v_mov_b32 v{48+r}, v{40+r}")
            for r in range(8): a(f"v_permlane32_swap_b32 v{40+r}, v{48+r}")
            for r in range(8): a(f"v_add_f32_dpp v{40+r}, v{48+r}, v{40+r} row_ror:8 row_mask:0xf bank_mask:0xf")
            for r in range(8): a(f"v_bfi_b32 v{40+r}, {sFF}, {vTAG}, v{40+r}")
            a(f"s_add_u32 {sT0}, s10, {WS_C + 1536 * st_}"); a(f"s_add_u32 {sT1}, s10, {WS_C + 2 * MS + 1536 * st_}")
            self.setexec(0x00FF00FF)
            a(f"buffer_store_dwordx4 v[40:43], {vUP}, {srd(SRD_WS)}, {sT0} offen sc1"); a(f"buffer_store_dwordx4 v[44:47], {vUP}, {srd(SRD_WS)}, {sT1} offen sc1")
            a("s_mov_b64 exec, -1")
        a.label("L_c1done")
        self.stamp(1, "fine")
        loads = [(8 + 4 * k, 4, vUA, None if k < 2 else (k & ~1) * 2304, (k & 1) * 2304) for k in range(8)]
        if p.CGATE: self.cnt_gate(p.CTGT, p.PS_ATT)
        self.poll(loads, active=L24, sleep=p.SL_ATT)
        self.stamp(6)
        self.sum_rows4([8 + 4 * k for k in range(8)])
        a(f"v_pk_fma_f32 v[{UX}:{UX+1}], v[8:9], v[{UGA}:{UGA+1}], v[{UX}:{UX+1}]"); a(f"v_pk_fma_f32 v[{UX+2}:{UX+3}], v[10:11], v[{UGA+2}:{UGA+3}], v[{UX+2}:{UX+3}]")
        a(f"v_pk_mul_f32 v[{UC1}:{UC1+1}], v[{UX}:{UX+1}], v[{UC1}:{UC1+1}]"); a(f"v_pk_mul_f32 v[{UC1+2}:{UC1+3}], v[{UX+2}:{UX+3}], v[{UC1+2}:{UC1+3}]")
        for k in range(4): a(f"v_cvt_pk_bf16_f32 v{8+k}, v{UC1+k}, v{UC1+k}")
        a(f"ds_write_b128 {vUT}, v[8:11]"); a("s_mov_b64 exec, -1")
        self.tread(16, 3, vUR)
        for st_ in range(2):
            if st_ == 1:
                a(f"s_cmp_eq_u32 {sDBL}, 0"); a("s_cbranch_scc1 L_zdone")
            self.gemv(12, 48 * st_, list(range(16, 28)), 36)
            self.half_add(36, 40)
            for r in range(4): a(f"v_bfi_b32 v{36+r}, {sFF}, {vTAG}, v{36+r}")
            a(f"s_add_u32 {sT0}, s10, {WS_G + 1536 * st_}")
            self.setexec(0x00FF00FF); a(f"buffer_store_dwordx4 v[36:39], {vUP}, {srd(SRD_WS)}, {sT0} offen sc1"); a("s_mov_b64 exec, -1")
        a.label("L_zdone")
        self.stamp(2, "fine")
        a("s_or_b32 s11, s6, s8"); a("s_cmp_lg_u32 s11, 0"); a("s_cbranch_scc1 L_nostat")
        a("v_mov_b32 v12, 0"); a("v_mov_b32 v13, 0")
        self.setexec(L24)
        a(f"v_pk_add_f32 v[14:15], v[{UX}:{UX+1}], v[{UX+2}:{UX+3}]"); a(f"v_pk_mul_f32 v[16:17], v[{UX}:{UX+1}], v[{UX}:{UX+1}]")
        a(f"v_pk_fma_f32 v[16:17], v[{UX+2}:{UX+3}], v[{UX+2}:{UX+3}], v[16:17]")
        a("v_add_f32 v12, v14, v15"); a("v_add_f32 v13, v16, v17")
        a("s_mov_b64 exec, -1")
        self.allreduceN("v_add_f32", [("v12", "v14"), ("v13", "v15")], ["q1", "q2", "r4", "r8", "p16"])
        a("v_mov_b32 v14, 0"); a("v_mov_b32 v15, 0")
        for c in range(4): a(f"v_bfi_b32 v{12+c}, {sFF}, {vTAG}, v{12+c}")
        a("s_lshl_b32 s11, s7, 7"); a(f"s_add_u32 s11, s11, {WS_ST}")
        a("s_mov_b64 exec, 1"); a(f"buffer_store_dwordx4 v[12:15], off, {srd(SRD_WS)}, s11 sc1"); a("s_mov_b64 exec, -1")
        a.label("L_nostat")
        a(f"s_cmp_lt_u32 {sTK}, 90"); a("s_cbranch_scc1 L_fin")
        a("s_cmp_eq_u32 s61, 0"); a("s_cbranch_scc1 L_hexit")
        a.label("L_down")
        self.poll([(20, 1, "v58", WS_C, 0), (21, 1, "v58", WS_C + 2 * MS, 0), (22, 1, "v58", WS_C + MS, 0), (23, 1, "v58", WS_C + 3 * MS, 0)], sleep=p.SL_C)
        self.lane6_reduce([20, 21, 22, 23], 12)
        self.poll([(8, 1, "v58", WS_G, 0), (9, 1, "v58", WS_G + MS, 0), (10, 4, "v59", None, 0)], presleep=p.PS_G, sleep=p.SL_G, strong=(2,))
        self.stamp(3, "fine")
        self.lane6_reduce([8, 9, 10, 11], 14)
        a(f"v_mul_f32 v10, {f32hex(1/576)}, v10"); a(f"v_mul_f32 v11, {f32hex(1/576)}, v11")
        a("v_fma_f32 v11, -v10, v10, v11"); a("v_max_f32 v11, 0, v11"); a(f"v_add_f32 v11, {f32hex(1e-5)}, v11"); a("v_rsq_f32 v11, v11")
        a("v_fma_f32 v8, -v10, v20, v8"); a("v_fma_f32 v9, -v10, v22, v9")
        a("v_fma_f32 v8, v8, v11, v21"); a("v_fma_f32 v9, v9, v11, v23")
        self.sigmoid("v12", "v8", "v12")
        a("v_mul_f32 v8, v12, v9")
        a("v_cvt_pk_bf16_f32 v8, v8, v8")
        for r in range(4): a(f"v_and_b32 v{12+r}, v8, v{vM[r]}")
        for cb in range(9):
            d = 16 + 4 * cb
            a(f"v_mfma_f32_16x16x32_bf16 v[{d}:{d+3}], a[{48+4*cb}:{51+4*cb}], v[12:15], 0")
        self.setexec(self.VALID)
        for cb in range(9): a(f"ds_write_b128 v{FX}, v[{16+4*cb}:{19+4*cb}] offset:{256*cb}")
        a("s_mov_b64 exec, -1")
        a("s_waitcnt lgkmcnt(0)")
        a("s_barrier")
        a(f"s_cmp_ge_u32 {sHW}, 3"); a("s_cbranch_scc1 L_hexit")
        self.setexec(lanes(48))
        for k in range(8): a(f"ds_read_b128 v[{8+4*k}:{11+4*k}], v{FX+1} offset:{L_DOWN + 2304*k}")
        a("s_waitcnt lgkmcnt(0)")
        self.sum_rows4([8 + 4 * k for k in range(8)])
        for c in range(4): a(f"v_bfi_b32 v{8+c}, {sFF}, {vTAG}, v{8+c}")
        a(f"buffer_store_dwordx4 v[8:11], v{FX+1}, {srd(SRD_WS)}, s15 offen sc1")
        self.stamp(7)
        a("s_branch L_hexit")
        a.label("L_fin")
        a(f"s_sub_u32 s14, {sTK}, 72")
        self.set_srd(SRD_B, sX, size=1152)
        a(f"v_and_b32 v46, 7, {vLANE}")
        a("s_lshl_b32 s15, s14, 6"); a("v_lshlrev_b32 v8, 1, v46")
        for r in range(4): a(f"buffer_load_ushort v{FX+r}, v8, {srd(SRD_B)}, s15 offen offset:{16*r}")
        a("v_mov_b32 v8, s14"); self.piece_off("v2", "v8", "v9")
        self.gather_mod([2, 5], "v2", [FGA, FGB], FULL, sleep=2)
        for r in range(4): a(f"v_lshlrev_b32 v{FX+r}, 16, v{FX+r}")
        a("s_lshl_b32 s15, s14, 7"); a("v_lshlrev_b32 v47, 4, v46"); a("v_add_u32 v47, s15, v47")
        a(f"v_lshrrev_b32 v8, 3, {vLANE}"); a("v_mul_u32_u24 v42, 2304, v8"); a("v_add_u32 v42, v42, v47"); a(f"v_add_u32 v42, {WS_ATT}, v42")
        a(f"s_mul_i32 {sT0}, {sHW}, 36"); a(f"v_add_u32 v8, {sT0}, v8"); a("v_mul_u32_u24 v43, 2304, v8"); a("v_add_u32 v43, v43, v47"); a(f"v_add_u32 v43, {WS_OUT}, v43")
        a(f"v_add_u32 v44, {4*8*2304}, v43"); a(f"v_cmp_gt_u32 vcc, 32, {vLANE}"); a("v_cndmask_b32 v44, v43, v44, vcc")
        a(f"s_lshl_b32 {sT0}, {sHW}, 7"); a(f"s_add_u32 {sT0}, {sT0}, {L_FIN}"); a("v_lshlrev_b32 v45, 4, v46"); a(f"v_add_u32 v40, {sT0}, v45")
        self.poll([(8, 4, "v42", None, 0)], sleep=1)
        self.allreduceN("v_add_f32", [(f"v{8+c}", f"v{12+c}") for c in range(4)], ["r8", "p16", "p32"])
        a(f"v_pk_fma_f32 v[{FX}:{FX+1}], v[8:9], v[{FGA}:{FGA+1}], v[{FX}:{FX+1}]"); a(f"v_pk_fma_f32 v[{FX+2}:{FX+3}], v[10:11], v[{FGA+2}:{FGA+3}], v[{FX+2}:{FX+3}]")
        self.set_srd(SRD_B, sOUT, size=1152)
        a("s_lshl_b32 s15, s14, 6"); a("v_lshlrev_b32 v49, 1, v46")
        self.stamp(3, "fine")
        self.poll([(8, 4, "v43", None, 0), (12, 4, "v43", 8*2304, 0), (16, 4, "v43", 16*2304, 0), (20, 4, "v43", 24*2304, 0), (24, 4, "v44", None, 0)], presleep=p.PS_OUT, sleep=p.SL_OUT)
        a(f"v_cmp_gt_u32 vcc, 32, {vLANE}")
        self.sum_rows4([8, 12, 16, 20])
        for c in range(4): a(f"v_cndmask_b32 v{24+c}, 0, v{24+c}, vcc")
        self.sum_rows4([8, 24])
        self.allreduceN("v_add_f32", [(f"v{8+c}", f"v{12+c}") for c in range(4)], ["r8", "p16", "p32"])
        self.setexec(0xFF)
        a("ds_write_b128 v40, v[8:11]")
        a("s_mov_b64 exec, -1")
        a("s_waitcnt lgkmcnt(0)")
        a("s_barrier")
        a(f"s_cmp_lg_u32 {sHW}, 0"); a("s_cbranch_scc1 L_hexit")
        self.setexec(0xFF)
        for w in range(4): a(f"ds_read_b128 v[{8+4*w}:{11+4*w}], v45 offset:{L_FIN + 128*w}")
        a("s_waitcnt lgkmcnt(0)")
        self.sum_rows4([8, 12, 16, 20])
        a(f"v_pk_fma_f32 v[8:9], v[8:9], v[{FGB}:{FGB+1}], v[{FX}:{FX+1}]"); a(f"v_pk_fma_f32 v[10:11], v[10:11], v[{FGB+2}:{FGB+3}], v[{FX+2}:{FX+3}]")
        a("v_cvt_pk_bf16_f32 v12, v8, v9"); a("v_cvt_pk_bf16_f32 v13, v10, v11")
        a(f"buffer_store_short v12, v49, {srd(SRD_B)}, s15 offen"); a(f"buffer_store_short_d16_hi v12, v49, {srd(SRD_B)}, s15 offen offset:16")
        a(f"buffer_store_short v13, v49, {srd(SRD_B)}, s15 offen offset:32"); a(f"buffer_store_short_d16_hi v13, v49, {srd(SRD_B)}, s15 offen offset:48")
        self.stamp(7)
        a("s_cmp_lg_u32 s14, 0"); a("s_cbranch_scc1 L_hexit")
        a("s_mov_b64 exec, 1")
        a(f"v_mov_b32 v8, {sTAG}")
        a(f"buffer_store_dword v8, off, {srd(SRD_WS)}, 0 sc1")
        a("s_branch L_hexit")
        a.label("L_wo")
        a(f"s_and_b32 {sR0}, {sTK}, 7"); a(f"s_lshr_b32 {sR1}, {sTK}, 3")
        a(f"s_lshl_b32 {sT2}, {sR1}, 7")
        self.set_srd(SRD_A, sWO, off=sT2, size_minus_off=4096 * 1152)
        a(f"s_lshl_b32 {sR2}, {sR0}, 2"); a(f"s_add_u32 {sR2}, {sR2}, {sHW}")
        a(f"s_lshl_b32 {sT0}, {sR2}, 7")
        a(f"v_lshrrev_b32 v1, 3, {vLANE}"); a(f"v_add_u32 v1, {sT0}, v1"); a("v_mul_u32_u24 v1, 1152, v1")
        a(f"v_and_b32 v2, 7, {vLANE}"); a("v_lshl_add_u32 v1, v2, 4, v1")
        self.lds_spin(L_WCNT, target=4, sleep=1)
        self.stamp(5)
        a(f"s_mov_b32 {sT0}, 0")
        for t in range(16):
            a(f"buffer_load_dwordx4 a[{96+4*t}:{99+4*t}], v1, {srd(SRD_A)}, {sT0} offen nt")
            if t < 15: a(f"s_add_u32 {sT0}, {sT0}, 9216")
        a(f"s_mul_i32 s4, {sR2}, {8*OSLOT}"); a("s_add_u32 s4, s4, " + str(WS_O))
        a(f"s_mul_i32 {sT0}, {sR0}, 2304"); a(f"s_lshl_b32 {sT1}, {sR1}, 8"); a(f"s_add_u32 {sT0}, {sT0}, {sT1}"); a(f"s_add_u32 s5, {sT0}, {WS_ATT}")
        a(f"v_and_b32 v41, 7, {vLANE}"); a(f"v_mul_u32_u24 v41, {OSLOT}, v41")
        a(f"v_lshlrev_b32 v40, 3, {vLANE}")
        a(f"v_and_b32 v8, 3, {vLANE}"); a("v_mul_u32_u24 v8, 160, v8"); a(f"v_lshrrev_b32 v42, 2, {vLANE}"); a("v_lshl_add_u32 v42, v42, 2, v8")
        a(f"s_mul_i32 {sT0}, {sHW}, {TBLW}"); a(f"s_add_u32 {sT0}, {sT0}, {L_TBL}"); a(f"v_add_u32 v42, {sT0}, v42")
        self.taddr_r("v43", 20)
        self.dpiece_addr("v44", "v8", L_PART, 256)
        a(f"v_lshlrev_b32 v45, 4, {vLANE}")
        a("s_add_u32 s15, s4, 3200")
        self.poll([(8, 4, "v41", "s4", 512)], sleep=4, strong=(0,))
        a(f"v_and_b32 v8, {sFFFF0000}, v8")
        a("v_mov_b32 v10, v8")
        self.allreduce("v_max_f32", "v10", "v11", ["q1", "q2", "hm"])
        a("v_sub_f32 v11, v8, v10"); a(f"v_mul_f32 v11, 0x{LOG2E:08x}, v11"); a("v_exp_f32 v11, v11")
        a("v_mul_f32 v12, v11, v9")
        self.allreduce("v_add_f32", "v12", "v13", ["q1", "q2", "hm"])
        a("v_rcp_f32 v12, v12"); a("v_mul_f32 v11, v11, v12")
        for s_ in range(8): a(f"v_mov_b32_dpp v{48+s_}, v11 row_newbcast:{s_} row_mask:0xf bank_mask:0xf")
        a("s_setprio 3")
        if p.CGATE_O: self.cnt_gate(p.CTGT_O, p.PS_O)
        self.poll([(8 + 2 * s_, 2, "v40", "s4" if s_ < 6 else "s15", s_ * OSLOT if s_ < 6 else (s_ - 5) * OSLOT) for s_ in range(8)], sleep=p.SL_O)
        self.stamp(6, "wo")
        a("v_pk_mul_f32 v[24:25], v[8:9], v[48:49] op_sel_hi:[1,0]")
        a("v_pk_mul_f32 v[26:27], v[10:11], v[48:49] op_sel:[0,1]")
        for s_ in range(2, 8):
            d = 24 + 2 * (s_ & 1); w = 48 + (s_ & ~1)
            sel = "op_sel_hi:[1,0,1]" if (s_ & 1) == 0 else "op_sel:[0,1,0]"
            a(f"v_pk_fma_f32 v[{d}:{d+1}], v[{8+2*s_}:{9+2*s_}], v[{w}:{w+1}], v[{d}:{d+1}] {sel}")
        self.pk_add(24, 24, 26)
        a("v_cvt_pk_bf16_f32 v24, v24, v24"); a("v_cvt_pk_bf16_f32 v25, v25, v25")
        a("ds_write_b32 v42, v24"); a("ds_write_b32 v42, v25 offset:80")
        self.tread(16, 4, "v43")
        self.gemv(16, 96, list(range(16, 32)), 36)
        self.setexec(self.VALID); a("ds_write_b128 v44, v[36:39]"); a("s_mov_b64 exec, -1")
        a("s_waitcnt lgkmcnt(0)")
        a("s_barrier")
        a(f"s_cmp_lg_u32 {sHW}, 0"); a("s_cbranch_scc1 L_wo_done")
        self.setexec(0xFFFF)
        for k in range(8): a(f"ds_read_b128 v[{8+4*k}:{11+4*k}], v45 offset:{L_PART + 256*k}")
        a("s_waitcnt lgkmcnt(0)")
        self.sum_rows4([8 + 4 * k for k in range(8)])
        for c in range(4): a(f"v_bfi_b32 v{8+c}, {sFF}, {vTAG}, v{8+c}")
        a(f"buffer_store_dwordx4 v[8:11], v45, {srd(SRD_WS)}, s5 offen sc1")
        a("s_mov_b64 exec, -1")
        self.stamp(1, "wo")
        a.label("L_wo_done")
        a(f"s_mov_b32 s14, {sTK}")
        down_prep()
        a("s_branch L_down")
        a.label("L_hexit")
        self.dump_stamps(extra=sTK)
        a("s_endpgm")

    def group_watch(self):
        a = self.a; p = self.p
        if not p.GSYNC: return
        a(f"s_cmp_lg_u32 {sHW}, 2"); a("s_cbranch_scc1 L_nogw")
        self.lds_spin(L_MLCNT, target=4, sleep=8)
        a(f"s_lshr_b32 {sT0}, s100, 3"); a(f"s_mul_i32 s4, {sT0}, {8*OSLOT}"); a("s_add_u32 s4, s4, " + str(WS_O))
        a(f"v_and_b32 v41, 7, {vLANE}"); a(f"v_mul_u32_u24 v41, {OSLOT}, v41")
        self.poll([(8, 4, "v41", "s4", 512)], active=0xFF, sleep=p.SL_GW, strong=(0,))
        a("s_mov_b64 exec, 1")
        a(f"v_mov_b32 v8, {L_GRP}"); a("v_mov_b32 v9, 1"); a("ds_write_b32 v8, v9")
        a("s_mov_b64 exec, -1")
        a.label("L_nogw")

    def read_ticket(self):
        a = self.a; L = a.uid("Ltk")
        a(f"s_cmp_lg_u32 {sHW}, 0"); a(f"s_cbranch_scc1 {L}")
        self.set_srd(SRD_B, sDBG, size=256)
        a("s_mov_b64 exec, 1")
        a("v_mov_b32 v8, 1")
        a(f"buffer_atomic_add v8, off, {srd(SRD_B)}, 0 sc0")
        a("s_waitcnt vmcnt(0)")
        a(f"v_add_u32 v8, 1, v8"); a(f"v_mov_b32 v9, {L_TICK}"); a("ds_write_b32 v9, v8")
        a("s_mov_b64 exec, -1")
        a.label(L)
        self.lds_spin(L_TICK, target=1, sleep=1)
        a(f"s_sub_u32 s63, {sT3}, 1")

    def go_watch(self, lab):
        a = self.a; p = self.p
        if not p.GT: return
        L = a.uid("Lgo"); E = a.uid("Lgoe")
        a(f"s_cmp_lg_u32 {sHW}, 2"); a(f"s_cbranch_scc1 {lab}")
        self.lds_spin(L_WCNT, target=4, sleep=2)
        self.set_srd(SRD_B, sDBG, size=256)
        a("s_mov_b64 exec, 1")
        a("v_mov_b32 v8, 1")
        a(f"buffer_atomic_add v8, off, {srd(SRD_B)}, 0 sc0")
        a("s_waitcnt vmcnt(0)")
        a(f"v_readfirstlane_b32 {sT3}, v8"); a(f"s_add_u32 {sT3}, {sT3}, 1")
        a(f"s_mov_b32 {sSPIN}, 0")
        a.label(L)
        a(f"s_cmp_ge_u32 {sT3}, {p.GT}"); a(f"s_cbranch_scc1 {E}")
        a(f"s_sleep {p.GSL}")
        a(f"buffer_load_dword v8, off, {srd(SRD_B)}, 0 sc1")
        a("s_waitcnt vmcnt(0)")
        a(f"v_readfirstlane_b32 {sT3}, v8")
        a(f"s_add_u32 {sSPIN}, {sSPIN}, 1"); a(f"s_cmp_lt_u32 {sSPIN}, {SPIN_MAX}"); a(f"s_cbranch_scc1 {L}")
        a.label(E)
        a(f"v_mov_b32 v8, {L_GO}"); a("v_mov_b32 v9, 1"); a("ds_write_b32 v8, v9")
        a("s_mov_b64 exec, -1")
        a.label(lab)

    def go_watch_u(self): self.go_watch("L_nogo_u")
    def go_watch_w(self): self.go_watch("L_nogo_w")

    def cnt_gate(self, target, presleep):
        a = self.a; L = a.uid("Lcg"); E = a.uid("Lcge")
        self.set_srd(SRD_B, sDBG, size=256)
        a(f"s_mov_b32 {sSPIN}, 0")
        a.label(L)
        a(f"buffer_load_dword v61, off, {srd(SRD_B)}, 0 sc1")
        a("s_waitcnt vmcnt(0)")
        a(f"v_readfirstlane_b32 {sT3}, v61")
        a(f"s_cmp_ge_u32 {sT3}, {target}"); a(f"s_cbranch_scc1 {E}")
        a("s_sleep 6")
        a(f"s_add_u32 {sSPIN}, {sSPIN}, 1"); a(f"s_cmp_lt_u32 {sSPIN}, {SPIN_MAX}"); a(f"s_cbranch_scc1 {L}")
        a.label(E)
        n = presleep
        while n > 0:
            a(f"s_sleep {min(n, 127)}"); n -= 127

    def lane6_reduce(self, regs, T):
        a = self.a
        a(f"v_and_b32 v{T}, 7, {vLANE}"); a(f"v_cmp_gt_u32 vcc, 6, v{T}")
        for r in regs: a(f"v_cndmask_b32 v{r}, 0, v{r}, vcc")
        self.allreduceN("v_add_f32", [(f"v{r}", f"v{T}") for r in regs], ["q1", "q2", "hm"])

    def build(self):
        self.prologue(); self.swave(); self.hwave()
        self.a.label("L_exit"); self.a("s_endpgm")
        return autonop(self.a.lines)

HEADER = open("adaLN_cond__mha_block_cached__glu_gated_glu__decode.s.ref").read().split("; Override launch geometry")[0]

LAST_SITES = {}
def make(p=P):
    g = Gen(p)
    body = g.build()
    global LAST_SITES
    LAST_SITES = getattr(g, "sites", {})
    txt = HEADER + "; Override launch geometry by editing the next line (default: block=256,\n; grid=ceil(out_elems/256), lds=0). Harness parses it; keep it on one line.\n"
    txt += f"; @launch grid=(256,1,1) block=(512,1,1) lds={LDS_BYTES}\n"
    txt += f""".amdgcn_target "amdgcn-amd-amdhsa--gfx950"
.text
.globl {KNAME}
.p2align 8
.type {KNAME},@function
{KNAME}:
"""
    txt += "\n".join(("" if l.endswith(":") else "    ") + l for l in body) + "\n"
    txt += f""".section .rodata,"a"
.p2align 6
.amdhsa_kernel {KNAME}
  .amdhsa_next_free_vgpr 256
  .amdhsa_next_free_sgpr 102
  .amdhsa_accum_offset {NVGPR}
  .amdhsa_group_segment_fixed_size 0
  .amdhsa_kernarg_size 112
  .amdhsa_user_sgpr_count 2
  .amdhsa_user_sgpr_kernarg_segment_ptr 1
  .amdhsa_system_sgpr_workgroup_id_x 1
.end_amdhsa_kernel
"""
    return txt

def report_h(pr, hw, mode, dyn=True):
    if not dyn:
        u = hw[72:252]
        if mode == "fine":
            pr("late trigger", u[:, :, 5]); pr("unit: C done", u[:, :, 1]); pr("unit: attn gathered", u[:, :, 6]); pr("unit: G published", u[:, :, 2])
            pr("  C done singles", hw[72:216, :, 1]); pr("  C done doubles", hw[216:252, :, 1]); pr("  attn gath singles", hw[72:216, :, 6]); pr("  attn gath doubles", hw[216:252, :, 6])
            pr("  G pub singles", hw[72:216, :, 2]); pr("  G pub doubles", hw[216:252, :, 2])
            g = hw[72:252, :, 2]; late = np.argsort(g.max(1))[-8:]
            print("   latest G publishers (id, trig, Cdone, attn, Gpub):", [(int(72 + k), round(float(hw[72+k, :, 5].max()), 2), round(float(hw[72+k, :, 1].max()), 2), round(float(hw[72+k, :, 6].max()), 2), round(float(g[k].max()), 2)) for k in late])
            pr("down: G gathered", hw[72:216, :, 3]); pr("down: published", hw[72:216, :3, 7]); pr("fin: x1", hw[216:234, :, 3]); pr("fin: done", hw[216:234, 0, 7])
        elif mode == "fin":
            f = hw[216:234]
            pr("down: published", hw[72:216, :3, 7]); pr("down: store acked", hw[72:216, :3, 6]); pr("fin: OUT gathered", f[:, :, 1]); pr("fin: before barrier", f[:, :, 2]); pr("fin: after barrier", f[:, :, 3]); pr("fin: done", f[:, 0, 7])
        elif mode == "wo":
            w = hw[:72]; pr("wo: trigger", w[:, :, 5]); pr("wo: ML+weights done", w[:, :, 2]); pr("wo: gathered", w[:, :, 6]); pr("wo: barrier passed", w[:, :, 3]); pr("wo: published", w[:, 0, 7])
        return
    if mode == "pre":
        qs = hw[:192, 0]; mc = hw[192:246, 0]; mn = hw[72:180, 1]
        pr("q gathered (H3)", hw[:, 3, 4])
    elif mode == "wo":
        w = hw[:72]
        pr("wo: trigger", w[:, :, 5]); pr("wo: gathered", w[:, :, 6]); pr("wo: published", w[:, 0, 1])
    elif mode == "fine":
        u = hw[72:234]
        pr("ticket known", hw[:234, :, 4]); pr("ticket W", hw[:72, :, 4]); pr("ticket D", hw[72:126, :, 4]); pr("ticket S", hw[126:234, :, 4])
        pr("unit trigger", u[:, :, 5]); pr("unit: C done D", hw[72:126, :, 1]); pr("unit: C done S", hw[126:234, :, 1]); pr("unit: attn gathered D", hw[72:126, :, 6]); pr("unit: attn gathered S+dn", hw[126:198, :, 6]); pr("unit: attn gathered S", hw[198:234, :, 6])
        pr("G published D", hw[72:126, :, 2]); pr("G published S+dn", hw[126:198, :, 2]); pr("G published S", hw[198:234, :, 2])
        print("   attn gathered by wave:", [round(float(u[:, w, 6].mean()), 2) for w in range(4)], "max", [round(float(u[:, w, 6].max()), 2) for w in range(4)])
        late = np.argsort(u[:, :, 6].max(1))[-6:]; print("   latest attn gathers (ticket, times, Cdone):", [(int(72 + k), u[k, :, 6].round(2).tolist(), u[k, :, 1].round(2).tolist()) for k in late])
        dn = np.concatenate([hw[:72], hw[126:198]])
        pr("down: G gathered", dn[:, :, 3]); pr("down: published", dn[:, :3, 7]); pr("fin: x1", hw[72:90, :, 3]); pr("fin: done", hw[72:90, 0, 7])
    else:
        u = hw[72:234]
        pr("unit trigger", u[:, :, 5]); pr("unit: attn gathered", u[:, :, 6]); pr("fin: done", hw[72:90, 0, 7])
def end_time(hw, dyn=True): return hw[72:90, 0, 7].max() if dyn else hw[216:234, 0, 7].max()
def order_h(hw, tickets):
    o = np.argsort(tickets, kind="stable")
    return hw[o]
import numpy as np

if __name__ == "__main__":
    out = sys.argv[1] if len(sys.argv) > 1 else "adaLN_cond__mha_block_cached__glu_gated_glu__decode.s"
    open(out, "w").write(make())
    print("wrote", out)
```

```python
import sys
from asmlib import Asm, autonop

KNAME = "adaLN_cond__mha_block_cached__glu_gated_glu__decode_kernel"

WS_EPOCH = 0
WS_O = 0x10000
OSLOT = 640
WS_ATT = 0x40000
WS_MOD = 0x80000
WS_Q = 0x90000
WS_OUT = 0xA0000
WS_G = 0x100000
WS_C = 0x140000
WS_ST = 0x1B0000
WS_DBG = 0x200000
WS_SIZE = 0x300000

L_QFLAG = 0
L_WCNT = 4
L_MLCNT = 8
L_OCNT = 12
L_TICK = 16
L_GRP = 20
L_W2 = 24
L_GO = 28
L_SENT = 32
L_Q = 0x40
L_ML = 0x180
L_STAT = 0x1C0
L_TBL = 0x200
TBLW = 768
L_PART = 0x1000
L_OPART = 0x1800
L_FIN = 0x2000
L_DOWN = 0x3000
L_KRING = 0x8000
LDS_BYTES = 0x8000 + 4 * 24 * 1024

LOG2E = 0x3FB8AA3B
SCALE = 0x3DB504F3
SPIN_MAX = 200000
NVGPR = 96

class P:
    R = 44
    D = 5
    NP = 44
    STAMPS = False
    MODE = "tail"
    QSLEEP = 16
    WTRIG = 'done'
    FULLCHECK = False
    LATEMOD = False
    WOEARLY = True
    MAP2 = False
    WOLATE = True
    DYN = False
    DOWNAFTERC = False
    LPACE = 0
    LPACE_T = 150
    NOTAIL = False
    MAPKV = 0
    DBLEARLY = True
    CMERGE = True
    GSYNC = 0
    MLAT = 12
    SL_GW = 8
    TKAT = 1
    SL_C = 2
    SL_O = 0
    CGATE = False
    CTGT = 256
    PS_ATT = 60
    CGATE_O = False
    CTGT_O = 256
    PS_O = 10
    SL_ATT = 0
    SL_G = 0
    SL_OUT = 0
    KVPOL = 'nt'
    WPOL = 'nt'
    DOWNLATER = True
    WOTGT = 4
    WOAT = 0
    MAP3 = False
    REPAIR = False
    UNITPACE = 0
    TOUTDBG = False
    SENT_ATT = 8
    SENT1 = False
    AD_O = None
    STREP = False
    SL_FA = 1
    SENT_K = 0
    GT = 0
    GT_W = False
    GSL = 8
    DUP_G = 0
    DUP_OUT = 0
    DUP_O = 0
    UEARLY = False
    UPACE = 2
    UAT = 0
    PRETOUCH = False
    HPRIO0 = 1
    HDELAY = 0
    KLDS = True
    PS_A = 60
    SL_A = 16
    PS_QG = 240
    PS_G = 0
    PS_OUT = 0
    PS_Q = 0
    DEND = 10
    DENDAT = 32
    D2 = 0
    NEARLY = 0
    EPACE = 1
    WTHR = 0
    SPRIO = 2
    WOPACE = 2

def f32hex(x):
    import struct
    return "0x%08x" % struct.unpack("<I", struct.pack("<f", x))[0]

sWAVE = "s3"
sX, sK, sV, sWQ, sWO, sWG, sWU, sWD, sC, sWM, sOUT, sDBG, sWS = 16, 18, 20, 22, 24, 28, 30, 32, 34, 36, 38, 40, 42
SRD_A, SRD_B, SRD_WS, SRD_C = 44, 48, 52, 56
sTAG = "s64"
sT0, sT1, sT2, sT3 = "s65", "s66", "s67", "s68"
sSPIN = "s69"
sSAVE = 72
sHW = "s76"
sR0, sR1, sR2, sR3 = "s77", "s78", "s79", "s83"
sFFFF0000 = "s80"
sFF = "s81"
sSTAMP = 84
def srd(b): return f"s[{b}:{b+3}]"
def sp(b): return f"s[{b}:{b+1}]"
vLANE = "v3"
vM = [4, 5, 6, 7]
vTAG = "v60"
FULL = (1 << 64) - 1
def lanes(n): return (1 << n) - 1

class Gen:
    def __init__(self, p=P):
        self.a = Asm(); self.p = p

    def mask64(self, sreg, val):
        self.a(f"s_mov_b32 s{sreg}, 0x{val & 0xffffffff:08x}"); self.a(f"s_mov_b32 s{sreg+1}, 0x{(val >> 32) & 0xffffffff:08x}")
    def setexec(self, val):
        a = self.a
        if val == FULL: a("s_mov_b64 exec, -1")
        elif val <= 64: a(f"s_mov_b64 exec, {val}")
        elif val < (1 << 32): a(f"s_mov_b64 exec, 0x{val:x}")
        else:
            a(f"s_mov_b32 exec_lo, 0x{val & 0xffffffff:08x}"); a(f"s_mov_b32 exec_hi, 0x{(val >> 32) & 0xffffffff:08x}")
    def stamp(self, idx, mode="tail"):
        if self.p.STAMPS and (mode == self.p.MODE or mode == "all" or (mode == "tail" and self.p.MODE in ("fine", "fin", "wo"))):
            self.a(f"s_memrealtime s[{sSTAMP+2*idx}:{sSTAMP+2*idx+1}]")
    def dump_stamps(self, n=8, extra=None):
        if not self.p.STAMPS: return
        a = self.a
        a("s_waitcnt lgkmcnt(0)")
        a("s_mov_b64 exec, -1")
        a(f"s_lshl_b32 {sT0}, s2, 3"); a(f"s_add_u32 {sT0}, {sT0}, {sWAVE}"); a(f"s_lshl_b32 {sT0}, {sT0}, 7")
        a(f"s_add_u32 {sT0}, {sT0}, {WS_DBG}")
        for i in range(2 * n): a(f"v_writelane_b32 v8, s{sSTAMP+i}, {i}")
        if extra: a(f"v_writelane_b32 v8, {extra}, 16")
        a(f"v_lshlrev_b32 v9, 2, {vLANE}")
        a("s_mov_b64 exec, 0x1ffff")
        a(f"buffer_store_dword v8, v9, {srd(SRD_WS)}, {sT0} offen")
    def tout(self, site):
        if not self.p.TOUTDBG: return
        a = self.a
        self.site = getattr(self, "site", 0) + 1
        self.sites = getattr(self, "sites", {}); self.sites[self.site] = site
        a("s_mov_b64 s[96:97], exec"); a("s_mov_b64 exec, 1")
        a(f"s_lshl_b32 s98, s2, 3"); a(f"s_add_u32 s98, s98, {sWAVE}"); a("s_lshl_b32 s98, s98, 2"); a(f"s_add_u32 s98, s98, {WS_DBG + 0x10000}")
        a(f"v_mov_b32 v63, {self.site}")
        a(f"buffer_store_dword v63, off, {srd(SRD_WS)}, s98 sc1")
        a("s_mov_b64 exec, s[96:97]")
    def lds_spin(self, addr, target=1, vtmp="v61", vaddr="v62", sleep=1):
        a = self.a; L = a.uid("Lspin"); E = a.uid("Lspun")
        a(f"v_mov_b32 {vaddr}, {addr}")
        a(f"s_mov_b32 {sSPIN}, 0")
        a.label(L)
        a(f"ds_read_b32 {vtmp}, {vaddr}")
        a("s_waitcnt lgkmcnt(0)")
        a(f"v_readfirstlane_b32 {sT3}, {vtmp}")
        a(f"s_cmp_ge_u32 {sT3}, {target}")
        a(f"s_cbranch_scc1 {E}")
        if sleep: a(f"s_sleep {sleep}")
        a(f"s_add_u32 {sSPIN}, {sSPIN}, 1")
        a(f"s_cmp_lt_u32 {sSPIN}, {SPIN_MAX * 4}")
        a(f"s_cbranch_scc1 {L}")
        self.tout(f"lds_spin addr={addr} target={target}")
        a.label(E)
    def lds_add1(self, addr, va, vb):
        a = self.a
        a("s_mov_b64 exec, 1")
        a(f"v_mov_b32 {va}, {addr}"); a(f"v_mov_b32 {vb}, 1"); a(f"ds_add_u32 {va}, {vb}")
        a("s_mov_b64 exec, -1")
    def poll(self, loads, active=None, sleep=0, tmps=("v61", "v62", "v63"), presleep=0, strong=(), adapt=None):
        a = self.a; L = a.uid("Lpoll"); E = a.uid("Lpolled")
        t0, t1, t2 = tmps
        sMISS = "s70"
        if active is not None: self.setexec(active)
        if presleep: a(f"s_sleep {presleep}")
        n = len(loads)
        def issue(ld):
            (dst, k, voff, soff, imm) = ld
            op = {1: "buffer_load_dword", 2: "buffer_load_dwordx2", 4: "buffer_load_dwordx4"}[k]
            r = f"v{dst}" if k == 1 else f"v[{dst}:{dst+k-1}]"
            if soff is not None and not str(soff).startswith("s"):
                a(f"s_mov_b32 {sT3}, {soff}"); so = sT3
            else: so = soff if soff is not None else "0"
            a(f"{op} {r}, {voff}, {srd(SRD_WS)}, {so} offen offset:{imm} sc1")
        def test(li, ld):
            if li in strong or self.p.FULLCHECK:
                a(f"v_xor_b32 {t0}, {vTAG}, v{ld[0]}")
                k = 1
                while k < ld[1]:
                    if k + 1 < ld[1]:
                        a(f"v_xor_b32 {t1}, {vTAG}, v{ld[0]+k}"); a(f"v_xor_b32 {t2}, {vTAG}, v{ld[0]+k+1}"); a(f"v_or3_b32 {t0}, {t0}, {t1}, {t2}"); k += 2
                    else:
                        a(f"v_xor_b32 {t1}, {vTAG}, v{ld[0]+k}"); a(f"v_or_b32 {t0}, {t0}, {t1}"); k += 1
                a(f"v_cmp_ne_u32_sdwa vcc, 0, {t0} src0_sel:DWORD src1_sel:BYTE_0") if False else (a(f"v_and_b32 {t0}, 0xff, {t0}"), a(f"v_cmp_ne_u32 vcc, 0, {t0}"))
            else:
                a(f"v_cmp_ne_u32_sdwa vcc, {vTAG}, v{ld[0]} src0_sel:BYTE_0 src1_sel:BYTE_0")
        if n == 1:
            a(f"s_mov_b32 {sSPIN}, 0")
            a.label(L)
            issue(loads[0]); a("s_waitcnt vmcnt(0)")
            test(0, loads[0])
            a(f"s_cbranch_vccz {E}")
            if sleep: a(f"s_sleep {sleep}")
            a(f"s_add_u32 {sSPIN}, {sSPIN}, 1"); a(f"s_cmp_lt_u32 {sSPIN}, {SPIN_MAX}"); a(f"s_cbranch_scc1 {L}")
            self.tout(f"poll1 {loads[0]}")
            a.label(E)
            return
        for ld in loads: issue(ld)
        a(f"s_mov_b32 {sMISS}, 0")
        for li, ld in enumerate(loads):
            Lk = a.uid("Lk")
            a(f"s_waitcnt vmcnt({n-1-li})")
            test(li, ld)
            a(f"s_cbranch_vccz {Lk}")
            a(f"s_bitset1_b32 {sMISS}, {li}")
            a.label(Lk)
        a(f"s_cmp_eq_u32 {sMISS}, 0"); a(f"s_cbranch_scc1 {E}")
        a(f"s_mov_b32 {sSPIN}, 0")
        a.label(L)
        if sleep: a(f"s_sleep {sleep}")
        if adapt:
            Lk = a.uid("La")
            a(f"s_bcnt1_i32_b32 {sT3}, {sMISS}"); a(f"s_cmp_lt_u32 {sT3}, {adapt[0]}"); a(f"s_cbranch_scc1 {Lk}")
            a(f"s_sleep {adapt[1]}"); a.label(Lk)
        for li, ld in enumerate(loads):
            Lk = a.uid("Ls")
            a(f"s_bitcmp1_b32 {sMISS}, {li}"); a(f"s_cbranch_scc0 {Lk}")
            issue(ld); a.label(Lk)
        a("s_waitcnt vmcnt(0)")
        for li, ld in enumerate(loads):
            Lk = a.uid("Lt")
            a(f"s_bitcmp1_b32 {sMISS}, {li}"); a(f"s_cbranch_scc0 {Lk}")
            test(li, ld)
            a(f"s_cbranch_vccnz {Lk}")
            a(f"s_bitset0_b32 {sMISS}, {li}")
            a.label(Lk)
        a(f"s_cmp_eq_u32 {sMISS}, 0"); a(f"s_cbranch_scc1 {E}")
        a(f"s_add_u32 {sSPIN}, {sSPIN}, 1"); a(f"s_cmp_lt_u32 {sSPIN}, {SPIN_MAX}"); a(f"s_cbranch_scc1 {L}")
        self.tout(f"pollN n={n} first={loads[0]}")
        a.label(E)
    def poll_dup(self, loads, bdst, gap, active=None, strong=(), tmps=("v61", "v62", "v63")):
        a = self.a; L = a.uid("Lpd"); E = a.uid("Lpde"); B = a.uid("Lpdb")
        t0, t1, t2 = tmps
        if active is not None: self.setexec(active)
        n = len(loads)
        def issue(ld, dst):
            (_, k, voff, soff, imm) = ld
            op = {1: "buffer_load_dword", 2: "buffer_load_dwordx2", 4: "buffer_load_dwordx4"}[k]
            r = f"v{dst}" if k == 1 else f"v[{dst}:{dst+k-1}]"
            if soff is not None and not str(soff).startswith("s"):
                a(f"s_mov_b32 {sT3}, {soff}"); so = sT3
            else: so = soff if soff is not None else "0"
            a(f"{op} {r}, {voff}, {srd(SRD_WS)}, {so} offen offset:{imm} sc1")
        def test(dsts):
            regs = []
            for li, (ld, d) in enumerate(zip(loads, dsts)):
                regs += [d + k for k in range(ld[1])] if li in strong else [d]
            a(f"v_xor_b32 {t0}, {vTAG}, v{regs[0]}")
            k = 1
            while k < len(regs):
                if k + 1 < len(regs):
                    a(f"v_xor_b32 {t1}, {vTAG}, v{regs[k]}"); a(f"v_xor_b32 {t2}, {vTAG}, v{regs[k+1]}"); a(f"v_or3_b32 {t0}, {t0}, {t1}, {t2}"); k += 2
                else:
                    a(f"v_xor_b32 {t1}, {vTAG}, v{regs[k]}"); a(f"v_or_b32 {t0}, {t0}, {t1}"); k += 1
            a(f"v_cmp_ne_u32_sdwa vcc, 0, {t0} src0_sel:DWORD src1_sel:BYTE_0")
        adst = [ld[0] for ld in loads]
        a(f"s_mov_b32 {sSPIN}, 0")
        a.label(L)
        for ld in loads: issue(ld, ld[0])
        a(f"s_sleep {gap}")
        for ld, d in zip(loads, bdst): issue(ld, d)
        a(f"s_waitcnt vmcnt({n})")
        test(adst)
        a(f"s_cbranch_vccz {E}")
        a("s_waitcnt vmcnt(0)")
        test(bdst)
        a(f"s_cbranch_vccz {B}")
        a(f"s_add_u32 {sSPIN}, {sSPIN}, 1"); a(f"s_cmp_lt_u32 {sSPIN}, {SPIN_MAX}"); a(f"s_cbranch_scc1 {L}")
        a.label(B)
        for ld, d in zip(loads, bdst):
            for k in range(ld[1]): a(f"v_mov_b32 v{ld[0]+k}, v{d+k}")
        a.label(E)

    def bf16_round(self, dst, src, tmp):
        self.a(f"v_cvt_pk_bf16_f32 {tmp}, {src}, {src}"); self.a(f"v_lshlrev_b32 {dst}, 16, {tmp}")
    def bf16_round2(self, d0, d1, s0, s1, tmp):
        a = self.a
        a(f"v_cvt_pk_bf16_f32 {tmp}, {s0}, {s1}"); a(f"v_lshlrev_b32 {d0}, 16, {tmp}"); a(f"v_and_b32 {d1}, {sFFFF0000}, {tmp}")
    def allreduce(self, op, v, t, steps):
        self.allreduceN(op, [(v, t)], steps)
    def allreduceN(self, op, vts, steps):
        a = self.a
        dpp = {"q1": "quad_perm:[1,0,3,2]", "q2": "quad_perm:[2,3,0,1]", "hm": "row_half_mirror", "r4": "row_ror:4", "r8": "row_ror:8"}
        for s in steps:
            if s in dpp:
                for (v, t) in vts: a(f"{op}_dpp {v}, {v}, {v} {dpp[s]} row_mask:0xf bank_mask:0xf")
            else:
                ins = "v_permlane16_swap_b32" if s == "p16" else "v_permlane32_swap_b32"
                for (v, t) in vts: a(f"v_mov_b32 {t}, {v}")
                for (v, t) in vts: a(f"{ins} {v}, {t}")
                for (v, t) in vts: a(f"{op} {v}, {v}, {t}")
    def pk_add(self, d, x, y): self.a(f"v_pk_add_f32 v[{d}:{d+1}], v[{x}:{x+1}], v[{y}:{y+1}]")
    def sum_rows4(self, bases):
        b = list(bases)
        while len(b) > 1:
            nb = []
            for i in range(0, len(b) - 1, 2):
                self.pk_add(b[i], b[i], b[i+1]); self.pk_add(b[i] + 2, b[i] + 2, b[i+1] + 2); nb.append(b[i])
            if len(b) % 2: nb.append(b[-1])
            b = nb
    def gemv(self, ntiles, abase, xx, D, bsets=(8, 12), waits=None):
        a = self.a
        def mkB(t):
            b = bsets[t & 1]
            for r in range(4): a(f"v_and_b32 v{b+r}, v{xx[t]}, v{vM[r]}")
        mkB(0)
        for t in range(ntiles):
            if t + 1 < ntiles: mkB(t + 1)
            if waits and t in waits: a(f"s_waitcnt vmcnt({waits[t]})")
            b = bsets[t & 1]
            c = "0" if t == 0 else f"v[{D}:{D+3}]"
            a(f"v_mfma_f32_16x16x32_bf16 v[{D}:{D+3}], a[{abase+4*t}:{abase+4*t+3}], v[{b}:{b+3}], {c}")
    def taddr_w(self, vaddr, vt, TS):
        a = self.a
        a(f"v_and_b32 {vt}, 1, {vLANE}"); a(f"v_mul_u32_u24 {vt}, {TS*16}, {vt}")
        a(f"v_lshrrev_b32 {vaddr}, 1, {vLANE}"); a(f"v_lshl_add_u32 {vaddr}, {vaddr}, 2, {vt}")
        a(f"s_mul_i32 {sT0}, {sHW}, {TBLW}"); a(f"s_add_u32 {sT0}, {sT0}, {L_TBL}")
        a(f"v_add_u32 {vaddr}, {sT0}, {vaddr}")
    def taddr_r(self, vaddr, TS):
        a = self.a
        a(f"v_lshrrev_b32 {vaddr}, 3, {vLANE}"); a(f"v_mul_u32_u24 {vaddr}, {TS*4}, {vaddr}")
        a(f"s_mul_i32 {sT0}, {sHW}, {TBLW}"); a(f"s_add_u32 {sT0}, {sT0}, {L_TBL}")
        a(f"v_add_u32 {vaddr}, {sT0}, {vaddr}")
    def twrite4(self, regs, vaddr, TS):
        for k in range(4): self.a(f"ds_write_b32 {vaddr}, v{regs[k]} offset:{k*TS*4}")
    def tread(self, first, nb128, vaddr):
        a = self.a
        for i in range(nb128): a(f"ds_read_b128 v[{first+4*i}:{first+4*i+3}], {vaddr} offset:{16*i}")
        a("s_waitcnt lgkmcnt(0)")
    VALID = 0xFF00FF0000FF00FF
    def paddr(self, vaddr, vt, base, rowlen):
        a = self.a
        a(f"v_lshrrev_b32 {vaddr}, 5, {vLANE}"); a(f"v_mul_u32_u24 {vaddr}, {rowlen*4}, {vaddr}")
        a(f"v_bfe_u32 {vt}, {vLANE}, 4, 1"); a(f"v_lshl_add_u32 {vaddr}, {vt}, 7, {vaddr}")
        a(f"v_and_b32 {vt}, 7, {vLANE}"); a(f"v_lshl_add_u32 {vaddr}, {vt}, 2, {vaddr}")
        a(f"s_mul_i32 {sT0}, {sHW}, {2*rowlen*4}"); a(f"s_add_u32 {sT0}, {sT0}, {base}")
        a(f"v_add_u32 {vaddr}, {sT0}, {vaddr}")
    def pwrite(self, D, vaddr, off=0):
        for r in range(4): self.a(f"ds_write_b32 {vaddr}, v{D+r} offset:{off + r*32}")
    def sigmoid(self, dst, v, t):
        a = self.a
        a(f"v_mul_f32 {t}, 0x{(LOG2E | 0x80000000):08x}, {v}"); a(f"v_exp_f32 {t}, {t}")
        a(f"v_add_f32 {t}, 1.0, {t}"); a(f"v_rcp_f32 {dst}, {t}")
    def unpack4(self, dst, src):
        a = self.a
        a(f"v_lshlrev_b32 v{dst}, 16, v{src}"); a(f"v_and_b32 v{dst+1}, {sFFFF0000}, v{src}")
        a(f"v_lshlrev_b32 v{dst+2}, 16, v{src+1}"); a(f"v_and_b32 v{dst+3}, {sFFFF0000}, v{src+1}")
    def round4(self, X, tmp):
        for k in (0, 2): self.bf16_round2(f"v{X+k}", f"v{X+k+1}", f"v{X+k}", f"v{X+k+1}", tmp)
    def set_srd(self, s, base, off=None, size=None, size_minus_off=None):
        a = self.a
        if off is None:
            a(f"s_mov_b32 s{s}, s{base}"); a(f"s_mov_b32 s{s+1}, s{base+1}")
        else:
            a(f"s_add_u32 s{s}, s{base}, {off}"); a(f"s_addc_u32 s{s+1}, s{base+1}, 0")
        if size_minus_off is not None: a(f"s_sub_u32 s{s+2}, {size_minus_off}, {off}")
        else: a(f"s_mov_b32 s{s+2}, {size}")
        a(f"s_mov_b32 s{s+3}, 0x20000")
    def div3(self, q, r, x):
        a = self.a
        a(f"s_mul_i32 {q}, {x}, 0x5556"); a(f"s_lshr_b32 {q}, {q}, 16")
        a(f"s_mul_i32 {r}, {q}, 3"); a(f"s_sub_u32 {r}, {x}, {r}")

    def prologue(self):
        a = self.a
        a("s_cmp_ge_u32 s2, 256"); a("s_cbranch_scc1 L_exit")
        self.stamp(0, "all")
        a("s_load_dwordx16 s[16:31], s[0:1], 0")
        a("s_load_dwordx8 s[32:39], s[0:1], 64")
        a("s_load_dwordx4 s[40:43], s[0:1], 96")
        a("v_lshrrev_b32 v1, 6, v0")
        a(f"v_and_b32 {vLANE}, 63, v0")
        a(f"v_readfirstlane_b32 {sWAVE}, v1")
        a(f"v_and_b32 v8, 1, {vLANE}"); a("v_cmp_eq_u32 vcc, 1, v8")
        a("v_mov_b32 v9, 0xffff"); a("v_mov_b32 v10, 0xffff0000")
        a("v_cndmask_b32 v9, v9, v10, vcc")
        a(f"v_bfe_u32 v8, {vLANE}, 1, 2")
        for r in range(4):
            a(f"v_cmp_eq_u32 vcc, {r}, v8"); a(f"v_cndmask_b32 v{vM[r]}, 0, v9, vcc")
        a(f"s_mov_b32 {sFFFF0000}, 0xffff0000"); a(f"s_mov_b32 {sFF}, 0xff")
        if self.p.MAPKV == 0: a("s_mov_b32 s100, s2")
        elif self.p.MAPKV == 1:
            a("s_and_b32 s100, s2, 31"); a("s_lshl_b32 s100, s100, 3"); a("s_lshr_b32 s101, s2, 5"); a("s_add_u32 s100, s100, s101")
        else:
            a("s_lshr_b32 s101, s2, 3"); a("s_xor_b32 s101, s101, s2"); a("s_and_b32 s101, s101, 7"); a("s_andn2_b32 s100, s2, 7"); a("s_or_b32 s100, s100, s101")
        a(f"s_lshl_b32 {sT0}, {sWAVE}, 10")
        a(f"v_lshrrev_b32 v8, 4, {vLANE}"); a("v_lshlrev_b32 v8, 6, v8")
        a(f"v_bfe_u32 v9, {vLANE}, 2, 2"); a("v_lshl_add_u32 v8, v9, 8, v8")
        a(f"v_and_b32 v9, 3, {vLANE}"); a("v_lshl_add_u32 v8, v9, 4, v8")
        a(f"v_add_u32 v1, {sT0}, v8")
        a(f"v_lshlrev_b32 v9, 4, {vLANE}"); a(f"v_add_u32 v2, {sT0}, v9")
        a(f"s_lshl_b32 {sT2}, s100, 18")
        a(f"s_cmp_ge_u32 {sWAVE}, 4")
        a("s_waitcnt lgkmcnt(0)")
        a("s_cbranch_scc1 L_helper")
    def common_setup(self):
        a = self.a
        a(f"s_load_dword {sTAG}, s[{sWS}:{sWS+1}], 0")
        self.set_srd(SRD_WS, sWS, size=WS_SIZE)
    def get_tag(self):
        a = self.a
        a("s_waitcnt lgkmcnt(0)")
        a(f"s_add_u32 {sTAG}, {sTAG}, 1")
        a(f"s_and_b32 {sT3}, {sTAG}, 0xff")
        a(f"v_mov_b32 {vTAG}, {sT3}")

    def swave(self):
        a = self.a; p = self.p
        R, D, NP = p.R, max(p.D, p.D2), p.NP
        Dlo = p.D
        vK, vV = "v1", "v2"
        B_T = 8; S = 24; DQ = (40, 44); DO = 48; T = 52
        vm, vl, vf = "v56", "v57", "v58"
        vOW, vPUB = "v64", "v65"
        self.set_srd(SRD_A, sK, off=sT2, size=0x40000)
        N = 128
        def slot(i):
            if p.KLDS:
                k = i if i < 64 else (i - 64) % 40
                return f"a[{4*k}:{4*k+3}]"
            k = i % R
            return f"a[{4*k}:{4*k+3}]" if k < 40 else f"v[{68+4*(k-40)}:{71+4*(k-40)}]"
        st = dict(issued=0)
        KL = p.KLDS
        RK = R if not KL else 40
        def issue(throttle=True):
            nonlocal D, Dlo
            i = st["issued"]
            if p.DEND and i >= 64 + p.DENDAT: D = Dlo = p.DEND
            if throttle and i >= Dlo and D != Dlo:
                L = a.uid("Lthr")
                a(f"s_cbranch_vccnz {L}"); a(f"s_waitcnt vmcnt({Dlo-1})"); a.label(L)
            if throttle and i >= D: a(f"s_waitcnt vmcnt({D-1})")
            a(f"s_mov_b32 {sT1}, {(i % 64) * 4096}")
            s_, v_ = (SRD_A, vK) if i < 64 else (SRD_B, vV)
            if KL and RK <= i < 64:
                a(f"s_add_u32 m0, s60, {(i - RK) * 1024}")
                a("s_nop 0")
                a(f"buffer_load_dwordx4 {v_}, {srd(s_)}, {sT1} offen {p.KVPOL} lds")
            else:
                a(f"buffer_load_dwordx4 {slot(i)}, {v_}, {srd(s_)}, {sT1} offen {p.KVPOL}")
            st["issued"] = i + 1
            if i == N - 1: self.lds_add1(L_WCNT, f"v{T}", f"v{T+1}")
            if (p.WOAT and i == 64 + p.WOAT) or (p.UAT and i == 64 + p.UAT): self.lds_add1(L_W2, f"v{T}", f"v{T+1}")
        def need(tile): a(f"s_waitcnt vmcnt({st['issued'] - 1 - tile})")
        if D != Dlo:
            a("s_mov_b64 vcc, 0"); a("s_cmp_lt_u32 s2, 72"); a("s_cbranch_scc1 L_vset"); a("s_cmp_ge_u32 s2, 216"); a("s_cbranch_scc1 L_vset")
            a("s_mov_b64 vcc, -1"); a.label("L_vset")
        self.stamp(3, "start")
        for _ in range(min(Dlo, NP)): issue(False)
        if p.SPRIO: a(f"s_setprio {p.SPRIO}")
        self.set_srd(SRD_B, sV, off=sT2, size=0x40000)
        self.common_setup()
        self.stamp(4, "start")
        a("s_barrier")
        self.stamp(5, "start")
        if p.STAMPS and p.MODE == "start":
            a(f"s_waitcnt vmcnt({D-1})"); self.stamp(6, "start")
        a(f"v_lshrrev_b32 v8, 4, {vLANE}"); a("v_lshlrev_b32 v8, 7, v8")
        a(f"v_and_b32 v9, 7, {vLANE}"); a("v_lshl_add_u32 v8, v9, 2, v8")
        a(f"s_lshl_b32 {sT0}, {sWAVE}, 9"); a(f"s_add_u32 {sT0}, {sT0}, {L_OPART}")
        a(f"v_add_u32 {vOW}, {sT0}, v8")
        a(f"v_lshlrev_b32 {vPUB}, 4, {vLANE}")
        if p.KLDS:
            a(f"s_mul_i32 s60, {sWAVE}, {24*1024}"); a(f"s_add_u32 s60, s60, {L_KRING}")
            a(f"v_lshlrev_b32 v66, 4, {vLANE}"); a("v_add_u32 v66, s60, v66")
        mT = [6, 8, 10, 12]; m1, m3, m23 = 14, 4, 62
        for t in range(4): self.mask64(mT[t], 0x000F000F000F000F << (4 * t))
        self.mask64(m1, 0x2222222222222222); self.mask64(m3, 0x8888888888888888); self.mask64(m23, 0xCCCCCCCCCCCCCCCC)
        while st["issued"] < (64 if p.KLDS else NP): issue()
        self.stamp(1, "all")
        self.get_tag()
        self.lds_spin(L_QFLAG)
        self.stamp(2, "all")
        a(f"v_lshrrev_b32 v{T}, 4, {vLANE}"); a(f"v_lshlrev_b32 v{T}, 6, v{T}")
        a(f"v_and_b32 v{T+1}, 3, {vLANE}"); a(f"v_lshl_add_u32 v{T}, v{T+1}, 4, v{T}")
        a(f"ds_read_b128 v[{T+4}:{T+7}], v{T} offset:{L_Q}")
        a("s_waitcnt lgkmcnt(0)")
        for t in range(4):
            for k in range(4): a(f"v_cndmask_b32 v{B_T+4*t+k}, 0, v{T+4+k}, {sp(mT[t])}")
        STG = (68, 84)
        def stage(g):
            b = 68
            for t in range(4):
                a(f"ds_read_b128 v[{b+4*t}:{b+4*t+3}], v66 offset:{(4*g+t-RK)*1024}")
        def qk_mfma(g):
            d = DQ[g & 1]
            lds = KL and 4 * g >= RK
            if lds: a("s_waitcnt lgkmcnt(0)")
            else: need(4 * g + 3)
            for t in range(4):
                c = "0" if t == 0 else f"v[{d}:{d+3}]"
                b = 68
                src = f"v[{b+4*t}:{b+4*t+3}]" if lds else slot(4*g+t)
                a(f"v_mfma_f32_16x16x32_bf16 v[{d}:{d+3}], {src}, v[{B_T+4*t}:{B_T+4*t+3}], {c}")
        def qk_post(g):
            d = DQ[g & 1]
            a(f"v_cndmask_b32 v{T}, v{d}, v{d+1}, {sp(m1)}")
            a(f"v_cndmask_b32 v{T+1}, v{d+2}, v{d+3}, {sp(m3)}")
            a(f"v_cndmask_b32 v{T}, v{T}, v{T+1}, {sp(m23)}")
            a(f"v_add_f32_dpp v{T+1}, v{T}, v{T} quad_perm:[1,0,3,2] row_mask:0xf bank_mask:0xf")
            a(f"v_add_f32_dpp v{S+g}, v{T+1}, v{T+1} quad_perm:[2,3,0,1] row_mask:0xf bank_mask:0xf")
        g = 0
        if KL:
            while g < 16:
                if 4 * (g + 1) >= RK and g + 1 < 16 and False: pass
                if 4 * g >= RK:
                    need(4 * g + 3); stage(g)
                qk_mfma(g)
                if g > 0: qk_post(g - 1)
                g += 1
                free = min(4 * g, RK) - (st["issued"] - 64)
                nissue = 2 if g <= 3 else 1
                for _ in range(max(0, min(nissue, free))):
                    if st["issued"] < N: issue()
        else:
            while g < 16:
                lag = st["issued"] - 4 * g
                qk_mfma(g)
                if g > 0: qk_post(g - 1)
                g += 1
                free = 4 * g + R - st["issued"]
                nissue = (1 if (g % 3 == 0) else 0) if lag > D + 8 else 4
                for _ in range(min(nissue, free)):
                    if st["issued"] < N: issue()
        qk_post(15)
        self.stamp(3, "tail")
        for _ in range(3): issue(False)
        a(f"s_mov_b32 {sT0}, 0x{SCALE:08x}")
        for k in range(0, 16, 2):
            x, y = f"v{S+k}", f"v{S+k+1}"; t = f"v{T + (k // 2) % 4}"
            a(f"v_cvt_pk_bf16_f32 {t}, {x}, {y}")
            a(f"v_lshlrev_b32 {x}, 16, {t}"); a(f"v_and_b32 {y}, {sFFFF0000}, {t}")
            a(f"v_mul_f32 {x}, {sT0}, {x}"); a(f"v_mul_f32 {y}, {sT0}, {y}")
            a(f"v_cvt_pk_bf16_f32 {t}, {x}, {y}")
            a(f"v_lshlrev_b32 {x}, 16, {t}"); a(f"v_and_b32 {y}, {sFFFF0000}, {t}")
        a(f"v_max3_f32 {vm}, v{S}, v{S+1}, v{S+2}")
        for k in range(3, 15, 2): a(f"v_max3_f32 {vm}, {vm}, v{S+k}, v{S+k+1}")
        a(f"v_max_f32 {vm}, {vm}, v{S+15}")
        self.allreduce("v_max_f32", vm, f"v{T}", ["r4", "r8", "p16", "p32"])
        a(f"s_mov_b32 {sT0}, 0x{LOG2E:08x}")
        a(f"v_mul_f32 v{T+3}, {sT0}, {vm}")
        for k in range(16): a(f"v_fma_f32 v{S+k}, v{S+k}, {sT0}, -v{T+3}")
        for k in range(16): a(f"v_exp_f32 v{S+k}, v{S+k}")
        a(f"v_add_f32 {vl}, v{S}, v{S+1}")
        for k in range(2, 16): a(f"v_add_f32 {vl}, {vl}, v{S+k}")
        for k in range(16): a(f"v_cvt_pk_bf16_f32 v{S+k}, v{S+k}, v{S+k}")
        self.allreduce("v_add_f32", vl, f"v{T}", ["r4", "r8", "p16", "p32"])
        a("s_mov_b64 exec, 1")
        a(f"s_lshl_b32 {sT0}, {sWAVE}, 3"); a(f"s_add_u32 {sT0}, {sT0}, {L_ML}")
        a(f"v_mov_b32 v{T}, {sT0}"); a(f"ds_write_b64 v{T}, v[56:57]")
        a(f"v_mov_b32 v{T}, {L_MLCNT}"); a(f"v_mov_b32 v{T+1}, 1"); a(f"ds_add_u32 v{T}, v{T+1}")
        a("s_mov_b64 exec, -1")
        self.stamp(4, "tail")
        BV = (8, 12)
        def mkB(vi):
            g_, t_ = vi >> 2, vi & 3; b = BV[vi & 1]
            for r in range(4): a(f"v_and_b32_dpp v{b+r}, v{S+g_}, v{vM[r]} row_newbcast:{4*t_} row_mask:0xf bank_mask:0xf")
        def ml_exchange():
            self.lds_spin(L_MLCNT, target=4)
            a(f"v_mov_b32 v16, {L_ML}")
            a("ds_read_b128 v[20:23], v16"); a("ds_read_b128 v[40:43], v16 offset:16")
            a("s_waitcnt lgkmcnt(0)")
            a("v_max3_f32 v16, v20, v22, v40"); a("v_max_f32 v16, v16, v42")
            a(f"s_mov_b32 {sT0}, 0x{LOG2E:08x}")
            a(f"v_sub_f32 {vf}, {vm}, v16"); a(f"v_mul_f32 {vf}, {sT0}, {vf}"); a(f"v_exp_f32 {vf}, {vf}")
            L = a.uid("Lnoml")
            a(f"s_cmp_lg_u32 {sWAVE}, 0"); a(f"s_cbranch_scc1 {L}")
            for i, r in enumerate((20, 22, 40, 42)):
                a(f"v_sub_f32 v{r}, v{r}, v16"); a(f"v_mul_f32 v{r}, {sT0}, v{r}"); a(f"v_exp_f32 v{r}, v{r}")
            a("v_mul_f32 v17, v20, v21"); a("v_fmac_f32 v17, v22, v23"); a("v_fmac_f32 v17, v40, v41"); a("v_fmac_f32 v17, v42, v43")
            a("v_mov_b32 v18, 0"); a("v_mov_b32 v19, 0")
            for c in range(4): a(f"v_bfi_b32 v{16+c}, {sFF}, {vTAG}, v{16+c}")
            a(f"s_mul_i32 {sT0}, s100, {OSLOT}"); a(f"s_add_u32 {sT0}, {sT0}, {WS_O + 512}")
            a("s_mov_b64 exec, 1")
            a(f"buffer_store_dwordx4 v[16:19], off, {srd(SRD_WS)}, {sT0} sc1")
            a("s_mov_b64 exec, -1")
            st["extra_wave0"] = True
            a.label(L)
        mkB(0)
        for vi in range(64):
            if vi + 1 < 64: mkB(vi + 1)
            tile = 64 + vi
            while st["issued"] < N and st["issued"] - tile < (p.DEND if (p.DEND and st["issued"] >= 64 + p.DENDAT) else D) + 1: issue()
            need(tile)
            b = BV[vi & 1]
            c = "0" if vi == 0 else f"v[{DO}:{DO+3}]"
            a(f"v_mfma_f32_16x16x32_bf16 v[{DO}:{DO+3}], {slot(tile)}, v[{b}:{b+3}], {c}")
            if vi == p.MLAT:
                ml_exchange()
            if p.GSYNC and vi == p.GSYNC:
                self.lds_spin(L_GRP, target=1, sleep=2)
        self.stamp(5, "tail")
        for r in range(4): a(f"v_mul_f32 v{DO+r}, {vf}, v{DO+r}")
        self.setexec(0x00FF00FF00FF00FF)
        for r in range(4): a(f"ds_write_b32 {vOW}, v{DO+r} offset:{32*r}")
        a("s_mov_b64 exec, 1")
        a(f"v_mov_b32 v8, {L_OCNT}"); a("v_mov_b32 v9, 1"); a("ds_add_rtn_u32 v9, v8, v9")
        a(f"s_mul_i32 {sT0}, s100, {OSLOT}"); a(f"s_add_u32 {sT0}, {sT0}, {WS_O}")
        a("s_waitcnt lgkmcnt(0)")
        a(f"v_readfirstlane_b32 {sT1}, v9")
        a(f"s_cmp_lg_u32 {sT1}, 3"); a("s_cbranch_scc1 L_sdone")
        self.setexec(lanes(32))
        for w in range(4): a(f"ds_read_b128 v[{12+4*w}:{15+4*w}], {vPUB} offset:{L_OPART + 512*w}")
        a("s_waitcnt lgkmcnt(0)")
        self.sum_rows4([12, 16, 20, 24])
        for c in range(4): a(f"v_bfi_b32 v{12+c}, {sFF}, {vTAG}, v{12+c}")
        a(f"buffer_store_dwordx4 v[12:15], {vPUB}, {srd(SRD_WS)}, {sT0} offen sc1")
        self.stamp(6, "tail")
        a.label("L_sdone")
        self.dump_stamps()
        a("s_endpgm")

    def unit_loads(self, stride_s, tau_s):
        a = self.a
        a(f"s_mul_i32 {sT0}, {tau_s}, 192")
        a(f"v_lshrrev_b32 v1, 3, {vLANE}"); a(f"v_add_u32 v1, {sT0}, v1")
        a(f"v_mul_lo_u32 v1, v1, {stride_s}")
        a(f"v_and_b32 v2, 7, {vLANE}"); a("v_lshl_add_u32 v1, v2, 4, v1")
        a(f"s_lshl_b32 {sT1}, {stride_s}, 3"); a(f"s_mov_b32 {sT0}, 0")
        for t in range(24):
            if self.p.UNITPACE and t >= self.p.UNITPACE: a(f"s_waitcnt vmcnt({self.p.UNITPACE-1})")
            a(f"buffer_load_dwordx4 a[{4*t}:{4*t+3}], v1, {srd(SRD_A)}, {sT0} offen nt")
            if t < 23: a(f"s_add_u32 {sT0}, {sT0}, {sT1}")

    def hwave(self):
        a = self.a; p = self.p
        a.label("L_helper")
        self.common_setup()
        for q in (SRD_A, SRD_B, SRD_C): self.set_srd(q, sWS, size=0)
        a(f"s_setprio {p.HPRIO0}")
        a(f"s_sub_u32 {sHW}, {sWAVE}, 4")
        a("s_mov_b32 s71, 0")
        a(f"s_cmp_lg_u32 {sHW}, 2"); a("s_cbranch_scc1 L_noinit")
        a(f"v_lshlrev_b32 v8, 2, {vLANE}"); a("v_mov_b32 v9, 0")
        self.setexec(0xFFFF); a("ds_write_b32 v8, v9"); a("s_mov_b64 exec, -1"); a("s_waitcnt lgkmcnt(0)")
        a.label("L_noinit")
        a("s_barrier")
        if p.PRETOUCH:
            a(f"s_cmp_lg_u32 {sHW}, 2"); a("s_cbranch_scc1 L_notouch")
            a(f"v_lshlrev_b32 v8, 21, {vLANE}")
            a(f"v_lshlrev_b32 v9, 16, {vLANE}")
            self.setexec(0xF)
            a(f"s_lshl_b32 {sT0}, s100, 18"); self.set_srd(SRD_A, sV, off=sT0, size=0x40000)
            a(f"buffer_load_dword v10, v9, {srd(SRD_A)}, 0 offen nt")
            for k, (ptr, sz) in enumerate(((sWO, 4096 * 1152), (sWG, 576 * 9216), (sWU, 576 * 9216), (sWD, 4608 * 1152))):
                self.set_srd(SRD_A, ptr, size=sz)
                a(f"buffer_load_dword v{11+k}, v8, {srd(SRD_A)}, 0 offen nt")
            a("s_mov_b64 exec, -1")
            self.set_srd(SRD_A, sWS, size=0)
            a.label("L_notouch")
        if p.HDELAY: a(f"s_sleep {p.HDELAY}")
        for r in list(range(40, 60)) + list(range(80, 90)): a(f"v_mov_b32 v{r}, 0")
        if p.WOEARLY and not p.WOLATE:
            a("s_cmp_ge_u32 s2, 72"); a("s_cbranch_scc1 L_nowoearly")
            if not p.MAP2: a(f"s_cmp_eq_u32 {sHW}, 0"); a("s_cbranch_scc1 L_nowoearly")
            a(f"s_and_b32 {sT0}, s2, 7"); a(f"s_lshr_b32 {sT1}, s2, 3"); a(f"s_lshl_b32 {sT2}, {sT1}, 7")
            self.set_srd(SRD_C, sWO, off=sT2, size_minus_off=4096 * 1152)
            a(f"s_lshl_b32 {sT0}, {sT0}, 2"); a(f"s_add_u32 {sT0}, {sT0}, {sHW}"); a(f"s_lshl_b32 {sT0}, {sT0}, 7")
            a(f"v_lshrrev_b32 v1, 3, {vLANE}"); a(f"v_add_u32 v1, {sT0}, v1"); a("v_mul_u32_u24 v1, 1152, v1")
            a(f"v_and_b32 v2, 7, {vLANE}"); a("v_lshl_add_u32 v1, v2, 4, v1")
            a("s_setprio 0")
            a(f"s_mov_b32 {sT0}, 0")
            for t in range(16):
                a(f"buffer_load_dwordx4 a[{96+4*t}:{99+4*t}], v1, {srd(SRD_C)}, {sT0} offen nt")
                if t < 15: a(f"s_add_u32 {sT0}, {sT0}, 9216")
            a(f"s_setprio {p.HPRIO0}")
            a.label("L_nowoearly")
        a(f"s_cmp_eq_u32 {sHW}, 0"); a("s_cbranch_scc1 L_h0")
        a(f"s_cmp_eq_u32 {sHW}, 1"); a("s_cbranch_scc1 L_h1")
        a("s_branch L_nounit")
        a.label("L_h0")
        if p.MAP2:
            a("s_cmp_lt_u32 s2, 72"); a("s_cbranch_scc1 L_nounit")
            a("s_sub_u32 s62, s2, 72"); a("s_branch L_qunit")
            a.label("L_h1")
            a("s_cmp_lt_u32 s2, 72"); a("s_cbranch_scc1 L_nounit")
            a("s_cmp_ge_u32 s2, 242"); a("s_cbranch_scc1 L_nounit")
            a("s_add_u32 s62, s2, 112"); a("s_cmp_lt_u32 s2, 80"); a("s_cbranch_scc1 L_qunit")
            a(f"s_sub_u32 {sT2}, s2, 80"); self.div3(sR0, sR1, sT2)
        else:
            a("s_mov_b32 s62, s2")
            a("s_cmp_lt_u32 s2, 192"); a("s_cbranch_scc1 L_qunit")
            a("s_cmp_ge_u32 s2, 246"); a("s_cbranch_scc1 L_nounit")
            a(f"s_sub_u32 {sT2}, s2, 192"); self.div3(sR0, sR1, sT2)
            a("s_branch L_munit")
            a.label("L_h1")
            if p.MAP3:
                a(f"s_mov_b32 {sT2}, s2"); a("s_cmp_lt_u32 s2, 72"); a("s_cbranch_scc1 L_m3")
                a("s_cmp_lt_u32 s2, 180"); a("s_cbranch_scc1 L_nounit")
                a("s_cmp_ge_u32 s2, 216"); a("s_cbranch_scc1 L_nounit")
                a(f"s_sub_u32 {sT2}, s2, 108")
                a.label("L_m3")
                self.div3(sR0, sR1, sT2); a(f"s_add_u32 {sR0}, {sR0}, 18")
            else:
                a("s_cmp_lt_u32 s2, 72"); a("s_cbranch_scc1 L_nounit")
                a("s_cmp_ge_u32 s2, 180"); a("s_cbranch_scc1 L_nounit")
                a(f"s_sub_u32 {sT2}, s2, 72"); self.div3(sR0, sR1, sT2); a(f"s_add_u32 {sR0}, {sR0}, 18")
        if p.LATEMOD:
            self.lds_spin(L_QFLAG, target=1, sleep=8)
            a("s_setprio 0")
            a("s_mov_b32 s71, 1")
        a.label("L_munit")
        a(f"s_lshl_b32 {sT2}, {sR0}, 7")
        self.set_srd(SRD_A, sWM, off=sT2, size_minus_off=576 * 6912)
        self.set_srd(SRD_B, sC, size=1152)
        a(f"s_mul_i32 {sT0}, {sR1}, 384"); a(f"v_lshlrev_b32 v8, 3, {vLANE}")
        a(f"buffer_load_dwordx2 v[40:41], v8, {srd(SRD_B)}, {sT0} offen")
        a(f"s_mov_b32 {sR2}, 6912")
        self.unit_loads(sR2, sR1)
        self.get_tag()
        self.stamp(1, "pre")
        a(f"s_mul_i32 {sR2}, {sR0}, 3"); a(f"s_add_u32 {sR2}, {sR2}, {sR1}"); a(f"s_lshl_b32 {sR2}, {sR2}, 8"); a(f"s_add_u32 {sR2}, {sR2}, {WS_MOD}")
        self.taddr_w("v2", "v8", 24)
        a("s_waitcnt vmcnt(24)")
        self.unpack4(44, 40)
        for k in range(4): self.sigmoid(f"v{48+k}", f"v{44+k}", f"v{48+k}")
        for k in range(4): a(f"v_mul_f32 v{44+k}, v{44+k}, v{48+k}")
        for k in range(4): a(f"v_cvt_pk_bf16_f32 v{44+k}, v{44+k}, v{44+k}")
        self.setexec(lanes(48)); self.twrite4([44, 45, 46, 47], "v2", 24); a("s_mov_b64 exec, -1")
        self.stamp(2, "pre")
        a("s_branch L_unit_gemv")
        a.label("L_qunit")
        self.div3(sR0, sR1, "s62")
        a(f"s_lshl_b32 {sT2}, {sR0}, 7")
        self.set_srd(SRD_A, sWQ, off=sT2, size_minus_off=576 * 8192)
        self.set_srd(SRD_B, sX, size=1152)
        a(f"v_lshrrev_b32 v8, 3, {vLANE}"); a("v_lshlrev_b32 v8, 5, v8"); a(f"v_and_b32 v9, 7, {vLANE}"); a("v_add_u32 v8, v8, v9"); a("v_lshlrev_b32 v8, 1, v8")
        a(f"s_mul_i32 {sT0}, {sR1}, 384")
        for r in range(4): a(f"buffer_load_ushort v{44+r}, v8, {srd(SRD_B)}, {sT0} offen offset:{16*r}")
        a(f"v_lshlrev_b32 v9, 5, {vLANE}")
        a(f"buffer_load_dwordx4 v[16:19], v9, {srd(SRD_B)}, 0 offen")
        a(f"buffer_load_dwordx4 v[20:23], v9, {srd(SRD_B)}, 0 offen offset:16")
        a(f"s_mov_b32 {sR2}, 8192")
        self.unit_loads(sR2, sR1)
        self.get_tag()
        a(f"s_mul_i32 {sR2}, {sR0}, 3"); a(f"s_add_u32 {sR2}, {sR2}, {sR1}"); a(f"s_lshl_b32 {sR2}, {sR2}, 8"); a(f"s_add_u32 {sR2}, {sR2}, {WS_Q}")
        a(f"s_mul_i32 {sT0}, {sR1}, 6"); a(f"v_lshrrev_b32 v8, 3, {vLANE}"); a(f"v_add_u32 v8, {sT0}, v8")
        a("v_lshrrev_b32 v9, 1, v8"); a("v_mul_u32_u24 v9, 768, v9")
        a("v_and_b32 v8, 1, v8"); a("v_lshl_add_u32 v9, v8, 7, v9")
        a(f"v_and_b32 v8, 7, {vLANE}"); a("v_lshl_add_u32 v50, v8, 4, v9")
        a(f"v_mul_u32_u24 v51, 96, v8"); a(f"v_lshrrev_b32 v9, 3, {vLANE}"); a("v_lshl_add_u32 v51, v9, 4, v51")
        a(f"s_mul_i32 {sT0}, {sHW}, {TBLW}"); a(f"s_add_u32 {sT0}, {sT0}, {L_TBL}"); a(f"v_add_u32 v51, {sT0}, v51")
        a("s_waitcnt vmcnt(24)")
        for r in range(4): a(f"v_lshlrev_b32 v{44+r}, 16, v{44+r}")
        for i in range(8):
            a(f"v_lshlrev_b32 v{24+2*i}, 16, v{16+i}"); a(f"v_and_b32 v{25+2*i}, {sFFFF0000}, v{16+i}")
        a("v_add_f32 v48, v24, v25")
        for i in range(2, 16): a(f"v_add_f32 v48, v48, v{24+i}")
        self.allreduce("v_add_f32", "v48", "v49", ["q1", "q2", "r4", "r8", "p16", "p32"])
        a(f"v_mul_f32 v48, {f32hex(1/576)}, v48")
        for i in range(16): a(f"v_sub_f32 v{24+i}, v{24+i}, v48")
        a("v_mul_f32 v49, v24, v24")
        for i in range(1, 16): a(f"v_fmac_f32 v49, v{24+i}, v{24+i}")
        a(f"v_cmp_gt_u32 vcc, 36, {vLANE}"); a("v_cndmask_b32 v49, 0, v49, vcc")
        self.allreduce("v_add_f32", "v49", "v52", ["q1", "q2", "r4", "r8", "p16", "p32"])
        a(f"v_mul_f32 v49, {f32hex(1/576)}, v49")
        self.bf16_round2("v48", "v49", "v48", "v49", "v52")
        a(f"v_add_f32 v49, {f32hex(1e-5)}, v49"); self.bf16_round("v49", "v49", "v52")
        a("v_sqrt_f32 v49, v49"); self.bf16_round("v49", "v49", "v52"); a("v_rcp_f32 v49, v49")
        for k in range(4): a(f"v_sub_f32 v{44+k}, v{44+k}, v48")
        self.round4(44, "v52")
        for k in range(4): a(f"v_mul_f32 v{44+k}, v{44+k}, v49")
        self.round4(44, "v52")
        self.stamp(1, "pre")
        self.poll([(8 + 4 * t, 4, "v50", WS_MOD, 256 * t) for t in range(3)] + [(20 + 4 * t, 4, "v50", WS_MOD + 9 * 768, 256 * t) for t in range(3)],
                  active=lanes(48), sleep=p.SL_A, presleep=p.PS_A)
        self.stamp(2, "pre")
        self.sum_rows4([8, 12, 16]); self.sum_rows4([20, 24, 28])
        self.round4(8, "v52"); self.round4(20, "v53")
        for k in range(4): a(f"v_add_f32 v{20+k}, 1.0, v{20+k}")
        self.round4(20, "v52")
        for k in range(4): a(f"v_mul_f32 v{44+k}, v{44+k}, v{20+k}")
        self.round4(44, "v52")
        for k in range(4): a(f"v_add_f32 v{44+k}, v{44+k}, v{8+k}")
        for k in range(4): a(f"v_cvt_pk_bf16_f32 v{44+k}, v{44+k}, v{44+k}")
        a("ds_write_b128 v51, v[44:47]")
        a("s_mov_b64 exec, -1")
        a.label("L_unit_gemv")
        self.taddr_r("v2", 24)
        self.tread(16, 6, "v2")
        self.gemv(24, 0, list(range(16, 40)), 40, waits={0: 20, 4: 16, 8: 12, 12: 8, 16: 4, 20: 0})
        self.stamp(3, "pre")
        a(f"v_lshrrev_b32 v2, 4, {vLANE}"); a("v_lshlrev_b32 v2, 7, v2"); a(f"v_and_b32 v8, 7, {vLANE}"); a("v_lshl_add_u32 v2, v8, 4, v2")
        for r in range(4): a(f"v_mov_b32 v{44+r}, v{40+r}")
        for r in range(4): a(f"v_permlane32_swap_b32 v{40+r}, v{44+r}")
        for r in range(4): a(f"v_add_f32_dpp v{40+r}, v{44+r}, v{40+r} row_ror:8 row_mask:0xf bank_mask:0xf")
        for r in range(4): a(f"v_bfi_b32 v{40+r}, {sFF}, {vTAG}, v{40+r}")
        self.setexec(0x00FF00FF)
        a(f"buffer_store_dwordx4 v[40:43], v2, {srd(SRD_WS)}, {sR2} offen sc1")
        a("s_mov_b64 exec, -1")
        if p.STAMPS and p.MODE == "pre":
            a("s_waitcnt vmcnt(0)")
        self.stamp(7, "pre")
        a("s_branch L_pre_done")
        a.label("L_nounit")
        self.get_tag()
        a.label("L_pre_done")
        a(f"s_cmp_lg_u32 {sHW}, 3"); a("s_cbranch_scc1 L_noq")
        a(f"s_lshr_b32 {sT0}, s100, 3"); a(f"s_mul_i32 {sT0}, {sT0}, {2*768}"); a(f"s_add_u32 {sR0}, {sT0}, {WS_Q}")
        a(f"v_lshrrev_b32 v8, 4, {vLANE}"); a("v_mul_u32_u24 v2, 768, v8"); a(f"v_and_b32 v9, 15, {vLANE}"); a("v_lshl_add_u32 v2, v9, 4, v2")
        a("v_lshlrev_b32 v8, 6, v8"); a(f"v_bfe_u32 v9, {vLANE}, 3, 1"); a("v_lshl_add_u32 v8, v9, 5, v8")
        a(f"v_and_b32 v9, 7, {vLANE}"); a("v_add_u32 v8, v8, v9"); a("v_lshlrev_b32 v24, 1, v8")
        if p.PS_QG > 127: a("s_sleep 127")
        self.poll([(8 + 4 * t, 4, "v2", sR0, 256 * t) for t in range(3)], active=lanes(32), sleep=p.QSLEEP, presleep=(p.PS_QG - 127 if p.PS_QG > 127 else p.PS_QG))
        self.sum_rows4([8, 12, 16])
        a("v_cvt_pk_bf16_f32 v12, v8, v9"); a("v_cvt_pk_bf16_f32 v13, v10, v11")
        a(f"ds_write_b16 v24, v12 offset:{L_Q}"); a(f"ds_write_b16_d16_hi v24, v12 offset:{L_Q + 16}")
        a(f"ds_write_b16 v24, v13 offset:{L_Q + 32}"); a(f"ds_write_b16_d16_hi v24, v13 offset:{L_Q + 48}")
        a("s_waitcnt lgkmcnt(0)")
        a("s_mov_b64 exec, 1")
        a(f"v_mov_b32 v8, {L_QFLAG}"); a("v_mov_b32 v9, 1"); a("ds_write_b32 v8, v9")
        a("s_mov_b64 exec, -1")
        if p.MODE != "fine": self.stamp(4, "all")
        a.label("L_noq")
        if p.NOTAIL:
            self.dump_stamps(); a("s_endpgm")
        elif p.DYN: self.tail_dyn()
        else: self.tail()

    def piece_off(self, dst, gam_v, tmp):
        a = self.a
        a(f"v_lshrrev_b32 {tmp}, 1, {gam_v}"); a(f"v_mul_u32_u24 {tmp}, 768, {tmp}")
        a(f"v_and_b32 {dst}, 1, {gam_v}"); a(f"v_lshl_add_u32 {tmp}, {dst}, 7, {tmp}")
        a(f"v_and_b32 {dst}, 7, {vLANE}"); a(f"v_lshl_add_u32 {dst}, {dst}, 4, {tmp}")
    def gather_mod(self, vecs, voff, dsts, active, tmp0=8, sleep=16):
        a = self.a
        loads = []
        for i, v in enumerate(vecs):
            for t in range(3): loads.append((tmp0 + 12 * i + 4 * t, 4, voff, WS_MOD + 9 * v * 768, 256 * t))
        self.poll(loads, active=active, sleep=sleep)
        for i, v in enumerate(vecs):
            b = tmp0 + 12 * i
            self.sum_rows4([b, b + 4, b + 8]); self.round4(b, "v61")
            for r in range(4): a(f"v_mov_b32 v{dsts[i]+r}, v{b+r}")
    def half_add(self, D, T):
        a = self.a
        for r in range(4): a(f"v_mov_b32 v{T+r}, v{D+r}")
        for r in range(4): a(f"v_permlane32_swap_b32 v{D+r}, v{T+r}")
        for r in range(4): a(f"v_add_f32_dpp v{D+r}, v{T+r}, v{D+r} row_ror:8 row_mask:0xf bank_mask:0xf")
    def dpiece_addr(self, vaddr, vt, base, rowbytes):
        a = self.a
        a(f"v_lshrrev_b32 {vaddr}, 5, {vLANE}"); a(f"v_mul_u32_u24 {vaddr}, {rowbytes}, {vaddr}")
        a(f"v_bfe_u32 {vt}, {vLANE}, 4, 1"); a(f"v_lshl_add_u32 {vaddr}, {vt}, 7, {vaddr}")
        a(f"v_and_b32 {vt}, 7, {vLANE}"); a(f"v_lshl_add_u32 {vaddr}, {vt}, 4, {vaddr}")
        a(f"s_mul_i32 {sT0}, {sHW}, {2*rowbytes}"); a(f"s_add_u32 {sT0}, {sT0}, {base}")
        a(f"v_add_u32 {vaddr}, {sT0}, {vaddr}")

    def tail(self):
        a = self.a; p = self.p
        L24 = lanes(24)
        UX, UGA, UC1, USB = 64, 68, 72, 76
        vUT, vUR, vUP, vUA = "v80", "v81", "v82", "v83"
        FX, FGA, FGB = 84, 88, 92
        MS = 72 * 6 * 256
        a.label("L_tail")
        a("s_setprio 0")
        self.lds_spin(L_QFLAG, target=1, sleep=8)
        self.group_watch()
        a("s_cmp_lt_u32 s2, 72"); a("s_cbranch_scc1 L_wo")
        a("s_cmp_ge_u32 s2, 252"); a("s_cbranch_scc1 L_hexit")
        a("s_cmp_ge_u32 s2, 216"); a("s_cbranch_scc1 L_dbl")
        a(f"s_sub_u32 {sT2}, s2, 72"); self.div3("s6", "s7", sT2)
        if p.REPAIR:
            a("s_cmp_ge_u32 s6, 24"); a("s_cbranch_scc1 L_hi24")
            a(f"s_lshr_b32 {sT0}, s6, 2"); a(f"s_lshl_b32 {sT0}, {sT0}, 3"); a(f"s_and_b32 {sT1}, s6, 1"); a(f"s_add_u32 {sT0}, {sT0}, {sT1}")
            a(f"s_and_b32 {sT1}, s6, 2"); a(f"s_lshl_b32 {sT1}, {sT1}, 1"); a(f"s_add_u32 {sT0}, {sT0}, {sT1}"); a(f"s_add_u32 s6, {sT0}, 2")
            a("s_branch L_uprep")
            a.label("L_hi24")
            a("s_add_u32 s6, s6, 24")
        a("s_branch L_uprep")
        a.label("L_dbl")
        a(f"s_sub_u32 {sT2}, s2, 216"); self.div3("s6", "s7", sT2)
        if p.REPAIR:
            a(f"s_lshr_b32 {sT0}, s6, 1"); a(f"s_lshl_b32 {sT0}, {sT0}, 3"); a("s_and_b32 s6, s6, 1"); a("s_lshl_b32 s6, s6, 2"); a(f"s_add_u32 s6, s6, {sT0}")
        else:
            a("s_lshl_b32 s6, s6, 1"); a("s_add_u32 s6, s6, 48")
        a.label("L_uprep")
        a(f"s_lshr_b32 {sT0}, {sHW}, 1"); a("s_lshl_b32 s7, s7, 1"); a(f"s_add_u32 s7, s7, {sT0}")
        a(f"s_and_b32 s8, {sHW}, 1")
        a("s_mul_i32 s9, s7, 3")
        a(f"v_lshrrev_b32 v8, 3, {vLANE}"); a("v_add_u32 v8, s9, v8")
        self.piece_off("v2", "v8", "v9")
        a(f"v_lshlrev_b32 {vUA}, 7, v8"); a(f"v_and_b32 v9, 7, {vLANE}"); a(f"v_lshl_add_u32 {vUA}, v9, 4, {vUA}"); a(f"v_add_u32 {vUA}, {WS_ATT}, {vUA}")
        self.set_srd(SRD_B, sX, size=1152)
        a("v_lshlrev_b32 v8, 5, v8"); a("v_add_u32 v8, v8, v9"); a("v_lshlrev_b32 v8, 1, v8")
        for r in range(4): a(f"buffer_load_ushort v{UX+r}, v8, {srd(SRD_B)}, 0 offen offset:{16*r}")
        a(f"buffer_load_ushort v86, off, {srd(SRD_B)}, 0")
        self.gather_mod([2, 4, 3], "v2", [UGA, UC1, USB], L24, sleep=4)
        a("s_mov_b64 exec, -1")
        for r in range(4): a(f"v_lshlrev_b32 v{UX+r}, 16, v{UX+r}")
        a("v_lshlrev_b32 v86, 16, v86")
        for r in range(4): a(f"v_sub_f32 v{UX+r}, v{UX+r}, v86")
        for r in range(4): a(f"v_add_f32 v{UC1+r}, 1.0, v{UC1+r}")
        self.round4(UC1, "v8")
        a(f"s_mul_i32 {sT0}, {sHW}, {TBLW}"); a(f"s_add_u32 {sT0}, {sT0}, {L_TBL}")
        a(f"v_and_b32 v8, 7, {vLANE}"); a(f"v_mul_u32_u24 {vUT}, 48, v8"); a(f"v_lshrrev_b32 v9, 3, {vLANE}"); a(f"v_lshl_add_u32 {vUT}, v9, 4, {vUT}"); a(f"v_add_u32 {vUT}, {sT0}, {vUT}")
        a(f"v_mul_u32_u24 {vUR}, 48, v9"); a(f"v_add_u32 {vUR}, {sT0}, {vUR}")
        a(f"v_lshrrev_b32 {vUP}, 4, {vLANE}"); a(f"v_lshlrev_b32 {vUP}, 7, {vUP}"); a(f"v_lshl_add_u32 {vUP}, v8, 4, {vUP}")
        a("s_mul_i32 s10, s8, 72"); a("s_add_u32 s10, s10, s6"); a("s_mul_i32 s10, s10, 6"); a("s_add_u32 s10, s10, s7"); a("s_lshl_b32 s10, s10, 8")
        a("s_cmp_eq_u32 s8, 0"); a(f"s_cselect_b32 s12, s{sWG}, s{sWU}"); a(f"s_cselect_b32 s13, s{sWG+1}, s{sWU+1}")
        a(f"s_lshl_b32 {sT2}, s6, 7")
        self.set_srd(SRD_C, 12, off=sT2, size_minus_off=576 * 9216)
        a("s_mul_i32 s11, s7, 96"); a(f"v_lshrrev_b32 v56, 3, {vLANE}"); a("v_add_u32 v56, s11, v56"); a("v_mul_u32_u24 v56, 9216, v56")
        a(f"v_and_b32 v8, 7, {vLANE}"); a("v_lshl_add_u32 v56, v8, 4, v56")
        if p.UEARLY:
            if p.UAT: self.lds_spin(L_W2, target=1, sleep=8)
            a(f"s_mov_b32 {sT0}, 0")
            for t_ in range(12):
                if t_ >= p.UPACE: a(f"s_waitcnt vmcnt({p.UPACE-1})")
                a(f"buffer_load_dwordx4 a[{4*t_}:{4*t_+3}], v56, {srd(SRD_C)}, {sT0} offen nt")
                if t_ < 11: a(f"s_add_u32 {sT0}, {sT0}, {8*9216}")
        if p.DBLEARLY:
            a("s_cmp_lt_u32 s2, 216"); a("s_cbranch_scc1 L_noearly2")
            a(f"s_mov_b32 {sT0}, 128")
            for t_ in range(12):
                if t_ >= p.WOPACE: a(f"s_waitcnt vmcnt({p.WOPACE-1})")
                a(f"buffer_load_dwordx4 a[{48+4*t_}:{51+4*t_}], v56, {srd(SRD_C)}, {sT0} offen nt")
                if t_ < 11: a(f"s_add_u32 {sT0}, {sT0}, {8*9216}")
            a.label("L_noearly2")
        a("s_cmp_ge_u32 s2, 216"); a("s_cbranch_scc1 L_finprep")
        a(f"s_sub_u32 s14, s2, 72")
        a(f"s_mul_i32 {sT2}, s14, {32*1152}"); self.set_srd(SRD_A, sWD, off=sT2, size=32 * 1152)
        a(f"s_lshl_b32 {sT0}, {sHW}, 3")
        a(f"v_lshrrev_b32 v57, 3, {vLANE}"); a(f"v_add_u32 v57, {sT0}, v57"); a("v_mul_u32_u24 v57, 1152, v57")
        a(f"v_and_b32 v8, 7, {vLANE}"); a("v_lshl_add_u32 v57, v8, 4, v57")
        a("s_lshr_b32 s15, s14, 1"); a("s_mul_i32 s15, s15, 1536"); a(f"s_and_b32 {sT0}, s14, 1"); a(f"s_lshl_b32 {sT0}, {sT0}, 7"); a(f"s_add_u32 s15, s15, {sT0}")
        a(f"s_lshl_b32 {sT0}, {sHW}, 2"); a(f"s_add_u32 s15, s15, {sT0}")
        a(f"v_and_b32 v8, 7, {vLANE}"); a("v_min_u32 v8, 5, v8"); a("v_lshlrev_b32 v58, 8, v8"); a(f"v_lshrrev_b32 v9, 3, {vLANE}"); a("v_lshl_add_u32 v58, v9, 4, v58"); a("v_add_u32 v58, s15, v58")
        a("v_lshlrev_b32 v59, 7, v8"); a(f"v_add_u32 v59, {WS_ST}, v59")
        if p.STREP:
            a(f"s_and_b32 {sT0}, s2, 7"); a(f"s_lshl_b32 {sT0}, {sT0}, 10"); a(f"v_add_u32 v59, {sT0}, v59")
        self.dpiece_addr(f"v{FX}", "v8", L_DOWN, 2304)
        a(f"s_mul_i32 {sT0}, {sHW}, 48"); a(f"v_add_u32 v{FX+1}, {sT0}, {vLANE}"); a(f"v_lshlrev_b32 v{FX+1}, 4, v{FX+1}")
        a("s_mul_i32 s15, s14, 2304"); a(f"s_add_u32 s15, s15, {WS_OUT}")
        a("s_branch L_late")
        a.label("L_finprep")
        a("s_cmp_ge_u32 s2, 234"); a("s_cbranch_scc1 L_late")
        a(f"s_sub_u32 s14, s2, 216")
        self.set_srd(SRD_B, sX, size=1152)
        a(f"v_and_b32 v46, 7, {vLANE}")
        a("s_lshl_b32 s15, s14, 6"); a("v_lshlrev_b32 v8, 1, v46")
        for r in range(4): a(f"buffer_load_ushort v{FX+r}, v8, {srd(SRD_B)}, s15 offen offset:{16*r}")
        a("v_mov_b32 v8, s14"); self.piece_off("v2", "v8", "v9")
        self.gather_mod([2, 5], "v2", [FGA, FGB], FULL, sleep=4)
        for r in range(4): a(f"v_lshlrev_b32 v{FX+r}, 16, v{FX+r}")
        a.label("L_late")
        if p.LPACE:
            self.lds_spin(L_WCNT, target=1, sleep=2)
            self.read_ticket()
        if p.GT:
            self.go_watch_u()
            self.lds_spin(L_GO, target=1, sleep=2)
        if not p.UEARLY: self.lds_spin(L_WCNT if p.WTRIG == "issued" else L_OCNT, target=4, sleep=2)
        self.stamp(5)
        if p.LPACE:
            a(f"s_cmp_ge_u32 s63, {p.LPACE_T}"); a("s_cbranch_scc1 L_ufast")
            a(f"s_mov_b32 {sT0}, 0")
            for t in range(12):
                if t >= p.LPACE: a(f"s_waitcnt vmcnt({p.LPACE-1})")
                a(f"buffer_load_dwordx4 a[{4*t}:{4*t+3}], v56, {srd(SRD_C)}, {sT0} offen nt")
                if t < 11: a(f"s_add_u32 {sT0}, {sT0}, {8*9216}")
            a("s_branch L_uissued")
            a.label("L_ufast")
        a(f"s_mov_b32 {sT0}, 0")
        for t in range(12 if not p.UEARLY else 0):
            a(f"buffer_load_dwordx4 a[{4*t}:{4*t+3}], v56, {srd(SRD_C)}, {sT0} offen nt")
            if t < 11: a(f"s_add_u32 {sT0}, {sT0}, {8*9216}")
        a.label("L_uissued")
        a("s_cmp_ge_u32 s2, 216"); a("s_cbranch_scc1 L_late2")
        if p.DOWNLATER: a("s_waitcnt vmcnt(0)")
        for cb in range(9 if not p.DOWNAFTERC else 0):
            a(f"buffer_load_dwordx4 a[{48+4*cb}:{51+4*cb}], v57, {srd(SRD_A)}, 0 offen offset:{128*cb} nt")
        a("s_setprio 3")
        if not p.DOWNLATER: a("s_waitcnt vmcnt(9)")
        a("s_branch L_unit")
        a.label("L_late2")
        if not p.DBLEARLY:
            a(f"s_mov_b32 {sT0}, 128")
            for t in range(12):
                a(f"buffer_load_dwordx4 a[{48+4*t}:{51+4*t}], v56, {srd(SRD_C)}, {sT0} offen nt")
                if t < 11: a(f"s_add_u32 {sT0}, {sT0}, {8*9216}")
        a("s_setprio 3")
        a("s_waitcnt vmcnt(0)")
        a.label("L_unit")
        cnt = [0]
        def unit_pass(src4, area):
            cnt[0] += 1; L = f"L_up{cnt[0]}"
            for k in range(4): a(f"v_cvt_pk_bf16_f32 v{8+k}, v{src4+k}, v{src4+k}")
            self.setexec(L24); a(f"ds_write_b128 {vUT}, v[8:11]"); a("s_mov_b64 exec, -1")
            self.tread(16, 3, vUR)
            for st_ in range(2):
                if st_ == 1:
                    a("s_cmp_lt_u32 s2, 216"); a(f"s_cbranch_scc1 {L}")
                self.gemv(12, 48 * st_, list(range(16, 28)), 36)
                self.half_add(36, 40)
                for r in range(4): a(f"v_bfi_b32 v{36+r}, {sFF}, {vTAG}, v{36+r}")
                a(f"s_add_u32 {sT0}, s10, {area + 1536 * st_}")
                self.setexec(0x00FF00FF); a(f"buffer_store_dwordx4 v[36:39], {vUP}, {srd(SRD_WS)}, {sT0} offen sc1"); a("s_mov_b64 exec, -1")
            a.label(L)
        if p.CMERGE:
            for k in range(4): a(f"v_cvt_pk_bf16_f32 v{8+k}, v{UC1+k}, v{UC1+k}")
            for k in range(4): a(f"v_cvt_pk_bf16_f32 v{12+k}, v{USB+k}, v{USB+k}")
            self.setexec(L24); a(f"ds_write_b128 {vUT}, v[8:11]"); a(f"ds_write_b128 {vUT}, v[12:15] offset:384"); a("s_mov_b64 exec, -1")
            for i_ in range(3): a(f"ds_read_b128 v[{16+4*i_}:{19+4*i_}], {vUR} offset:{16*i_}")
            for i_ in range(3): a(f"ds_read_b128 v[{28+4*i_}:{31+4*i_}], {vUR} offset:{384+16*i_}")
            a("s_waitcnt lgkmcnt(0)")
            for st_ in range(2):
                if st_ == 1:
                    a("s_cmp_lt_u32 s2, 216"); a("s_cbranch_scc1 L_c1done")
                def mk(tt):
                    for r in range(4): a(f"v_and_b32 v{8+r}, v{16+tt}, v{vM[r]}")
                def mk2(tt):
                    for r in range(4): a(f"v_and_b32 v{12+r}, v{28+tt}, v{vM[r]}")
                mk(0)
                for tt in range(12):
                    A_ = f"a[{48*st_+4*tt}:{48*st_+4*tt+3}]"
                    mk2(tt)
                    a(f"v_mfma_f32_16x16x32_bf16 v[40:43], {A_}, v[8:11], {'0' if tt == 0 else 'v[40:43]'}")
                    if tt + 1 < 12: mk(tt + 1)
                    a(f"v_mfma_f32_16x16x32_bf16 v[44:47], {A_}, v[12:15], {'0' if tt == 0 else 'v[44:47]'}")
                for r in range(8): a(f"v_mov_b32 v{48+r}, v{40+r}")
                for r in range(8): a(f"v_permlane32_swap_b32 v{40+r}, v{48+r}")
                for r in range(8): a(f"v_add_f32_dpp v{40+r}, v{48+r}, v{40+r} row_ror:8 row_mask:0xf bank_mask:0xf")
                for r in range(8): a(f"v_bfi_b32 v{40+r}, {sFF}, {vTAG}, v{40+r}")
                a(f"s_add_u32 {sT0}, s10, {WS_C + 1536 * st_}"); a(f"s_add_u32 {sT1}, s10, {WS_C + 2 * MS + 1536 * st_}")
                self.setexec(0x00FF00FF)
                a(f"buffer_store_dwordx4 v[40:43], {vUP}, {srd(SRD_WS)}, {sT0} offen sc1"); a(f"buffer_store_dwordx4 v[44:47], {vUP}, {srd(SRD_WS)}, {sT1} offen sc1")
                a("s_mov_b64 exec, -1")
            a.label("L_c1done")
        else:
            unit_pass(UC1, WS_C)
            unit_pass(USB, WS_C + 2 * MS)
        if p.DOWNAFTERC:
            if p.UEARLY: self.lds_spin(L_WCNT if p.WTRIG == "issued" else L_OCNT, target=4, sleep=2)
            a("s_cmp_ge_u32 s2, 216"); a("s_cbranch_scc1 L_nodl")
            for cb in range(9):
                a(f"buffer_load_dwordx4 a[{48+4*cb}:{51+4*cb}], v57, {srd(SRD_A)}, 0 offen offset:{128*cb} nt")
            a.label("L_nodl")
        self.stamp(1, "fine")
        loads = [(8 + 4 * k, 4, vUA, None if k < 2 else (k & ~1) * 2304, (k & 1) * 2304) for k in range(8)]
        if p.SENT_ATT:
            if p.SENT1:
                a(f"s_cmp_lg_u32 {sHW}, 0"); a("s_cbranch_scc1 L_sentw")
                self.poll([loads[p.SENT_K]], active=0xFF, sleep=p.SENT_ATT)
                a("s_mov_b64 exec, 1"); a(f"v_mov_b32 v61, {L_SENT}"); a("v_mov_b32 v62, 1"); a("ds_write_b32 v61, v62"); a("s_mov_b64 exec, -1")
                a.label("L_sentw")
                self.lds_spin(L_SENT, target=1, sleep=1)
            else:
                self.poll([loads[p.SENT_K]], active=L24, sleep=p.SENT_ATT)
        self.poll(loads, active=L24, sleep=p.SL_ATT)
        self.stamp(6)
        self.sum_rows4([8 + 4 * k for k in range(8)])
        a(f"v_pk_fma_f32 v[{UX}:{UX+1}], v[8:9], v[{UGA}:{UGA+1}], v[{UX}:{UX+1}]"); a(f"v_pk_fma_f32 v[{UX+2}:{UX+3}], v[10:11], v[{UGA+2}:{UGA+3}], v[{UX+2}:{UX+3}]")
        a(f"v_pk_mul_f32 v[{UC1}:{UC1+1}], v[{UX}:{UX+1}], v[{UC1}:{UC1+1}]"); a(f"v_pk_mul_f32 v[{UC1+2}:{UC1+3}], v[{UX+2}:{UX+3}], v[{UC1+2}:{UC1+3}]")
        a("s_mov_b64 exec, -1")
        unit_pass(UC1, WS_G)
        self.stamp(2, "fine")
        a("s_or_b32 s11, s6, s8"); a("s_cmp_lg_u32 s11, 0"); a("s_cbranch_scc1 L_nostat")
        a("v_mov_b32 v12, 0"); a("v_mov_b32 v13, 0")
        self.setexec(L24)
        a(f"v_pk_add_f32 v[14:15], v[{UX}:{UX+1}], v[{UX+2}:{UX+3}]"); a(f"v_pk_mul_f32 v[16:17], v[{UX}:{UX+1}], v[{UX}:{UX+1}]")
        a(f"v_pk_fma_f32 v[16:17], v[{UX+2}:{UX+3}], v[{UX+2}:{UX+3}], v[16:17]")
        a("v_add_f32 v12, v14, v15"); a("v_add_f32 v13, v16, v17")
        a("s_mov_b64 exec, -1")
        self.allreduceN("v_add_f32", [("v12", "v14"), ("v13", "v15")], ["q1", "q2", "r4", "r8", "p16"])
        a("v_mov_b32 v14, 0"); a("v_mov_b32 v15, 0")
        for c in range(4): a(f"v_bfi_b32 v{12+c}, {sFF}, {vTAG}, v{12+c}")
        a("s_lshl_b32 s11, s7, 7"); a(f"s_add_u32 s11, s11, {WS_ST}")
        if p.STREP:
            a(f"v_lshlrev_b32 v16, 10, {vLANE}")
            a("s_mov_b64 exec, 0xff"); a(f"buffer_store_dwordx4 v[12:15], v16, {srd(SRD_WS)}, s11 offen sc1"); a("s_mov_b64 exec, -1")
        else:
            a("s_mov_b64 exec, 1"); a(f"buffer_store_dwordx4 v[12:15], off, {srd(SRD_WS)}, s11 sc1"); a("s_mov_b64 exec, -1")
        a.label("L_nostat")
        a("s_cmp_ge_u32 s2, 234"); a("s_cbranch_scc1 L_hexit")
        a("s_cmp_ge_u32 s2, 216"); a("s_cbranch_scc1 L_fin")
        K6 = 0x3F3F3F3F3F3F3F3F
        for r in (8, 9, 10, 11, 20, 21, 22, 23): a(f"v_mov_b32 v{r}, 0")
        self.poll([(20, 1, "v58", WS_C, 0), (21, 1, "v58", WS_C + 2 * MS, 0), (22, 1, "v58", WS_C + MS, 0), (23, 1, "v58", WS_C + 3 * MS, 0)], active=K6)
        a("s_mov_b64 exec, -1")
        self.allreduceN("v_add_f32", [(f"v{r}", "v12") for r in (20, 21, 22, 23)], ["q1", "q2", "hm"])
        if p.DUP_G: self.poll_dup([(8, 1, "v58", WS_G, 0), (9, 1, "v58", WS_G + MS, 0), (10, 4, "v59", None, 0)], [86, 87, 88], p.DUP_G, strong=(2,), active=K6)
        else: self.poll([(8, 1, "v58", WS_G, 0), (9, 1, "v58", WS_G + MS, 0), (10, 4, "v59", None, 0)], presleep=p.PS_G, strong=(2,), active=K6)
        a("s_mov_b64 exec, -1")
        self.stamp(3, "fine")
        self.allreduceN("v_add_f32", [(f"v{r}", "v14") for r in (8, 9, 10, 11)], ["q1", "q2", "hm"])
        a(f"v_mul_f32 v10, {f32hex(1/576)}, v10"); a(f"v_mul_f32 v11, {f32hex(1/576)}, v11")
        a("v_fma_f32 v11, -v10, v10, v11"); a("v_max_f32 v11, 0, v11"); a(f"v_add_f32 v11, {f32hex(1e-5)}, v11"); a("v_rsq_f32 v11, v11")
        a("v_fma_f32 v8, -v10, v20, v8"); a("v_fma_f32 v9, -v10, v22, v9")
        a("v_fma_f32 v8, v8, v11, v21"); a("v_fma_f32 v9, v9, v11, v23")
        self.sigmoid("v12", "v8", "v12")
        a("v_mul_f32 v8, v12, v9")
        a("v_cvt_pk_bf16_f32 v8, v8, v8")
        for r in range(4): a(f"v_and_b32 v{12+r}, v8, v{vM[r]}")
        for cb in range(9):
            d = 16 + 4 * cb
            a(f"v_mfma_f32_16x16x32_bf16 v[{d}:{d+3}], a[{48+4*cb}:{51+4*cb}], v[12:15], 0")
        self.setexec(self.VALID)
        for cb in range(9): a(f"ds_write_b128 v{FX}, v[{16+4*cb}:{19+4*cb}] offset:{256*cb}")
        a("s_mov_b64 exec, -1")
        a("s_waitcnt lgkmcnt(0)")
        a("s_barrier")
        a(f"s_cmp_ge_u32 {sHW}, 3"); a("s_cbranch_scc1 L_hexit")
        self.setexec(lanes(48))
        for k in range(8): a(f"ds_read_b128 v[{8+4*k}:{11+4*k}], v{FX+1} offset:{L_DOWN + 2304*k}")
        a("s_waitcnt lgkmcnt(0)")
        self.sum_rows4([8 + 4 * k for k in range(8)])
        for c in range(4): a(f"v_bfi_b32 v{8+c}, {sFF}, {vTAG}, v{8+c}")
        a(f"buffer_store_dwordx4 v[8:11], v{FX+1}, {srd(SRD_WS)}, s15 offen sc1")
        self.stamp(7)
        if p.STAMPS and p.MODE == "fin":
            a("s_waitcnt vmcnt(0)"); self.stamp(6, "fin")
        a("s_branch L_hexit")
        a.label("L_fin")
        a(f"v_and_b32 v46, 7, {vLANE}")
        a("s_lshl_b32 s15, s14, 7"); a("v_lshlrev_b32 v47, 4, v46"); a("v_add_u32 v47, s15, v47")
        a(f"v_lshrrev_b32 v8, 3, {vLANE}"); a("v_mul_u32_u24 v42, 2304, v8"); a("v_add_u32 v42, v42, v47"); a(f"v_add_u32 v42, {WS_ATT}, v42")
        a(f"s_mul_i32 {sT0}, {sHW}, 36"); a(f"v_add_u32 v8, {sT0}, v8"); a("v_mul_u32_u24 v43, 2304, v8"); a("v_add_u32 v43, v43, v47"); a(f"v_add_u32 v43, {WS_OUT}, v43")
        a(f"v_add_u32 v44, {4*8*2304}, v43"); a(f"v_cmp_gt_u32 vcc, 32, {vLANE}"); a("v_cndmask_b32 v44, v43, v44, vcc")
        a(f"s_lshl_b32 {sT0}, {sHW}, 7"); a(f"s_add_u32 {sT0}, {sT0}, {L_FIN}"); a("v_lshlrev_b32 v45, 4, v46"); a(f"v_add_u32 v40, {sT0}, v45")
        self.poll([(8, 4, "v42", None, 0)], sleep=p.SL_FA)
        self.allreduceN("v_add_f32", [(f"v{8+c}", f"v{12+c}") for c in range(4)], ["r8", "p16", "p32"])
        a(f"v_pk_fma_f32 v[{FX}:{FX+1}], v[8:9], v[{FGA}:{FGA+1}], v[{FX}:{FX+1}]"); a(f"v_pk_fma_f32 v[{FX+2}:{FX+3}], v[10:11], v[{FGA+2}:{FGA+3}], v[{FX+2}:{FX+3}]")
        self.set_srd(SRD_B, sOUT, size=1152)
        a("s_lshl_b32 s15, s14, 6"); a("v_lshlrev_b32 v49, 1, v46")
        self.stamp(3, "fine")
        outl = [(8, 4, "v43", None, 0), (12, 4, "v43", 8*2304, 0), (16, 4, "v43", 16*2304, 0), (20, 4, "v43", 24*2304, 0), (24, 4, "v44", None, 0)]
        if p.DUP_OUT: self.poll_dup(outl, [28, 32, 36, 52, 56], p.DUP_OUT)
        else: self.poll(outl, presleep=p.PS_OUT)
        self.stamp(1, "fin")
        a(f"v_cmp_gt_u32 vcc, 32, {vLANE}")
        self.sum_rows4([8, 12, 16, 20])
        for c in range(4): a(f"v_cndmask_b32 v{24+c}, 0, v{24+c}, vcc")
        self.sum_rows4([8, 24])
        self.allreduceN("v_add_f32", [(f"v{8+c}", f"v{12+c}") for c in range(4)], ["r8", "p16", "p32"])
        self.setexec(0xFF)
        a("ds_write_b128 v40, v[8:11]")
        a("s_mov_b64 exec, -1")
        a("s_waitcnt lgkmcnt(0)")
        self.stamp(2, "fin")
        a("s_barrier")
        self.stamp(3, "fin")
        a(f"s_cmp_lg_u32 {sHW}, 0"); a("s_cbranch_scc1 L_hexit")
        self.setexec(0xFF)
        for w in range(4): a(f"ds_read_b128 v[{8+4*w}:{11+4*w}], v45 offset:{L_FIN + 128*w}")
        a("s_waitcnt lgkmcnt(0)")
        self.sum_rows4([8, 12, 16, 20])
        a(f"v_pk_fma_f32 v[8:9], v[8:9], v[{FGB}:{FGB+1}], v[{FX}:{FX+1}]"); a(f"v_pk_fma_f32 v[10:11], v[10:11], v[{FGB+2}:{FGB+3}], v[{FX+2}:{FX+3}]")
        a("v_cvt_pk_bf16_f32 v12, v8, v9"); a("v_cvt_pk_bf16_f32 v13, v10, v11")
        a(f"buffer_store_short v12, v49, {srd(SRD_B)}, s15 offen"); a(f"buffer_store_short_d16_hi v12, v49, {srd(SRD_B)}, s15 offen offset:16")
        a(f"buffer_store_short v13, v49, {srd(SRD_B)}, s15 offen offset:32"); a(f"buffer_store_short_d16_hi v13, v49, {srd(SRD_B)}, s15 offen offset:48")
        self.stamp(7)
        a("s_cmp_lg_u32 s14, 0"); a("s_cbranch_scc1 L_hexit")
        a("s_mov_b64 exec, 1")
        a(f"v_mov_b32 v8, {sTAG}")
        a(f"buffer_store_dword v8, off, {srd(SRD_WS)}, 0 sc1")
        a("s_branch L_hexit")
        a.label("L_wo")
        a(f"s_and_b32 {sR0}, s2, 7"); a(f"s_lshr_b32 {sR1}, s2, 3")
        a(f"s_lshl_b32 {sT2}, {sR1}, 7")
        self.set_srd(SRD_A, sWO, off=sT2, size_minus_off=4096 * 1152)
        a(f"s_lshl_b32 {sR2}, {sR0}, 2"); a(f"s_add_u32 {sR2}, {sR2}, {sHW}")
        a(f"s_lshl_b32 {sT0}, {sR2}, 7")
        a(f"v_lshrrev_b32 v1, 3, {vLANE}"); a(f"v_add_u32 v1, {sT0}, v1"); a("v_mul_u32_u24 v1, 1152, v1")
        a(f"v_and_b32 v2, 7, {vLANE}"); a("v_lshl_add_u32 v1, v2, 4, v1")
        if p.WOLATE: a("s_branch L_wo_have")
        elif p.WOEARLY:
            if p.MAP2: a("s_branch L_wo_have")
            else: a(f"s_cmp_lg_u32 {sHW}, 0"); a("s_cbranch_scc1 L_wo_have")
        a(f"s_mov_b32 {sT0}, 0")
        for t in range(16):
            if t >= p.WOPACE: a(f"s_waitcnt vmcnt({p.WOPACE-1})")
            a(f"buffer_load_dwordx4 a[{96+4*t}:{99+4*t}], v1, {srd(SRD_A)}, {sT0} offen nt")
            if t < 15: a(f"s_add_u32 {sT0}, {sT0}, 9216")
        a.label("L_wo_have")
        a(f"s_mul_i32 s4, {sR2}, {8*OSLOT}"); a("s_add_u32 s4, s4, " + str(WS_O))
        a(f"s_mul_i32 {sT0}, {sR0}, 2304"); a(f"s_lshl_b32 {sT1}, {sR1}, 8"); a(f"s_add_u32 {sT0}, {sT0}, {sT1}"); a(f"s_add_u32 s5, {sT0}, {WS_ATT}")
        a(f"v_and_b32 v41, 7, {vLANE}"); a(f"v_mul_u32_u24 v41, {OSLOT}, v41")
        a(f"v_lshlrev_b32 v40, 3, {vLANE}")
        a(f"v_and_b32 v8, 3, {vLANE}"); a("v_mul_u32_u24 v8, 160, v8"); a(f"v_lshrrev_b32 v42, 2, {vLANE}"); a("v_lshl_add_u32 v42, v42, 2, v8")
        a(f"s_mul_i32 {sT0}, {sHW}, {TBLW}"); a(f"s_add_u32 {sT0}, {sT0}, {L_TBL}"); a(f"v_add_u32 v42, {sT0}, v42")
        self.taddr_r("v43", 20)
        self.dpiece_addr("v44", "v8", L_PART, 256)
        a(f"v_lshlrev_b32 v45, 4, {vLANE}")
        a("s_add_u32 s15, s4, 3200")
        self.poll([(8, 4, "v41", "s4", 512)], sleep=32, strong=(0,))
        a(f"v_and_b32 v8, {sFFFF0000}, v8")
        a("v_mov_b32 v10, v8")
        self.allreduce("v_max_f32", "v10", "v11", ["q1", "q2", "hm"])
        a("v_sub_f32 v11, v8, v10"); a(f"v_mul_f32 v11, 0x{LOG2E:08x}, v11"); a("v_exp_f32 v11, v11")
        a("v_mul_f32 v12, v11, v9")
        self.allreduce("v_add_f32", "v12", "v13", ["q1", "q2", "hm"])
        a("v_rcp_f32 v12, v12"); a("v_mul_f32 v11, v11, v12")
        for s_ in range(8): a(f"v_mov_b32_dpp v{48+s_}, v11 row_newbcast:{s_} row_mask:0xf bank_mask:0xf")
        if p.LPACE and p.WOLATE:
            self.lds_spin(L_WCNT, target=1, sleep=2)
            self.read_ticket()
        if p.GT:
            self.go_watch_w()
            if p.GT_W: self.lds_spin(L_GO, target=1, sleep=2)
        self.lds_spin(L_W2 if p.WOAT else L_WCNT, target=p.WOTGT, sleep=2)
        if p.WOLATE:
            if p.LPACE:
                a(f"s_cmp_ge_u32 s63, {p.LPACE_T}"); a("s_cbranch_scc1 L_wfast")
                a(f"s_mov_b32 {sT0}, 0")
                for t in range(16):
                    if t >= p.LPACE: a(f"s_waitcnt vmcnt({p.LPACE-1})")
                    a(f"buffer_load_dwordx4 a[{96+4*t}:{99+4*t}], v1, {srd(SRD_A)}, {sT0} offen nt")
                    if t < 15: a(f"s_add_u32 {sT0}, {sT0}, 9216")
                a("s_branch L_wissued")
                a.label("L_wfast")
            a(f"s_mov_b32 {sT0}, 0")
            for t in range(16):
                a(f"buffer_load_dwordx4 a[{96+4*t}:{99+4*t}], v1, {srd(SRD_A)}, {sT0} offen nt")
                if t < 15: a(f"s_add_u32 {sT0}, {sT0}, 9216")
            a.label("L_wissued")
        a("s_setprio 3")
        self.stamp(5)
        if p.STAMPS and p.MODE == "wo":
            a("s_waitcnt vmcnt(0)"); self.stamp(2, "wo")
        ol = [(8 + 2 * s_, 2, "v40", "s4" if s_ < 6 else "s15", s_ * OSLOT if s_ < 6 else (s_ - 5) * OSLOT) for s_ in range(8)]
        if p.DUP_O: self.poll_dup(ol, [64 + 2 * s_ for s_ in range(8)], p.DUP_O)
        else: self.poll(ol, sleep=p.SL_O, adapt=p.AD_O)
        self.stamp(6, "wo")
        a("v_pk_mul_f32 v[24:25], v[8:9], v[48:49] op_sel_hi:[1,0]")
        a("v_pk_mul_f32 v[26:27], v[10:11], v[48:49] op_sel:[0,1]")
        for s_ in range(2, 8):
            d = 24 + 2 * (s_ & 1); w = 48 + (s_ & ~1)
            sel = "op_sel_hi:[1,0,1]" if (s_ & 1) == 0 else "op_sel:[0,1,0]"
            a(f"v_pk_fma_f32 v[{d}:{d+1}], v[{8+2*s_}:{9+2*s_}], v[{w}:{w+1}], v[{d}:{d+1}] {sel}")
        self.pk_add(24, 24, 26)
        a("v_cvt_pk_bf16_f32 v24, v24, v24"); a("v_cvt_pk_bf16_f32 v25, v25, v25")
        a("ds_write_b32 v42, v24"); a("ds_write_b32 v42, v25 offset:80")
        self.tread(16, 4, "v43")
        self.stamp(1, "wo")
        self.gemv(16, 96, list(range(16, 32)), 36)
        self.setexec(self.VALID); a("ds_write_b128 v44, v[36:39]"); a("s_mov_b64 exec, -1")
        a("s_waitcnt lgkmcnt(0)")
        a("s_barrier")
        self.stamp(3, "wo")
        a(f"s_cmp_lg_u32 {sHW}, 0"); a("s_cbranch_scc1 L_hexit")
        self.setexec(0xFFFF)
        for k in range(8): a(f"ds_read_b128 v[{8+4*k}:{11+4*k}], v45 offset:{L_PART + 256*k}")
        a("s_waitcnt lgkmcnt(0)")
        self.sum_rows4([8 + 4 * k for k in range(8)])
        for c in range(4): a(f"v_bfi_b32 v{8+c}, {sFF}, {vTAG}, v{8+c}")
        a(f"buffer_store_dwordx4 v[8:11], v45, {srd(SRD_WS)}, s5 offen sc1")
        self.stamp(7, "wo")
        a.label("L_hexit")
        self.dump_stamps()
        a("s_endpgm")

    def tail_dyn(self):
        a = self.a; p = self.p
        L24 = lanes(24)
        UX, UGA, UC1, USB = 64, 68, 72, 76
        vUT, vUR, vUP, vUA = "v80", "v81", "v82", "v83"
        FX, FGA, FGB = 84, 88, 92
        MS = 72 * 6 * 256
        sTK = "s63"; sDBL = "s62"
        def down_prep():
            a(f"s_mul_i32 {sT2}, s14, {32*1152}"); self.set_srd(SRD_A, sWD, off=sT2, size=32 * 1152)
            a(f"s_lshl_b32 {sT0}, {sHW}, 3")
            a(f"v_lshrrev_b32 v57, 3, {vLANE}"); a(f"v_add_u32 v57, {sT0}, v57"); a("v_mul_u32_u24 v57, 1152, v57")
            a(f"v_and_b32 v8, 7, {vLANE}"); a("v_lshl_add_u32 v57, v8, 4, v57")
            for cb in range(9):
                a(f"buffer_load_dwordx4 a[{48+4*cb}:{51+4*cb}], v57, {srd(SRD_A)}, 0 offen offset:{128*cb} nt")
            a("s_lshr_b32 s15, s14, 1"); a("s_mul_i32 s15, s15, 1536"); a(f"s_and_b32 {sT0}, s14, 1"); a(f"s_lshl_b32 {sT0}, {sT0}, 7"); a(f"s_add_u32 s15, s15, {sT0}")
            a(f"s_lshl_b32 {sT0}, {sHW}, 2"); a(f"s_add_u32 s15, s15, {sT0}")
            a(f"v_and_b32 v8, 7, {vLANE}"); a("v_min_u32 v8, 5, v8"); a("v_lshlrev_b32 v58, 8, v8"); a(f"v_lshrrev_b32 v9, 3, {vLANE}"); a("v_lshl_add_u32 v58, v9, 4, v58"); a("v_add_u32 v58, s15, v58")
            a("v_lshlrev_b32 v59, 7, v8"); a(f"v_add_u32 v59, {WS_ST}, v59")
            self.dpiece_addr(f"v{FX}", "v8", L_DOWN, 2304)
            a(f"s_mul_i32 {sT0}, {sHW}, 48"); a(f"v_add_u32 v{FX+1}, {sT0}, {vLANE}"); a(f"v_lshlrev_b32 v{FX+1}, 4, v{FX+1}")
            a("s_mul_i32 s15, s14, 2304"); a(f"s_add_u32 s15, s15, {WS_OUT}")
        a.label("L_tail")
        a("s_setprio 0")
        self.lds_spin(L_QFLAG, target=1, sleep=8)
        a(f"s_cmp_lg_u32 {sHW}, 2"); a("s_cbranch_scc1 L_tkwait")
        self.lds_spin(L_WCNT, target=p.TKAT, sleep=2)
        self.set_srd(SRD_B, sDBG, size=256)
        a("s_mov_b64 exec, 1")
        a("v_mov_b32 v8, 1")
        a(f"buffer_atomic_add v8, off, {srd(SRD_B)}, 0 sc0")
        a("s_waitcnt vmcnt(0)")
        a(f"v_add_u32 v8, 1, v8"); a(f"v_mov_b32 v9, {L_TICK}"); a("ds_write_b32 v9, v8")
        a("s_mov_b64 exec, -1")
        a.label("L_tkwait")
        self.lds_spin(L_TICK, target=1, sleep=2)
        a(f"s_sub_u32 {sTK}, {sT3}, 1")
        a(f"s_setprio 2")
        self.stamp(4, "fine")
        a(f"s_cmp_ge_u32 {sTK}, 234"); a("s_cbranch_scc1 L_hexit")
        a(f"s_cmp_lt_u32 {sTK}, 72"); a("s_cbranch_scc1 L_wo")
        a(f"s_cmp_ge_u32 {sTK}, 126"); a("s_cbranch_scc1 L_sgl")
        a(f"s_sub_u32 {sT2}, {sTK}, 72"); self.div3("s6", "s7", sT2); a("s_lshl_b32 s6, s6, 1"); a(f"s_mov_b32 {sDBL}, 1")
        a("s_branch L_uprep")
        a.label("L_sgl")
        a(f"s_sub_u32 {sT2}, {sTK}, 126"); self.div3("s6", "s7", sT2); a("s_add_u32 s6, s6, 36"); a(f"s_mov_b32 {sDBL}, 0")
        a.label("L_uprep")
        a(f"s_lshr_b32 {sT0}, {sHW}, 1"); a("s_lshl_b32 s7, s7, 1"); a(f"s_add_u32 s7, s7, {sT0}")
        a(f"s_and_b32 s8, {sHW}, 1")
        a("s_cmp_eq_u32 s8, 0"); a(f"s_cselect_b32 s12, s{sWG}, s{sWU}"); a(f"s_cselect_b32 s13, s{sWG+1}, s{sWU+1}")
        a(f"s_lshl_b32 {sT2}, s6, 7")
        self.set_srd(SRD_C, 12, off=sT2, size_minus_off=576 * 9216)
        a("s_mul_i32 s11, s7, 96"); a(f"v_lshrrev_b32 v56, 3, {vLANE}"); a("v_add_u32 v56, s11, v56"); a("v_mul_u32_u24 v56, 9216, v56")
        a(f"v_and_b32 v8, 7, {vLANE}"); a("v_lshl_add_u32 v56, v8, 4, v56")
        self.lds_spin(L_WCNT if p.WTRIG == "issued" else L_OCNT, target=4, sleep=1)
        self.stamp(5)
        a(f"s_mov_b32 {sT0}, 0")
        for t in range(12):
            a(f"buffer_load_dwordx4 a[{4*t}:{4*t+3}], v56, {srd(SRD_C)}, {sT0} offen nt")
            if t < 11: a(f"s_add_u32 {sT0}, {sT0}, {8*9216}")
        a(f"s_cmp_eq_u32 {sDBL}, 0"); a("s_cbranch_scc1 L_one")
        a(f"s_mov_b32 {sT0}, 128")
        for t in range(12):
            a(f"buffer_load_dwordx4 a[{48+4*t}:{51+4*t}], v56, {srd(SRD_C)}, {sT0} offen nt")
            if t < 11: a(f"s_add_u32 {sT0}, {sT0}, {8*9216}")
        a.label("L_one")
        a("s_mul_i32 s9, s7, 3")
        a(f"v_lshrrev_b32 v8, 3, {vLANE}"); a("v_add_u32 v8, s9, v8")
        self.piece_off("v2", "v8", "v9")
        a(f"v_lshlrev_b32 {vUA}, 7, v8"); a(f"v_and_b32 v9, 7, {vLANE}"); a(f"v_lshl_add_u32 {vUA}, v9, 4, {vUA}"); a(f"v_add_u32 {vUA}, {WS_ATT}, {vUA}")
        self.set_srd(SRD_B, sX, size=1152)
        a("v_lshlrev_b32 v8, 5, v8"); a("v_add_u32 v8, v8, v9"); a("v_lshlrev_b32 v8, 1, v8")
        for r in range(4): a(f"buffer_load_ushort v{UX+r}, v8, {srd(SRD_B)}, 0 offen offset:{16*r}")
        a(f"s_mul_i32 {sT0}, {sHW}, {TBLW}"); a(f"s_add_u32 {sT0}, {sT0}, {L_TBL}")
        a(f"v_and_b32 v8, 7, {vLANE}"); a(f"v_mul_u32_u24 {vUT}, 48, v8"); a(f"v_lshrrev_b32 v9, 3, {vLANE}"); a(f"v_lshl_add_u32 {vUT}, v9, 4, {vUT}"); a(f"v_add_u32 {vUT}, {sT0}, {vUT}")
        a(f"v_mul_u32_u24 {vUR}, 48, v9"); a(f"v_add_u32 {vUR}, {sT0}, {vUR}")
        a(f"v_lshrrev_b32 {vUP}, 4, {vLANE}"); a(f"v_lshlrev_b32 {vUP}, 7, {vUP}"); a(f"v_lshl_add_u32 {vUP}, v8, 4, {vUP}")
        a("s_mul_i32 s10, s8, 72"); a("s_add_u32 s10, s10, s6"); a("s_mul_i32 s10, s10, 6"); a("s_add_u32 s10, s10, s7"); a("s_lshl_b32 s10, s10, 8")
        self.gather_mod([2, 4, 3], "v2", [UGA, UC1, USB], L24, sleep=2)
        a("s_mov_b64 exec, -1")
        for r in range(4): a(f"v_lshlrev_b32 v{UX+r}, 16, v{UX+r}")
        for r in range(4): a(f"v_add_f32 v{UC1+r}, 1.0, v{UC1+r}")
        self.round4(UC1, "v8")
        a(f"s_mov_b32 s61, 0")
        a(f"s_sub_u32 s14, {sTK}, 54"); a(f"s_sub_u32 {sT2}, {sTK}, 126"); a(f"s_cmp_ge_u32 {sT2}, 72"); a("s_cbranch_scc1 L_nodown")
        a("s_mov_b32 s61, 1")
        down_prep()
        a.label("L_nodown")
        a("s_setprio 3")
        for k in range(4): a(f"v_cvt_pk_bf16_f32 v{8+k}, v{UC1+k}, v{UC1+k}")
        for k in range(4): a(f"v_cvt_pk_bf16_f32 v{12+k}, v{USB+k}, v{USB+k}")
        self.setexec(L24); a(f"ds_write_b128 {vUT}, v[8:11]"); a(f"ds_write_b128 {vUT}, v[12:15] offset:384"); a("s_mov_b64 exec, -1")
        for i in range(3): a(f"ds_read_b128 v[{16+4*i}:{19+4*i}], {vUR} offset:{16*i}")
        for i in range(3): a(f"ds_read_b128 v[{28+4*i}:{31+4*i}], {vUR} offset:{384+16*i}")
        a("s_waitcnt lgkmcnt(0)")
        for st_ in range(2):
            if st_ == 1:
                a(f"s_cmp_eq_u32 {sDBL}, 0"); a("s_cbranch_scc1 L_c1done")
            def mk(t):
                for r in range(4): a(f"v_and_b32 v{8+r}, v{16+t}, v{vM[r]}")
            def mk2(t):
                for r in range(4): a(f"v_and_b32 v{12+r}, v{28+t}, v{vM[r]}")
            mk(0)
            for t in range(12):
                A_ = f"a[{48*st_+4*t}:{48*st_+4*t+3}]"
                mk2(t)
                a(f"v_mfma_f32_16x16x32_bf16 v[40:43], {A_}, v[8:11], {'0' if t == 0 else 'v[40:43]'}")
                if t + 1 < 12: mk(t + 1)
                a(f"v_mfma_f32_16x16x32_bf16 v[44:47], {A_}, v[12:15], {'0' if t == 0 else 'v[44:47]'}")
            for r in range(8): a(f"v_mov_b32 v{48+r}, v{40+r}")
            for r in range(8): a(f"v_permlane32_swap_b32 v{40+r}, v{48+r}")
            for r in range(8): a(f"v_add_f32_dpp v{40+r}, v{48+r}, v{40+r} row_ror:8 row_mask:0xf bank_mask:0xf")
            for r in range(8): a(f"v_bfi_b32 v{40+r}, {sFF}, {vTAG}, v{40+r}")
            a(f"s_add_u32 {sT0}, s10, {WS_C + 1536 * st_}"); a(f"s_add_u32 {sT1}, s10, {WS_C + 2 * MS + 1536 * st_}")
            self.setexec(0x00FF00FF)
            a(f"buffer_store_dwordx4 v[40:43], {vUP}, {srd(SRD_WS)}, {sT0} offen sc1"); a(f"buffer_store_dwordx4 v[44:47], {vUP}, {srd(SRD_WS)}, {sT1} offen sc1")
            a("s_mov_b64 exec, -1")
        a.label("L_c1done")
        self.stamp(1, "fine")
        loads = [(8 + 4 * k, 4, vUA, None if k < 2 else (k & ~1) * 2304, (k & 1) * 2304) for k in range(8)]
        if p.CGATE: self.cnt_gate(p.CTGT, p.PS_ATT)
        self.poll(loads, active=L24, sleep=p.SL_ATT)
        self.stamp(6)
        self.sum_rows4([8 + 4 * k for k in range(8)])
        a(f"v_pk_fma_f32 v[{UX}:{UX+1}], v[8:9], v[{UGA}:{UGA+1}], v[{UX}:{UX+1}]"); a(f"v_pk_fma_f32 v[{UX+2}:{UX+3}], v[10:11], v[{UGA+2}:{UGA+3}], v[{UX+2}:{UX+3}]")
        a(f"v_pk_mul_f32 v[{UC1}:{UC1+1}], v[{UX}:{UX+1}], v[{UC1}:{UC1+1}]"); a(f"v_pk_mul_f32 v[{UC1+2}:{UC1+3}], v[{UX+2}:{UX+3}], v[{UC1+2}:{UC1+3}]")
        for k in range(4): a(f"v_cvt_pk_bf16_f32 v{8+k}, v{UC1+k}, v{UC1+k}")
        a(f"ds_write_b128 {vUT}, v[8:11]"); a("s_mov_b64 exec, -1")
        self.tread(16, 3, vUR)
        for st_ in range(2):
            if st_ == 1:
                a(f"s_cmp_eq_u32 {sDBL}, 0"); a("s_cbranch_scc1 L_zdone")
            self.gemv(12, 48 * st_, list(range(16, 28)), 36)
            self.half_add(36, 40)
            for r in range(4): a(f"v_bfi_b32 v{36+r}, {sFF}, {vTAG}, v{36+r}")
            a(f"s_add_u32 {sT0}, s10, {WS_G + 1536 * st_}")
            self.setexec(0x00FF00FF); a(f"buffer_store_dwordx4 v[36:39], {vUP}, {srd(SRD_WS)}, {sT0} offen sc1"); a("s_mov_b64 exec, -1")
        a.label("L_zdone")
        self.stamp(2, "fine")
        a("s_or_b32 s11, s6, s8"); a("s_cmp_lg_u32 s11, 0"); a("s_cbranch_scc1 L_nostat")
        a("v_mov_b32 v12, 0"); a("v_mov_b32 v13, 0")
        self.setexec(L24)
        a(f"v_pk_add_f32 v[14:15], v[{UX}:{UX+1}], v[{UX+2}:{UX+3}]"); a(f"v_pk_mul_f32 v[16:17], v[{UX}:{UX+1}], v[{UX}:{UX+1}]")
        a(f"v_pk_fma_f32 v[16:17], v[{UX+2}:{UX+3}], v[{UX+2}:{UX+3}], v[16:17]")
        a("v_add_f32 v12, v14, v15"); a("v_add_f32 v13, v16, v17")
        a("s_mov_b64 exec, -1")
        self.allreduceN("v_add_f32", [("v12", "v14"), ("v13", "v15")], ["q1", "q2", "r4", "r8", "p16"])
        a("v_mov_b32 v14, 0"); a("v_mov_b32 v15, 0")
        for c in range(4): a(f"v_bfi_b32 v{12+c}, {sFF}, {vTAG}, v{12+c}")
        a("s_lshl_b32 s11, s7, 7"); a(f"s_add_u32 s11, s11, {WS_ST}")
        a("s_mov_b64 exec, 1"); a(f"buffer_store_dwordx4 v[12:15], off, {srd(SRD_WS)}, s11 sc1"); a("s_mov_b64 exec, -1")
        a.label("L_nostat")
        a(f"s_cmp_lt_u32 {sTK}, 90"); a("s_cbranch_scc1 L_fin")
        a("s_cmp_eq_u32 s61, 0"); a("s_cbranch_scc1 L_hexit")
        a.label("L_down")
        self.poll([(20, 1, "v58", WS_C, 0), (21, 1, "v58", WS_C + 2 * MS, 0), (22, 1, "v58", WS_C + MS, 0), (23, 1, "v58", WS_C + 3 * MS, 0)], sleep=p.SL_C)
        self.lane6_reduce([20, 21, 22, 23], 12)
        self.poll([(8, 1, "v58", WS_G, 0), (9, 1, "v58", WS_G + MS, 0), (10, 4, "v59", None, 0)], presleep=p.PS_G, sleep=p.SL_G, strong=(2,))
        self.stamp(3, "fine")
        self.lane6_reduce([8, 9, 10, 11], 14)
        a(f"v_mul_f32 v10, {f32hex(1/576)}, v10"); a(f"v_mul_f32 v11, {f32hex(1/576)}, v11")
        a("v_fma_f32 v11, -v10, v10, v11"); a("v_max_f32 v11, 0, v11"); a(f"v_add_f32 v11, {f32hex(1e-5)}, v11"); a("v_rsq_f32 v11, v11")
        a("v_fma_f32 v8, -v10, v20, v8"); a("v_fma_f32 v9, -v10, v22, v9")
        a("v_fma_f32 v8, v8, v11, v21"); a("v_fma_f32 v9, v9, v11, v23")
        self.sigmoid("v12", "v8", "v12")
        a("v_mul_f32 v8, v12, v9")
        a("v_cvt_pk_bf16_f32 v8, v8, v8")
        for r in range(4): a(f"v_and_b32 v{12+r}, v8, v{vM[r]}")
        for cb in range(9):
            d = 16 + 4 * cb
            a(f"v_mfma_f32_16x16x32_bf16 v[{d}:{d+3}], a[{48+4*cb}:{51+4*cb}], v[12:15], 0")
        self.setexec(self.VALID)
        for cb in range(9): a(f"ds_write_b128 v{FX}, v[{16+4*cb}:{19+4*cb}] offset:{256*cb}")
        a("s_mov_b64 exec, -1")
        a("s_waitcnt lgkmcnt(0)")
        a("s_barrier")
        a(f"s_cmp_ge_u32 {sHW}, 3"); a("s_cbranch_scc1 L_hexit")
        self.setexec(lanes(48))
        for k in range(8): a(f"ds_read_b128 v[{8+4*k}:{11+4*k}], v{FX+1} offset:{L_DOWN + 2304*k}")
        a("s_waitcnt lgkmcnt(0)")
        self.sum_rows4([8 + 4 * k for k in range(8)])
        for c in range(4): a(f"v_bfi_b32 v{8+c}, {sFF}, {vTAG}, v{8+c}")
        a(f"buffer_store_dwordx4 v[8:11], v{FX+1}, {srd(SRD_WS)}, s15 offen sc1")
        self.stamp(7)
        a("s_branch L_hexit")
        a.label("L_fin")
        a(f"s_sub_u32 s14, {sTK}, 72")
        self.set_srd(SRD_B, sX, size=1152)
        a(f"v_and_b32 v46, 7, {vLANE}")
        a("s_lshl_b32 s15, s14, 6"); a("v_lshlrev_b32 v8, 1, v46")
        for r in range(4): a(f"buffer_load_ushort v{FX+r}, v8, {srd(SRD_B)}, s15 offen offset:{16*r}")
        a("v_mov_b32 v8, s14"); self.piece_off("v2", "v8", "v9")
        self.gather_mod([2, 5], "v2", [FGA, FGB], FULL, sleep=2)
        for r in range(4): a(f"v_lshlrev_b32 v{FX+r}, 16, v{FX+r}")
        a("s_lshl_b32 s15, s14, 7"); a("v_lshlrev_b32 v47, 4, v46"); a("v_add_u32 v47, s15, v47")
        a(f"v_lshrrev_b32 v8, 3, {vLANE}"); a("v_mul_u32_u24 v42, 2304, v8"); a("v_add_u32 v42, v42, v47"); a(f"v_add_u32 v42, {WS_ATT}, v42")
        a(f"s_mul_i32 {sT0}, {sHW}, 36"); a(f"v_add_u32 v8, {sT0}, v8"); a("v_mul_u32_u24 v43, 2304, v8"); a("v_add_u32 v43, v43, v47"); a(f"v_add_u32 v43, {WS_OUT}, v43")
        a(f"v_add_u32 v44, {4*8*2304}, v43"); a(f"v_cmp_gt_u32 vcc, 32, {vLANE}"); a("v_cndmask_b32 v44, v43, v44, vcc")
        a(f"s_lshl_b32 {sT0}, {sHW}, 7"); a(f"s_add_u32 {sT0}, {sT0}, {L_FIN}"); a("v_lshlrev_b32 v45, 4, v46"); a(f"v_add_u32 v40, {sT0}, v45")
        self.poll([(8, 4, "v42", None, 0)], sleep=1)
        self.allreduceN("v_add_f32", [(f"v{8+c}", f"v{12+c}") for c in range(4)], ["r8", "p16", "p32"])
        a(f"v_pk_fma_f32 v[{FX}:{FX+1}], v[8:9], v[{FGA}:{FGA+1}], v[{FX}:{FX+1}]"); a(f"v_pk_fma_f32 v[{FX+2}:{FX+3}], v[10:11], v[{FGA+2}:{FGA+3}], v[{FX+2}:{FX+3}]")
        self.set_srd(SRD_B, sOUT, size=1152)
        a("s_lshl_b32 s15, s14, 6"); a("v_lshlrev_b32 v49, 1, v46")
        self.stamp(3, "fine")
        self.poll([(8, 4, "v43", None, 0), (12, 4, "v43", 8*2304, 0), (16, 4, "v43", 16*2304, 0), (20, 4, "v43", 24*2304, 0), (24, 4, "v44", None, 0)], presleep=p.PS_OUT, sleep=p.SL_OUT)
        a(f"v_cmp_gt_u32 vcc, 32, {vLANE}")
        self.sum_rows4([8, 12, 16, 20])
        for c in range(4): a(f"v_cndmask_b32 v{24+c}, 0, v{24+c}, vcc")
        self.sum_rows4([8, 24])
        self.allreduceN("v_add_f32", [(f"v{8+c}", f"v{12+c}") for c in range(4)], ["r8", "p16", "p32"])
        self.setexec(0xFF)
        a("ds_write_b128 v40, v[8:11]")
        a("s_mov_b64 exec, -1")
        a("s_waitcnt lgkmcnt(0)")
        a("s_barrier")
        a(f"s_cmp_lg_u32 {sHW}, 0"); a("s_cbranch_scc1 L_hexit")
        self.setexec(0xFF)
        for w in range(4): a(f"ds_read_b128 v[{8+4*w}:{11+4*w}], v45 offset:{L_FIN + 128*w}")
        a("s_waitcnt lgkmcnt(0)")
        self.sum_rows4([8, 12, 16, 20])
        a(f"v_pk_fma_f32 v[8:9], v[8:9], v[{FGB}:{FGB+1}], v[{FX}:{FX+1}]"); a(f"v_pk_fma_f32 v[10:11], v[10:11], v[{FGB+2}:{FGB+3}], v[{FX+2}:{FX+3}]")
        a("v_cvt_pk_bf16_f32 v12, v8, v9"); a("v_cvt_pk_bf16_f32 v13, v10, v11")
        a(f"buffer_store_short v12, v49, {srd(SRD_B)}, s15 offen"); a(f"buffer_store_short_d16_hi v12, v49, {srd(SRD_B)}, s15 offen offset:16")
        a(f"buffer_store_short v13, v49, {srd(SRD_B)}, s15 offen offset:32"); a(f"buffer_store_short_d16_hi v13, v49, {srd(SRD_B)}, s15 offen offset:48")
        self.stamp(7)
        a("s_cmp_lg_u32 s14, 0"); a("s_cbranch_scc1 L_hexit")
        a("s_mov_b64 exec, 1")
        a(f"v_mov_b32 v8, {sTAG}")
        a(f"buffer_store_dword v8, off, {srd(SRD_WS)}, 0 sc1")
        a("s_branch L_hexit")
        a.label("L_wo")
        a(f"s_and_b32 {sR0}, {sTK}, 7"); a(f"s_lshr_b32 {sR1}, {sTK}, 3")
        a(f"s_lshl_b32 {sT2}, {sR1}, 7")
        self.set_srd(SRD_A, sWO, off=sT2, size_minus_off=4096 * 1152)
        a(f"s_lshl_b32 {sR2}, {sR0}, 2"); a(f"s_add_u32 {sR2}, {sR2}, {sHW}")
        a(f"s_lshl_b32 {sT0}, {sR2}, 7")
        a(f"v_lshrrev_b32 v1, 3, {vLANE}"); a(f"v_add_u32 v1, {sT0}, v1"); a("v_mul_u32_u24 v1, 1152, v1")
        a(f"v_and_b32 v2, 7, {vLANE}"); a("v_lshl_add_u32 v1, v2, 4, v1")
        self.lds_spin(L_WCNT, target=4, sleep=1)
        self.stamp(5)
        a(f"s_mov_b32 {sT0}, 0")
        for t in range(16):
            a(f"buffer_load_dwordx4 a[{96+4*t}:{99+4*t}], v1, {srd(SRD_A)}, {sT0} offen nt")
            if t < 15: a(f"s_add_u32 {sT0}, {sT0}, 9216")
        a(f"s_mul_i32 s4, {sR2}, {8*OSLOT}"); a("s_add_u32 s4, s4, " + str(WS_O))
        a(f"s_mul_i32 {sT0}, {sR0}, 2304"); a(f"s_lshl_b32 {sT1}, {sR1}, 8"); a(f"s_add_u32 {sT0}, {sT0}, {sT1}"); a(f"s_add_u32 s5, {sT0}, {WS_ATT}")
        a(f"v_and_b32 v41, 7, {vLANE}"); a(f"v_mul_u32_u24 v41, {OSLOT}, v41")
        a(f"v_lshlrev_b32 v40, 3, {vLANE}")
        a(f"v_and_b32 v8, 3, {vLANE}"); a("v_mul_u32_u24 v8, 160, v8"); a(f"v_lshrrev_b32 v42, 2, {vLANE}"); a("v_lshl_add_u32 v42, v42, 2, v8")
        a(f"s_mul_i32 {sT0}, {sHW}, {TBLW}"); a(f"s_add_u32 {sT0}, {sT0}, {L_TBL}"); a(f"v_add_u32 v42, {sT0}, v42")
        self.taddr_r("v43", 20)
        self.dpiece_addr("v44", "v8", L_PART, 256)
        a(f"v_lshlrev_b32 v45, 4, {vLANE}")
        a("s_add_u32 s15, s4, 3200")
        self.poll([(8, 4, "v41", "s4", 512)], sleep=4, strong=(0,))
        a(f"v_and_b32 v8, {sFFFF0000}, v8")
        a("v_mov_b32 v10, v8")
        self.allreduce("v_max_f32", "v10", "v11", ["q1", "q2", "hm"])
        a("v_sub_f32 v11, v8, v10"); a(f"v_mul_f32 v11, 0x{LOG2E:08x}, v11"); a("v_exp_f32 v11, v11")
        a("v_mul_f32 v12, v11, v9")
        self.allreduce("v_add_f32", "v12", "v13", ["q1", "q2", "hm"])
        a("v_rcp_f32 v12, v12"); a("v_mul_f32 v11, v11, v12")
        for s_ in range(8): a(f"v_mov_b32_dpp v{48+s_}, v11 row_newbcast:{s_} row_mask:0xf bank_mask:0xf")
        a("s_setprio 3")
        if p.CGATE_O: self.cnt_gate(p.CTGT_O, p.PS_O)
        self.poll([(8 + 2 * s_, 2, "v40", "s4" if s_ < 6 else "s15", s_ * OSLOT if s_ < 6 else (s_ - 5) * OSLOT) for s_ in range(8)], sleep=p.SL_O)
        self.stamp(6, "wo")
        a("v_pk_mul_f32 v[24:25], v[8:9], v[48:49] op_sel_hi:[1,0]")
        a("v_pk_mul_f32 v[26:27], v[10:11], v[48:49] op_sel:[0,1]")
        for s_ in range(2, 8):
            d = 24 + 2 * (s_ & 1); w = 48 + (s_ & ~1)
            sel = "op_sel_hi:[1,0,1]" if (s_ & 1) == 0 else "op_sel:[0,1,0]"
            a(f"v_pk_fma_f32 v[{d}:{d+1}], v[{8+2*s_}:{9+2*s_}], v[{w}:{w+1}], v[{d}:{d+1}] {sel}")
        self.pk_add(24, 24, 26)
        a("v_cvt_pk_bf16_f32 v24, v24, v24"); a("v_cvt_pk_bf16_f32 v25, v25, v25")
        a("ds_write_b32 v42, v24"); a("ds_write_b32 v42, v25 offset:80")
        self.tread(16, 4, "v43")
        self.gemv(16, 96, list(range(16, 32)), 36)
        self.setexec(self.VALID); a("ds_write_b128 v44, v[36:39]"); a("s_mov_b64 exec, -1")
        a("s_waitcnt lgkmcnt(0)")
        a("s_barrier")
        a(f"s_cmp_lg_u32 {sHW}, 0"); a("s_cbranch_scc1 L_wo_done")
        self.setexec(0xFFFF)
        for k in range(8): a(f"ds_read_b128 v[{8+4*k}:{11+4*k}], v45 offset:{L_PART + 256*k}")
        a("s_waitcnt lgkmcnt(0)")
        self.sum_rows4([8 + 4 * k for k in range(8)])
        for c in range(4): a(f"v_bfi_b32 v{8+c}, {sFF}, {vTAG}, v{8+c}")
        a(f"buffer_store_dwordx4 v[8:11], v45, {srd(SRD_WS)}, s5 offen sc1")
        a("s_mov_b64 exec, -1")
        self.stamp(1, "wo")
        a.label("L_wo_done")
        a(f"s_mov_b32 s14, {sTK}")
        down_prep()
        a("s_branch L_down")
        a.label("L_hexit")
        self.dump_stamps(extra=sTK)
        a("s_endpgm")

    def group_watch(self):
        a = self.a; p = self.p
        if not p.GSYNC: return
        a(f"s_cmp_lg_u32 {sHW}, 2"); a("s_cbranch_scc1 L_nogw")
        self.lds_spin(L_MLCNT, target=4, sleep=8)
        a(f"s_lshr_b32 {sT0}, s100, 3"); a(f"s_mul_i32 s4, {sT0}, {8*OSLOT}"); a("s_add_u32 s4, s4, " + str(WS_O))
        a(f"v_and_b32 v41, 7, {vLANE}"); a(f"v_mul_u32_u24 v41, {OSLOT}, v41")
        self.poll([(8, 4, "v41", "s4", 512)], active=0xFF, sleep=p.SL_GW, strong=(0,))
        a("s_mov_b64 exec, 1")
        a(f"v_mov_b32 v8, {L_GRP}"); a("v_mov_b32 v9, 1"); a("ds_write_b32 v8, v9")
        a("s_mov_b64 exec, -1")
        a.label("L_nogw")

    def read_ticket(self):
        a = self.a; L = a.uid("Ltk")
        a(f"s_cmp_lg_u32 {sHW}, 0"); a(f"s_cbranch_scc1 {L}")
        self.set_srd(SRD_B, sDBG, size=256)
        a("s_mov_b64 exec, 1")
        a("v_mov_b32 v8, 1")
        a(f"buffer_atomic_add v8, off, {srd(SRD_B)}, 0 sc0")
        a("s_waitcnt vmcnt(0)")
        a(f"v_add_u32 v8, 1, v8"); a(f"v_mov_b32 v9, {L_TICK}"); a("ds_write_b32 v9, v8")
        a("s_mov_b64 exec, -1")
        a.label(L)
        self.lds_spin(L_TICK, target=1, sleep=1)
        a(f"s_sub_u32 s63, {sT3}, 1")

    def go_watch(self, lab):
        a = self.a; p = self.p
        if not p.GT: return
        L = a.uid("Lgo"); E = a.uid("Lgoe")
        a(f"s_cmp_lg_u32 {sHW}, 2"); a(f"s_cbranch_scc1 {lab}")
        self.lds_spin(L_WCNT, target=4, sleep=2)
        self.set_srd(SRD_B, sDBG, size=256)
        a("s_mov_b64 exec, 1")
        a("v_mov_b32 v8, 1")
        a(f"buffer_atomic_add v8, off, {srd(SRD_B)}, 0 sc0")
        a("s_waitcnt vmcnt(0)")
        a(f"v_readfirstlane_b32 {sT3}, v8"); a(f"s_add_u32 {sT3}, {sT3}, 1")
        a(f"s_mov_b32 {sSPIN}, 0")
        a.label(L)
        a(f"s_cmp_ge_u32 {sT3}, {p.GT}"); a(f"s_cbranch_scc1 {E}")
        a(f"s_sleep {p.GSL}")
        a(f"buffer_load_dword v8, off, {srd(SRD_B)}, 0 sc1")
        a("s_waitcnt vmcnt(0)")
        a(f"v_readfirstlane_b32 {sT3}, v8")
        a(f"s_add_u32 {sSPIN}, {sSPIN}, 1"); a(f"s_cmp_lt_u32 {sSPIN}, {SPIN_MAX}"); a(f"s_cbranch_scc1 {L}")
        a.label(E)
        a(f"v_mov_b32 v8, {L_GO}"); a("v_mov_b32 v9, 1"); a("ds_write_b32 v8, v9")
        a("s_mov_b64 exec, -1")
        a.label(lab)

    def go_watch_u(self): self.go_watch("L_nogo_u")
    def go_watch_w(self): self.go_watch("L_nogo_w")

    def cnt_gate(self, target, presleep):
        a = self.a; L = a.uid("Lcg"); E = a.uid("Lcge")
        self.set_srd(SRD_B, sDBG, size=256)
        a(f"s_mov_b32 {sSPIN}, 0")
        a.label(L)
        a(f"buffer_load_dword v61, off, {srd(SRD_B)}, 0 sc1")
        a("s_waitcnt vmcnt(0)")
        a(f"v_readfirstlane_b32 {sT3}, v61")
        a(f"s_cmp_ge_u32 {sT3}, {target}"); a(f"s_cbranch_scc1 {E}")
        a("s_sleep 6")
        a(f"s_add_u32 {sSPIN}, {sSPIN}, 1"); a(f"s_cmp_lt_u32 {sSPIN}, {SPIN_MAX}"); a(f"s_cbranch_scc1 {L}")
        a.label(E)
        n = presleep
        while n > 0:
            a(f"s_sleep {min(n, 127)}"); n -= 127

    def lane6_reduce(self, regs, T):
        a = self.a
        a(f"v_and_b32 v{T}, 7, {vLANE}"); a(f"v_cmp_gt_u32 vcc, 6, v{T}")
        for r in regs: a(f"v_cndmask_b32 v{r}, 0, v{r}, vcc")
        self.allreduceN("v_add_f32", [(f"v{r}", f"v{T}") for r in regs], ["q1", "q2", "hm"])

    def build(self):
        self.prologue(); self.swave(); self.hwave()
        self.a.label("L_exit"); self.a("s_endpgm")
        return autonop(self.a.lines)

HEADER = open("adaLN_cond__mha_block_cached__glu_gated_glu__decode.s.ref").read().split("; Override launch geometry")[0]

LAST_SITES = {}
def make(p=P):
    g = Gen(p)
    body = g.build()
    global LAST_SITES
    LAST_SITES = getattr(g, "sites", {})
    txt = HEADER + "; Override launch geometry by editing the next line (default: block=256,\n; grid=ceil(out_elems/256), lds=0). Harness parses it; keep it on one line.\n"
    txt += f"; @launch grid=(256,1,1) block=(512,1,1) lds={LDS_BYTES}\n"
    txt += f""".amdgcn_target "amdgcn-amd-amdhsa--gfx950"
.text
.globl {KNAME}
.p2align 8
.type {KNAME},@function
{KNAME}:
"""
    txt += "\n".join(("" if l.endswith(":") else "    ") + l for l in body) + "\n"
    txt += f""".section .rodata,"a"
.p2align 6
.amdhsa_kernel {KNAME}
  .amdhsa_next_free_vgpr 256
  .amdhsa_next_free_sgpr 102
  .amdhsa_accum_offset {NVGPR}
  .amdhsa_group_segment_fixed_size 0
  .amdhsa_kernarg_size 112
  .amdhsa_user_sgpr_count 2
  .amdhsa_user_sgpr_kernarg_segment_ptr 1
  .amdhsa_system_sgpr_workgroup_id_x 1
.end_amdhsa_kernel
"""
    return txt

def report_h(pr, hw, mode, dyn=True):
    if not dyn:
        u = hw[72:252]
        if mode == "fine":
            pr("late trigger", u[:, :, 5]); pr("unit: C done", u[:, :, 1]); pr("unit: attn gathered", u[:, :, 6]); pr("unit: G published", u[:, :, 2])
            pr("  C done singles", hw[72:216, :, 1]); pr("  C done doubles", hw[216:252, :, 1]); pr("  attn gath singles", hw[72:216, :, 6]); pr("  attn gath doubles", hw[216:252, :, 6])
            pr("  G pub singles", hw[72:216, :, 2]); pr("  G pub doubles", hw[216:252, :, 2])
            g = hw[72:252, :, 2]; late = np.argsort(g.max(1))[-8:]
            print("   latest G publishers (id, trig, Cdone, attn, Gpub):", [(int(72 + k), round(float(hw[72+k, :, 5].max()), 2), round(float(hw[72+k, :, 1].max()), 2), round(float(hw[72+k, :, 6].max()), 2), round(float(g[k].max()), 2)) for k in late])
            pr("down: G gathered", hw[72:216, :, 3]); pr("down: published", hw[72:216, :3, 7]); pr("fin: x1", hw[216:234, :, 3]); pr("fin: done", hw[216:234, 0, 7])
        elif mode == "fin":
            f = hw[216:234]
            pr("down: published", hw[72:216, :3, 7]); pr("down: store acked", hw[72:216, :3, 6]); pr("fin: OUT gathered", f[:, :, 1]); pr("fin: before barrier", f[:, :, 2]); pr("fin: after barrier", f[:, :, 3]); pr("fin: done", f[:, 0, 7])
        elif mode == "wo":
            w = hw[:72]; pr("wo: trigger", w[:, :, 5]); pr("wo: ML+weights done", w[:, :, 2]); pr("wo: gathered", w[:, :, 6]); pr("wo: barrier passed", w[:, :, 3]); pr("wo: published", w[:, 0, 7])
        return
    if mode == "pre":
        qs = hw[:192, 0]; mc = hw[192:246, 0]; mn = hw[72:180, 1]
        pr("q gathered (H3)", hw[:, 3, 4])
    elif mode == "wo":
        w = hw[:72]
        pr("wo: trigger", w[:, :, 5]); pr("wo: gathered", w[:, :, 6]); pr("wo: published", w[:, 0, 1])
    elif mode == "fine":
        u = hw[72:234]
        pr("ticket known", hw[:234, :, 4]); pr("ticket W", hw[:72, :, 4]); pr("ticket D", hw[72:126, :, 4]); pr("ticket S", hw[126:234, :, 4])
        pr("unit trigger", u[:, :, 5]); pr("unit: C done D", hw[72:126, :, 1]); pr("unit: C done S", hw[126:234, :, 1]); pr("unit: attn gathered D", hw[72:126, :, 6]); pr("unit: attn gathered S+dn", hw[126:198, :, 6]); pr("unit: attn gathered S", hw[198:234, :, 6])
        pr("G published D", hw[72:126, :, 2]); pr("G published S+dn", hw[126:198, :, 2]); pr("G published S", hw[198:234, :, 2])
        print("   attn gathered by wave:", [round(float(u[:, w, 6].mean()), 2) for w in range(4)], "max", [round(float(u[:, w, 6].max()), 2) for w in range(4)])
        late = np.argsort(u[:, :, 6].max(1))[-6:]; print("   latest attn gathers (ticket, times, Cdone):", [(int(72 + k), u[k, :, 6].round(2).tolist(), u[k, :, 1].round(2).tolist()) for k in late])
        dn = np.concatenate([hw[:72], hw[126:198]])
        pr("down: G gathered", dn[:, :, 3]); pr("down: published", dn[:, :3, 7]); pr("fin: x1", hw[72:90, :, 3]); pr("fin: done", hw[72:90, 0, 7])
    else:
        u = hw[72:234]
        pr("unit trigger", u[:, :, 5]); pr("unit: attn gathered", u[:, :, 6]); pr("fin: done", hw[72:90, 0, 7])
def end_time(hw, dyn=True): return hw[72:90, 0, 7].max() if dyn else hw[216:234, 0, 7].max()
def order_h(hw, tickets):
    o = np.argsort(tickets, kind="stable")
    return hw[o]
import numpy as np

if __name__ == "__main__":
    out = sys.argv[1] if len(sys.argv) > 1 else "adaLN_cond__mha_block_cached__glu_gated_glu__decode.s"
    open(out, "w").write(make())
    print("wrote", out)
```

```python
import sys
from asmlib import Asm, autonop

KNAME = "adaLN_cond__mha_block_cached__glu_gated_glu__decode_kernel"

WS_EPOCH = 0
WS_O = 0x10000
OSLOT = 640
WS_ATT = 0x40000
WS_MOD = 0x80000
WS_Q = 0x90000
WS_OUT = 0xA0000
WS_G = 0x100000
WS_C = 0x140000
WS_ST = 0x1B0000
WS_DBG = 0x200000
WS_SIZE = 0x300000

L_QFLAG = 0
L_WCNT = 4
L_MLCNT = 8
L_OCNT = 12
L_TICK = 16
L_GRP = 20
L_W2 = 24
L_GO = 28
L_SENT = 32
L_Q = 0x40
L_ML = 0x180
L_STAT = 0x1C0
L_TBL = 0x200
TBLW = 768
L_PART = 0x1000
L_OPART = 0x1800
L_FIN = 0x2000
L_DOWN = 0x3000
L_KRING = 0x8000
LDS_BYTES = 0x8000 + 4 * 24 * 1024

LOG2E = 0x3FB8AA3B
SCALE = 0x3DB504F3
SPIN_MAX = 200000
NVGPR = 96

class P:
    R = 44
    D = 5
    NP = 44
    STAMPS = False
    MODE = "tail"
    QSLEEP = 16
    WTRIG = 'done'
    FULLCHECK = False
    LATEMOD = False
    WOEARLY = True
    MAP2 = False
    WOLATE = True
    DYN = False
    DOWNAFTERC = False
    LPACE = 0
    LPACE_T = 150
    NOTAIL = False
    MAPKV = 0
    DBLEARLY = True
    CMERGE = True
    GSYNC = 0
    MLAT = 12
    SL_GW = 8
    TKAT = 1
    SL_C = 2
    SL_O = 0
    CGATE = False
    CTGT = 256
    PS_ATT = 60
    CGATE_O = False
    CTGT_O = 256
    PS_O = 10
    SL_ATT = 0
    SL_G = 0
    SL_OUT = 0
    KVPOL = 'nt'
    WPOL = 'nt'
    DOWNLATER = True
    WOTGT = 4
    WOAT = 0
    MAP3 = False
    REPAIR = False
    UNITPACE = 0
    TOUTDBG = False
    SENT_ATT = 8
    SENT1 = False
    AD_O = None
    STREP = False
    SL_FA = 1
    SENT_K = 0
    GT = 0
    GT_W = False
    GSL = 8
    DUP_G = 0
    DUP_OUT = 0
    DUP_O = 0
    UEARLY = False
    UPACE = 2
    UAT = 0
    PRETOUCH = False
    HPRIO0 = 1
    HDELAY = 0
    KLDS = True
    PS_A = 60
    SL_A = 16
    PS_QG = 240
    PS_G = 0
    PS_OUT = 0
    PS_Q = 0
    DEND = 10
    DENDAT = 32
    D2 = 0
    NEARLY = 0
    EPACE = 1
    WTHR = 0
    SPRIO = 2
    WOPACE = 2

def f32hex(x):
    import struct
    return "0x%08x" % struct.unpack("<I", struct.pack("<f", x))[0]

sWAVE = "s3"
sX, sK, sV, sWQ, sWO, sWG, sWU, sWD, sC, sWM, sOUT, sDBG, sWS = 16, 18, 20, 22, 24, 28, 30, 32, 34, 36, 38, 40, 42
SRD_A, SRD_B, SRD_WS, SRD_C = 44, 48, 52, 56
sTAG = "s64"
sT0, sT1, sT2, sT3 = "s65", "s66", "s67", "s68"
sSPIN = "s69"
sSAVE = 72
sHW = "s76"
sR0, sR1, sR2, sR3 = "s77", "s78", "s79", "s83"
sFFFF0000 = "s80"
sFF = "s81"
sSTAMP = 84
def srd(b): return f"s[{b}:{b+3}]"
def sp(b): return f"s[{b}:{b+1}]"
vLANE = "v3"
vM = [4, 5, 6, 7]
vTAG = "v60"
FULL = (1 << 64) - 1
def lanes(n): return (1 << n) - 1

class Gen:
    def __init__(self, p=P):
        self.a = Asm(); self.p = p

    def mask64(self, sreg, val):
        self.a(f"s_mov_b32 s{sreg}, 0x{val & 0xffffffff:08x}"); self.a(f"s_mov_b32 s{sreg+1}, 0x{(val >> 32) & 0xffffffff:08x}")
    def setexec(self, val):
        a = self.a
        if val == FULL: a("s_mov_b64 exec, -1")
        elif val <= 64: a(f"s_mov_b64 exec, {val}")
        elif val < (1 << 32): a(f"s_mov_b64 exec, 0x{val:x}")
        else:
            a(f"s_mov_b32 exec_lo, 0x{val & 0xffffffff:08x}"); a(f"s_mov_b32 exec_hi, 0x{(val >> 32) & 0xffffffff:08x}")
    def stamp(self, idx, mode="tail"):
        if self.p.STAMPS and (mode == self.p.MODE or mode == "all" or (mode == "tail" and self.p.MODE in ("fine", "fin", "wo"))):
            self.a(f"s_memrealtime s[{sSTAMP+2*idx}:{sSTAMP+2*idx+1}]")
    def dump_stamps(self, n=8, extra=None):
        if not self.p.STAMPS: return
        a = self.a
        a("s_waitcnt lgkmcnt(0)")
        a("s_mov_b64 exec, -1")
        a(f"s_lshl_b32 {sT0}, s2, 3"); a(f"s_add_u32 {sT0}, {sT0}, {sWAVE}"); a(f"s_lshl_b32 {sT0}, {sT0}, 7")
        a(f"s_add_u32 {sT0}, {sT0}, {WS_DBG}")
        for i in range(2 * n): a(f"v_writelane_b32 v8, s{sSTAMP+i}, {i}")
        if extra: a(f"v_writelane_b32 v8, {extra}, 16")
        a(f"v_lshlrev_b32 v9, 2, {vLANE}")
        a("s_mov_b64 exec, 0x1ffff")
        a(f"buffer_store_dword v8, v9, {srd(SRD_WS)}, {sT0} offen")
    def tout(self, site):
        if not self.p.TOUTDBG: return
        a = self.a
        self.site = getattr(self, "site", 0) + 1
        self.sites = getattr(self, "sites", {}); self.sites[self.site] = site
        a("s_mov_b64 s[96:97], exec"); a("s_mov_b64 exec, 1")
        a(f"s_lshl_b32 s98, s2, 3"); a(f"s_add_u32 s98, s98, {sWAVE}"); a("s_lshl_b32 s98, s98, 2"); a(f"s_add_u32 s98, s98, {WS_DBG + 0x10000}")
        a(f"v_mov_b32 v63, {self.site}")
        a(f"buffer_store_dword v63, off, {srd(SRD_WS)}, s98 sc1")
        a("s_mov_b64 exec, s[96:97]")
    def lds_spin(self, addr, target=1, vtmp="v61", vaddr="v62", sleep=1):
        a = self.a; L = a.uid("Lspin"); E = a.uid("Lspun")
        a(f"v_mov_b32 {vaddr}, {addr}")
        a(f"s_mov_b32 {sSPIN}, 0")
        a.label(L)
        a(f"ds_read_b32 {vtmp}, {vaddr}")
        a("s_waitcnt lgkmcnt(0)")
        a(f"v_readfirstlane_b32 {sT3}, {vtmp}")
        a(f"s_cmp_ge_u32 {sT3}, {target}")
        a(f"s_cbranch_scc1 {E}")
        if sleep: a(f"s_sleep {sleep}")
        a(f"s_add_u32 {sSPIN}, {sSPIN}, 1")
        a(f"s_cmp_lt_u32 {sSPIN}, {SPIN_MAX * 4}")
        a(f"s_cbranch_scc1 {L}")
        self.tout(f"lds_spin addr={addr} target={target}")
        a.label(E)
    def lds_add1(self, addr, va, vb):
        a = self.a
        a("s_mov_b64 exec, 1")
        a(f"v_mov_b32 {va}, {addr}"); a(f"v_mov_b32 {vb}, 1"); a(f"ds_add_u32 {va}, {vb}")
        a("s_mov_b64 exec, -1")
    def poll(self, loads, active=None, sleep=0, tmps=("v61", "v62", "v63"), presleep=0, strong=(), adapt=None):
        a = self.a; L = a.uid("Lpoll"); E = a.uid("Lpolled")
        t0, t1, t2 = tmps
        sMISS = "s70"
        if active is not None: self.setexec(active)
        if presleep: a(f"s_sleep {presleep}")
        n = len(loads)
        def issue(ld):
            (dst, k, voff, soff, imm) = ld
            op = {1: "buffer_load_dword", 2: "buffer_load_dwordx2", 4: "buffer_load_dwordx4"}[k]
            r = f"v{dst}" if k == 1 else f"v[{dst}:{dst+k-1}]"
            if soff is not None and not str(soff).startswith("s"):
                a(f"s_mov_b32 {sT3}, {soff}"); so = sT3
            else: so = soff if soff is not None else "0"
            a(f"{op} {r}, {voff}, {srd(SRD_WS)}, {so} offen offset:{imm} sc1")
        def test(li, ld):
            if li in strong or self.p.FULLCHECK:
                a(f"v_xor_b32 {t0}, {vTAG}, v{ld[0]}")
                k = 1
                while k < ld[1]:
                    if k + 1 < ld[1]:
                        a(f"v_xor_b32 {t1}, {vTAG}, v{ld[0]+k}"); a(f"v_xor_b32 {t2}, {vTAG}, v{ld[0]+k+1}"); a(f"v_or3_b32 {t0}, {t0}, {t1}, {t2}"); k += 2
                    else:
                        a(f"v_xor_b32 {t1}, {vTAG}, v{ld[0]+k}"); a(f"v_or_b32 {t0}, {t0}, {t1}"); k += 1
                a(f"v_cmp_ne_u32_sdwa vcc, 0, {t0} src0_sel:DWORD src1_sel:BYTE_0") if False else (a(f"v_and_b32 {t0}, 0xff, {t0}"), a(f"v_cmp_ne_u32 vcc, 0, {t0}"))
            else:
                a(f"v_cmp_ne_u32_sdwa vcc, {vTAG}, v{ld[0]} src0_sel:BYTE_0 src1_sel:BYTE_0")
        if n == 1:
            a(f"s_mov_b32 {sSPIN}, 0")
            a.label(L)
            issue(loads[0]); a("s_waitcnt vmcnt(0)")
            test(0, loads[0])
            a(f"s_cbranch_vccz {E}")
            if sleep: a(f"s_sleep {sleep}")
            a(f"s_add_u32 {sSPIN}, {sSPIN}, 1"); a(f"s_cmp_lt_u32 {sSPIN}, {SPIN_MAX}"); a(f"s_cbranch_scc1 {L}")
            self.tout(f"poll1 {loads[0]}")
            a.label(E)
            return
        for ld in loads: issue(ld)
        a(f"s_mov_b32 {sMISS}, 0")
        for li, ld in enumerate(loads):
            Lk = a.uid("Lk")
            a(f"s_waitcnt vmcnt({n-1-li})")
            test(li, ld)
            a(f"s_cbranch_vccz {Lk}")
            a(f"s_bitset1_b32 {sMISS}, {li}")
            a.label(Lk)
        a(f"s_cmp_eq_u32 {sMISS}, 0"); a(f"s_cbranch_scc1 {E}")
        a(f"s_mov_b32 {sSPIN}, 0")
        a.label(L)
        if sleep: a(f"s_sleep {sleep}")
        if adapt:
            Lk = a.uid("La")
            a(f"s_bcnt1_i32_b32 {sT3}, {sMISS}"); a(f"s_cmp_lt_u32 {sT3}, {adapt[0]}"); a(f"s_cbranch_scc1 {Lk}")
            a(f"s_sleep {adapt[1]}"); a.label(Lk)
        for li, ld in enumerate(loads):
            Lk = a.uid("Ls")
            a(f"s_bitcmp1_b32 {sMISS}, {li}"); a(f"s_cbranch_scc0 {Lk}")
            issue(ld); a.label(Lk)
        a("s_waitcnt vmcnt(0)")
        for li, ld in enumerate(loads):
            Lk = a.uid("Lt")
            a(f"s_bitcmp1_b32 {sMISS}, {li}"); a(f"s_cbranch_scc0 {Lk}")
            test(li, ld)
            a(f"s_cbranch_vccnz {Lk}")
            a(f"s_bitset0_b32 {sMISS}, {li}")
            a.label(Lk)
        a(f"s_cmp_eq_u32 {sMISS}, 0"); a(f"s_cbranch_scc1 {E}")
        a(f"s_add_u32 {sSPIN}, {sSPIN}, 1"); a(f"s_cmp_lt_u32 {sSPIN}, {SPIN_MAX}"); a(f"s_cbranch_scc1 {L}")
        self.tout(f"pollN n={n} first={loads[0]}")
        a.label(E)
    def poll_dup(self, loads, bdst, gap, active=None, strong=(), tmps=("v61", "v62", "v63")):
        a = self.a; L = a.uid("Lpd"); E = a.uid("Lpde"); B = a.uid("Lpdb")
        t0, t1, t2 = tmps
        if active is not None: self.setexec(active)
        n = len(loads)
        def issue(ld, dst):
            (_, k, voff, soff, imm) = ld
            op = {1: "buffer_load_dword", 2: "buffer_load_dwordx2", 4: "buffer_load_dwordx4"}[k]
            r = f"v{dst}" if k == 1 else f"v[{dst}:{dst+k-1}]"
            if soff is not None and not str(soff).startswith("s"):
                a(f"s_mov_b32 {sT3}, {soff}"); so = sT3
            else: so = soff if soff is not None else "0"
            a(f"{op} {r}, {voff}, {srd(SRD_WS)}, {so} offen offset:{imm} sc1")
        def test(dsts):
            regs = []
            for li, (ld, d) in enumerate(zip(loads, dsts)):
                regs += [d + k for k in range(ld[1])] if li in strong else [d]
            a(f"v_xor_b32 {t0}, {vTAG}, v{regs[0]}")
            k = 1
            while k < len(regs):
                if k + 1 < len(regs):
                    a(f"v_xor_b32 {t1}, {vTAG}, v{regs[k]}"); a(f"v_xor_b32 {t2}, {vTAG}, v{regs[k+1]}"); a(f"v_or3_b32 {t0}, {t0}, {t1}, {t2}"); k += 2
                else:
                    a(f"v_xor_b32 {t1}, {vTAG}, v{regs[k]}"); a(f"v_or_b32 {t0}, {t0}, {t1}"); k += 1
            a(f"v_cmp_ne_u32_sdwa vcc, 0, {t0} src0_sel:DWORD src1_sel:BYTE_0")
        adst = [ld[0] for ld in loads]
        a(f"s_mov_b32 {sSPIN}, 0")
        a.label(L)
        for ld in loads: issue(ld, ld[0])
        a(f"s_sleep {gap}")
        for ld, d in zip(loads, bdst): issue(ld, d)
        a(f"s_waitcnt vmcnt({n})")
        test(adst)
        a(f"s_cbranch_vccz {E}")
        a("s_waitcnt vmcnt(0)")
        test(bdst)
        a(f"s_cbranch_vccz {B}")
        a(f"s_add_u32 {sSPIN}, {sSPIN}, 1"); a(f"s_cmp_lt_u32 {sSPIN}, {SPIN_MAX}"); a(f"s_cbranch_scc1 {L}")
        a.label(B)
        for ld, d in zip(loads, bdst):
            for k in range(ld[1]): a(f"v_mov_b32 v{ld[0]+k}, v{d+k}")
        a.label(E)

    def bf16_round(self, dst, src, tmp):
        self.a(f"v_cvt_pk_bf16_f32 {tmp}, {src}, {src}"); self.a(f"v_lshlrev_b32 {dst}, 16, {tmp}")
    def bf16_round2(self, d0, d1, s0, s1, tmp):
        a = self.a
        a(f"v_cvt_pk_bf16_f32 {tmp}, {s0}, {s1}"); a(f"v_lshlrev_b32 {d0}, 16, {tmp}"); a(f"v_and_b32 {d1}, {sFFFF0000}, {tmp}")
    def allreduce(self, op, v, t, steps):
        self.allreduceN(op, [(v, t)], steps)
    def allreduceN(self, op, vts, steps):
        a = self.a
        dpp = {"q1": "quad_perm:[1,0,3,2]", "q2": "quad_perm:[2,3,0,1]", "hm": "row_half_mirror", "r4": "row_ror:4", "r8": "row_ror:8"}
        for s in steps:
            if s in dpp:
                for (v, t) in vts: a(f"{op}_dpp {v}, {v}, {v} {dpp[s]} row_mask:0xf bank_mask:0xf")
            else:
                ins = "v_permlane16_swap_b32" if s == "p16" else "v_permlane32_swap_b32"
                for (v, t) in vts: a(f"v_mov_b32 {t}, {v}")
                for (v, t) in vts: a(f"{ins} {v}, {t}")
                for (v, t) in vts: a(f"{op} {v}, {v}, {t}")
    def pk_add(self, d, x, y): self.a(f"v_pk_add_f32 v[{d}:{d+1}], v[{x}:{x+1}], v[{y}:{y+1}]")
    def sum_rows4(self, bases):
        b = list(bases)
        while len(b) > 1:
            nb = []
            for i in range(0, len(b) - 1, 2):
                self.pk_add(b[i], b[i], b[i+1]); self.pk_add(b[i] + 2, b[i] + 2, b[i+1] + 2); nb.append(b[i])
            if len(b) % 2: nb.append(b[-1])
            b = nb
    def gemv(self, ntiles, abase, xx, D, bsets=(8, 12), waits=None):
        a = self.a
        def mkB(t):
            b = bsets[t & 1]
            for r in range(4): a(f"v_and_b32 v{b+r}, v{xx[t]}, v{vM[r]}")
        mkB(0)
        for t in range(ntiles):
            if t + 1 < ntiles: mkB(t + 1)
            if waits and t in waits: a(f"s_waitcnt vmcnt({waits[t]})")
            b = bsets[t & 1]
            c = "0" if t == 0 else f"v[{D}:{D+3}]"
            a(f"v_mfma_f32_16x16x32_bf16 v[{D}:{D+3}], a[{abase+4*t}:{abase+4*t+3}], v[{b}:{b+3}], {c}")
    def taddr_w(self, vaddr, vt, TS):
        a = self.a
        a(f"v_and_b32 {vt}, 1, {vLANE}"); a(f"v_mul_u32_u24 {vt}, {TS*16}, {vt}")
        a(f"v_lshrrev_b32 {vaddr}, 1, {vLANE}"); a(f"v_lshl_add_u32 {vaddr}, {vaddr}, 2, {vt}")
        a(f"s_mul_i32 {sT0}, {sHW}, {TBLW}"); a(f"s_add_u32 {sT0}, {sT0}, {L_TBL}")
        a(f"v_add_u32 {vaddr}, {sT0}, {vaddr}")
    def taddr_r(self, vaddr, TS):
        a = self.a
        a(f"v_lshrrev_b32 {vaddr}, 3, {vLANE}"); a(f"v_mul_u32_u24 {vaddr}, {TS*4}, {vaddr}")
        a(f"s_mul_i32 {sT0}, {sHW}, {TBLW}"); a(f"s_add_u32 {sT0}, {sT0}, {L_TBL}")
        a(f"v_add_u32 {vaddr}, {sT0}, {vaddr}")
    def twrite4(self, regs, vaddr, TS):
        for k in range(4): self.a(f"ds_write_b32 {vaddr}, v{regs[k]} offset:{k*TS*4}")
    def tread(self, first, nb128, vaddr):
        a = self.a
        for i in range(nb128): a(f"ds_read_b128 v[{first+4*i}:{first+4*i+3}], {vaddr} offset:{16*i}")
        a("s_waitcnt lgkmcnt(0)")
    VALID = 0xFF00FF0000FF00FF
    def paddr(self, vaddr, vt, base, rowlen):
        a = self.a
        a(f"v_lshrrev_b32 {vaddr}, 5, {vLANE}"); a(f"v_mul_u32_u24 {vaddr}, {rowlen*4}, {vaddr}")
        a(f"v_bfe_u32 {vt}, {vLANE}, 4, 1"); a(f"v_lshl_add_u32 {vaddr}, {vt}, 7, {vaddr}")
        a(f"v_and_b32 {vt}, 7, {vLANE}"); a(f"v_lshl_add_u32 {vaddr}, {vt}, 2, {vaddr}")
        a(f"s_mul_i32 {sT0}, {sHW}, {2*rowlen*4}"); a(f"s_add_u32 {sT0}, {sT0}, {base}")
        a(f"v_add_u32 {vaddr}, {sT0}, {vaddr}")
    def pwrite(self, D, vaddr, off=0):
        for r in range(4): self.a(f"ds_write_b32 {vaddr}, v{D+r} offset:{off + r*32}")
    def sigmoid(self, dst, v, t):
        a = self.a
        a(f"v_mul_f32 {t}, 0x{(LOG2E | 0x80000000):08x}, {v}"); a(f"v_exp_f32 {t}, {t}")
        a(f"v_add_f32 {t}, 1.0, {t}"); a(f"v_rcp_f32 {dst}, {t}")
    def unpack4(self, dst, src):
        a = self.a
        a(f"v_lshlrev_b32 v{dst}, 16, v{src}"); a(f"v_and_b32 v{dst+1}, {sFFFF0000}, v{src}")
        a(f"v_lshlrev_b32 v{dst+2}, 16, v{src+1}"); a(f"v_and_b32 v{dst+3}, {sFFFF0000}, v{src+1}")
    def round4(self, X, tmp):
        for k in (0, 2): self.bf16_round2(f"v{X+k}", f"v{X+k+1}", f"v{X+k}", f"v{X+k+1}", tmp)
    def set_srd(self, s, base, off=None, size=None, size_minus_off=None):
        a = self.a
        if off is None:
            a(f"s_mov_b32 s{s}, s{base}"); a(f"s_mov_b32 s{s+1}, s{base+1}")
        else:
            a(f"s_add_u32 s{s}, s{base}, {off}"); a(f"s_addc_u32 s{s+1}, s{base+1}, 0")
        if size_minus_off is not None: a(f"s_sub_u32 s{s+2}, {size_minus_off}, {off}")
        else: a(f"s_mov_b32 s{s+2}, {size}")
        a(f"s_mov_b32 s{s+3}, 0x20000")
    def div3(self, q, r, x):
        a = self.a
        a(f"s_mul_i32 {q}, {x}, 0x5556"); a(f"s_lshr_b32 {q}, {q}, 16")
        a(f"s_mul_i32 {r}, {q}, 3"); a(f"s_sub_u32 {r}, {x}, {r}")

    def prologue(self):
        a = self.a
        a("s_cmp_ge_u32 s2, 256"); a("s_cbranch_scc1 L_exit")
        self.stamp(0, "all")
        a("s_load_dwordx16 s[16:31], s[0:1], 0")
        a("s_load_dwordx8 s[32:39], s[0:1], 64")
        a("s_load_dwordx4 s[40:43], s[0:1], 96")
        a("v_lshrrev_b32 v1, 6, v0")
        a(f"v_and_b32 {vLANE}, 63, v0")
        a(f"v_readfirstlane_b32 {sWAVE}, v1")
        a(f"v_and_b32 v8, 1, {vLANE}"); a("v_cmp_eq_u32 vcc, 1, v8")
        a("v_mov_b32 v9, 0xffff"); a("v_mov_b32 v10, 0xffff0000")
        a("v_cndmask_b32 v9, v9, v10, vcc")
        a(f"v_bfe_u32 v8, {vLANE}, 1, 2")
        for r in range(4):
            a(f"v_cmp_eq_u32 vcc, {r}, v8"); a(f"v_cndmask_b32 v{vM[r]}, 0, v9, vcc")
        a(f"s_mov_b32 {sFFFF0000}, 0xffff0000"); a(f"s_mov_b32 {sFF}, 0xff")
        if self.p.MAPKV == 0: a("s_mov_b32 s100, s2")
        elif self.p.MAPKV == 1:
            a("s_and_b32 s100, s2, 31"); a("s_lshl_b32 s100, s100, 3"); a("s_lshr_b32 s101, s2, 5"); a("s_add_u32 s100, s100, s101")
        else:
            a("s_lshr_b32 s101, s2, 3"); a("s_xor_b32 s101, s101, s2"); a("s_and_b32 s101, s101, 7"); a("s_andn2_b32 s100, s2, 7"); a("s_or_b32 s100, s100, s101")
        a(f"s_lshl_b32 {sT0}, {sWAVE}, 10")
        a(f"v_lshrrev_b32 v8, 4, {vLANE}"); a("v_lshlrev_b32 v8, 6, v8")
        a(f"v_bfe_u32 v9, {vLANE}, 2, 2"); a("v_lshl_add_u32 v8, v9, 8, v8")
        a(f"v_and_b32 v9, 3, {vLANE}"); a("v_lshl_add_u32 v8, v9, 4, v8")
        a(f"v_add_u32 v1, {sT0}, v8")
        a(f"v_lshlrev_b32 v9, 4, {vLANE}"); a(f"v_add_u32 v2, {sT0}, v9")
        a(f"s_lshl_b32 {sT2}, s100, 18")
        a(f"s_cmp_ge_u32 {sWAVE}, 4")
        a("s_waitcnt lgkmcnt(0)")
        a("s_cbranch_scc1 L_helper")
    def common_setup(self):
        a = self.a
        a(f"s_load_dword {sTAG}, s[{sWS}:{sWS+1}], 0")
        self.set_srd(SRD_WS, sWS, size=WS_SIZE)
    def get_tag(self):
        a = self.a
        a("s_waitcnt lgkmcnt(0)")
        a(f"s_add_u32 {sTAG}, {sTAG}, 1")
        a(f"s_and_b32 {sT3}, {sTAG}, 0xff")
        a(f"v_mov_b32 {vTAG}, {sT3}")

    def swave(self):
        a = self.a; p = self.p
        R, D, NP = p.R, max(p.D, p.D2), p.NP
        Dlo = p.D
        vK, vV = "v1", "v2"
        B_T = 8; S = 24; DQ = (40, 44); DO = 48; T = 52
        vm, vl, vf = "v56", "v57", "v58"
        vOW, vPUB = "v64", "v65"
        self.set_srd(SRD_A, sK, off=sT2, size=0x40000)
        N = 128
        def slot(i):
            if p.KLDS:
                k = i if i < 64 else (i - 64) % 40
                return f"a[{4*k}:{4*k+3}]"
            k = i % R
            return f"a[{4*k}:{4*k+3}]" if k < 40 else f"v[{68+4*(k-40)}:{71+4*(k-40)}]"
        st = dict(issued=0)
        KL = p.KLDS
        RK = R if not KL else 40
        def issue(throttle=True):
            nonlocal D, Dlo
            i = st["issued"]
            if p.DEND and i >= 64 + p.DENDAT: D = Dlo = p.DEND
            if throttle and i >= Dlo and D != Dlo:
                L = a.uid("Lthr")
                a(f"s_cbranch_vccnz {L}"); a(f"s_waitcnt vmcnt({Dlo-1})"); a.label(L)
            if throttle and i >= D: a(f"s_waitcnt vmcnt({D-1})")
            a(f"s_mov_b32 {sT1}, {(i % 64) * 4096}")
            s_, v_ = (SRD_A, vK) if i < 64 else (SRD_B, vV)
            if KL and RK <= i < 64:
                a(f"s_add_u32 m0, s60, {(i - RK) * 1024}")
                a("s_nop 0")
                a(f"buffer_load_dwordx4 {v_}, {srd(s_)}, {sT1} offen {p.KVPOL} lds")
            else:
                a(f"buffer_load_dwordx4 {slot(i)}, {v_}, {srd(s_)}, {sT1} offen {p.KVPOL}")
            st["issued"] = i + 1
            if i == N - 1: self.lds_add1(L_WCNT, f"v{T}", f"v{T+1}")
            if (p.WOAT and i == 64 + p.WOAT) or (p.UAT and i == 64 + p.UAT): self.lds_add1(L_W2, f"v{T}", f"v{T+1}")
        def need(tile): a(f"s_waitcnt vmcnt({st['issued'] - 1 - tile})")
        if D != Dlo:
            a("s_mov_b64 vcc, 0"); a("s_cmp_lt_u32 s2, 72"); a("s_cbranch_scc1 L_vset"); a("s_cmp_ge_u32 s2, 216"); a("s_cbranch_scc1 L_vset")
            a("s_mov_b64 vcc, -1"); a.label("L_vset")
        self.stamp(3, "start")
        for _ in range(min(Dlo, NP)): issue(False)
        if p.SPRIO: a(f"s_setprio {p.SPRIO}")
        self.set_srd(SRD_B, sV, off=sT2, size=0x40000)
        self.common_setup()
        self.stamp(4, "start")
        a("s_barrier")
        self.stamp(5, "start")
        if p.STAMPS and p.MODE == "start":
            a(f"s_waitcnt vmcnt({D-1})"); self.stamp(6, "start")
        a(f"v_lshrrev_b32 v8, 4, {vLANE}"); a("v_lshlrev_b32 v8, 7, v8")
        a(f"v_and_b32 v9, 7, {vLANE}"); a("v_lshl_add_u32 v8, v9, 2, v8")
        a(f"s_lshl_b32 {sT0}, {sWAVE}, 9"); a(f"s_add_u32 {sT0}, {sT0}, {L_OPART}")
        a(f"v_add_u32 {vOW}, {sT0}, v8")
        a(f"v_lshlrev_b32 {vPUB}, 4, {vLANE}")
        if p.KLDS:
            a(f"s_mul_i32 s60, {sWAVE}, {24*1024}"); a(f"s_add_u32 s60, s60, {L_KRING}")
            a(f"v_lshlrev_b32 v66, 4, {vLANE}"); a("v_add_u32 v66, s60, v66")
        mT = [6, 8, 10, 12]; m1, m3, m23 = 14, 4, 62
        for t in range(4): self.mask64(mT[t], 0x000F000F000F000F << (4 * t))
        self.mask64(m1, 0x2222222222222222); self.mask64(m3, 0x8888888888888888); self.mask64(m23, 0xCCCCCCCCCCCCCCCC)
        while st["issued"] < (64 if p.KLDS else NP): issue()
        self.stamp(1, "all")
        self.get_tag()
        self.lds_spin(L_QFLAG)
        self.stamp(2, "all")
        a(f"v_lshrrev_b32 v{T}, 4, {vLANE}"); a(f"v_lshlrev_b32 v{T}, 6, v{T}")
        a(f"v_and_b32 v{T+1}, 3, {vLANE}"); a(f"v_lshl_add_u32 v{T}, v{T+1}, 4, v{T}")
        a(f"ds_read_b128 v[{T+4}:{T+7}], v{T} offset:{L_Q}")
        a("s_waitcnt lgkmcnt(0)")
        for t in range(4):
            for k in range(4): a(f"v_cndmask_b32 v{B_T+4*t+k}, 0, v{T+4+k}, {sp(mT[t])}")
        STG = (68, 84)
        def stage(g):
            b = 68
            for t in range(4):
                a(f"ds_read_b128 v[{b+4*t}:{b+4*t+3}], v66 offset:{(4*g+t-RK)*1024}")
        def qk_mfma(g):
            d = DQ[g & 1]
            lds = KL and 4 * g >= RK
            if lds: a("s_waitcnt lgkmcnt(0)")
            else: need(4 * g + 3)
            for t in range(4):
                c = "0" if t == 0 else f"v[{d}:{d+3}]"
                b = 68
                src = f"v[{b+4*t}:{b+4*t+3}]" if lds else slot(4*g+t)
                a(f"v_mfma_f32_16x16x32_bf16 v[{d}:{d+3}], {src}, v[{B_T+4*t}:{B_T+4*t+3}], {c}")
        def qk_post(g):
            d = DQ[g & 1]
            a(f"v_cndmask_b32 v{T}, v{d}, v{d+1}, {sp(m1)}")
            a(f"v_cndmask_b32 v{T+1}, v{d+2}, v{d+3}, {sp(m3)}")
            a(f"v_cndmask_b32 v{T}, v{T}, v{T+1}, {sp(m23)}")
            a(f"v_add_f32_dpp v{T+1}, v{T}, v{T} quad_perm:[1,0,3,2] row_mask:0xf bank_mask:0xf")
            a(f"v_add_f32_dpp v{S+g}, v{T+1}, v{T+1} quad_perm:[2,3,0,1] row_mask:0xf bank_mask:0xf")
        g = 0
        if KL:
            while g < 16:
                if 4 * (g + 1) >= RK and g + 1 < 16 and False: pass
                if 4 * g >= RK:
                    need(4 * g + 3); stage(g)
                qk_mfma(g)
                if g > 0: qk_post(g - 1)
                g += 1
                free = min(4 * g, RK) - (st["issued"] - 64)
                nissue = 2 if g <= 3 else 1
                for _ in range(max(0, min(nissue, free))):
                    if st["issued"] < N: issue()
        else:
            while g < 16:
                lag = st["issued"] - 4 * g
                qk_mfma(g)
                if g > 0: qk_post(g - 1)
                g += 1
                free = 4 * g + R - st["issued"]
                nissue = (1 if (g % 3 == 0) else 0) if lag > D + 8 else 4
                for _ in range(min(nissue, free)):
                    if st["issued"] < N: issue()
        qk_post(15)
        self.stamp(3, "tail")
        for _ in range(3): issue(False)
        a(f"s_mov_b32 {sT0}, 0x{SCALE:08x}")
        for k in range(0, 16, 2):
            x, y = f"v{S+k}", f"v{S+k+1}"; t = f"v{T + (k // 2) % 4}"
            a(f"v_cvt_pk_bf16_f32 {t}, {x}, {y}")
            a(f"v_lshlrev_b32 {x}, 16, {t}"); a(f"v_and_b32 {y}, {sFFFF0000}, {t}")
            a(f"v_mul_f32 {x}, {sT0}, {x}"); a(f"v_mul_f32 {y}, {sT0}, {y}")
            a(f"v_cvt_pk_bf16_f32 {t}, {x}, {y}")
            a(f"v_lshlrev_b32 {x}, 16, {t}"); a(f"v_and_b32 {y}, {sFFFF0000}, {t}")
        a(f"v_max3_f32 {vm}, v{S}, v{S+1}, v{S+2}")
        for k in range(3, 15, 2): a(f"v_max3_f32 {vm}, {vm}, v{S+k}, v{S+k+1}")
        a(f"v_max_f32 {vm}, {vm}, v{S+15}")
        self.allreduce("v_max_f32", vm, f"v{T}", ["r4", "r8", "p16", "p32"])
        a(f"s_mov_b32 {sT0}, 0x{LOG2E:08x}")
        a(f"v_mul_f32 v{T+3}, {sT0}, {vm}")
        for k in range(16): a(f"v_fma_f32 v{S+k}, v{S+k}, {sT0}, -v{T+3}")
        for k in range(16): a(f"v_exp_f32 v{S+k}, v{S+k}")
        a(f"v_add_f32 {vl}, v{S}, v{S+1}")
        for k in range(2, 16): a(f"v_add_f32 {vl}, {vl}, v{S+k}")
        for k in range(16): a(f"v_cvt_pk_bf16_f32 v{S+k}, v{S+k}, v{S+k}")
        self.allreduce("v_add_f32", vl, f"v{T}", ["r4", "r8", "p16", "p32"])
        a("s_mov_b64 exec, 1")
        a(f"s_lshl_b32 {sT0}, {sWAVE}, 3"); a(f"s_add_u32 {sT0}, {sT0}, {L_ML}")
        a(f"v_mov_b32 v{T}, {sT0}"); a(f"ds_write_b64 v{T}, v[56:57]")
        a(f"v_mov_b32 v{T}, {L_MLCNT}"); a(f"v_mov_b32 v{T+1}, 1"); a(f"ds_add_u32 v{T}, v{T+1}")
        a("s_mov_b64 exec, -1")
        self.stamp(4, "tail")
        BV = (8, 12)
        def mkB(vi):
            g_, t_ = vi >> 2, vi & 3; b = BV[vi & 1]
            for r in range(4): a(f"v_and_b32_dpp v{b+r}, v{S+g_}, v{vM[r]} row_newbcast:{4*t_} row_mask:0xf bank_mask:0xf")
        def ml_exchange():
            self.lds_spin(L_MLCNT, target=4)
            a(f"v_mov_b32 v16, {L_ML}")
            a("ds_read_b128 v[20:23], v16"); a("ds_read_b128 v[40:43], v16 offset:16")
            a("s_waitcnt lgkmcnt(0)")
            a("v_max3_f32 v16, v20, v22, v40"); a("v_max_f32 v16, v16, v42")
            a(f"s_mov_b32 {sT0}, 0x{LOG2E:08x}")
            a(f"v_sub_f32 {vf}, {vm}, v16"); a(f"v_mul_f32 {vf}, {sT0}, {vf}"); a(f"v_exp_f32 {vf}, {vf}")
            L = a.uid("Lnoml")
            a(f"s_cmp_lg_u32 {sWAVE}, 0"); a(f"s_cbranch_scc1 {L}")
            for i, r in enumerate((20, 22, 40, 42)):
                a(f"v_sub_f32 v{r}, v{r}, v16"); a(f"v_mul_f32 v{r}, {sT0}, v{r}"); a(f"v_exp_f32 v{r}, v{r}")
            a("v_mul_f32 v17, v20, v21"); a("v_fmac_f32 v17, v22, v23"); a("v_fmac_f32 v17, v40, v41"); a("v_fmac_f32 v17, v42, v43")
            a("v_mov_b32 v18, 0"); a("v_mov_b32 v19, 0")
            for c in range(4): a(f"v_bfi_b32 v{16+c}, {sFF}, {vTAG}, v{16+c}")
            a(f"s_mul_i32 {sT0}, s100, {OSLOT}"); a(f"s_add_u32 {sT0}, {sT0}, {WS_O + 512}")
            a("s_mov_b64 exec, 1")
            a(f"buffer_store_dwordx4 v[16:19], off, {srd(SRD_WS)}, {sT0} sc1")
            a("s_mov_b64 exec, -1")
            st["extra_wave0"] = True
            a.label(L)
        mkB(0)
        for vi in range(64):
            if vi + 1 < 64: mkB(vi + 1)
            tile = 64 + vi
            while st["issued"] < N and st["issued"] - tile < (p.DEND if (p.DEND and st["issued"] >= 64 + p.DENDAT) else D) + 1: issue()
            need(tile)
            b = BV[vi & 1]
            c = "0" if vi == 0 else f"v[{DO}:{DO+3}]"
            a(f"v_mfma_f32_16x16x32_bf16 v[{DO}:{DO+3}], {slot(tile)}, v[{b}:{b+3}], {c}")
            if vi == p.MLAT:
                ml_exchange()
            if p.GSYNC and vi == p.GSYNC:
                self.lds_spin(L_GRP, target=1, sleep=2)
        self.stamp(5, "tail")
        for r in range(4): a(f"v_mul_f32 v{DO+r}, {vf}, v{DO+r}")
        self.setexec(0x00FF00FF00FF00FF)
        for r in range(4): a(f"ds_write_b32 {vOW}, v{DO+r} offset:{32*r}")
        a("s_mov_b64 exec, 1")
        a(f"v_mov_b32 v8, {L_OCNT}"); a("v_mov_b32 v9, 1"); a("ds_add_rtn_u32 v9, v8, v9")
        a(f"s_mul_i32 {sT0}, s100, {OSLOT}"); a(f"s_add_u32 {sT0}, {sT0}, {WS_O}")
        a("s_waitcnt lgkmcnt(0)")
        a(f"v_readfirstlane_b32 {sT1}, v9")
        a(f"s_cmp_lg_u32 {sT1}, 3"); a("s_cbranch_scc1 L_sdone")
        self.setexec(lanes(32))
        for w in range(4): a(f"ds_read_b128 v[{12+4*w}:{15+4*w}], {vPUB} offset:{L_OPART + 512*w}")
        a("s_waitcnt lgkmcnt(0)")
        self.sum_rows4([12, 16, 20, 24])
        for c in range(4): a(f"v_bfi_b32 v{12+c}, {sFF}, {vTAG}, v{12+c}")
        a(f"buffer_store_dwordx4 v[12:15], {vPUB}, {srd(SRD_WS)}, {sT0} offen sc1")
        self.stamp(6, "tail")
        a.label("L_sdone")
        self.dump_stamps()
        a("s_endpgm")

    def unit_loads(self, stride_s, tau_s):
        a = self.a
        a(f"s_mul_i32 {sT0}, {tau_s}, 192")
        a(f"v_lshrrev_b32 v1, 3, {vLANE}"); a(f"v_add_u32 v1, {sT0}, v1")
        a(f"v_mul_lo_u32 v1, v1, {stride_s}")
        a(f"v_and_b32 v2, 7, {vLANE}"); a("v_lshl_add_u32 v1, v2, 4, v1")
        a(f"s_lshl_b32 {sT1}, {stride_s}, 3"); a(f"s_mov_b32 {sT0}, 0")
        for t in range(24):
            if self.p.UNITPACE and t >= self.p.UNITPACE: a(f"s_waitcnt vmcnt({self.p.UNITPACE-1})")
            a(f"buffer_load_dwordx4 a[{4*t}:{4*t+3}], v1, {srd(SRD_A)}, {sT0} offen nt")
            if t < 23: a(f"s_add_u32 {sT0}, {sT0}, {sT1}")

    def hwave(self):
        a = self.a; p = self.p
        a.label("L_helper")
        self.common_setup()
        for q in (SRD_A, SRD_B, SRD_C): self.set_srd(q, sWS, size=0)
        a(f"s_setprio {p.HPRIO0}")
        a(f"s_sub_u32 {sHW}, {sWAVE}, 4")
        a("s_mov_b32 s71, 0")
        a(f"s_cmp_lg_u32 {sHW}, 2"); a("s_cbranch_scc1 L_noinit")
        a(f"v_lshlrev_b32 v8, 2, {vLANE}"); a("v_mov_b32 v9, 0")
        self.setexec(0xFFFF); a("ds_write_b32 v8, v9"); a("s_mov_b64 exec, -1"); a("s_waitcnt lgkmcnt(0)")
        a.label("L_noinit")
        a("s_barrier")
        if p.PRETOUCH:
            a(f"s_cmp_lg_u32 {sHW}, 2"); a("s_cbranch_scc1 L_notouch")
            a(f"v_lshlrev_b32 v8, 21, {vLANE}")
            a(f"v_lshlrev_b32 v9, 16, {vLANE}")
            self.setexec(0xF)
            a(f"s_lshl_b32 {sT0}, s100, 18"); self.set_srd(SRD_A, sV, off=sT0, size=0x40000)
            a(f"buffer_load_dword v10, v9, {srd(SRD_A)}, 0 offen nt")
            for k, (ptr, sz) in enumerate(((sWO, 4096 * 1152), (sWG, 576 * 9216), (sWU, 576 * 9216), (sWD, 4608 * 1152))):
                self.set_srd(SRD_A, ptr, size=sz)
                a(f"buffer_load_dword v{11+k}, v8, {srd(SRD_A)}, 0 offen nt")
            a("s_mov_b64 exec, -1")
            self.set_srd(SRD_A, sWS, size=0)
            a.label("L_notouch")
        if p.HDELAY: a(f"s_sleep {p.HDELAY}")
        for r in list(range(40, 60)) + list(range(80, 90)): a(f"v_mov_b32 v{r}, 0")
        if p.WOEARLY and not p.WOLATE:
            a("s_cmp_ge_u32 s2, 72"); a("s_cbranch_scc1 L_nowoearly")
            if not p.MAP2: a(f"s_cmp_eq_u32 {sHW}, 0"); a("s_cbranch_scc1 L_nowoearly")
            a(f"s_and_b32 {sT0}, s2, 7"); a(f"s_lshr_b32 {sT1}, s2, 3"); a(f"s_lshl_b32 {sT2}, {sT1}, 7")
            self.set_srd(SRD_C, sWO, off=sT2, size_minus_off=4096 * 1152)
            a(f"s_lshl_b32 {sT0}, {sT0}, 2"); a(f"s_add_u32 {sT0}, {sT0}, {sHW}"); a(f"s_lshl_b32 {sT0}, {sT0}, 7")
            a(f"v_lshrrev_b32 v1, 3, {vLANE}"); a(f"v_add_u32 v1, {sT0}, v1"); a("v_mul_u32_u24 v1, 1152, v1")
            a(f"v_and_b32 v2, 7, {vLANE}"); a("v_lshl_add_u32 v1, v2, 4, v1")
            a("s_setprio 0")
            a(f"s_mov_b32 {sT0}, 0")
            for t in range(16):
                a(f"buffer_load_dwordx4 a[{96+4*t}:{99+4*t}], v1, {srd(SRD_C)}, {sT0} offen nt")
                if t < 15: a(f"s_add_u32 {sT0}, {sT0}, 9216")
            a(f"s_setprio {p.HPRIO0}")
            a.label("L_nowoearly")
        a(f"s_cmp_eq_u32 {sHW}, 0"); a("s_cbranch_scc1 L_h0")
        a(f"s_cmp_eq_u32 {sHW}, 1"); a("s_cbranch_scc1 L_h1")
        a("s_branch L_nounit")
        a.label("L_h0")
        if p.MAP2:
            a("s_cmp_lt_u32 s2, 72"); a("s_cbranch_scc1 L_nounit")
            a("s_sub_u32 s62, s2, 72"); a("s_branch L_qunit")
            a.label("L_h1")
            a("s_cmp_lt_u32 s2, 72"); a("s_cbranch_scc1 L_nounit")
            a("s_cmp_ge_u32 s2, 242"); a("s_cbranch_scc1 L_nounit")
            a("s_add_u32 s62, s2, 112"); a("s_cmp_lt_u32 s2, 80"); a("s_cbranch_scc1 L_qunit")
            a(f"s_sub_u32 {sT2}, s2, 80"); self.div3(sR0, sR1, sT2)
        else:
            a("s_mov_b32 s62, s2")
            a("s_cmp_lt_u32 s2, 192"); a("s_cbranch_scc1 L_qunit")
            a("s_cmp_ge_u32 s2, 246"); a("s_cbranch_scc1 L_nounit")
            a(f"s_sub_u32 {sT2}, s2, 192"); self.div3(sR0, sR1, sT2)
            a("s_branch L_munit")
            a.label("L_h1")
            if p.MAP3:
                a(f"s_mov_b32 {sT2}, s2"); a("s_cmp_lt_u32 s2, 72"); a("s_cbranch_scc1 L_m3")
                a("s_cmp_lt_u32 s2, 180"); a("s_cbranch_scc1 L_nounit")
                a("s_cmp_ge_u32 s2, 216"); a("s_cbranch_scc1 L_nounit")
                a(f"s_sub_u32 {sT2}, s2, 108")
                a.label("L_m3")
                self.div3(sR0, sR1, sT2); a(f"s_add_u32 {sR0}, {sR0}, 18")
            else:
                a("s_cmp_lt_u32 s2, 72"); a("s_cbranch_scc1 L_nounit")
                a("s_cmp_ge_u32 s2, 180"); a("s_cbranch_scc1 L_nounit")
                a(f"s_sub_u32 {sT2}, s2, 72"); self.div3(sR0, sR1, sT2); a(f"s_add_u32 {sR0}, {sR0}, 18")
        if p.LATEMOD:
            self.lds_spin(L_QFLAG, target=1, sleep=8)
            a("s_setprio 0")
            a("s_mov_b32 s71, 1")
        a.label("L_munit")
        a(f"s_lshl_b32 {sT2}, {sR0}, 7")
        self.set_srd(SRD_A, sWM, off=sT2, size_minus_off=576 * 6912)
        self.set_srd(SRD_B, sC, size=1152)
        a(f"s_mul_i32 {sT0}, {sR1}, 384"); a(f"v_lshlrev_b32 v8, 3, {vLANE}")
        a(f"buffer_load_dwordx2 v[40:41], v8, {srd(SRD_B)}, {sT0} offen")
        a(f"s_mov_b32 {sR2}, 6912")
        self.unit_loads(sR2, sR1)
        self.get_tag()
        self.stamp(1, "pre")
        a(f"s_mul_i32 {sR2}, {sR0}, 3"); a(f"s_add_u32 {sR2}, {sR2}, {sR1}"); a(f"s_lshl_b32 {sR2}, {sR2}, 8"); a(f"s_add_u32 {sR2}, {sR2}, {WS_MOD}")
        self.taddr_w("v2", "v8", 24)
        a("s_waitcnt vmcnt(24)")
        self.unpack4(44, 40)
        for k in range(4): self.sigmoid(f"v{48+k}", f"v{44+k}", f"v{48+k}")
        for k in range(4): a(f"v_mul_f32 v{44+k}, v{44+k}, v{48+k}")
        for k in range(4): a(f"v_cvt_pk_bf16_f32 v{44+k}, v{44+k}, v{44+k}")
        self.setexec(lanes(48)); self.twrite4([44, 45, 46, 47], "v2", 24); a("s_mov_b64 exec, -1")
        self.stamp(2, "pre")
        a("s_branch L_unit_gemv")
        a.label("L_qunit")
        self.div3(sR0, sR1, "s62")
        a(f"s_lshl_b32 {sT2}, {sR0}, 7")
        self.set_srd(SRD_A, sWQ, off=sT2, size_minus_off=576 * 8192)
        self.set_srd(SRD_B, sX, size=1152)
        a(f"v_lshrrev_b32 v8, 3, {vLANE}"); a("v_lshlrev_b32 v8, 5, v8"); a(f"v_and_b32 v9, 7, {vLANE}"); a("v_add_u32 v8, v8, v9"); a("v_lshlrev_b32 v8, 1, v8")
        a(f"s_mul_i32 {sT0}, {sR1}, 384")
        for r in range(4): a(f"buffer_load_ushort v{44+r}, v8, {srd(SRD_B)}, {sT0} offen offset:{16*r}")
        a(f"v_lshlrev_b32 v9, 5, {vLANE}")
        a(f"buffer_load_dwordx4 v[16:19], v9, {srd(SRD_B)}, 0 offen")
        a(f"buffer_load_dwordx4 v[20:23], v9, {srd(SRD_B)}, 0 offen offset:16")
        a(f"s_mov_b32 {sR2}, 8192")
        self.unit_loads(sR2, sR1)
        self.get_tag()
        a(f"s_mul_i32 {sR2}, {sR0}, 3"); a(f"s_add_u32 {sR2}, {sR2}, {sR1}"); a(f"s_lshl_b32 {sR2}, {sR2}, 8"); a(f"s_add_u32 {sR2}, {sR2}, {WS_Q}")
        a(f"s_mul_i32 {sT0}, {sR1}, 6"); a(f"v_lshrrev_b32 v8, 3, {vLANE}"); a(f"v_add_u32 v8, {sT0}, v8")
        a("v_lshrrev_b32 v9, 1, v8"); a("v_mul_u32_u24 v9, 768, v9")
        a("v_and_b32 v8, 1, v8"); a("v_lshl_add_u32 v9, v8, 7, v9")
        a(f"v_and_b32 v8, 7, {vLANE}"); a("v_lshl_add_u32 v50, v8, 4, v9")
        a(f"v_mul_u32_u24 v51, 96, v8"); a(f"v_lshrrev_b32 v9, 3, {vLANE}"); a("v_lshl_add_u32 v51, v9, 4, v51")
        a(f"s_mul_i32 {sT0}, {sHW}, {TBLW}"); a(f"s_add_u32 {sT0}, {sT0}, {L_TBL}"); a(f"v_add_u32 v51, {sT0}, v51")
        a("s_waitcnt vmcnt(24)")
        for r in range(4): a(f"v_lshlrev_b32 v{44+r}, 16, v{44+r}")
        for i in range(8):
            a(f"v_lshlrev_b32 v{24+2*i}, 16, v{16+i}"); a(f"v_and_b32 v{25+2*i}, {sFFFF0000}, v{16+i}")
        a("v_add_f32 v48, v24, v25")
        for i in range(2, 16): a(f"v_add_f32 v48, v48, v{24+i}")
        self.allreduce("v_add_f32", "v48", "v49", ["q1", "q2", "r4", "r8", "p16", "p32"])
        a(f"v_mul_f32 v48, {f32hex(1/576)}, v48")
        for i in range(16): a(f"v_sub_f32 v{24+i}, v{24+i}, v48")
        a("v_mul_f32 v49, v24, v24")
        for i in range(1, 16): a(f"v_fmac_f32 v49, v{24+i}, v{24+i}")
        a(f"v_cmp_gt_u32 vcc, 36, {vLANE}"); a("v_cndmask_b32 v49, 0, v49, vcc")
        self.allreduce("v_add_f32", "v49", "v52", ["q1", "q2", "r4", "r8", "p16", "p32"])
        a(f"v_mul_f32 v49, {f32hex(1/576)}, v49")
        self.bf16_round2("v48", "v49", "v48", "v49", "v52")
        a(f"v_add_f32 v49, {f32hex(1e-5)}, v49"); self.bf16_round("v49", "v49", "v52")
        a("v_sqrt_f32 v49, v49"); self.bf16_round("v49", "v49", "v52"); a("v_rcp_f32 v49, v49")
        for k in range(4): a(f"v_sub_f32 v{44+k}, v{44+k}, v48")
        self.round4(44, "v52")
        for k in range(4): a(f"v_mul_f32 v{44+k}, v{44+k}, v49")
        self.round4(44, "v52")
        self.stamp(1, "pre")
        self.poll([(8 + 4 * t, 4, "v50", WS_MOD, 256 * t) for t in range(3)] + [(20 + 4 * t, 4, "v50", WS_MOD + 9 * 768, 256 * t) for t in range(3)],
                  active=lanes(48), sleep=p.SL_A, presleep=p.PS_A)
        self.stamp(2, "pre")
        self.sum_rows4([8, 12, 16]); self.sum_rows4([20, 24, 28])
        self.round4(8, "v52"); self.round4(20, "v53")
        for k in range(4): a(f"v_add_f32 v{20+k}, 1.0, v{20+k}")
        self.round4(20, "v52")
        for k in range(4): a(f"v_mul_f32 v{44+k}, v{44+k}, v{20+k}")
        self.round4(44, "v52")
        for k in range(4): a(f"v_add_f32 v{44+k}, v{44+k}, v{8+k}")
        for k in range(4): a(f"v_cvt_pk_bf16_f32 v{44+k}, v{44+k}, v{44+k}")
        a("ds_write_b128 v51, v[44:47]")
        a("s_mov_b64 exec, -1")
        a.label("L_unit_gemv")
        self.taddr_r("v2", 24)
        self.tread(16, 6, "v2")
        self.gemv(24, 0, list(range(16, 40)), 40, waits={0: 20, 4: 16, 8: 12, 12: 8, 16: 4, 20: 0})
        self.stamp(3, "pre")
        a(f"v_lshrrev_b32 v2, 4, {vLANE}"); a("v_lshlrev_b32 v2, 7, v2"); a(f"v_and_b32 v8, 7, {vLANE}"); a("v_lshl_add_u32 v2, v8, 4, v2")
        for r in range(4): a(f"v_mov_b32 v{44+r}, v{40+r}")
        for r in range(4): a(f"v_permlane32_swap_b32 v{40+r}, v{44+r}")
        for r in range(4): a(f"v_add_f32_dpp v{40+r}, v{44+r}, v{40+r} row_ror:8 row_mask:0xf bank_mask:0xf")
        for r in range(4): a(f"v_bfi_b32 v{40+r}, {sFF}, {vTAG}, v{40+r}")
        self.setexec(0x00FF00FF)
        a(f"buffer_store_dwordx4 v[40:43], v2, {srd(SRD_WS)}, {sR2} offen sc1")
        a("s_mov_b64 exec, -1")
        if p.STAMPS and p.MODE == "pre":
            a("s_waitcnt vmcnt(0)")
        self.stamp(7, "pre")
        a("s_branch L_pre_done")
        a.label("L_nounit")
        self.get_tag()
        a.label("L_pre_done")
        a(f"s_cmp_lg_u32 {sHW}, 3"); a("s_cbranch_scc1 L_noq")
        a(f"s_lshr_b32 {sT0}, s100, 3"); a(f"s_mul_i32 {sT0}, {sT0}, {2*768}"); a(f"s_add_u32 {sR0}, {sT0}, {WS_Q}")
        a(f"v_lshrrev_b32 v8, 4, {vLANE}"); a("v_mul_u32_u24 v2, 768, v8"); a(f"v_and_b32 v9, 15, {vLANE}"); a("v_lshl_add_u32 v2, v9, 4, v2")
        a("v_lshlrev_b32 v8, 6, v8"); a(f"v_bfe_u32 v9, {vLANE}, 3, 1"); a("v_lshl_add_u32 v8, v9, 5, v8")
        a(f"v_and_b32 v9, 7, {vLANE}"); a("v_add_u32 v8, v8, v9"); a("v_lshlrev_b32 v24, 1, v8")
        if p.PS_QG > 127: a("s_sleep 127")
        self.poll([(8 + 4 * t, 4, "v2", sR0, 256 * t) for t in range(3)], active=lanes(32), sleep=p.QSLEEP, presleep=(p.PS_QG - 127 if p.PS_QG > 127 else p.PS_QG))
        self.sum_rows4([8, 12, 16])
        a("v_cvt_pk_bf16_f32 v12, v8, v9"); a("v_cvt_pk_bf16_f32 v13, v10, v11")
        a(f"ds_write_b16 v24, v12 offset:{L_Q}"); a(f"ds_write_b16_d16_hi v24, v12 offset:{L_Q + 16}")
        a(f"ds_write_b16 v24, v13 offset:{L_Q + 32}"); a(f"ds_write_b16_d16_hi v24, v13 offset:{L_Q + 48}")
        a("s_waitcnt lgkmcnt(0)")
        a("s_mov_b64 exec, 1")
        a(f"v_mov_b32 v8, {L_QFLAG}"); a("v_mov_b32 v9, 1"); a("ds_write_b32 v8, v9")
        a("s_mov_b64 exec, -1")
        if p.MODE != "fine": self.stamp(4, "all")
        a.label("L_noq")
        if p.NOTAIL:
            self.dump_stamps(); a("s_endpgm")
        elif p.DYN: self.tail_dyn()
        else: self.tail()

    def piece_off(self, dst, gam_v, tmp):
        a = self.a
        a(f"v_lshrrev_b32 {tmp}, 1, {gam_v}"); a(f"v_mul_u32_u24 {tmp}, 768, {tmp}")
        a(f"v_and_b32 {dst}, 1, {gam_v}"); a(f"v_lshl_add_u32 {tmp}, {dst}, 7, {tmp}")
        a(f"v_and_b32 {dst}, 7, {vLANE}"); a(f"v_lshl_add_u32 {dst}, {dst}, 4, {tmp}")
    def gather_mod(self, vecs, voff, dsts, active, tmp0=8, sleep=16):
        a = self.a
        loads = []
        for i, v in enumerate(vecs):
            for t in range(3): loads.append((tmp0 + 12 * i + 4 * t, 4, voff, WS_MOD + 9 * v * 768, 256 * t))
        self.poll(loads, active=active, sleep=sleep)
        for i, v in enumerate(vecs):
            b = tmp0 + 12 * i
            self.sum_rows4([b, b + 4, b + 8]); self.round4(b, "v61")
            for r in range(4): a(f"v_mov_b32 v{dsts[i]+r}, v{b+r}")
    def half_add(self, D, T):
        a = self.a
        for r in range(4): a(f"v_mov_b32 v{T+r}, v{D+r}")
        for r in range(4): a(f"v_permlane32_swap_b32 v{D+r}, v{T+r}")
        for r in range(4): a(f"v_add_f32_dpp v{D+r}, v{T+r}, v{D+r} row_ror:8 row_mask:0xf bank_mask:0xf")
    def dpiece_addr(self, vaddr, vt, base, rowbytes):
        a = self.a
        a(f"v_lshrrev_b32 {vaddr}, 5, {vLANE}"); a(f"v_mul_u32_u24 {vaddr}, {rowbytes}, {vaddr}")
        a(f"v_bfe_u32 {vt}, {vLANE}, 4, 1"); a(f"v_lshl_add_u32 {vaddr}, {vt}, 7, {vaddr}")
        a(f"v_and_b32 {vt}, 7, {vLANE}"); a(f"v_lshl_add_u32 {vaddr}, {vt}, 4, {vaddr}")
        a(f"s_mul_i32 {sT0}, {sHW}, {2*rowbytes}"); a(f"s_add_u32 {sT0}, {sT0}, {base}")
        a(f"v_add_u32 {vaddr}, {sT0}, {vaddr}")

    def tail(self):
        a = self.a; p = self.p
        L24 = lanes(24)
        UX, UGA, UC1, USB = 64, 68, 72, 76
        vUT, vUR, vUP, vUA = "v80", "v81", "v82", "v83"
        FX, FGA, FGB = 84, 88, 92
        MS = 72 * 6 * 256
        a.label("L_tail")
        a("s_setprio 0")
        self.lds_spin(L_QFLAG, target=1, sleep=8)
        self.group_watch()
        a("s_cmp_lt_u32 s2, 72"); a("s_cbranch_scc1 L_wo")
        a("s_cmp_ge_u32 s2, 252"); a("s_cbranch_scc1 L_hexit")
        a("s_cmp_ge_u32 s2, 216"); a("s_cbranch_scc1 L_dbl")
        a(f"s_sub_u32 {sT2}, s2, 72"); self.div3("s6", "s7", sT2)
        if p.REPAIR:
            a("s_cmp_ge_u32 s6, 24"); a("s_cbranch_scc1 L_hi24")
            a(f"s_lshr_b32 {sT0}, s6, 2"); a(f"s_lshl_b32 {sT0}, {sT0}, 3"); a(f"s_and_b32 {sT1}, s6, 1"); a(f"s_add_u32 {sT0}, {sT0}, {sT1}")
            a(f"s_and_b32 {sT1}, s6, 2"); a(f"s_lshl_b32 {sT1}, {sT1}, 1"); a(f"s_add_u32 {sT0}, {sT0}, {sT1}"); a(f"s_add_u32 s6, {sT0}, 2")
            a("s_branch L_uprep")
            a.label("L_hi24")
            a("s_add_u32 s6, s6, 24")
        a("s_branch L_uprep")
        a.label("L_dbl")
        a(f"s_sub_u32 {sT2}, s2, 216"); self.div3("s6", "s7", sT2)
        if p.REPAIR:
            a(f"s_lshr_b32 {sT0}, s6, 1"); a(f"s_lshl_b32 {sT0}, {sT0}, 3"); a("s_and_b32 s6, s6, 1"); a("s_lshl_b32 s6, s6, 2"); a(f"s_add_u32 s6, s6, {sT0}")
        else:
            a("s_lshl_b32 s6, s6, 1"); a("s_add_u32 s6, s6, 48")
        a.label("L_uprep")
        a(f"s_lshr_b32 {sT0}, {sHW}, 1"); a("s_lshl_b32 s7, s7, 1"); a(f"s_add_u32 s7, s7, {sT0}")
        a(f"s_and_b32 s8, {sHW}, 1")
        a("s_mul_i32 s9, s7, 3")
        a(f"v_lshrrev_b32 v8, 3, {vLANE}"); a("v_add_u32 v8, s9, v8")
        self.piece_off("v2", "v8", "v9")
        a(f"v_lshlrev_b32 {vUA}, 7, v8"); a(f"v_and_b32 v9, 7, {vLANE}"); a(f"v_lshl_add_u32 {vUA}, v9, 4, {vUA}"); a(f"v_add_u32 {vUA}, {WS_ATT}, {vUA}")
        self.set_srd(SRD_B, sX, size=1152)
        a("v_lshlrev_b32 v8, 5, v8"); a("v_add_u32 v8, v8, v9"); a("v_lshlrev_b32 v8, 1, v8")
        for r in range(4): a(f"buffer_load_ushort v{UX+r}, v8, {srd(SRD_B)}, 0 offen offset:{16*r}")
        a(f"buffer_load_ushort v86, off, {srd(SRD_B)}, 0")
        self.gather_mod([2, 4, 3], "v2", [UGA, UC1, USB], L24, sleep=4)
        a("s_mov_b64 exec, -1")
        for r in range(4): a(f"v_lshlrev_b32 v{UX+r}, 16, v{UX+r}")
        a("v_lshlrev_b32 v86, 16, v86")
        for r in range(4): a(f"v_sub_f32 v{UX+r}, v{UX+r}, v86")
        for r in range(4): a(f"v_add_f32 v{UC1+r}, 1.0, v{UC1+r}")
        self.round4(UC1, "v8")
        a(f"s_mul_i32 {sT0}, {sHW}, {TBLW}"); a(f"s_add_u32 {sT0}, {sT0}, {L_TBL}")
        a(f"v_and_b32 v8, 7, {vLANE}"); a(f"v_mul_u32_u24 {vUT}, 48, v8"); a(f"v_lshrrev_b32 v9, 3, {vLANE}"); a(f"v_lshl_add_u32 {vUT}, v9, 4, {vUT}"); a(f"v_add_u32 {vUT}, {sT0}, {vUT}")
        a(f"v_mul_u32_u24 {vUR}, 48, v9"); a(f"v_add_u32 {vUR}, {sT0}, {vUR}")
        a(f"v_lshrrev_b32 {vUP}, 4, {vLANE}"); a(f"v_lshlrev_b32 {vUP}, 7, {vUP}"); a(f"v_lshl_add_u32 {vUP}, v8, 4, {vUP}")
        a("s_mul_i32 s10, s8, 72"); a("s_add_u32 s10, s10, s6"); a("s_mul_i32 s10, s10, 6"); a("s_add_u32 s10, s10, s7"); a("s_lshl_b32 s10, s10, 8")
        a("s_cmp_eq_u32 s8, 0"); a(f"s_cselect_b32 s12, s{sWG}, s{sWU}"); a(f"s_cselect_b32 s13, s{sWG+1}, s{sWU+1}")
        a(f"s_lshl_b32 {sT2}, s6, 7")
        self.set_srd(SRD_C, 12, off=sT2, size_minus_off=576 * 9216)
        a("s_mul_i32 s11, s7, 96"); a(f"v_lshrrev_b32 v56, 3, {vLANE}"); a("v_add_u32 v56, s11, v56"); a("v_mul_u32_u24 v56, 9216, v56")
        a(f"v_and_b32 v8, 7, {vLANE}"); a("v_lshl_add_u32 v56, v8, 4, v56")
        if p.UEARLY:
            if p.UAT: self.lds_spin(L_W2, target=1, sleep=8)
            a(f"s_mov_b32 {sT0}, 0")
            for t_ in range(12):
                if t_ >= p.UPACE: a(f"s_waitcnt vmcnt({p.UPACE-1})")
                a(f"buffer_load_dwordx4 a[{4*t_}:{4*t_+3}], v56, {srd(SRD_C)}, {sT0} offen nt")
                if t_ < 11: a(f"s_add_u32 {sT0}, {sT0}, {8*9216}")
        if p.DBLEARLY:
            a("s_cmp_lt_u32 s2, 216"); a("s_cbranch_scc1 L_noearly2")
            a(f"s_mov_b32 {sT0}, 128")
            for t_ in range(12):
                if t_ >= p.WOPACE: a(f"s_waitcnt vmcnt({p.WOPACE-1})")
                a(f"buffer_load_dwordx4 a[{48+4*t_}:{51+4*t_}], v56, {srd(SRD_C)}, {sT0} offen nt")
                if t_ < 11: a(f"s_add_u32 {sT0}, {sT0}, {8*9216}")
            a.label("L_noearly2")
        a("s_cmp_ge_u32 s2, 216"); a("s_cbranch_scc1 L_finprep")
        a(f"s_sub_u32 s14, s2, 72")
        a(f"s_mul_i32 {sT2}, s14, {32*1152}"); self.set_srd(SRD_A, sWD, off=sT2, size=32 * 1152)
        a(f"s_lshl_b32 {sT0}, {sHW}, 3")
        a(f"v_lshrrev_b32 v57, 3, {vLANE}"); a(f"v_add_u32 v57, {sT0}, v57"); a("v_mul_u32_u24 v57, 1152, v57")
        a(f"v_and_b32 v8, 7, {vLANE}"); a("v_lshl_add_u32 v57, v8, 4, v57")
        a("s_lshr_b32 s15, s14, 1"); a("s_mul_i32 s15, s15, 1536"); a(f"s_and_b32 {sT0}, s14, 1"); a(f"s_lshl_b32 {sT0}, {sT0}, 7"); a(f"s_add_u32 s15, s15, {sT0}")
        a(f"s_lshl_b32 {sT0}, {sHW}, 2"); a(f"s_add_u32 s15, s15, {sT0}")
        a(f"v_and_b32 v8, 7, {vLANE}"); a("v_min_u32 v8, 5, v8"); a("v_lshlrev_b32 v58, 8, v8"); a(f"v_lshrrev_b32 v9, 3, {vLANE}"); a("v_lshl_add_u32 v58, v9, 4, v58"); a("v_add_u32 v58, s15, v58")
        a("v_lshlrev_b32 v59, 7, v8"); a(f"v_add_u32 v59, {WS_ST}, v59")
        if p.STREP:
            a(f"s_and_b32 {sT0}, s2, 7"); a(f"s_lshl_b32 {sT0}, {sT0}, 10"); a(f"v_add_u32 v59, {sT0}, v59")
        self.dpiece_addr(f"v{FX}", "v8", L_DOWN, 2304)
        a(f"s_mul_i32 {sT0}, {sHW}, 48"); a(f"v_add_u32 v{FX+1}, {sT0}, {vLANE}"); a(f"v_lshlrev_b32 v{FX+1}, 4, v{FX+1}")
        a("s_mul_i32 s15, s14, 2304"); a(f"s_add_u32 s15, s15, {WS_OUT}")
        a("s_branch L_late")
        a.label("L_finprep")
        a("s_cmp_ge_u32 s2, 234"); a("s_cbranch_scc1 L_late")
        a(f"s_sub_u32 s14, s2, 216")
        self.set_srd(SRD_B, sX, size=1152)
        a(f"v_and_b32 v46, 7, {vLANE}")
        a("s_lshl_b32 s15, s14, 6"); a("v_lshlrev_b32 v8, 1, v46")
        for r in range(4): a(f"buffer_load_ushort v{FX+r}, v8, {srd(SRD_B)}, s15 offen offset:{16*r}")
        a("v_mov_b32 v8, s14"); self.piece_off("v2", "v8", "v9")
        self.gather_mod([2, 5], "v2", [FGA, FGB], FULL, sleep=4)
        for r in range(4): a(f"v_lshlrev_b32 v{FX+r}, 16, v{FX+r}")
        a.label("L_late")
        if p.LPACE:
            self.lds_spin(L_WCNT, target=1, sleep=2)
            self.read_ticket()
        if p.GT:
            self.go_watch_u()
            self.lds_spin(L_GO, target=1, sleep=2)
        if not p.UEARLY: self.lds_spin(L_WCNT if p.WTRIG == "issued" else L_OCNT, target=4, sleep=2)
        self.stamp(5)
        if p.LPACE:
            a(f"s_cmp_ge_u32 s63, {p.LPACE_T}"); a("s_cbranch_scc1 L_ufast")
            a(f"s_mov_b32 {sT0}, 0")
            for t in range(12):
                if t >= p.LPACE: a(f"s_waitcnt vmcnt({p.LPACE-1})")
                a(f"buffer_load_dwordx4 a[{4*t}:{4*t+3}], v56, {srd(SRD_C)}, {sT0} offen nt")
                if t < 11: a(f"s_add_u32 {sT0}, {sT0}, {8*9216}")
            a("s_branch L_uissued")
            a.label("L_ufast")
        a(f"s_mov_b32 {sT0}, 0")
        for t in range(12 if not p.UEARLY else 0):
            a(f"buffer_load_dwordx4 a[{4*t}:{4*t+3}], v56, {srd(SRD_C)}, {sT0} offen nt")
            if t < 11: a(f"s_add_u32 {sT0}, {sT0}, {8*9216}")
        a.label("L_uissued")
        a("s_cmp_ge_u32 s2, 216"); a("s_cbranch_scc1 L_late2")
        if p.DOWNLATER: a("s_waitcnt vmcnt(0)")
        for cb in range(9 if not p.DOWNAFTERC else 0):
            a(f"buffer_load_dwordx4 a[{48+4*cb}:{51+4*cb}], v57, {srd(SRD_A)}, 0 offen offset:{128*cb} nt")
        a("s_setprio 3")
        if not p.DOWNLATER: a("s_waitcnt vmcnt(9)")
        a("s_branch L_unit")
        a.label("L_late2")
        if not p.DBLEARLY:
            a(f"s_mov_b32 {sT0}, 128")
            for t in range(12):
                a(f"buffer_load_dwordx4 a[{48+4*t}:{51+4*t}], v56, {srd(SRD_C)}, {sT0} offen nt")
                if t < 11: a(f"s_add_u32 {sT0}, {sT0}, {8*9216}")
        a("s_setprio 3")
        a("s_waitcnt vmcnt(0)")
        a.label("L_unit")
        cnt = [0]
        def unit_pass(src4, area):
            cnt[0] += 1; L = f"L_up{cnt[0]}"
            for k in range(4): a(f"v_cvt_pk_bf16_f32 v{8+k}, v{src4+k}, v{src4+k}")
            self.setexec(L24); a(f"ds_write_b128 {vUT}, v[8:11]"); a("s_mov_b64 exec, -1")
            self.tread(16, 3, vUR)
            for st_ in range(2):
                if st_ == 1:
                    a("s_cmp_lt_u32 s2, 216"); a(f"s_cbranch_scc1 {L}")
                self.gemv(12, 48 * st_, list(range(16, 28)), 36)
                self.half_add(36, 40)
                for r in range(4): a(f"v_bfi_b32 v{36+r}, {sFF}, {vTAG}, v{36+r}")
                a(f"s_add_u32 {sT0}, s10, {area + 1536 * st_}")
                self.setexec(0x00FF00FF); a(f"buffer_store_dwordx4 v[36:39], {vUP}, {srd(SRD_WS)}, {sT0} offen sc1"); a("s_mov_b64 exec, -1")
            a.label(L)
        if p.CMERGE:
            for k in range(4): a(f"v_cvt_pk_bf16_f32 v{8+k}, v{UC1+k}, v{UC1+k}")
            for k in range(4): a(f"v_cvt_pk_bf16_f32 v{12+k}, v{USB+k}, v{USB+k}")
            self.setexec(L24); a(f"ds_write_b128 {vUT}, v[8:11]"); a(f"ds_write_b128 {vUT}, v[12:15] offset:384"); a("s_mov_b64 exec, -1")
            for i_ in range(3): a(f"ds_read_b128 v[{16+4*i_}:{19+4*i_}], {vUR} offset:{16*i_}")
            for i_ in range(3): a(f"ds_read_b128 v[{28+4*i_}:{31+4*i_}], {vUR} offset:{384+16*i_}")
            a("s_waitcnt lgkmcnt(0)")
            for st_ in range(2):
                if st_ == 1:
                    a("s_cmp_lt_u32 s2, 216"); a("s_cbranch_scc1 L_c1done")
                def mk(tt):
                    for r in range(4): a(f"v_and_b32 v{8+r}, v{16+tt}, v{vM[r]}")
                def mk2(tt):
                    for r in range(4): a(f"v_and_b32 v{12+r}, v{28+tt}, v{vM[r]}")
                mk(0)
                for tt in range(12):
                    A_ = f"a[{48*st_+4*tt}:{48*st_+4*tt+3}]"
                    mk2(tt)
                    a(f"v_mfma_f32_16x16x32_bf16 v[40:43], {A_}, v[8:11], {'0' if tt == 0 else 'v[40:43]'}")
                    if tt + 1 < 12: mk(tt + 1)
                    a(f"v_mfma_f32_16x16x32_bf16 v[44:47], {A_}, v[12:15], {'0' if tt == 0 else 'v[44:47]'}")
                for r in range(8): a(f"v_mov_b32 v{48+r}, v{40+r}")
                for r in range(8): a(f"v_permlane32_swap_b32 v{40+r}, v{48+r}")
                for r in range(8): a(f"v_add_f32_dpp v{40+r}, v{48+r}, v{40+r} row_ror:8 row_mask:0xf bank_mask:0xf")
                for r in range(8): a(f"v_bfi_b32 v{40+r}, {sFF}, {vTAG}, v{40+r}")
                a(f"s_add_u32 {sT0}, s10, {WS_C + 1536 * st_}"); a(f"s_add_u32 {sT1}, s10, {WS_C + 2 * MS + 1536 * st_}")
                self.setexec(0x00FF00FF)
                a(f"buffer_store_dwordx4 v[40:43], {vUP}, {srd(SRD_WS)}, {sT0} offen sc1"); a(f"buffer_store_dwordx4 v[44:47], {vUP}, {srd(SRD_WS)}, {sT1} offen sc1")
                a("s_mov_b64 exec, -1")
            a.label("L_c1done")
        else:
            unit_pass(UC1, WS_C)
            unit_pass(USB, WS_C + 2 * MS)
        if p.DOWNAFTERC:
            if p.UEARLY: self.lds_spin(L_WCNT if p.WTRIG == "issued" else L_OCNT, target=4, sleep=2)
            a("s_cmp_ge_u32 s2, 216"); a("s_cbranch_scc1 L_nodl")
            for cb in range(9):
                a(f"buffer_load_dwordx4 a[{48+4*cb}:{51+4*cb}], v57, {srd(SRD_A)}, 0 offen offset:{128*cb} nt")
            a.label("L_nodl")
        self.stamp(1, "fine")
        loads = [(8 + 4 * k, 4, vUA, None if k < 2 else (k & ~1) * 2304, (k & 1) * 2304) for k in range(8)]
        if p.SENT_ATT:
            if p.SENT1:
                a(f"s_cmp_lg_u32 {sHW}, 0"); a("s_cbranch_scc1 L_sentw")
                self.poll([loads[p.SENT_K]], active=0xFF, sleep=p.SENT_ATT)
                a("s_mov_b64 exec, 1"); a(f"v_mov_b32 v61, {L_SENT}"); a("v_mov_b32 v62, 1"); a("ds_write_b32 v61, v62"); a("s_mov_b64 exec, -1")
                a.label("L_sentw")
                self.lds_spin(L_SENT, target=1, sleep=1)
            else:
                self.poll([loads[p.SENT_K]], active=L24, sleep=p.SENT_ATT)
        self.poll(loads, active=L24, sleep=p.SL_ATT)
        self.stamp(6)
        self.sum_rows4([8 + 4 * k for k in range(8)])
        a(f"v_pk_fma_f32 v[{UX}:{UX+1}], v[8:9], v[{UGA}:{UGA+1}], v[{UX}:{UX+1}]"); a(f"v_pk_fma_f32 v[{UX+2}:{UX+3}], v[10:11], v[{UGA+2}:{UGA+3}], v[{UX+2}:{UX+3}]")
        a(f"v_pk_mul_f32 v[{UC1}:{UC1+1}], v[{UX}:{UX+1}], v[{UC1}:{UC1+1}]"); a(f"v_pk_mul_f32 v[{UC1+2}:{UC1+3}], v[{UX+2}:{UX+3}], v[{UC1+2}:{UC1+3}]")
        a("s_mov_b64 exec, -1")
        unit_pass(UC1, WS_G)
        self.stamp(2, "fine")
        a("s_or_b32 s11, s6, s8"); a("s_cmp_lg_u32 s11, 0"); a("s_cbranch_scc1 L_nostat")
        a("v_mov_b32 v12, 0"); a("v_mov_b32 v13, 0")
        self.setexec(L24)
        a(f"v_pk_add_f32 v[14:15], v[{UX}:{UX+1}], v[{UX+2}:{UX+3}]"); a(f"v_pk_mul_f32 v[16:17], v[{UX}:{UX+1}], v[{UX}:{UX+1}]")
        a(f"v_pk_fma_f32 v[16:17], v[{UX+2}:{UX+3}], v[{UX+2}:{UX+3}], v[16:17]")
        a("v_add_f32 v12, v14, v15"); a("v_add_f32 v13, v16, v17")
        a("s_mov_b64 exec, -1")
        self.allreduceN("v_add_f32", [("v12", "v14"), ("v13", "v15")], ["q1", "q2", "r4", "r8", "p16"])
        a("v_mov_b32 v14, 0"); a("v_mov_b32 v15, 0")
        for c in range(4): a(f"v_bfi_b32 v{12+c}, {sFF}, {vTAG}, v{12+c}")
        a("s_lshl_b32 s11, s7, 7"); a(f"s_add_u32 s11, s11, {WS_ST}")
        if p.STREP:
            a(f"v_lshlrev_b32 v16, 10, {vLANE}")
            a("s_mov_b64 exec, 0xff"); a(f"buffer_store_dwordx4 v[12:15], v16, {srd(SRD_WS)}, s11 offen sc1"); a("s_mov_b64 exec, -1")
        else:
            a("s_mov_b64 exec, 1"); a(f"buffer_store_dwordx4 v[12:15], off, {srd(SRD_WS)}, s11 sc1"); a("s_mov_b64 exec, -1")
        a.label("L_nostat")
        a("s_cmp_ge_u32 s2, 234"); a("s_cbranch_scc1 L_hexit")
        a("s_cmp_ge_u32 s2, 216"); a("s_cbranch_scc1 L_fin")
        K6 = 0x3F3F3F3F3F3F3F3F
        for r in (8, 9, 10, 11, 20, 21, 22, 23): a(f"v_mov_b32 v{r}, 0")
        self.poll([(20, 1, "v58", WS_C, 0), (21, 1, "v58", WS_C + 2 * MS, 0), (22, 1, "v58", WS_C + MS, 0), (23, 1, "v58", WS_C + 3 * MS, 0)], active=K6)
        a("s_mov_b64 exec, -1")
        self.allreduceN("v_add_f32", [(f"v{r}", "v12") for r in (20, 21, 22, 23)], ["q1", "q2", "hm"])
        if p.DUP_G: self.poll_dup([(8, 1, "v58", WS_G, 0), (9, 1, "v58", WS_G + MS, 0), (10, 4, "v59", None, 0)], [86, 87, 88], p.DUP_G, strong=(2,), active=K6)
        else: self.poll([(8, 1, "v58", WS_G, 0), (9, 1, "v58", WS_G + MS, 0), (10, 4, "v59", None, 0)], presleep=p.PS_G, strong=(2,), active=K6)
        a("s_mov_b64 exec, -1")
        self.stamp(3, "fine")
        self.allreduceN("v_add_f32", [(f"v{r}", "v14") for r in (8, 9, 10, 11)], ["q1", "q2", "hm"])
        a(f"v_mul_f32 v10, {f32hex(1/576)}, v10"); a(f"v_mul_f32 v11, {f32hex(1/576)}, v11")
        a("v_fma_f32 v11, -v10, v10, v11"); a("v_max_f32 v11, 0, v11"); a(f"v_add_f32 v11, {f32hex(1e-5)}, v11"); a("v_rsq_f32 v11, v11")
        a("v_fma_f32 v8, -v10, v20, v8"); a("v_fma_f32 v9, -v10, v22, v9")
        a("v_fma_f32 v8, v8, v11, v21"); a("v_fma_f32 v9, v9, v11, v23")
        self.sigmoid("v12", "v8", "v12")
        a("v_mul_f32 v8, v12, v9")
        a("v_cvt_pk_bf16_f32 v8, v8, v8")
        for r in range(4): a(f"v_and_b32 v{12+r}, v8, v{vM[r]}")
        for cb in range(9):
            d = 16 + 4 * cb
            a(f"v_mfma_f32_16x16x32_bf16 v[{d}:{d+3}], a[{48+4*cb}:{51+4*cb}], v[12:15], 0")
        self.setexec(self.VALID)
        for cb in range(9): a(f"ds_write_b128 v{FX}, v[{16+4*cb}:{19+4*cb}] offset:{256*cb}")
        a("s_mov_b64 exec, -1")
        a("s_waitcnt lgkmcnt(0)")
        a("s_barrier")
        a(f"s_cmp_ge_u32 {sHW}, 3"); a("s_cbranch_scc1 L_hexit")
        self.setexec(lanes(48))
        for k in range(8): a(f"ds_read_b128 v[{8+4*k}:{11+4*k}], v{FX+1} offset:{L_DOWN + 2304*k}")
        a("s_waitcnt lgkmcnt(0)")
        self.sum_rows4([8 + 4 * k for k in range(8)])
        for c in range(4): a(f"v_bfi_b32 v{8+c}, {sFF}, {vTAG}, v{8+c}")
        a(f"buffer_store_dwordx4 v[8:11], v{FX+1}, {srd(SRD_WS)}, s15 offen sc1")
        self.stamp(7)
        if p.STAMPS and p.MODE == "fin":
            a("s_waitcnt vmcnt(0)"); self.stamp(6, "fin")
        a("s_branch L_hexit")
        a.label("L_fin")
        a(f"v_and_b32 v46, 7, {vLANE}")
        a("s_lshl_b32 s15, s14, 7"); a("v_lshlrev_b32 v47, 4, v46"); a("v_add_u32 v47, s15, v47")
        a(f"v_lshrrev_b32 v8, 3, {vLANE}"); a("v_mul_u32_u24 v42, 2304, v8"); a("v_add_u32 v42, v42, v47"); a(f"v_add_u32 v42, {WS_ATT}, v42")
        a(f"s_mul_i32 {sT0}, {sHW}, 36"); a(f"v_add_u32 v8, {sT0}, v8"); a("v_mul_u32_u24 v43, 2304, v8"); a("v_add_u32 v43, v43, v47"); a(f"v_add_u32 v43, {WS_OUT}, v43")
        a(f"v_add_u32 v44, {4*8*2304}, v43"); a(f"v_cmp_gt_u32 vcc, 32, {vLANE}"); a("v_cndmask_b32 v44, v43, v44, vcc")
        a(f"s_lshl_b32 {sT0}, {sHW}, 7"); a(f"s_add_u32 {sT0}, {sT0}, {L_FIN}"); a("v_lshlrev_b32 v45, 4, v46"); a(f"v_add_u32 v40, {sT0}, v45")
        self.poll([(8, 4, "v42", None, 0)], sleep=p.SL_FA)
        self.allreduceN("v_add_f32", [(f"v{8+c}", f"v{12+c}") for c in range(4)], ["r8", "p16", "p32"])
        a(f"v_pk_fma_f32 v[{FX}:{FX+1}], v[8:9], v[{FGA}:{FGA+1}], v[{FX}:{FX+1}]"); a(f"v_pk_fma_f32 v[{FX+2}:{FX+3}], v[10:11], v[{FGA+2}:{FGA+3}], v[{FX+2}:{FX+3}]")
        a(f"s_or_b32 {sT0}, s14, {sHW}"); a(f"s_cmp_lg_u32 {sT0}, 0"); a("s_cbranch_scc1 L_noepoch")
        a("s_mov_b64 exec, 1")
        a(f"v_mov_b32 v8, {sTAG}")
        a(f"buffer_store_dword v8, off, {srd(SRD_WS)}, 0 sc1")
        a("s_mov_b64 exec, -1")
        a.label("L_noepoch")
        self.set_srd(SRD_B, sOUT, size=1152)
        a("s_lshl_b32 s15, s14, 6"); a("v_lshlrev_b32 v49, 1, v46")
        self.stamp(3, "fine")
        outl = [(8, 4, "v43", None, 0), (12, 4, "v43", 8*2304, 0), (16, 4, "v43", 16*2304, 0), (20, 4, "v43", 24*2304, 0), (24, 4, "v44", None, 0)]
        if p.DUP_OUT: self.poll_dup(outl, [28, 32, 36, 52, 56], p.DUP_OUT)
        else: self.poll(outl, presleep=p.PS_OUT)
        self.stamp(1, "fin")
        a(f"v_cmp_gt_u32 vcc, 32, {vLANE}")
        self.sum_rows4([8, 12, 16, 20])
        for c in range(4): a(f"v_cndmask_b32 v{24+c}, 0, v{24+c}, vcc")
        self.sum_rows4([8, 24])
        self.allreduceN("v_add_f32", [(f"v{8+c}", f"v{12+c}") for c in range(4)], ["r8", "p16", "p32"])
        self.setexec(0xFF)
        a("ds_write_b128 v40, v[8:11]")
        a("s_mov_b64 exec, -1")
        a("s_waitcnt lgkmcnt(0)")
        self.stamp(2, "fin")
        a("s_barrier")
        self.stamp(3, "fin")
        a(f"s_cmp_lg_u32 {sHW}, 0"); a("s_cbranch_scc1 L_hexit")
        self.setexec(0xFF)
        for w in range(4): a(f"ds_read_b128 v[{8+4*w}:{11+4*w}], v45 offset:{L_FIN + 128*w}")
        a("s_waitcnt lgkmcnt(0)")
        self.sum_rows4([8, 12, 16, 20])
        a(f"v_pk_fma_f32 v[8:9], v[8:9], v[{FGB}:{FGB+1}], v[{FX}:{FX+1}]"); a(f"v_pk_fma_f32 v[10:11], v[10:11], v[{FGB+2}:{FGB+3}], v[{FX+2}:{FX+3}]")
        a("v_cvt_pk_bf16_f32 v12, v8, v9"); a("v_cvt_pk_bf16_f32 v13, v10, v11")
        a(f"buffer_store_short v12, v49, {srd(SRD_B)}, s15 offen"); a(f"buffer_store_short_d16_hi v12, v49, {srd(SRD_B)}, s15 offen offset:16")
        a(f"buffer_store_short v13, v49, {srd(SRD_B)}, s15 offen offset:32"); a(f"buffer_store_short_d16_hi v13, v49, {srd(SRD_B)}, s15 offen offset:48")
        self.stamp(7)
        a("s_branch L_hexit")
        a.label("L_wo")
        a(f"s_and_b32 {sR0}, s2, 7"); a(f"s_lshr_b32 {sR1}, s2, 3")
        a(f"s_lshl_b32 {sT2}, {sR1}, 7")
        self.set_srd(SRD_A, sWO, off=sT2, size_minus_off=4096 * 1152)
        a(f"s_lshl_b32 {sR2}, {sR0}, 2"); a(f"s_add_u32 {sR2}, {sR2}, {sHW}")
        a(f"s_lshl_b32 {sT0}, {sR2}, 7")
        a(f"v_lshrrev_b32 v1, 3, {vLANE}"); a(f"v_add_u32 v1, {sT0}, v1"); a("v_mul_u32_u24 v1, 1152, v1")
        a(f"v_and_b32 v2, 7, {vLANE}"); a("v_lshl_add_u32 v1, v2, 4, v1")
        if p.WOLATE: a("s_branch L_wo_have")
        elif p.WOEARLY:
            if p.MAP2: a("s_branch L_wo_have")
            else: a(f"s_cmp_lg_u32 {sHW}, 0"); a("s_cbranch_scc1 L_wo_have")
        a(f"s_mov_b32 {sT0}, 0")
        for t in range(16):
            if t >= p.WOPACE: a(f"s_waitcnt vmcnt({p.WOPACE-1})")
            a(f"buffer_load_dwordx4 a[{96+4*t}:{99+4*t}], v1, {srd(SRD_A)}, {sT0} offen nt")
            if t < 15: a(f"s_add_u32 {sT0}, {sT0}, 9216")
        a.label("L_wo_have")
        a(f"s_mul_i32 s4, {sR2}, {8*OSLOT}"); a("s_add_u32 s4, s4, " + str(WS_O))
        a(f"s_mul_i32 {sT0}, {sR0}, 2304"); a(f"s_lshl_b32 {sT1}, {sR1}, 8"); a(f"s_add_u32 {sT0}, {sT0}, {sT1}"); a(f"s_add_u32 s5, {sT0}, {WS_ATT}")
        a(f"v_and_b32 v41, 7, {vLANE}"); a(f"v_mul_u32_u24 v41, {OSLOT}, v41")
        a(f"v_lshlrev_b32 v40, 3, {vLANE}")
        a(f"v_and_b32 v8, 3, {vLANE}"); a("v_mul_u32_u24 v8, 160, v8"); a(f"v_lshrrev_b32 v42, 2, {vLANE}"); a("v_lshl_add_u32 v42, v42, 2, v8")
        a(f"s_mul_i32 {sT0}, {sHW}, {TBLW}"); a(f"s_add_u32 {sT0}, {sT0}, {L_TBL}"); a(f"v_add_u32 v42, {sT0}, v42")
        self.taddr_r("v43", 20)
        self.dpiece_addr("v44", "v8", L_PART, 256)
        a(f"v_lshlrev_b32 v45, 4, {vLANE}")
        a("s_add_u32 s15, s4, 3200")
        self.poll([(8, 4, "v41", "s4", 512)], sleep=32, strong=(0,))
        a(f"v_and_b32 v8, {sFFFF0000}, v8")
        a("v_mov_b32 v10, v8")
        self.allreduce("v_max_f32", "v10", "v11", ["q1", "q2", "hm"])
        a("v_sub_f32 v11, v8, v10"); a(f"v_mul_f32 v11, 0x{LOG2E:08x}, v11"); a("v_exp_f32 v11, v11")
        a("v_mul_f32 v12, v11, v9")
        self.allreduce("v_add_f32", "v12", "v13", ["q1", "q2", "hm"])
        a("v_rcp_f32 v12, v12"); a("v_mul_f32 v11, v11, v12")
        for s_ in range(8): a(f"v_mov_b32_dpp v{48+s_}, v11 row_newbcast:{s_} row_mask:0xf bank_mask:0xf")
        if p.LPACE and p.WOLATE:
            self.lds_spin(L_WCNT, target=1, sleep=2)
            self.read_ticket()
        if p.GT:
            self.go_watch_w()
            if p.GT_W: self.lds_spin(L_GO, target=1, sleep=2)
        self.lds_spin(L_W2 if p.WOAT else L_WCNT, target=p.WOTGT, sleep=2)
        if p.WOLATE:
            if p.LPACE:
                a(f"s_cmp_ge_u32 s63, {p.LPACE_T}"); a("s_cbranch_scc1 L_wfast")
                a(f"s_mov_b32 {sT0}, 0")
                for t in range(16):
                    if t >= p.LPACE: a(f"s_waitcnt vmcnt({p.LPACE-1})")
                    a(f"buffer_load_dwordx4 a[{96+4*t}:{99+4*t}], v1, {srd(SRD_A)}, {sT0} offen nt")
                    if t < 15: a(f"s_add_u32 {sT0}, {sT0}, 9216")
                a("s_branch L_wissued")
                a.label("L_wfast")
            a(f"s_mov_b32 {sT0}, 0")
            for t in range(16):
                a(f"buffer_load_dwordx4 a[{96+4*t}:{99+4*t}], v1, {srd(SRD_A)}, {sT0} offen nt")
                if t < 15: a(f"s_add_u32 {sT0}, {sT0}, 9216")
            a.label("L_wissued")
        a("s_setprio 3")
        self.stamp(5)
        if p.STAMPS and p.MODE == "wo":
            a("s_waitcnt vmcnt(0)"); self.stamp(2, "wo")
        ol = [(8 + 2 * s_, 2, "v40", "s4" if s_ < 6 else "s15", s_ * OSLOT if s_ < 6 else (s_ - 5) * OSLOT) for s_ in range(8)]
        if p.DUP_O: self.poll_dup(ol, [64 + 2 * s_ for s_ in range(8)], p.DUP_O)
        else: self.poll(ol, sleep=p.SL_O, adapt=p.AD_O)
        self.stamp(6, "wo")
        a("v_pk_mul_f32 v[24:25], v[8:9], v[48:49] op_sel_hi:[1,0]")
        a("v_pk_mul_f32 v[26:27], v[10:11], v[48:49] op_sel:[0,1]")
        for s_ in range(2, 8):
            d = 24 + 2 * (s_ & 1); w = 48 + (s_ & ~1)
            sel = "op_sel_hi:[1,0,1]" if (s_ & 1) == 0 else "op_sel:[0,1,0]"
            a(f"v_pk_fma_f32 v[{d}:{d+1}], v[{8+2*s_}:{9+2*s_}], v[{w}:{w+1}], v[{d}:{d+1}] {sel}")
        self.pk_add(24, 24, 26)
        a("v_cvt_pk_bf16_f32 v24, v24, v24"); a("v_cvt_pk_bf16_f32 v25, v25, v25")
        a("ds_write_b32 v42, v24"); a("ds_write_b32 v42, v25 offset:80")
        self.tread(16, 4, "v43")
        self.stamp(1, "wo")
        self.gemv(16, 96, list(range(16, 32)), 36)
        self.setexec(self.VALID); a("ds_write_b128 v44, v[36:39]"); a("s_mov_b64 exec, -1")
        a("s_waitcnt lgkmcnt(0)")
        a("s_barrier")
        self.stamp(3, "wo")
        a(f"s_cmp_lg_u32 {sHW}, 0"); a("s_cbranch_scc1 L_hexit")
        self.setexec(0xFFFF)
        for k in range(8): a(f"ds_read_b128 v[{8+4*k}:{11+4*k}], v45 offset:{L_PART + 256*k}")
        a("s_waitcnt lgkmcnt(0)")
        self.sum_rows4([8 + 4 * k for k in range(8)])
        for c in range(4): a(f"v_bfi_b32 v{8+c}, {sFF}, {vTAG}, v{8+c}")
        a(f"buffer_store_dwordx4 v[8:11], v45, {srd(SRD_WS)}, s5 offen sc1")
        self.stamp(7, "wo")
        a.label("L_hexit")
        self.dump_stamps()
        a("s_endpgm")

    def tail_dyn(self):
        a = self.a; p = self.p
        L24 = lanes(24)
        UX, UGA, UC1, USB = 64, 68, 72, 76
        vUT, vUR, vUP, vUA = "v80", "v81", "v82", "v83"
        FX, FGA, FGB = 84, 88, 92
        MS = 72 * 6 * 256
        sTK = "s63"; sDBL = "s62"
        def down_prep():
            a(f"s_mul_i32 {sT2}, s14, {32*1152}"); self.set_srd(SRD_A, sWD, off=sT2, size=32 * 1152)
            a(f"s_lshl_b32 {sT0}, {sHW}, 3")
            a(f"v_lshrrev_b32 v57, 3, {vLANE}"); a(f"v_add_u32 v57, {sT0}, v57"); a("v_mul_u32_u24 v57, 1152, v57")
            a(f"v_and_b32 v8, 7, {vLANE}"); a("v_lshl_add_u32 v57, v8, 4, v57")
            for cb in range(9):
                a(f"buffer_load_dwordx4 a[{48+4*cb}:{51+4*cb}], v57, {srd(SRD_A)}, 0 offen offset:{128*cb} nt")
            a("s_lshr_b32 s15, s14, 1"); a("s_mul_i32 s15, s15, 1536"); a(f"s_and_b32 {sT0}, s14, 1"); a(f"s_lshl_b32 {sT0}, {sT0}, 7"); a(f"s_add_u32 s15, s15, {sT0}")
            a(f"s_lshl_b32 {sT0}, {sHW}, 2"); a(f"s_add_u32 s15, s15, {sT0}")
            a(f"v_and_b32 v8, 7, {vLANE}"); a("v_min_u32 v8, 5, v8"); a("v_lshlrev_b32 v58, 8, v8"); a(f"v_lshrrev_b32 v9, 3, {vLANE}"); a("v_lshl_add_u32 v58, v9, 4, v58"); a("v_add_u32 v58, s15, v58")
            a("v_lshlrev_b32 v59, 7, v8"); a(f"v_add_u32 v59, {WS_ST}, v59")
            self.dpiece_addr(f"v{FX}", "v8", L_DOWN, 2304)
            a(f"s_mul_i32 {sT0}, {sHW}, 48"); a(f"v_add_u32 v{FX+1}, {sT0}, {vLANE}"); a(f"v_lshlrev_b32 v{FX+1}, 4, v{FX+1}")
            a("s_mul_i32 s15, s14, 2304"); a(f"s_add_u32 s15, s15, {WS_OUT}")
        a.label("L_tail")
        a("s_setprio 0")
        self.lds_spin(L_QFLAG, target=1, sleep=8)
        a(f"s_cmp_lg_u32 {sHW}, 2"); a("s_cbranch_scc1 L_tkwait")
        self.lds_spin(L_WCNT, target=p.TKAT, sleep=2)
        self.set_srd(SRD_B, sDBG, size=256)
        a("s_mov_b64 exec, 1")
        a("v_mov_b32 v8, 1")
        a(f"buffer_atomic_add v8, off, {srd(SRD_B)}, 0 sc0")
        a("s_waitcnt vmcnt(0)")
        a(f"v_add_u32 v8, 1, v8"); a(f"v_mov_b32 v9, {L_TICK}"); a("ds_write_b32 v9, v8")
        a("s_mov_b64 exec, -1")
        a.label("L_tkwait")
        self.lds_spin(L_TICK, target=1, sleep=2)
        a(f"s_sub_u32 {sTK}, {sT3}, 1")
        a(f"s_setprio 2")
        self.stamp(4, "fine")
        a(f"s_cmp_ge_u32 {sTK}, 234"); a("s_cbranch_scc1 L_hexit")
        a(f"s_cmp_lt_u32 {sTK}, 72"); a("s_cbranch_scc1 L_wo")
        a(f"s_cmp_ge_u32 {sTK}, 126"); a("s_cbranch_scc1 L_sgl")
        a(f"s_sub_u32 {sT2}, {sTK}, 72"); self.div3("s6", "s7", sT2); a("s_lshl_b32 s6, s6, 1"); a(f"s_mov_b32 {sDBL}, 1")
        a("s_branch L_uprep")
        a.label("L_sgl")
        a(f"s_sub_u32 {sT2}, {sTK}, 126"); self.div3("s6", "s7", sT2); a("s_add_u32 s6, s6, 36"); a(f"s_mov_b32 {sDBL}, 0")
        a.label("L_uprep")
        a(f"s_lshr_b32 {sT0}, {sHW}, 1"); a("s_lshl_b32 s7, s7, 1"); a(f"s_add_u32 s7, s7, {sT0}")
        a(f"s_and_b32 s8, {sHW}, 1")
        a("s_cmp_eq_u32 s8, 0"); a(f"s_cselect_b32 s12, s{sWG}, s{sWU}"); a(f"s_cselect_b32 s13, s{sWG+1}, s{sWU+1}")
        a(f"s_lshl_b32 {sT2}, s6, 7")
        self.set_srd(SRD_C, 12, off=sT2, size_minus_off=576 * 9216)
        a("s_mul_i32 s11, s7, 96"); a(f"v_lshrrev_b32 v56, 3, {vLANE}"); a("v_add_u32 v56, s11, v56"); a("v_mul_u32_u24 v56, 9216, v56")
        a(f"v_and_b32 v8, 7, {vLANE}"); a("v_lshl_add_u32 v56, v8, 4, v56")
        self.lds_spin(L_WCNT if p.WTRIG == "issued" else L_OCNT, target=4, sleep=1)
        self.stamp(5)
        a(f"s_mov_b32 {sT0}, 0")
        for t in range(12):
            a(f"buffer_load_dwordx4 a[{4*t}:{4*t+3}], v56, {srd(SRD_C)}, {sT0} offen nt")
            if t < 11: a(f"s_add_u32 {sT0}, {sT0}, {8*9216}")
        a(f"s_cmp_eq_u32 {sDBL}, 0"); a("s_cbranch_scc1 L_one")
        a(f"s_mov_b32 {sT0}, 128")
        for t in range(12):
            a(f"buffer_load_dwordx4 a[{48+4*t}:{51+4*t}], v56, {srd(SRD_C)}, {sT0} offen nt")
            if t < 11: a(f"s_add_u32 {sT0}, {sT0}, {8*9216}")
        a.label("L_one")
        a("s_mul_i32 s9, s7, 3")
        a(f"v_lshrrev_b32 v8, 3, {vLANE}"); a("v_add_u32 v8, s9, v8")
        self.piece_off("v2", "v8", "v9")
        a(f"v_lshlrev_b32 {vUA}, 7, v8"); a(f"v_and_b32 v9, 7, {vLANE}"); a(f"v_lshl_add_u32 {vUA}, v9, 4, {vUA}"); a(f"v_add_u32 {vUA}, {WS_ATT}, {vUA}")
        self.set_srd(SRD_B, sX, size=1152)
        a("v_lshlrev_b32 v8, 5, v8"); a("v_add_u32 v8, v8, v9"); a("v_lshlrev_b32 v8, 1, v8")
        for r in range(4): a(f"buffer_load_ushort v{UX+r}, v8, {srd(SRD_B)}, 0 offen offset:{16*r}")
        a(f"s_mul_i32 {sT0}, {sHW}, {TBLW}"); a(f"s_add_u32 {sT0}, {sT0}, {L_TBL}")
        a(f"v_and_b32 v8, 7, {vLANE}"); a(f"v_mul_u32_u24 {vUT}, 48, v8"); a(f"v_lshrrev_b32 v9, 3, {vLANE}"); a(f"v_lshl_add_u32 {vUT}, v9, 4, {vUT}"); a(f"v_add_u32 {vUT}, {sT0}, {vUT}")
        a(f"v_mul_u32_u24 {vUR}, 48, v9"); a(f"v_add_u32 {vUR}, {sT0}, {vUR}")
        a(f"v_lshrrev_b32 {vUP}, 4, {vLANE}"); a(f"v_lshlrev_b32 {vUP}, 7, {vUP}"); a(f"v_lshl_add_u32 {vUP}, v8, 4, {vUP}")
        a("s_mul_i32 s10, s8, 72"); a("s_add_u32 s10, s10, s6"); a("s_mul_i32 s10, s10, 6"); a("s_add_u32 s10, s10, s7"); a("s_lshl_b32 s10, s10, 8")
        self.gather_mod([2, 4, 3], "v2", [UGA, UC1, USB], L24, sleep=2)
        a("s_mov_b64 exec, -1")
        for r in range(4): a(f"v_lshlrev_b32 v{UX+r}, 16, v{UX+r}")
        for r in range(4): a(f"v_add_f32 v{UC1+r}, 1.0, v{UC1+r}")
        self.round4(UC1, "v8")
        a(f"s_mov_b32 s61, 0")
        a(f"s_sub_u32 s14, {sTK}, 54"); a(f"s_sub_u32 {sT2}, {sTK}, 126"); a(f"s_cmp_ge_u32 {sT2}, 72"); a("s_cbranch_scc1 L_nodown")
        a("s_mov_b32 s61, 1")
        down_prep()
        a.label("L_nodown")
        a("s_setprio 3")
        for k in range(4): a(f"v_cvt_pk_bf16_f32 v{8+k}, v{UC1+k}, v{UC1+k}")
        for k in range(4): a(f"v_cvt_pk_bf16_f32 v{12+k}, v{USB+k}, v{USB+k}")
        self.setexec(L24); a(f"ds_write_b128 {vUT}, v[8:11]"); a(f"ds_write_b128 {vUT}, v[12:15] offset:384"); a("s_mov_b64 exec, -1")
        for i in range(3): a(f"ds_read_b128 v[{16+4*i}:{19+4*i}], {vUR} offset:{16*i}")
        for i in range(3): a(f"ds_read_b128 v[{28+4*i}:{31+4*i}], {vUR} offset:{384+16*i}")
        a("s_waitcnt lgkmcnt(0)")
        for st_ in range(2):
            if st_ == 1:
                a(f"s_cmp_eq_u32 {sDBL}, 0"); a("s_cbranch_scc1 L_c1done")
            def mk(t):
                for r in range(4): a(f"v_and_b32 v{8+r}, v{16+t}, v{vM[r]}")
            def mk2(t):
                for r in range(4): a(f"v_and_b32 v{12+r}, v{28+t}, v{vM[r]}")
            mk(0)
            for t in range(12):
                A_ = f"a[{48*st_+4*t}:{48*st_+4*t+3}]"
                mk2(t)
                a(f"v_mfma_f32_16x16x32_bf16 v[40:43], {A_}, v[8:11], {'0' if t == 0 else 'v[40:43]'}")
                if t + 1 < 12: mk(t + 1)
                a(f"v_mfma_f32_16x16x32_bf16 v[44:47], {A_}, v[12:15], {'0' if t == 0 else 'v[44:47]'}")
            for r in range(8): a(f"v_mov_b32 v{48+r}, v{40+r}")
            for r in range(8): a(f"v_permlane32_swap_b32 v{40+r}, v{48+r}")
            for r in range(8): a(f"v_add_f32_dpp v{40+r}, v{48+r}, v{40+r} row_ror:8 row_mask:0xf bank_mask:0xf")
            for r in range(8): a(f"v_bfi_b32 v{40+r}, {sFF}, {vTAG}, v{40+r}")
            a(f"s_add_u32 {sT0}, s10, {WS_C + 1536 * st_}"); a(f"s_add_u32 {sT1}, s10, {WS_C + 2 * MS + 1536 * st_}")
            self.setexec(0x00FF00FF)
            a(f"buffer_store_dwordx4 v[40:43], {vUP}, {srd(SRD_WS)}, {sT0} offen sc1"); a(f"buffer_store_dwordx4 v[44:47], {vUP}, {srd(SRD_WS)}, {sT1} offen sc1")
            a("s_mov_b64 exec, -1")
        a.label("L_c1done")
        self.stamp(1, "fine")
        loads = [(8 + 4 * k, 4, vUA, None if k < 2 else (k & ~1) * 2304, (k & 1) * 2304) for k in range(8)]
        if p.CGATE: self.cnt_gate(p.CTGT, p.PS_ATT)
        self.poll(loads, active=L24, sleep=p.SL_ATT)
        self.stamp(6)
        self.sum_rows4([8 + 4 * k for k in range(8)])
        a(f"v_pk_fma_f32 v[{UX}:{UX+1}], v[8:9], v[{UGA}:{UGA+1}], v[{UX}:{UX+1}]"); a(f"v_pk_fma_f32 v[{UX+2}:{UX+3}], v[10:11], v[{UGA+2}:{UGA+3}], v[{UX+2}:{UX+3}]")
        a(f"v_pk_mul_f32 v[{UC1}:{UC1+1}], v[{UX}:{UX+1}], v[{UC1}:{UC1+1}]"); a(f"v_pk_mul_f32 v[{UC1+2}:{UC1+3}], v[{UX+2}:{UX+3}], v[{UC1+2}:{UC1+3}]")
        for k in range(4): a(f"v_cvt_pk_bf16_f32 v{8+k}, v{UC1+k}, v{UC1+k}")
        a(f"ds_write_b128 {vUT}, v[8:11]"); a("s_mov_b64 exec, -1")
        self.tread(16, 3, vUR)
        for st_ in range(2):
            if st_ == 1:
                a(f"s_cmp_eq_u32 {sDBL}, 0"); a("s_cbranch_scc1 L_zdone")
            self.gemv(12, 48 * st_, list(range(16, 28)), 36)
            self.half_add(36, 40)
            for r in range(4): a(f"v_bfi_b32 v{36+r}, {sFF}, {vTAG}, v{36+r}")
            a(f"s_add_u32 {sT0}, s10, {WS_G + 1536 * st_}")
            self.setexec(0x00FF00FF); a(f"buffer_store_dwordx4 v[36:39], {vUP}, {srd(SRD_WS)}, {sT0} offen sc1"); a("s_mov_b64 exec, -1")
        a.label("L_zdone")
        self.stamp(2, "fine")
        a("s_or_b32 s11, s6, s8"); a("s_cmp_lg_u32 s11, 0"); a("s_cbranch_scc1 L_nostat")
        a("v_mov_b32 v12, 0"); a("v_mov_b32 v13, 0")
        self.setexec(L24)
        a(f"v_pk_add_f32 v[14:15], v[{UX}:{UX+1}], v[{UX+2}:{UX+3}]"); a(f"v_pk_mul_f32 v[16:17], v[{UX}:{UX+1}], v[{UX}:{UX+1}]")
        a(f"v_pk_fma_f32 v[16:17], v[{UX+2}:{UX+3}], v[{UX+2}:{UX+3}], v[16:17]")
        a("v_add_f32 v12, v14, v15"); a("v_add_f32 v13, v16, v17")
        a("s_mov_b64 exec, -1")
        self.allreduceN("v_add_f32", [("v12", "v14"), ("v13", "v15")], ["q1", "q2", "r4", "r8", "p16"])
        a("v_mov_b32 v14, 0"); a("v_mov_b32 v15, 0")
        for c in range(4): a(f"v_bfi_b32 v{12+c}, {sFF}, {vTAG}, v{12+c}")
        a("s_lshl_b32 s11, s7, 7"); a(f"s_add_u32 s11, s11, {WS_ST}")
        a("s_mov_b64 exec, 1"); a(f"buffer_store_dwordx4 v[12:15], off, {srd(SRD_WS)}, s11 sc1"); a("s_mov_b64 exec, -1")
        a.label("L_nostat")
        a(f"s_cmp_lt_u32 {sTK}, 90"); a("s_cbranch_scc1 L_fin")
        a("s_cmp_eq_u32 s61, 0"); a("s_cbranch_scc1 L_hexit")
        a.label("L_down")
        self.poll([(20, 1, "v58", WS_C, 0), (21, 1, "v58", WS_C + 2 * MS, 0), (22, 1, "v58", WS_C + MS, 0), (23, 1, "v58", WS_C + 3 * MS, 0)], sleep=p.SL_C)
        self.lane6_reduce([20, 21, 22, 23], 12)
        self.poll([(8, 1, "v58", WS_G, 0), (9, 1, "v58", WS_G + MS, 0), (10, 4, "v59", None, 0)], presleep=p.PS_G, sleep=p.SL_G, strong=(2,))
        self.stamp(3, "fine")
        self.lane6_reduce([8, 9, 10, 11], 14)
        a(f"v_mul_f32 v10, {f32hex(1/576)}, v10"); a(f"v_mul_f32 v11, {f32hex(1/576)}, v11")
        a("v_fma_f32 v11, -v10, v10, v11"); a("v_max_f32 v11, 0, v11"); a(f"v_add_f32 v11, {f32hex(1e-5)}, v11"); a("v_rsq_f32 v11, v11")
        a("v_fma_f32 v8, -v10, v20, v8"); a("v_fma_f32 v9, -v10, v22, v9")
        a("v_fma_f32 v8, v8, v11, v21"); a("v_fma_f32 v9, v9, v11, v23")
        self.sigmoid("v12", "v8", "v12")
        a("v_mul_f32 v8, v12, v9")
        a("v_cvt_pk_bf16_f32 v8, v8, v8")
        for r in range(4): a(f"v_and_b32 v{12+r}, v8, v{vM[r]}")
        for cb in range(9):
            d = 16 + 4 * cb
            a(f"v_mfma_f32_16x16x32_bf16 v[{d}:{d+3}], a[{48+4*cb}:{51+4*cb}], v[12:15], 0")
        self.setexec(self.VALID)
        for cb in range(9): a(f"ds_write_b128 v{FX}, v[{16+4*cb}:{19+4*cb}] offset:{256*cb}")
        a("s_mov_b64 exec, -1")
        a("s_waitcnt lgkmcnt(0)")
        a("s_barrier")
        a(f"s_cmp_ge_u32 {sHW}, 3"); a("s_cbranch_scc1 L_hexit")
        self.setexec(lanes(48))
        for k in range(8): a(f"ds_read_b128 v[{8+4*k}:{11+4*k}], v{FX+1} offset:{L_DOWN + 2304*k}")
        a("s_waitcnt lgkmcnt(0)")
        self.sum_rows4([8 + 4 * k for k in range(8)])
        for c in range(4): a(f"v_bfi_b32 v{8+c}, {sFF}, {vTAG}, v{8+c}")
        a(f"buffer_store_dwordx4 v[8:11], v{FX+1}, {srd(SRD_WS)}, s15 offen sc1")
        self.stamp(7)
        a("s_branch L_hexit")
        a.label("L_fin")
        a(f"s_sub_u32 s14, {sTK}, 72")
        self.set_srd(SRD_B, sX, size=1152)
        a(f"v_and_b32 v46, 7, {vLANE}")
        a("s_lshl_b32 s15, s14, 6"); a("v_lshlrev_b32 v8, 1, v46")
        for r in range(4): a(f"buffer_load_ushort v{FX+r}, v8, {srd(SRD_B)}, s15 offen offset:{16*r}")
        a("v_mov_b32 v8, s14"); self.piece_off("v2", "v8", "v9")
        self.gather_mod([2, 5], "v2", [FGA, FGB], FULL, sleep=2)
        for r in range(4): a(f"v_lshlrev_b32 v{FX+r}, 16, v{FX+r}")
        a("s_lshl_b32 s15, s14, 7"); a("v_lshlrev_b32 v47, 4, v46"); a("v_add_u32 v47, s15, v47")
        a(f"v_lshrrev_b32 v8, 3, {vLANE}"); a("v_mul_u32_u24 v42, 2304, v8"); a("v_add_u32 v42, v42, v47"); a(f"v_add_u32 v42, {WS_ATT}, v42")
        a(f"s_mul_i32 {sT0}, {sHW}, 36"); a(f"v_add_u32 v8, {sT0}, v8"); a("v_mul_u32_u24 v43, 2304, v8"); a("v_add_u32 v43, v43, v47"); a(f"v_add_u32 v43, {WS_OUT}, v43")
        a(f"v_add_u32 v44, {4*8*2304}, v43"); a(f"v_cmp_gt_u32 vcc, 32, {vLANE}"); a("v_cndmask_b32 v44, v43, v44, vcc")
        a(f"s_lshl_b32 {sT0}, {sHW}, 7"); a(f"s_add_u32 {sT0}, {sT0}, {L_FIN}"); a("v_lshlrev_b32 v45, 4, v46"); a(f"v_add_u32 v40, {sT0}, v45")
        self.poll([(8, 4, "v42", None, 0)], sleep=1)
        self.allreduceN("v_add_f32", [(f"v{8+c}", f"v{12+c}") for c in range(4)], ["r8", "p16", "p32"])
        a(f"v_pk_fma_f32 v[{FX}:{FX+1}], v[8:9], v[{FGA}:{FGA+1}], v[{FX}:{FX+1}]"); a(f"v_pk_fma_f32 v[{FX+2}:{FX+3}], v[10:11], v[{FGA+2}:{FGA+3}], v[{FX+2}:{FX+3}]")
        self.set_srd(SRD_B, sOUT, size=1152)
        a("s_lshl_b32 s15, s14, 6"); a("v_lshlrev_b32 v49, 1, v46")
        self.stamp(3, "fine")
        self.poll([(8, 4, "v43", None, 0), (12, 4, "v43", 8*2304, 0), (16, 4, "v43", 16*2304, 0), (20, 4, "v43", 24*2304, 0), (24, 4, "v44", None, 0)], presleep=p.PS_OUT, sleep=p.SL_OUT)
        a(f"v_cmp_gt_u32 vcc, 32, {vLANE}")
        self.sum_rows4([8, 12, 16, 20])
        for c in range(4): a(f"v_cndmask_b32 v{24+c}, 0, v{24+c}, vcc")
        self.sum_rows4([8, 24])
        self.allreduceN("v_add_f32", [(f"v{8+c}", f"v{12+c}") for c in range(4)], ["r8", "p16", "p32"])
        self.setexec(0xFF)
        a("ds_write_b128 v40, v[8:11]")
        a("s_mov_b64 exec, -1")
        a("s_waitcnt lgkmcnt(0)")
        a("s_barrier")
        a(f"s_cmp_lg_u32 {sHW}, 0"); a("s_cbranch_scc1 L_hexit")
        self.setexec(0xFF)
        for w in range(4): a(f"ds_read_b128 v[{8+4*w}:{11+4*w}], v45 offset:{L_FIN + 128*w}")
        a("s_waitcnt lgkmcnt(0)")
        self.sum_rows4([8, 12, 16, 20])
        a(f"v_pk_fma_f32 v[8:9], v[8:9], v[{FGB}:{FGB+1}], v[{FX}:{FX+1}]"); a(f"v_pk_fma_f32 v[10:11], v[10:11], v[{FGB+2}:{FGB+3}], v[{FX+2}:{FX+3}]")
        a("v_cvt_pk_bf16_f32 v12, v8, v9"); a("v_cvt_pk_bf16_f32 v13, v10, v11")
        a(f"buffer_store_short v12, v49, {srd(SRD_B)}, s15 offen"); a(f"buffer_store_short_d16_hi v12, v49, {srd(SRD_B)}, s15 offen offset:16")
        a(f"buffer_store_short v13, v49, {srd(SRD_B)}, s15 offen offset:32"); a(f"buffer_store_short_d16_hi v13, v49, {srd(SRD_B)}, s15 offen offset:48")
        self.stamp(7)
        a("s_cmp_lg_u32 s14, 0"); a("s_cbranch_scc1 L_hexit")
        a("s_mov_b64 exec, 1")
        a(f"v_mov_b32 v8, {sTAG}")
        a(f"buffer_store_dword v8, off, {srd(SRD_WS)}, 0 sc1")
        a("s_branch L_hexit")
        a.label("L_wo")
        a(f"s_and_b32 {sR0}, {sTK}, 7"); a(f"s_lshr_b32 {sR1}, {sTK}, 3")
        a(f"s_lshl_b32 {sT2}, {sR1}, 7")
        self.set_srd(SRD_A, sWO, off=sT2, size_minus_off=4096 * 1152)
        a(f"s_lshl_b32 {sR2}, {sR0}, 2"); a(f"s_add_u32 {sR2}, {sR2}, {sHW}")
        a(f"s_lshl_b32 {sT0}, {sR2}, 7")
        a(f"v_lshrrev_b32 v1, 3, {vLANE}"); a(f"v_add_u32 v1, {sT0}, v1"); a("v_mul_u32_u24 v1, 1152, v1")
        a(f"v_and_b32 v2, 7, {vLANE}"); a("v_lshl_add_u32 v1, v2, 4, v1")
        self.lds_spin(L_WCNT, target=4, sleep=1)
        self.stamp(5)
        a(f"s_mov_b32 {sT0}, 0")
        for t in range(16):
            a(f"buffer_load_dwordx4 a[{96+4*t}:{99+4*t}], v1, {srd(SRD_A)}, {sT0} offen nt")
            if t < 15: a(f"s_add_u32 {sT0}, {sT0}, 9216")
        a(f"s_mul_i32 s4, {sR2}, {8*OSLOT}"); a("s_add_u32 s4, s4, " + str(WS_O))
        a(f"s_mul_i32 {sT0}, {sR0}, 2304"); a(f"s_lshl_b32 {sT1}, {sR1}, 8"); a(f"s_add_u32 {sT0}, {sT0}, {sT1}"); a(f"s_add_u32 s5, {sT0}, {WS_ATT}")
        a(f"v_and_b32 v41, 7, {vLANE}"); a(f"v_mul_u32_u24 v41, {OSLOT}, v41")
        a(f"v_lshlrev_b32 v40, 3, {vLANE}")
        a(f"v_and_b32 v8, 3, {vLANE}"); a("v_mul_u32_u24 v8, 160, v8"); a(f"v_lshrrev_b32 v42, 2, {vLANE}"); a("v_lshl_add_u32 v42, v42, 2, v8")
        a(f"s_mul_i32 {sT0}, {sHW}, {TBLW}"); a(f"s_add_u32 {sT0}, {sT0}, {L_TBL}"); a(f"v_add_u32 v42, {sT0}, v42")
        self.taddr_r("v43", 20)
        self.dpiece_addr("v44", "v8", L_PART, 256)
        a(f"v_lshlrev_b32 v45, 4, {vLANE}")
        a("s_add_u32 s15, s4, 3200")
        self.poll([(8, 4, "v41", "s4", 512)], sleep=4, strong=(0,))
        a(f"v_and_b32 v8, {sFFFF0000}, v8")
        a("v_mov_b32 v10, v8")
        self.allreduce("v_max_f32", "v10", "v11", ["q1", "q2", "hm"])
        a("v_sub_f32 v11, v8, v10"); a(f"v_mul_f32 v11, 0x{LOG2E:08x}, v11"); a("v_exp_f32 v11, v11")
        a("v_mul_f32 v12, v11, v9")
        self.allreduce("v_add_f32", "v12", "v13", ["q1", "q2", "hm"])
        a("v_rcp_f32 v12, v12"); a("v_mul_f32 v11, v11, v12")
        for s_ in range(8): a(f"v_mov_b32_dpp v{48+s_}, v11 row_newbcast:{s_} row_mask:0xf bank_mask:0xf")
        a("s_setprio 3")
        if p.CGATE_O: self.cnt_gate(p.CTGT_O, p.PS_O)
        self.poll([(8 + 2 * s_, 2, "v40", "s4" if s_ < 6 else "s15", s_ * OSLOT if s_ < 6 else (s_ - 5) * OSLOT) for s_ in range(8)], sleep=p.SL_O)
        self.stamp(6, "wo")
        a("v_pk_mul_f32 v[24:25], v[8:9], v[48:49] op_sel_hi:[1,0]")
        a("v_pk_mul_f32 v[26:27], v[10:11], v[48:49] op_sel:[0,1]")
        for s_ in range(2, 8):
            d = 24 + 2 * (s_ & 1); w = 48 + (s_ & ~1)
            sel = "op_sel_hi:[1,0,1]" if (s_ & 1) == 0 else "op_sel:[0,1,0]"
            a(f"v_pk_fma_f32 v[{d}:{d+1}], v[{8+2*s_}:{9+2*s_}], v[{w}:{w+1}], v[{d}:{d+1}] {sel}")
        self.pk_add(24, 24, 26)
        a("v_cvt_pk_bf16_f32 v24, v24, v24"); a("v_cvt_pk_bf16_f32 v25, v25, v25")
        a("ds_write_b32 v42, v24"); a("ds_write_b32 v42, v25 offset:80")
        self.tread(16, 4, "v43")
        self.gemv(16, 96, list(range(16, 32)), 36)
        self.setexec(self.VALID); a("ds_write_b128 v44, v[36:39]"); a("s_mov_b64 exec, -1")
        a("s_waitcnt lgkmcnt(0)")
        a("s_barrier")
        a(f"s_cmp_lg_u32 {sHW}, 0"); a("s_cbranch_scc1 L_wo_done")
        self.setexec(0xFFFF)
        for k in range(8): a(f"ds_read_b128 v[{8+4*k}:{11+4*k}], v45 offset:{L_PART + 256*k}")
        a("s_waitcnt lgkmcnt(0)")
        self.sum_rows4([8 + 4 * k for k in range(8)])
        for c in range(4): a(f"v_bfi_b32 v{8+c}, {sFF}, {vTAG}, v{8+c}")
        a(f"buffer_store_dwordx4 v[8:11], v45, {srd(SRD_WS)}, s5 offen sc1")
        a("s_mov_b64 exec, -1")
        self.stamp(1, "wo")
        a.label("L_wo_done")
        a(f"s_mov_b32 s14, {sTK}")
        down_prep()
        a("s_branch L_down")
        a.label("L_hexit")
        self.dump_stamps(extra=sTK)
        a("s_endpgm")

    def group_watch(self):
        a = self.a; p = self.p
        if not p.GSYNC: return
        a(f"s_cmp_lg_u32 {sHW}, 2"); a("s_cbranch_scc1 L_nogw")
        self.lds_spin(L_MLCNT, target=4, sleep=8)
        a(f"s_lshr_b32 {sT0}, s100, 3"); a(f"s_mul_i32 s4, {sT0}, {8*OSLOT}"); a("s_add_u32 s4, s4, " + str(WS_O))
        a(f"v_and_b32 v41, 7, {vLANE}"); a(f"v_mul_u32_u24 v41, {OSLOT}, v41")
        self.poll([(8, 4, "v41", "s4", 512)], active=0xFF, sleep=p.SL_GW, strong=(0,))
        a("s_mov_b64 exec, 1")
        a(f"v_mov_b32 v8, {L_GRP}"); a("v_mov_b32 v9, 1"); a("ds_write_b32 v8, v9")
        a("s_mov_b64 exec, -1")
        a.label("L_nogw")

    def read_ticket(self):
        a = self.a; L = a.uid("Ltk")
        a(f"s_cmp_lg_u32 {sHW}, 0"); a(f"s_cbranch_scc1 {L}")
        self.set_srd(SRD_B, sDBG, size=256)
        a("s_mov_b64 exec, 1")
        a("v_mov_b32 v8, 1")
        a(f"buffer_atomic_add v8, off, {srd(SRD_B)}, 0 sc0")
        a("s_waitcnt vmcnt(0)")
        a(f"v_add_u32 v8, 1, v8"); a(f"v_mov_b32 v9, {L_TICK}"); a("ds_write_b32 v9, v8")
        a("s_mov_b64 exec, -1")
        a.label(L)
        self.lds_spin(L_TICK, target=1, sleep=1)
        a(f"s_sub_u32 s63, {sT3}, 1")

    def go_watch(self, lab):
        a = self.a; p = self.p
        if not p.GT: return
        L = a.uid("Lgo"); E = a.uid("Lgoe")
        a(f"s_cmp_lg_u32 {sHW}, 2"); a(f"s_cbranch_scc1 {lab}")
        self.lds_spin(L_WCNT, target=4, sleep=2)
        self.set_srd(SRD_B, sDBG, size=256)
        a("s_mov_b64 exec, 1")
        a("v_mov_b32 v8, 1")
        a(f"buffer_atomic_add v8, off, {srd(SRD_B)}, 0 sc0")
        a("s_waitcnt vmcnt(0)")
        a(f"v_readfirstlane_b32 {sT3}, v8"); a(f"s_add_u32 {sT3}, {sT3}, 1")
        a(f"s_mov_b32 {sSPIN}, 0")
        a.label(L)
        a(f"s_cmp_ge_u32 {sT3}, {p.GT}"); a(f"s_cbranch_scc1 {E}")
        a(f"s_sleep {p.GSL}")
        a(f"buffer_load_dword v8, off, {srd(SRD_B)}, 0 sc1")
        a("s_waitcnt vmcnt(0)")
        a(f"v_readfirstlane_b32 {sT3}, v8")
        a(f"s_add_u32 {sSPIN}, {sSPIN}, 1"); a(f"s_cmp_lt_u32 {sSPIN}, {SPIN_MAX}"); a(f"s_cbranch_scc1 {L}")
        a.label(E)
        a(f"v_mov_b32 v8, {L_GO}"); a("v_mov_b32 v9, 1"); a("ds_write_b32 v8, v9")
        a("s_mov_b64 exec, -1")
        a.label(lab)

    def go_watch_u(self): self.go_watch("L_nogo_u")
    def go_watch_w(self): self.go_watch("L_nogo_w")

    def cnt_gate(self, target, presleep):
        a = self.a; L = a.uid("Lcg"); E = a.uid("Lcge")
        self.set_srd(SRD_B, sDBG, size=256)
        a(f"s_mov_b32 {sSPIN}, 0")
        a.label(L)
        a(f"buffer_load_dword v61, off, {srd(SRD_B)}, 0 sc1")
        a("s_waitcnt vmcnt(0)")
        a(f"v_readfirstlane_b32 {sT3}, v61")
        a(f"s_cmp_ge_u32 {sT3}, {target}"); a(f"s_cbranch_scc1 {E}")
        a("s_sleep 6")
        a(f"s_add_u32 {sSPIN}, {sSPIN}, 1"); a(f"s_cmp_lt_u32 {sSPIN}, {SPIN_MAX}"); a(f"s_cbranch_scc1 {L}")
        a.label(E)
        n = presleep
        while n > 0:
            a(f"s_sleep {min(n, 127)}"); n -= 127

    def lane6_reduce(self, regs, T):
        a = self.a
        a(f"v_and_b32 v{T}, 7, {vLANE}"); a(f"v_cmp_gt_u32 vcc, 6, v{T}")
        for r in regs: a(f"v_cndmask_b32 v{r}, 0, v{r}, vcc")
        self.allreduceN("v_add_f32", [(f"v{r}", f"v{T}") for r in regs], ["q1", "q2", "hm"])

    def build(self):
        self.prologue(); self.swave(); self.hwave()
        self.a.label("L_exit"); self.a("s_endpgm")
        return autonop(self.a.lines)

HEADER = open("adaLN_cond__mha_block_cached__glu_gated_glu__decode.s.ref").read().split("; Override launch geometry")[0]

LAST_SITES = {}
def make(p=P):
    g = Gen(p)
    body = g.build()
    global LAST_SITES
    LAST_SITES = getattr(g, "sites", {})
    txt = HEADER + "; Override launch geometry by editing the next line (default: block=256,\n; grid=ceil(out_elems/256), lds=0). Harness parses it; keep it on one line.\n"
    txt += f"; @launch grid=(256,1,1) block=(512,1,1) lds={LDS_BYTES}\n"
    txt += f""".amdgcn_target "amdgcn-amd-amdhsa--gfx950"
.text
.globl {KNAME}
.p2align 8
.type {KNAME},@function
{KNAME}:
"""
    txt += "\n".join(("" if l.endswith(":") else "    ") + l for l in body) + "\n"
    txt += f""".section .rodata,"a"
.p2align 6
.amdhsa_kernel {KNAME}
  .amdhsa_next_free_vgpr 256
  .amdhsa_next_free_sgpr 102
  .amdhsa_accum_offset {NVGPR}
  .amdhsa_group_segment_fixed_size 0
  .amdhsa_kernarg_size 112
  .amdhsa_user_sgpr_count 2
  .amdhsa_user_sgpr_kernarg_segment_ptr 1
  .amdhsa_system_sgpr_workgroup_id_x 1
.end_amdhsa_kernel
"""
    return txt

def report_h(pr, hw, mode, dyn=True):
    if not dyn:
        u = hw[72:252]
        if mode == "fine":
            pr("late trigger", u[:, :, 5]); pr("unit: C done", u[:, :, 1]); pr("unit: attn gathered", u[:, :, 6]); pr("unit: G published", u[:, :, 2])
            pr("  C done singles", hw[72:216, :, 1]); pr("  C done doubles", hw[216:252, :, 1]); pr("  attn gath singles", hw[72:216, :, 6]); pr("  attn gath doubles", hw[216:252, :, 6])
            pr("  G pub singles", hw[72:216, :, 2]); pr("  G pub doubles", hw[216:252, :, 2])
            g = hw[72:252, :, 2]; late = np.argsort(g.max(1))[-8:]
            print("   latest G publishers (id, trig, Cdone, attn, Gpub):", [(int(72 + k), round(float(hw[72+k, :, 5].max()), 2), round(float(hw[72+k, :, 1].max()), 2), round(float(hw[72+k, :, 6].max()), 2), round(float(g[k].max()), 2)) for k in late])
            pr("down: G gathered", hw[72:216, :, 3]); pr("down: published", hw[72:216, :3, 7]); pr("fin: x1", hw[216:234, :, 3]); pr("fin: done", hw[216:234, 0, 7])
        elif mode == "fin":
            f = hw[216:234]
            pr("down: published", hw[72:216, :3, 7]); pr("down: store acked", hw[72:216, :3, 6]); pr("fin: OUT gathered", f[:, :, 1]); pr("fin: before barrier", f[:, :, 2]); pr("fin: after barrier", f[:, :, 3]); pr("fin: done", f[:, 0, 7])
        elif mode == "wo":
            w = hw[:72]; pr("wo: trigger", w[:, :, 5]); pr("wo: ML+weights done", w[:, :, 2]); pr("wo: gathered", w[:, :, 6]); pr("wo: barrier passed", w[:, :, 3]); pr("wo: published", w[:, 0, 7])
        return
    if mode == "pre":
        qs = hw[:192, 0]; mc = hw[192:246, 0]; mn = hw[72:180, 1]
        pr("q gathered (H3)", hw[:, 3, 4])
    elif mode == "wo":
        w = hw[:72]
        pr("wo: trigger", w[:, :, 5]); pr("wo: gathered", w[:, :, 6]); pr("wo: published", w[:, 0, 1])
    elif mode == "fine":
        u = hw[72:234]
        pr("ticket known", hw[:234, :, 4]); pr("ticket W", hw[:72, :, 4]); pr("ticket D", hw[72:126, :, 4]); pr("ticket S", hw[126:234, :, 4])
        pr("unit trigger", u[:, :, 5]); pr("unit: C done D", hw[72:126, :, 1]); pr("unit: C done S", hw[126:234, :, 1]); pr("unit: attn gathered D", hw[72:126, :, 6]); pr("unit: attn gathered S+dn", hw[126:198, :, 6]); pr("unit: attn gathered S", hw[198:234, :, 6])
        pr("G published D", hw[72:126, :, 2]); pr("G published S+dn", hw[126:198, :, 2]); pr("G published S", hw[198:234, :, 2])
        print("   attn gathered by wave:", [round(float(u[:, w, 6].mean()), 2) for w in range(4)], "max", [round(float(u[:, w, 6].max()), 2) for w in range(4)])
        late = np.argsort(u[:, :, 6].max(1))[-6:]; print("   latest attn gathers (ticket, times, Cdone):", [(int(72 + k), u[k, :, 6].round(2).tolist(), u[k, :, 1].round(2).tolist()) for k in late])
        dn = np.concatenate([hw[:72], hw[126:198]])
        pr("down: G gathered", dn[:, :, 3]); pr("down: published", dn[:, :3, 7]); pr("fin: x1", hw[72:90, :, 3]); pr("fin: done", hw[72:90, 0, 7])
    else:
        u = hw[72:234]
        pr("unit trigger", u[:, :, 5]); pr("unit: attn gathered", u[:, :, 6]); pr("fin: done", hw[72:90, 0, 7])
def end_time(hw, dyn=True): return hw[72:90, 0, 7].max() if dyn else hw[216:234, 0, 7].max()
def order_h(hw, tickets):
    o = np.argsort(tickets, kind="stable")
    return hw[o]
import numpy as np

if __name__ == "__main__":
    out = sys.argv[1] if len(sys.argv) > 1 else "adaLN_cond__mha_block_cached__glu_gated_glu__decode.s"
    open(out, "w").write(make())
    print("wrote", out)
```

```python
import sys
from asmlib import Asm, autonop

KNAME = "adaLN_cond__mha_block_cached__glu_gated_glu__decode_kernel"

WS_EPOCH = 0
WS_O = 0x10000
OSLOT = 640
WS_ATT = 0x40000
WS_MOD = 0x80000
WS_Q = 0x90000
WS_OUT = 0xA0000
WS_G = 0x100000
WS_C = 0x140000
WS_ST = 0x1B0000
WS_DBG = 0x200000
WS_SIZE = 0x300000

L_QFLAG = 0
L_WCNT = 4
L_MLCNT = 8
L_OCNT = 12
L_TICK = 16
L_GRP = 20
L_W2 = 24
L_GO = 28
L_SENT = 32
L_Q = 0x40
L_ML = 0x180
L_STAT = 0x1C0
L_TBL = 0x200
TBLW = 768
L_PART = 0x1000
L_OPART = 0x1800
L_FIN = 0x2000
L_DOWN = 0x3000
L_KRING = 0x8000
LDS_BYTES = 0x8000 + 4 * 24 * 1024

LOG2E = 0x3FB8AA3B
SCALE = 0x3DB504F3
SPIN_MAX = 200000
NVGPR = 96

class P:
    R = 44
    D = 5
    NP = 44
    STAMPS = False
    MODE = "tail"
    QSLEEP = 16
    WTRIG = 'done'
    FULLCHECK = False
    LATEMOD = False
    WOEARLY = True
    MAP2 = False
    WOLATE = True
    DYN = False
    DOWNAFTERC = False
    LPACE = 0
    LPACE_T = 150
    NOTAIL = False
    MAPKV = 0
    DBLEARLY = True
    CMERGE = True
    GSYNC = 0
    MLAT = 12
    SL_GW = 8
    TKAT = 1
    SL_C = 2
    SL_O = 0
    CGATE = False
    CTGT = 256
    PS_ATT = 60
    CGATE_O = False
    CTGT_O = 256
    PS_O = 10
    SL_ATT = 0
    SL_G = 0
    SL_OUT = 0
    KVPOL = 'nt'
    WPOL = 'nt'
    DOWNLATER = True
    WOTGT = 4
    WOAT = 0
    OUTPOL = ''
    MAP3 = False
    REPAIR = False
    UNITPACE = 0
    TOUTDBG = False
    SENT_ATT = 8
    SENT1 = False
    AD_O = None
    STREP = False
    SL_FA = 1
    SENT_K = 0
    GT = 0
    GT_W = False
    GSL = 8
    DUP_G = 0
    DUP_OUT = 0
    DUP_O = 0
    UEARLY = False
    UPACE = 2
    UAT = 0
    PRETOUCH = False
    HPRIO0 = 1
    HDELAY = 0
    KLDS = True
    PS_A = 60
    SL_A = 16
    PS_QG = 240
    PS_G = 0
    PS_OUT = 0
    PS_Q = 0
    DEND = 10
    DENDAT = 32
    D2 = 0
    NEARLY = 0
    EPACE = 1
    WTHR = 0
    SPRIO = 2
    WOPACE = 2

def f32hex(x):
    import struct
    return "0x%08x" % struct.unpack("<I", struct.pack("<f", x))[0]

sWAVE = "s3"
sX, sK, sV, sWQ, sWO, sWG, sWU, sWD, sC, sWM, sOUT, sDBG, sWS = 16, 18, 20, 22, 24, 28, 30, 32, 34, 36, 38, 40, 42
SRD_A, SRD_B, SRD_WS, SRD_C = 44, 48, 52, 56
sTAG = "s64"
sT0, sT1, sT2, sT3 = "s65", "s66", "s67", "s68"
sSPIN = "s69"
sSAVE = 72
sHW = "s76"
sR0, sR1, sR2, sR3 = "s77", "s78", "s79", "s83"
sFFFF0000 = "s80"
sFF = "s81"
sSTAMP = 84
def srd(b): return f"s[{b}:{b+3}]"
def sp(b): return f"s[{b}:{b+1}]"
vLANE = "v3"
vM = [4, 5, 6, 7]
vTAG = "v60"
FULL = (1 << 64) - 1
def lanes(n): return (1 << n) - 1

class Gen:
    def __init__(self, p=P):
        self.a = Asm(); self.p = p

    def mask64(self, sreg, val):
        self.a(f"s_mov_b32 s{sreg}, 0x{val & 0xffffffff:08x}"); self.a(f"s_mov_b32 s{sreg+1}, 0x{(val >> 32) & 0xffffffff:08x}")
    def setexec(self, val):
        a = self.a
        if val == FULL: a("s_mov_b64 exec, -1")
        elif val <= 64: a(f"s_mov_b64 exec, {val}")
        elif val < (1 << 31): a(f"s_mov_b64 exec, 0x{val:x}")
        else:
            a(f"s_mov_b32 exec_lo, 0x{val & 0xffffffff:08x}"); a(f"s_mov_b32 exec_hi, 0x{(val >> 32) & 0xffffffff:08x}")
    def stamp(self, idx, mode="tail"):
        if self.p.STAMPS and (mode == self.p.MODE or mode == "all" or (mode == "tail" and self.p.MODE in ("fine", "fin", "wo"))):
            self.a(f"s_memrealtime s[{sSTAMP+2*idx}:{sSTAMP+2*idx+1}]")
    def dump_stamps(self, n=8, extra=None):
        if not self.p.STAMPS: return
        a = self.a
        a("s_waitcnt lgkmcnt(0)")
        a("s_mov_b64 exec, -1")
        a(f"s_lshl_b32 {sT0}, s2, 3"); a(f"s_add_u32 {sT0}, {sT0}, {sWAVE}"); a(f"s_lshl_b32 {sT0}, {sT0}, 7")
        a(f"s_add_u32 {sT0}, {sT0}, {WS_DBG}")
        for i in range(2 * n): a(f"v_writelane_b32 v8, s{sSTAMP+i}, {i}")
        if extra: a(f"v_writelane_b32 v8, {extra}, 16")
        a(f"v_lshlrev_b32 v9, 2, {vLANE}")
        a("s_mov_b64 exec, 0x1ffff")
        a(f"buffer_store_dword v8, v9, {srd(SRD_WS)}, {sT0} offen")
    def tout(self, site):
        if not self.p.TOUTDBG: return
        a = self.a
        self.site = getattr(self, "site", 0) + 1
        self.sites = getattr(self, "sites", {}); self.sites[self.site] = site
        a("s_mov_b64 s[96:97], exec"); a("s_mov_b64 exec, 1")
        a(f"s_lshl_b32 s98, s2, 3"); a(f"s_add_u32 s98, s98, {sWAVE}"); a("s_lshl_b32 s98, s98, 2"); a(f"s_add_u32 s98, s98, {WS_DBG + 0x10000}")
        a(f"v_mov_b32 v63, {self.site}")
        a(f"buffer_store_dword v63, off, {srd(SRD_WS)}, s98 sc1")
        a("s_mov_b64 exec, s[96:97]")
    def lds_spin(self, addr, target=1, vtmp="v61", vaddr="v62", sleep=1):
        a = self.a; L = a.uid("Lspin"); E = a.uid("Lspun")
        a(f"v_mov_b32 {vaddr}, {addr}")
        a(f"s_mov_b32 {sSPIN}, 0")
        a.label(L)
        a(f"ds_read_b32 {vtmp}, {vaddr}")
        a("s_waitcnt lgkmcnt(0)")
        a(f"v_readfirstlane_b32 {sT3}, {vtmp}")
        a(f"s_cmp_ge_u32 {sT3}, {target}")
        a(f"s_cbranch_scc1 {E}")
        if sleep: a(f"s_sleep {sleep}")
        a(f"s_add_u32 {sSPIN}, {sSPIN}, 1")
        a(f"s_cmp_lt_u32 {sSPIN}, {SPIN_MAX * 4}")
        a(f"s_cbranch_scc1 {L}")
        self.tout(f"lds_spin addr={addr} target={target}")
        a.label(E)
    def lds_add1(self, addr, va, vb):
        a = self.a
        a("s_mov_b64 exec, 1")
        a(f"v_mov_b32 {va}, {addr}"); a(f"v_mov_b32 {vb}, 1"); a(f"ds_add_u32 {va}, {vb}")
        a("s_mov_b64 exec, -1")
    def poll(self, loads, active=None, sleep=0, tmps=("v61", "v62", "v63"), presleep=0, strong=(), adapt=None):
        a = self.a; L = a.uid("Lpoll"); E = a.uid("Lpolled")
        t0, t1, t2 = tmps
        sMISS = "s70"
        if active is not None: self.setexec(active)
        if presleep: a(f"s_sleep {presleep}")
        n = len(loads)
        def issue(ld):
            (dst, k, voff, soff, imm) = ld
            op = {1: "buffer_load_dword", 2: "buffer_load_dwordx2", 4: "buffer_load_dwordx4"}[k]
            r = f"v{dst}" if k == 1 else f"v[{dst}:{dst+k-1}]"
            if soff is not None and not str(soff).startswith("s"):
                a(f"s_mov_b32 {sT3}, {soff}"); so = sT3
            else: so = soff if soff is not None else "0"
            a(f"{op} {r}, {voff}, {srd(SRD_WS)}, {so} offen offset:{imm} sc1")
        def test(li, ld):
            if li in strong or self.p.FULLCHECK:
                a(f"v_xor_b32 {t0}, {vTAG}, v{ld[0]}")
                k = 1
                while k < ld[1]:
                    if k + 1 < ld[1]:
                        a(f"v_xor_b32 {t1}, {vTAG}, v{ld[0]+k}"); a(f"v_xor_b32 {t2}, {vTAG}, v{ld[0]+k+1}"); a(f"v_or3_b32 {t0}, {t0}, {t1}, {t2}"); k += 2
                    else:
                        a(f"v_xor_b32 {t1}, {vTAG}, v{ld[0]+k}"); a(f"v_or_b32 {t0}, {t0}, {t1}"); k += 1
                a(f"v_cmp_ne_u32_sdwa vcc, 0, {t0} src0_sel:DWORD src1_sel:BYTE_0") if False else (a(f"v_and_b32 {t0}, 0xff, {t0}"), a(f"v_cmp_ne_u32 vcc, 0, {t0}"))
            else:
                a(f"v_cmp_ne_u32_sdwa vcc, {vTAG}, v{ld[0]} src0_sel:BYTE_0 src1_sel:BYTE_0")
        if n == 1:
            a(f"s_mov_b32 {sSPIN}, 0")
            a.label(L)
            issue(loads[0]); a("s_waitcnt vmcnt(0)")
            test(0, loads[0])
            a(f"s_cbranch_vccz {E}")
            if sleep: a(f"s_sleep {sleep}")
            a(f"s_add_u32 {sSPIN}, {sSPIN}, 1"); a(f"s_cmp_lt_u32 {sSPIN}, {SPIN_MAX}"); a(f"s_cbranch_scc1 {L}")
            self.tout(f"poll1 {loads[0]}")
            a.label(E)
            return
        for ld in loads: issue(ld)
        a(f"s_mov_b32 {sMISS}, 0")
        for li, ld in enumerate(loads):
            Lk = a.uid("Lk")
            a(f"s_waitcnt vmcnt({n-1-li})")
            test(li, ld)
            a(f"s_cbranch_vccz {Lk}")
            a(f"s_bitset1_b32 {sMISS}, {li}")
            a.label(Lk)
        a(f"s_cmp_eq_u32 {sMISS}, 0"); a(f"s_cbranch_scc1 {E}")
        a(f"s_mov_b32 {sSPIN}, 0")
        a.label(L)
        if sleep: a(f"s_sleep {sleep}")
        if adapt:
            Lk = a.uid("La")
            a(f"s_bcnt1_i32_b32 {sT3}, {sMISS}"); a(f"s_cmp_lt_u32 {sT3}, {adapt[0]}"); a(f"s_cbranch_scc1 {Lk}")
            a(f"s_sleep {adapt[1]}"); a.label(Lk)
        for li, ld in enumerate(loads):
            Lk = a.uid("Ls")
            a(f"s_bitcmp1_b32 {sMISS}, {li}"); a(f"s_cbranch_scc0 {Lk}")
            issue(ld); a.label(Lk)
        a("s_waitcnt vmcnt(0)")
        for li, ld in enumerate(loads):
            Lk = a.uid("Lt")
            a(f"s_bitcmp1_b32 {sMISS}, {li}"); a(f"s_cbranch_scc0 {Lk}")
            test(li, ld)
            a(f"s_cbranch_vccnz {Lk}")
            a(f"s_bitset0_b32 {sMISS}, {li}")
            a.label(Lk)
        a(f"s_cmp_eq_u32 {sMISS}, 0"); a(f"s_cbranch_scc1 {E}")
        a(f"s_add_u32 {sSPIN}, {sSPIN}, 1"); a(f"s_cmp_lt_u32 {sSPIN}, {SPIN_MAX}"); a(f"s_cbranch_scc1 {L}")
        self.tout(f"pollN n={n} first={loads[0]}")
        a.label(E)
    def poll_dup(self, loads, bdst, gap, active=None, strong=(), tmps=("v61", "v62", "v63")):
        a = self.a; L = a.uid("Lpd"); E = a.uid("Lpde"); B = a.uid("Lpdb")
        t0, t1, t2 = tmps
        if active is not None: self.setexec(active)
        n = len(loads)
        def issue(ld, dst):
            (_, k, voff, soff, imm) = ld
            op = {1: "buffer_load_dword", 2: "buffer_load_dwordx2", 4: "buffer_load_dwordx4"}[k]
            r = f"v{dst}" if k == 1 else f"v[{dst}:{dst+k-1}]"
            if soff is not None and not str(soff).startswith("s"):
                a(f"s_mov_b32 {sT3}, {soff}"); so = sT3
            else: so = soff if soff is not None else "0"
            a(f"{op} {r}, {voff}, {srd(SRD_WS)}, {so} offen offset:{imm} sc1")
        def test(dsts):
            regs = []
            for li, (ld, d) in enumerate(zip(loads, dsts)):
                regs += [d + k for k in range(ld[1])] if li in strong else [d]
            a(f"v_xor_b32 {t0}, {vTAG}, v{regs[0]}")
            k = 1
            while k < len(regs):
                if k + 1 < len(regs):
                    a(f"v_xor_b32 {t1}, {vTAG}, v{regs[k]}"); a(f"v_xor_b32 {t2}, {vTAG}, v{regs[k+1]}"); a(f"v_or3_b32 {t0}, {t0}, {t1}, {t2}"); k += 2
                else:
                    a(f"v_xor_b32 {t1}, {vTAG}, v{regs[k]}"); a(f"v_or_b32 {t0}, {t0}, {t1}"); k += 1
            a(f"v_cmp_ne_u32_sdwa vcc, 0, {t0} src0_sel:DWORD src1_sel:BYTE_0")
        adst = [ld[0] for ld in loads]
        a(f"s_mov_b32 {sSPIN}, 0")
        a.label(L)
        for ld in loads: issue(ld, ld[0])
        a(f"s_sleep {gap}")
        for ld, d in zip(loads, bdst): issue(ld, d)
        a(f"s_waitcnt vmcnt({n})")
        test(adst)
        a(f"s_cbranch_vccz {E}")
        a("s_waitcnt vmcnt(0)")
        test(bdst)
        a(f"s_cbranch_vccz {B}")
        a(f"s_add_u32 {sSPIN}, {sSPIN}, 1"); a(f"s_cmp_lt_u32 {sSPIN}, {SPIN_MAX}"); a(f"s_cbranch_scc1 {L}")
        a.label(B)
        for ld, d in zip(loads, bdst):
            for k in range(ld[1]): a(f"v_mov_b32 v{ld[0]+k}, v{d+k}")
        a.label(E)

    def bf16_round(self, dst, src, tmp):
        self.a(f"v_cvt_pk_bf16_f32 {tmp}, {src}, {src}"); self.a(f"v_lshlrev_b32 {dst}, 16, {tmp}")
    def bf16_round2(self, d0, d1, s0, s1, tmp):
        a = self.a
        a(f"v_cvt_pk_bf16_f32 {tmp}, {s0}, {s1}"); a(f"v_lshlrev_b32 {d0}, 16, {tmp}"); a(f"v_and_b32 {d1}, {sFFFF0000}, {tmp}")
    def allreduce(self, op, v, t, steps):
        self.allreduceN(op, [(v, t)], steps)
    def allreduceN(self, op, vts, steps):
        a = self.a
        dpp = {"q1": "quad_perm:[1,0,3,2]", "q2": "quad_perm:[2,3,0,1]", "hm": "row_half_mirror", "r4": "row_ror:4", "r8": "row_ror:8"}
        for s in steps:
            if s in dpp:
                for (v, t) in vts: a(f"{op}_dpp {v}, {v}, {v} {dpp[s]} row_mask:0xf bank_mask:0xf")
            else:
                ins = "v_permlane16_swap_b32" if s == "p16" else "v_permlane32_swap_b32"
                for (v, t) in vts: a(f"v_mov_b32 {t}, {v}")
                for (v, t) in vts: a(f"{ins} {v}, {t}")
                for (v, t) in vts: a(f"{op} {v}, {v}, {t}")
    def pk_add(self, d, x, y): self.a(f"v_pk_add_f32 v[{d}:{d+1}], v[{x}:{x+1}], v[{y}:{y+1}]")
    def sum_rows4(self, bases):
        b = list(bases)
        while len(b) > 1:
            nb = []
            for i in range(0, len(b) - 1, 2):
                self.pk_add(b[i], b[i], b[i+1]); self.pk_add(b[i] + 2, b[i] + 2, b[i+1] + 2); nb.append(b[i])
            if len(b) % 2: nb.append(b[-1])
            b = nb
    def gemv(self, ntiles, abase, xx, D, bsets=(8, 12), waits=None):
        a = self.a
        def mkB(t):
            b = bsets[t & 1]
            for r in range(4): a(f"v_and_b32 v{b+r}, v{xx[t]}, v{vM[r]}")
        mkB(0)
        for t in range(ntiles):
            if t + 1 < ntiles: mkB(t + 1)
            if waits and t in waits: a(f"s_waitcnt vmcnt({waits[t]})")
            b = bsets[t & 1]
            c = "0" if t == 0 else f"v[{D}:{D+3}]"
            a(f"v_mfma_f32_16x16x32_bf16 v[{D}:{D+3}], a[{abase+4*t}:{abase+4*t+3}], v[{b}:{b+3}], {c}")
    def taddr_w(self, vaddr, vt, TS):
        a = self.a
        a(f"v_and_b32 {vt}, 1, {vLANE}"); a(f"v_mul_u32_u24 {vt}, {TS*16}, {vt}")
        a(f"v_lshrrev_b32 {vaddr}, 1, {vLANE}"); a(f"v_lshl_add_u32 {vaddr}, {vaddr}, 2, {vt}")
        a(f"s_mul_i32 {sT0}, {sHW}, {TBLW}"); a(f"s_add_u32 {sT0}, {sT0}, {L_TBL}")
        a(f"v_add_u32 {vaddr}, {sT0}, {vaddr}")
    def taddr_r(self, vaddr, TS):
        a = self.a
        a(f"v_lshrrev_b32 {vaddr}, 3, {vLANE}"); a(f"v_mul_u32_u24 {vaddr}, {TS*4}, {vaddr}")
        a(f"s_mul_i32 {sT0}, {sHW}, {TBLW}"); a(f"s_add_u32 {sT0}, {sT0}, {L_TBL}")
        a(f"v_add_u32 {vaddr}, {sT0}, {vaddr}")
    def twrite4(self, regs, vaddr, TS):
        for k in range(4): self.a(f"ds_write_b32 {vaddr}, v{regs[k]} offset:{k*TS*4}")
    def tread(self, first, nb128, vaddr):
        a = self.a
        for i in range(nb128): a(f"ds_read_b128 v[{first+4*i}:{first+4*i+3}], {vaddr} offset:{16*i}")
        a("s_waitcnt lgkmcnt(0)")
    VALID = 0xFF00FF0000FF00FF
    def paddr(self, vaddr, vt, base, rowlen):
        a = self.a
        a(f"v_lshrrev_b32 {vaddr}, 5, {vLANE}"); a(f"v_mul_u32_u24 {vaddr}, {rowlen*4}, {vaddr}")
        a(f"v_bfe_u32 {vt}, {vLANE}, 4, 1"); a(f"v_lshl_add_u32 {vaddr}, {vt}, 7, {vaddr}")
        a(f"v_and_b32 {vt}, 7, {vLANE}"); a(f"v_lshl_add_u32 {vaddr}, {vt}, 2, {vaddr}")
        a(f"s_mul_i32 {sT0}, {sHW}, {2*rowlen*4}"); a(f"s_add_u32 {sT0}, {sT0}, {base}")
        a(f"v_add_u32 {vaddr}, {sT0}, {vaddr}")
    def pwrite(self, D, vaddr, off=0):
        for r in range(4): self.a(f"ds_write_b32 {vaddr}, v{D+r} offset:{off + r*32}")
    def sigmoid(self, dst, v, t):
        a = self.a
        a(f"v_mul_f32 {t}, 0x{(LOG2E | 0x80000000):08x}, {v}"); a(f"v_exp_f32 {t}, {t}")
        a(f"v_add_f32 {t}, 1.0, {t}"); a(f"v_rcp_f32 {dst}, {t}")
    def unpack4(self, dst, src):
        a = self.a
        a(f"v_lshlrev_b32 v{dst}, 16, v{src}"); a(f"v_and_b32 v{dst+1}, {sFFFF0000}, v{src}")
        a(f"v_lshlrev_b32 v{dst+2}, 16, v{src+1}"); a(f"v_and_b32 v{dst+3}, {sFFFF0000}, v{src+1}")
    def round4(self, X, tmp):
        for k in (0, 2): self.bf16_round2(f"v{X+k}", f"v{X+k+1}", f"v{X+k}", f"v{X+k+1}", tmp)
    def set_srd(self, s, base, off=None, size=None, size_minus_off=None):
        a = self.a
        if off is None:
            a(f"s_mov_b32 s{s}, s{base}"); a(f"s_mov_b32 s{s+1}, s{base+1}")
        else:
            a(f"s_add_u32 s{s}, s{base}, {off}"); a(f"s_addc_u32 s{s+1}, s{base+1}, 0")
        if size_minus_off is not None: a(f"s_sub_u32 s{s+2}, {size_minus_off}, {off}")
        else: a(f"s_mov_b32 s{s+2}, {size}")
        a(f"s_mov_b32 s{s+3}, 0x20000")
    def div3(self, q, r, x):
        a = self.a
        a(f"s_mul_i32 {q}, {x}, 0x5556"); a(f"s_lshr_b32 {q}, {q}, 16")
        a(f"s_mul_i32 {r}, {q}, 3"); a(f"s_sub_u32 {r}, {x}, {r}")

    def prologue(self):
        a = self.a
        a("s_cmp_ge_u32 s2, 256"); a("s_cbranch_scc1 L_exit")
        self.stamp(0, "all")
        a("s_load_dwordx16 s[16:31], s[0:1], 0")
        a("s_load_dwordx8 s[32:39], s[0:1], 64")
        a("s_load_dwordx4 s[40:43], s[0:1], 96")
        a("v_lshrrev_b32 v1, 6, v0")
        a(f"v_and_b32 {vLANE}, 63, v0")
        a(f"v_readfirstlane_b32 {sWAVE}, v1")
        a(f"v_and_b32 v8, 1, {vLANE}"); a("v_cmp_eq_u32 vcc, 1, v8")
        a("v_mov_b32 v9, 0xffff"); a("v_mov_b32 v10, 0xffff0000")
        a("v_cndmask_b32 v9, v9, v10, vcc")
        a(f"v_bfe_u32 v8, {vLANE}, 1, 2")
        for r in range(4):
            a(f"v_cmp_eq_u32 vcc, {r}, v8"); a(f"v_cndmask_b32 v{vM[r]}, 0, v9, vcc")
        a(f"s_mov_b32 {sFFFF0000}, 0xffff0000"); a(f"s_mov_b32 {sFF}, 0xff")
        if self.p.MAPKV == 0: a("s_mov_b32 s100, s2")
        elif self.p.MAPKV == 1:
            a("s_and_b32 s100, s2, 31"); a("s_lshl_b32 s100, s100, 3"); a("s_lshr_b32 s101, s2, 5"); a("s_add_u32 s100, s100, s101")
        else:
            a("s_lshr_b32 s101, s2, 3"); a("s_xor_b32 s101, s101, s2"); a("s_and_b32 s101, s101, 7"); a("s_andn2_b32 s100, s2, 7"); a("s_or_b32 s100, s100, s101")
        a(f"s_lshl_b32 {sT0}, {sWAVE}, 10")
        a(f"v_lshrrev_b32 v8, 4, {vLANE}"); a("v_lshlrev_b32 v8, 6, v8")
        a(f"v_bfe_u32 v9, {vLANE}, 2, 2"); a("v_lshl_add_u32 v8, v9, 8, v8")
        a(f"v_and_b32 v9, 3, {vLANE}"); a("v_lshl_add_u32 v8, v9, 4, v8")
        a(f"v_add_u32 v1, {sT0}, v8")
        a(f"v_lshlrev_b32 v9, 4, {vLANE}"); a(f"v_add_u32 v2, {sT0}, v9")
        a(f"s_lshl_b32 {sT2}, s100, 18")
        a(f"s_cmp_ge_u32 {sWAVE}, 4")
        a("s_waitcnt lgkmcnt(0)")
        a("s_cbranch_scc1 L_helper")
    def common_setup(self):
        a = self.a
        a(f"s_load_dword {sTAG}, s[{sWS}:{sWS+1}], 0")
        self.set_srd(SRD_WS, sWS, size=WS_SIZE)
    def get_tag(self):
        a = self.a
        a("s_waitcnt lgkmcnt(0)")
        a(f"s_add_u32 {sTAG}, {sTAG}, 1")
        a(f"s_and_b32 {sT3}, {sTAG}, 0xff")
        a(f"v_mov_b32 {vTAG}, {sT3}")

    def swave(self):
        a = self.a; p = self.p
        R, D, NP = p.R, max(p.D, p.D2), p.NP
        Dlo = p.D
        vK, vV = "v1", "v2"
        B_T = 8; S = 24; DQ = (40, 44); DO = 48; T = 52
        vm, vl, vf = "v56", "v57", "v58"
        vOW, vPUB = "v64", "v65"
        self.set_srd(SRD_A, sK, off=sT2, size=0x40000)
        N = 128
        def slot(i):
            if p.KLDS:
                k = i if i < 64 else (i - 64) % 40
                return f"a[{4*k}:{4*k+3}]"
            k = i % R
            return f"a[{4*k}:{4*k+3}]" if k < 40 else f"v[{68+4*(k-40)}:{71+4*(k-40)}]"
        st = dict(issued=0)
        KL = p.KLDS
        RK = R if not KL else 40
        def issue(throttle=True):
            nonlocal D, Dlo
            i = st["issued"]
            if p.DEND and i >= 64 + p.DENDAT: D = Dlo = p.DEND
            if throttle and i >= Dlo and D != Dlo:
                L = a.uid("Lthr")
                a(f"s_cbranch_vccnz {L}"); a(f"s_waitcnt vmcnt({Dlo-1})"); a.label(L)
            if throttle and i >= D: a(f"s_waitcnt vmcnt({D-1})")
            a(f"s_mov_b32 {sT1}, {(i % 64) * 4096}")
            s_, v_ = (SRD_A, vK) if i < 64 else (SRD_B, vV)
            if KL and RK <= i < 64:
                a(f"s_add_u32 m0, s60, {(i - RK) * 1024}")
                a("s_nop 0")
                a(f"buffer_load_dwordx4 {v_}, {srd(s_)}, {sT1} offen {p.KVPOL} lds")
            else:
                a(f"buffer_load_dwordx4 {slot(i)}, {v_}, {srd(s_)}, {sT1} offen {p.KVPOL}")
            st["issued"] = i + 1
            if i == N - 1: self.lds_add1(L_WCNT, f"v{T}", f"v{T+1}")
            if (p.WOAT and i == 64 + p.WOAT) or (p.UAT and i == 64 + p.UAT): self.lds_add1(L_W2, f"v{T}", f"v{T+1}")
        def need(tile): a(f"s_waitcnt vmcnt({st['issued'] - 1 - tile})")
        if D != Dlo:
            a("s_mov_b64 vcc, 0"); a("s_cmp_lt_u32 s2, 72"); a("s_cbranch_scc1 L_vset"); a("s_cmp_ge_u32 s2, 216"); a("s_cbranch_scc1 L_vset")
            a("s_mov_b64 vcc, -1"); a.label("L_vset")
        self.stamp(3, "start")
        for _ in range(min(Dlo, NP)): issue(False)
        if p.SPRIO: a(f"s_setprio {p.SPRIO}")
        self.set_srd(SRD_B, sV, off=sT2, size=0x40000)
        self.common_setup()
        self.stamp(4, "start")
        a("s_barrier")
        self.stamp(5, "start")
        if p.STAMPS and p.MODE == "start":
            a(f"s_waitcnt vmcnt({D-1})"); self.stamp(6, "start")
        a(f"v_lshrrev_b32 v8, 4, {vLANE}"); a("v_lshlrev_b32 v8, 7, v8")
        a(f"v_and_b32 v9, 7, {vLANE}"); a("v_lshl_add_u32 v8, v9, 2, v8")
        a(f"s_lshl_b32 {sT0}, {sWAVE}, 9"); a(f"s_add_u32 {sT0}, {sT0}, {L_OPART}")
        a(f"v_add_u32 {vOW}, {sT0}, v8")
        a(f"v_lshlrev_b32 {vPUB}, 4, {vLANE}")
        if p.KLDS:
            a(f"s_mul_i32 s60, {sWAVE}, {24*1024}"); a(f"s_add_u32 s60, s60, {L_KRING}")
            a(f"v_lshlrev_b32 v66, 4, {vLANE}"); a("v_add_u32 v66, s60, v66")
        mT = [6, 8, 10, 12]; m1, m3, m23 = 14, 4, 62
        for t in range(4): self.mask64(mT[t], 0x000F000F000F000F << (4 * t))
        self.mask64(m1, 0x2222222222222222); self.mask64(m3, 0x8888888888888888); self.mask64(m23, 0xCCCCCCCCCCCCCCCC)
        while st["issued"] < (64 if p.KLDS else NP): issue()
        self.stamp(1, "all")
        self.get_tag()
        self.lds_spin(L_QFLAG)
        self.stamp(2, "all")
        a(f"v_lshrrev_b32 v{T}, 4, {vLANE}"); a(f"v_lshlrev_b32 v{T}, 6, v{T}")
        a(f"v_and_b32 v{T+1}, 3, {vLANE}"); a(f"v_lshl_add_u32 v{T}, v{T+1}, 4, v{T}")
        a(f"ds_read_b128 v[{T+4}:{T+7}], v{T} offset:{L_Q}")
        a("s_waitcnt lgkmcnt(0)")
        for t in range(4):
            for k in range(4): a(f"v_cndmask_b32 v{B_T+4*t+k}, 0, v{T+4+k}, {sp(mT[t])}")
        STG = (68, 84)
        def stage(g):
            b = 68
            for t in range(4):
                a(f"ds_read_b128 v[{b+4*t}:{b+4*t+3}], v66 offset:{(4*g+t-RK)*1024}")
        def qk_mfma(g):
            d = DQ[g & 1]
            lds = KL and 4 * g >= RK
            if lds: a("s_waitcnt lgkmcnt(0)")
            else: need(4 * g + 3)
            for t in range(4):
                c = "0" if t == 0 else f"v[{d}:{d+3}]"
                b = 68
                src = f"v[{b+4*t}:{b+4*t+3}]" if lds else slot(4*g+t)
                a(f"v_mfma_f32_16x16x32_bf16 v[{d}:{d+3}], {src}, v[{B_T+4*t}:{B_T+4*t+3}], {c}")
        def qk_post(g):
            d = DQ[g & 1]
            a(f"v_cndmask_b32 v{T}, v{d}, v{d+1}, {sp(m1)}")
            a(f"v_cndmask_b32 v{T+1}, v{d+2}, v{d+3}, {sp(m3)}")
            a(f"v_cndmask_b32 v{T}, v{T}, v{T+1}, {sp(m23)}")
            a(f"v_add_f32_dpp v{T+1}, v{T}, v{T} quad_perm:[1,0,3,2] row_mask:0xf bank_mask:0xf")
            a(f"v_add_f32_dpp v{S+g}, v{T+1}, v{T+1} quad_perm:[2,3,0,1] row_mask:0xf bank_mask:0xf")
        g = 0
        if KL:
            while g < 16:
                if 4 * (g + 1) >= RK and g + 1 < 16 and False: pass
                if 4 * g >= RK:
                    need(4 * g + 3); stage(g)
                qk_mfma(g)
                if g > 0: qk_post(g - 1)
                g += 1
                free = min(4 * g, RK) - (st["issued"] - 64)
                nissue = 2 if g <= 3 else 1
                for _ in range(max(0, min(nissue, free))):
                    if st["issued"] < N: issue()
        else:
            while g < 16:
                lag = st["issued"] - 4 * g
                qk_mfma(g)
                if g > 0: qk_post(g - 1)
                g += 1
                free = 4 * g + R - st["issued"]
                nissue = (1 if (g % 3 == 0) else 0) if lag > D + 8 else 4
                for _ in range(min(nissue, free)):
                    if st["issued"] < N: issue()
        qk_post(15)
        self.stamp(3, "tail")
        for _ in range(3): issue(False)
        a(f"s_mov_b32 {sT0}, 0x{SCALE:08x}")
        for k in range(0, 16, 2):
            x, y = f"v{S+k}", f"v{S+k+1}"; t = f"v{T + (k // 2) % 4}"
            a(f"v_cvt_pk_bf16_f32 {t}, {x}, {y}")
            a(f"v_lshlrev_b32 {x}, 16, {t}"); a(f"v_and_b32 {y}, {sFFFF0000}, {t}")
            a(f"v_mul_f32 {x}, {sT0}, {x}"); a(f"v_mul_f32 {y}, {sT0}, {y}")
            a(f"v_cvt_pk_bf16_f32 {t}, {x}, {y}")
            a(f"v_lshlrev_b32 {x}, 16, {t}"); a(f"v_and_b32 {y}, {sFFFF0000}, {t}")
        a(f"v_max3_f32 {vm}, v{S}, v{S+1}, v{S+2}")
        for k in range(3, 15, 2): a(f"v_max3_f32 {vm}, {vm}, v{S+k}, v{S+k+1}")
        a(f"v_max_f32 {vm}, {vm}, v{S+15}")
        self.allreduce("v_max_f32", vm, f"v{T}", ["r4", "r8", "p16", "p32"])
        a(f"s_mov_b32 {sT0}, 0x{LOG2E:08x}")
        a(f"v_mul_f32 v{T+3}, {sT0}, {vm}")
        for k in range(16): a(f"v_fma_f32 v{S+k}, v{S+k}, {sT0}, -v{T+3}")
        for k in range(16): a(f"v_exp_f32 v{S+k}, v{S+k}")
        a(f"v_add_f32 {vl}, v{S}, v{S+1}")
        for k in range(2, 16): a(f"v_add_f32 {vl}, {vl}, v{S+k}")
        for k in range(16): a(f"v_cvt_pk_bf16_f32 v{S+k}, v{S+k}, v{S+k}")
        self.allreduce("v_add_f32", vl, f"v{T}", ["r4", "r8", "p16", "p32"])
        a("s_mov_b64 exec, 1")
        a(f"s_lshl_b32 {sT0}, {sWAVE}, 3"); a(f"s_add_u32 {sT0}, {sT0}, {L_ML}")
        a(f"v_mov_b32 v{T}, {sT0}"); a(f"ds_write_b64 v{T}, v[56:57]")
        a(f"v_mov_b32 v{T}, {L_MLCNT}"); a(f"v_mov_b32 v{T+1}, 1"); a(f"ds_add_u32 v{T}, v{T+1}")
        a("s_mov_b64 exec, -1")
        self.stamp(4, "tail")
        BV = (8, 12)
        def mkB(vi):
            g_, t_ = vi >> 2, vi & 3; b = BV[vi & 1]
            for r in range(4): a(f"v_and_b32_dpp v{b+r}, v{S+g_}, v{vM[r]} row_newbcast:{4*t_} row_mask:0xf bank_mask:0xf")
        def ml_exchange():
            self.lds_spin(L_MLCNT, target=4)
            a(f"v_mov_b32 v16, {L_ML}")
            a("ds_read_b128 v[20:23], v16"); a("ds_read_b128 v[40:43], v16 offset:16")
            a("s_waitcnt lgkmcnt(0)")
            a("v_max3_f32 v16, v20, v22, v40"); a("v_max_f32 v16, v16, v42")
            a(f"s_mov_b32 {sT0}, 0x{LOG2E:08x}")
            a(f"v_sub_f32 {vf}, {vm}, v16"); a(f"v_mul_f32 {vf}, {sT0}, {vf}"); a(f"v_exp_f32 {vf}, {vf}")
            L = a.uid("Lnoml")
            a(f"s_cmp_lg_u32 {sWAVE}, 0"); a(f"s_cbranch_scc1 {L}")
            for i, r in enumerate((20, 22, 40, 42)):
                a(f"v_sub_f32 v{r}, v{r}, v16"); a(f"v_mul_f32 v{r}, {sT0}, v{r}"); a(f"v_exp_f32 v{r}, v{r}")
            a("v_mul_f32 v17, v20, v21"); a("v_fmac_f32 v17, v22, v23"); a("v_fmac_f32 v17, v40, v41"); a("v_fmac_f32 v17, v42, v43")
            a("v_mov_b32 v18, 0"); a("v_mov_b32 v19, 0")
            for c in range(4): a(f"v_bfi_b32 v{16+c}, {sFF}, {vTAG}, v{16+c}")
            a(f"s_mul_i32 {sT0}, s100, {OSLOT}"); a(f"s_add_u32 {sT0}, {sT0}, {WS_O + 512}")
            a("s_mov_b64 exec, 1")
            a(f"buffer_store_dwordx4 v[16:19], off, {srd(SRD_WS)}, {sT0} sc1")
            a("s_mov_b64 exec, -1")
            st["extra_wave0"] = True
            a.label(L)
        mkB(0)
        for vi in range(64):
            if vi + 1 < 64: mkB(vi + 1)
            tile = 64 + vi
            while st["issued"] < N and st["issued"] - tile < (p.DEND if (p.DEND and st["issued"] >= 64 + p.DENDAT) else D) + 1: issue()
            need(tile)
            b = BV[vi & 1]
            c = "0" if vi == 0 else f"v[{DO}:{DO+3}]"
            a(f"v_mfma_f32_16x16x32_bf16 v[{DO}:{DO+3}], {slot(tile)}, v[{b}:{b+3}], {c}")
            if vi == p.MLAT:
                ml_exchange()
            if p.GSYNC and vi == p.GSYNC:
                self.lds_spin(L_GRP, target=1, sleep=2)
        self.stamp(5, "tail")
        for r in range(4): a(f"v_mul_f32 v{DO+r}, {vf}, v{DO+r}")
        self.setexec(0x00FF00FF00FF00FF)
        for r in range(4): a(f"ds_write_b32 {vOW}, v{DO+r} offset:{32*r}")
        a("s_mov_b64 exec, 1")
        a(f"v_mov_b32 v8, {L_OCNT}"); a("v_mov_b32 v9, 1"); a("ds_add_rtn_u32 v9, v8, v9")
        a(f"s_mul_i32 {sT0}, s100, {OSLOT}"); a(f"s_add_u32 {sT0}, {sT0}, {WS_O}")
        a("s_waitcnt lgkmcnt(0)")
        a(f"v_readfirstlane_b32 {sT1}, v9")
        a(f"s_cmp_lg_u32 {sT1}, 3"); a("s_cbranch_scc1 L_sdone")
        self.setexec(lanes(32))
        for w in range(4): a(f"ds_read_b128 v[{12+4*w}:{15+4*w}], {vPUB} offset:{L_OPART + 512*w}")
        a("s_waitcnt lgkmcnt(0)")
        self.sum_rows4([12, 16, 20, 24])
        for c in range(4): a(f"v_bfi_b32 v{12+c}, {sFF}, {vTAG}, v{12+c}")
        a(f"buffer_store_dwordx4 v[12:15], {vPUB}, {srd(SRD_WS)}, {sT0} offen sc1")
        self.stamp(6, "tail")
        a.label("L_sdone")
        self.dump_stamps()
        a("s_endpgm")

    def unit_loads(self, stride_s, tau_s):
        a = self.a
        a(f"s_mul_i32 {sT0}, {tau_s}, 192")
        a(f"v_lshrrev_b32 v1, 3, {vLANE}"); a(f"v_add_u32 v1, {sT0}, v1")
        a(f"v_mul_lo_u32 v1, v1, {stride_s}")
        a(f"v_and_b32 v2, 7, {vLANE}"); a("v_lshl_add_u32 v1, v2, 4, v1")
        a(f"s_lshl_b32 {sT1}, {stride_s}, 3"); a(f"s_mov_b32 {sT0}, 0")
        for t in range(24):
            if self.p.UNITPACE and t >= self.p.UNITPACE: a(f"s_waitcnt vmcnt({self.p.UNITPACE-1})")
            a(f"buffer_load_dwordx4 a[{4*t}:{4*t+3}], v1, {srd(SRD_A)}, {sT0} offen nt")
            if t < 23: a(f"s_add_u32 {sT0}, {sT0}, {sT1}")

    def hwave(self):
        a = self.a; p = self.p
        a.label("L_helper")
        self.common_setup()
        for q in (SRD_A, SRD_B, SRD_C): self.set_srd(q, sWS, size=0)
        a(f"s_setprio {p.HPRIO0}")
        a(f"s_sub_u32 {sHW}, {sWAVE}, 4")
        a("s_mov_b32 s71, 0")
        a(f"s_cmp_lg_u32 {sHW}, 2"); a("s_cbranch_scc1 L_noinit")
        a(f"v_lshlrev_b32 v8, 2, {vLANE}"); a("v_mov_b32 v9, 0")
        self.setexec(0xFFFF); a("ds_write_b32 v8, v9"); a("s_mov_b64 exec, -1"); a("s_waitcnt lgkmcnt(0)")
        a.label("L_noinit")
        a("s_barrier")
        if p.PRETOUCH:
            a(f"s_cmp_lg_u32 {sHW}, 2"); a("s_cbranch_scc1 L_notouch")
            a(f"v_lshlrev_b32 v8, 21, {vLANE}")
            a(f"v_lshlrev_b32 v9, 16, {vLANE}")
            self.setexec(0xF)
            a(f"s_lshl_b32 {sT0}, s100, 18"); self.set_srd(SRD_A, sV, off=sT0, size=0x40000)
            a(f"buffer_load_dword v10, v9, {srd(SRD_A)}, 0 offen nt")
            for k, (ptr, sz) in enumerate(((sWO, 4096 * 1152), (sWG, 576 * 9216), (sWU, 576 * 9216), (sWD, 4608 * 1152))):
                self.set_srd(SRD_A, ptr, size=sz)
                a(f"buffer_load_dword v{11+k}, v8, {srd(SRD_A)}, 0 offen nt")
            a("s_mov_b64 exec, -1")
            self.set_srd(SRD_A, sWS, size=0)
            a.label("L_notouch")
        if p.HDELAY: a(f"s_sleep {p.HDELAY}")
        for r in list(range(40, 60)) + list(range(80, 90)): a(f"v_mov_b32 v{r}, 0")
        if p.WOEARLY and not p.WOLATE:
            a("s_cmp_ge_u32 s2, 72"); a("s_cbranch_scc1 L_nowoearly")
            if not p.MAP2: a(f"s_cmp_eq_u32 {sHW}, 0"); a("s_cbranch_scc1 L_nowoearly")
            a(f"s_and_b32 {sT0}, s2, 7"); a(f"s_lshr_b32 {sT1}, s2, 3"); a(f"s_lshl_b32 {sT2}, {sT1}, 7")
            self.set_srd(SRD_C, sWO, off=sT2, size_minus_off=4096 * 1152)
            a(f"s_lshl_b32 {sT0}, {sT0}, 2"); a(f"s_add_u32 {sT0}, {sT0}, {sHW}"); a(f"s_lshl_b32 {sT0}, {sT0}, 7")
            a(f"v_lshrrev_b32 v1, 3, {vLANE}"); a(f"v_add_u32 v1, {sT0}, v1"); a("v_mul_u32_u24 v1, 1152, v1")
            a(f"v_and_b32 v2, 7, {vLANE}"); a("v_lshl_add_u32 v1, v2, 4, v1")
            a("s_setprio 0")
            a(f"s_mov_b32 {sT0}, 0")
            for t in range(16):
                a(f"buffer_load_dwordx4 a[{96+4*t}:{99+4*t}], v1, {srd(SRD_C)}, {sT0} offen nt")
                if t < 15: a(f"s_add_u32 {sT0}, {sT0}, 9216")
            a(f"s_setprio {p.HPRIO0}")
            a.label("L_nowoearly")
        a(f"s_cmp_eq_u32 {sHW}, 0"); a("s_cbranch_scc1 L_h0")
        a(f"s_cmp_eq_u32 {sHW}, 1"); a("s_cbranch_scc1 L_h1")
        a("s_branch L_nounit")
        a.label("L_h0")
        if p.MAP2:
            a("s_cmp_lt_u32 s2, 72"); a("s_cbranch_scc1 L_nounit")
            a("s_sub_u32 s62, s2, 72"); a("s_branch L_qunit")
            a.label("L_h1")
            a("s_cmp_lt_u32 s2, 72"); a("s_cbranch_scc1 L_nounit")
            a("s_cmp_ge_u32 s2, 242"); a("s_cbranch_scc1 L_nounit")
            a("s_add_u32 s62, s2, 112"); a("s_cmp_lt_u32 s2, 80"); a("s_cbranch_scc1 L_qunit")
            a(f"s_sub_u32 {sT2}, s2, 80"); self.div3(sR0, sR1, sT2)
        else:
            a("s_mov_b32 s62, s2")
            a("s_cmp_lt_u32 s2, 192"); a("s_cbranch_scc1 L_qunit")
            a("s_cmp_ge_u32 s2, 246"); a("s_cbranch_scc1 L_nounit")
            a(f"s_sub_u32 {sT2}, s2, 192"); self.div3(sR0, sR1, sT2)
            a("s_branch L_munit")
            a.label("L_h1")
            if p.MAP3:
                a(f"s_mov_b32 {sT2}, s2"); a("s_cmp_lt_u32 s2, 72"); a("s_cbranch_scc1 L_m3")
                a("s_cmp_lt_u32 s2, 180"); a("s_cbranch_scc1 L_nounit")
                a("s_cmp_ge_u32 s2, 216"); a("s_cbranch_scc1 L_nounit")
                a(f"s_sub_u32 {sT2}, s2, 108")
                a.label("L_m3")
                self.div3(sR0, sR1, sT2); a(f"s_add_u32 {sR0}, {sR0}, 18")
            else:
                a("s_cmp_lt_u32 s2, 72"); a("s_cbranch_scc1 L_nounit")
                a("s_cmp_ge_u32 s2, 180"); a("s_cbranch_scc1 L_nounit")
                a(f"s_sub_u32 {sT2}, s2, 72"); self.div3(sR0, sR1, sT2); a(f"s_add_u32 {sR0}, {sR0}, 18")
        if p.LATEMOD:
            self.lds_spin(L_QFLAG, target=1, sleep=8)
            a("s_setprio 0")
            a("s_mov_b32 s71, 1")
        a.label("L_munit")
        a(f"s_lshl_b32 {sT2}, {sR0}, 7")
        self.set_srd(SRD_A, sWM, off=sT2, size_minus_off=576 * 6912)
        self.set_srd(SRD_B, sC, size=1152)
        a(f"s_mul_i32 {sT0}, {sR1}, 384"); a(f"v_lshlrev_b32 v8, 3, {vLANE}")
        a(f"buffer_load_dwordx2 v[40:41], v8, {srd(SRD_B)}, {sT0} offen")
        a(f"s_mov_b32 {sR2}, 6912")
        self.unit_loads(sR2, sR1)
        self.get_tag()
        self.stamp(1, "pre")
        a(f"s_mul_i32 {sR2}, {sR0}, 3"); a(f"s_add_u32 {sR2}, {sR2}, {sR1}"); a(f"s_lshl_b32 {sR2}, {sR2}, 8"); a(f"s_add_u32 {sR2}, {sR2}, {WS_MOD}")
        self.taddr_w("v2", "v8", 24)
        a("s_waitcnt vmcnt(24)")
        self.unpack4(44, 40)
        for k in range(4): self.sigmoid(f"v{48+k}", f"v{44+k}", f"v{48+k}")
        for k in range(4): a(f"v_mul_f32 v{44+k}, v{44+k}, v{48+k}")
        for k in range(4): a(f"v_cvt_pk_bf16_f32 v{44+k}, v{44+k}, v{44+k}")
        self.setexec(lanes(48)); self.twrite4([44, 45, 46, 47], "v2", 24); a("s_mov_b64 exec, -1")
        self.stamp(2, "pre")
        a("s_branch L_unit_gemv")
        a.label("L_qunit")
        self.div3(sR0, sR1, "s62")
        a(f"s_lshl_b32 {sT2}, {sR0}, 7")
        self.set_srd(SRD_A, sWQ, off=sT2, size_minus_off=576 * 8192)
        self.set_srd(SRD_B, sX, size=1152)
        a(f"v_lshrrev_b32 v8, 3, {vLANE}"); a("v_lshlrev_b32 v8, 5, v8"); a(f"v_and_b32 v9, 7, {vLANE}"); a("v_add_u32 v8, v8, v9"); a("v_lshlrev_b32 v8, 1, v8")
        a(f"s_mul_i32 {sT0}, {sR1}, 384")
        for r in range(4): a(f"buffer_load_ushort v{44+r}, v8, {srd(SRD_B)}, {sT0} offen offset:{16*r}")
        a(f"v_lshlrev_b32 v9, 5, {vLANE}")
        a(f"buffer_load_dwordx4 v[16:19], v9, {srd(SRD_B)}, 0 offen")
        a(f"buffer_load_dwordx4 v[20:23], v9, {srd(SRD_B)}, 0 offen offset:16")
        a(f"s_mov_b32 {sR2}, 8192")
        self.unit_loads(sR2, sR1)
        self.get_tag()
        a(f"s_mul_i32 {sR2}, {sR0}, 3"); a(f"s_add_u32 {sR2}, {sR2}, {sR1}"); a(f"s_lshl_b32 {sR2}, {sR2}, 8"); a(f"s_add_u32 {sR2}, {sR2}, {WS_Q}")
        a(f"s_mul_i32 {sT0}, {sR1}, 6"); a(f"v_lshrrev_b32 v8, 3, {vLANE}"); a(f"v_add_u32 v8, {sT0}, v8")
        a("v_lshrrev_b32 v9, 1, v8"); a("v_mul_u32_u24 v9, 768, v9")
        a("v_and_b32 v8, 1, v8"); a("v_lshl_add_u32 v9, v8, 7, v9")
        a(f"v_and_b32 v8, 7, {vLANE}"); a("v_lshl_add_u32 v50, v8, 4, v9")
        a(f"v_mul_u32_u24 v51, 96, v8"); a(f"v_lshrrev_b32 v9, 3, {vLANE}"); a("v_lshl_add_u32 v51, v9, 4, v51")
        a(f"s_mul_i32 {sT0}, {sHW}, {TBLW}"); a(f"s_add_u32 {sT0}, {sT0}, {L_TBL}"); a(f"v_add_u32 v51, {sT0}, v51")
        a("s_waitcnt vmcnt(24)")
        for r in range(4): a(f"v_lshlrev_b32 v{44+r}, 16, v{44+r}")
        for i in range(8):
            a(f"v_lshlrev_b32 v{24+2*i}, 16, v{16+i}"); a(f"v_and_b32 v{25+2*i}, {sFFFF0000}, v{16+i}")
        a("v_add_f32 v48, v24, v25")
        for i in range(2, 16): a(f"v_add_f32 v48, v48, v{24+i}")
        self.allreduce("v_add_f32", "v48", "v49", ["q1", "q2", "r4", "r8", "p16", "p32"])
        a(f"v_mul_f32 v48, {f32hex(1/576)}, v48")
        for i in range(16): a(f"v_sub_f32 v{24+i}, v{24+i}, v48")
        a("v_mul_f32 v49, v24, v24")
        for i in range(1, 16): a(f"v_fmac_f32 v49, v{24+i}, v{24+i}")
        a(f"v_cmp_gt_u32 vcc, 36, {vLANE}"); a("v_cndmask_b32 v49, 0, v49, vcc")
        self.allreduce("v_add_f32", "v49", "v52", ["q1", "q2", "r4", "r8", "p16", "p32"])
        a(f"v_mul_f32 v49, {f32hex(1/576)}, v49")
        self.bf16_round2("v48", "v49", "v48", "v49", "v52")
        a(f"v_add_f32 v49, {f32hex(1e-5)}, v49"); self.bf16_round("v49", "v49", "v52")
        a("v_sqrt_f32 v49, v49"); self.bf16_round("v49", "v49", "v52"); a("v_rcp_f32 v49, v49")
        for k in range(4): a(f"v_sub_f32 v{44+k}, v{44+k}, v48")
        self.round4(44, "v52")
        for k in range(4): a(f"v_mul_f32 v{44+k}, v{44+k}, v49")
        self.round4(44, "v52")
        self.stamp(1, "pre")
        self.poll([(8 + 4 * t, 4, "v50", WS_MOD, 256 * t) for t in range(3)] + [(20 + 4 * t, 4, "v50", WS_MOD + 9 * 768, 256 * t) for t in range(3)],
                  active=lanes(48), sleep=p.SL_A, presleep=p.PS_A)
        self.stamp(2, "pre")
        self.sum_rows4([8, 12, 16]); self.sum_rows4([20, 24, 28])
        self.round4(8, "v52"); self.round4(20, "v53")
        for k in range(4): a(f"v_add_f32 v{20+k}, 1.0, v{20+k}")
        self.round4(20, "v52")
        for k in range(4): a(f"v_mul_f32 v{44+k}, v{44+k}, v{20+k}")
        self.round4(44, "v52")
        for k in range(4): a(f"v_add_f32 v{44+k}, v{44+k}, v{8+k}")
        for k in range(4): a(f"v_cvt_pk_bf16_f32 v{44+k}, v{44+k}, v{44+k}")
        a("ds_write_b128 v51, v[44:47]")
        a("s_mov_b64 exec, -1")
        a.label("L_unit_gemv")
        self.taddr_r("v2", 24)
        self.tread(16, 6, "v2")
        self.gemv(24, 0, list(range(16, 40)), 40, waits={0: 20, 4: 16, 8: 12, 12: 8, 16: 4, 20: 0})
        self.stamp(3, "pre")
        a(f"v_lshrrev_b32 v2, 4, {vLANE}"); a("v_lshlrev_b32 v2, 7, v2"); a(f"v_and_b32 v8, 7, {vLANE}"); a("v_lshl_add_u32 v2, v8, 4, v2")
        for r in range(4): a(f"v_mov_b32 v{44+r}, v{40+r}")
        for r in range(4): a(f"v_permlane32_swap_b32 v{40+r}, v{44+r}")
        for r in range(4): a(f"v_add_f32_dpp v{40+r}, v{44+r}, v{40+r} row_ror:8 row_mask:0xf bank_mask:0xf")
        for r in range(4): a(f"v_bfi_b32 v{40+r}, {sFF}, {vTAG}, v{40+r}")
        self.setexec(0x00FF00FF)
        a(f"buffer_store_dwordx4 v[40:43], v2, {srd(SRD_WS)}, {sR2} offen sc1")
        a("s_mov_b64 exec, -1")
        if p.STAMPS and p.MODE == "pre":
            a("s_waitcnt vmcnt(0)")
        self.stamp(7, "pre")
        a("s_branch L_pre_done")
        a.label("L_nounit")
        self.get_tag()
        a.label("L_pre_done")
        a(f"s_cmp_lg_u32 {sHW}, 3"); a("s_cbranch_scc1 L_noq")
        a(f"s_lshr_b32 {sT0}, s100, 3"); a(f"s_mul_i32 {sT0}, {sT0}, {2*768}"); a(f"s_add_u32 {sR0}, {sT0}, {WS_Q}")
        a(f"v_lshrrev_b32 v8, 4, {vLANE}"); a("v_mul_u32_u24 v2, 768, v8"); a(f"v_and_b32 v9, 15, {vLANE}"); a("v_lshl_add_u32 v2, v9, 4, v2")
        a("v_lshlrev_b32 v8, 6, v8"); a(f"v_bfe_u32 v9, {vLANE}, 3, 1"); a("v_lshl_add_u32 v8, v9, 5, v8")
        a(f"v_and_b32 v9, 7, {vLANE}"); a("v_add_u32 v8, v8, v9"); a("v_lshlrev_b32 v24, 1, v8")
        if p.PS_QG > 127: a("s_sleep 127")
        self.poll([(8 + 4 * t, 4, "v2", sR0, 256 * t) for t in range(3)], active=lanes(32), sleep=p.QSLEEP, presleep=(p.PS_QG - 127 if p.PS_QG > 127 else p.PS_QG))
        self.sum_rows4([8, 12, 16])
        a("v_cvt_pk_bf16_f32 v12, v8, v9"); a("v_cvt_pk_bf16_f32 v13, v10, v11")
        a(f"ds_write_b16 v24, v12 offset:{L_Q}"); a(f"ds_write_b16_d16_hi v24, v12 offset:{L_Q + 16}")
        a(f"ds_write_b16 v24, v13 offset:{L_Q + 32}"); a(f"ds_write_b16_d16_hi v24, v13 offset:{L_Q + 48}")
        a("s_waitcnt lgkmcnt(0)")
        a("s_mov_b64 exec, 1")
        a(f"v_mov_b32 v8, {L_QFLAG}"); a("v_mov_b32 v9, 1"); a("ds_write_b32 v8, v9")
        a("s_mov_b64 exec, -1")
        if p.MODE != "fine": self.stamp(4, "all")
        a.label("L_noq")
        if p.NOTAIL:
            self.dump_stamps(); a("s_endpgm")
        elif p.DYN: self.tail_dyn()
        else: self.tail()

    def piece_off(self, dst, gam_v, tmp):
        a = self.a
        a(f"v_lshrrev_b32 {tmp}, 1, {gam_v}"); a(f"v_mul_u32_u24 {tmp}, 768, {tmp}")
        a(f"v_and_b32 {dst}, 1, {gam_v}"); a(f"v_lshl_add_u32 {tmp}, {dst}, 7, {tmp}")
        a(f"v_and_b32 {dst}, 7, {vLANE}"); a(f"v_lshl_add_u32 {dst}, {dst}, 4, {tmp}")
    def gather_mod(self, vecs, voff, dsts, active, tmp0=8, sleep=16):
        a = self.a
        loads = []
        for i, v in enumerate(vecs):
            for t in range(3): loads.append((tmp0 + 12 * i + 4 * t, 4, voff, WS_MOD + 9 * v * 768, 256 * t))
        self.poll(loads, active=active, sleep=sleep)
        for i, v in enumerate(vecs):
            b = tmp0 + 12 * i
            self.sum_rows4([b, b + 4, b + 8]); self.round4(b, "v61")
            for r in range(4): a(f"v_mov_b32 v{dsts[i]+r}, v{b+r}")
    def half_add(self, D, T):
        a = self.a
        for r in range(4): a(f"v_mov_b32 v{T+r}, v{D+r}")
        for r in range(4): a(f"v_permlane32_swap_b32 v{D+r}, v{T+r}")
        for r in range(4): a(f"v_add_f32_dpp v{D+r}, v{T+r}, v{D+r} row_ror:8 row_mask:0xf bank_mask:0xf")
    def dpiece_addr(self, vaddr, vt, base, rowbytes):
        a = self.a
        a(f"v_lshrrev_b32 {vaddr}, 5, {vLANE}"); a(f"v_mul_u32_u24 {vaddr}, {rowbytes}, {vaddr}")
        a(f"v_bfe_u32 {vt}, {vLANE}, 4, 1"); a(f"v_lshl_add_u32 {vaddr}, {vt}, 7, {vaddr}")
        a(f"v_and_b32 {vt}, 7, {vLANE}"); a(f"v_lshl_add_u32 {vaddr}, {vt}, 4, {vaddr}")
        a(f"s_mul_i32 {sT0}, {sHW}, {2*rowbytes}"); a(f"s_add_u32 {sT0}, {sT0}, {base}")
        a(f"v_add_u32 {vaddr}, {sT0}, {vaddr}")

    def tail(self):
        a = self.a; p = self.p
        L24 = lanes(24)
        UX, UGA, UC1, USB = 64, 68, 72, 76
        vUT, vUR, vUP, vUA = "v80", "v81", "v82", "v83"
        FX, FGA, FGB = 84, 88, 92
        MS = 72 * 6 * 256
        a.label("L_tail")
        a("s_setprio 0")
        self.lds_spin(L_QFLAG, target=1, sleep=8)
        self.group_watch()
        a("s_cmp_lt_u32 s2, 72"); a("s_cbranch_scc1 L_wo")
        a("s_cmp_ge_u32 s2, 252"); a("s_cbranch_scc1 L_hexit")
        a("s_cmp_ge_u32 s2, 216"); a("s_cbranch_scc1 L_dbl")
        a(f"s_sub_u32 {sT2}, s2, 72"); self.div3("s6", "s7", sT2)
        if p.REPAIR:
            a("s_cmp_ge_u32 s6, 24"); a("s_cbranch_scc1 L_hi24")
            a(f"s_lshr_b32 {sT0}, s6, 2"); a(f"s_lshl_b32 {sT0}, {sT0}, 3"); a(f"s_and_b32 {sT1}, s6, 1"); a(f"s_add_u32 {sT0}, {sT0}, {sT1}")
            a(f"s_and_b32 {sT1}, s6, 2"); a(f"s_lshl_b32 {sT1}, {sT1}, 1"); a(f"s_add_u32 {sT0}, {sT0}, {sT1}"); a(f"s_add_u32 s6, {sT0}, 2")
            a("s_branch L_uprep")
            a.label("L_hi24")
            a("s_add_u32 s6, s6, 24")
        a("s_branch L_uprep")
        a.label("L_dbl")
        a(f"s_sub_u32 {sT2}, s2, 216"); self.div3("s6", "s7", sT2)
        if p.REPAIR:
            a(f"s_lshr_b32 {sT0}, s6, 1"); a(f"s_lshl_b32 {sT0}, {sT0}, 3"); a("s_and_b32 s6, s6, 1"); a("s_lshl_b32 s6, s6, 2"); a(f"s_add_u32 s6, s6, {sT0}")
        else:
            a("s_lshl_b32 s6, s6, 1"); a("s_add_u32 s6, s6, 48")
        a.label("L_uprep")
        a(f"s_lshr_b32 {sT0}, {sHW}, 1"); a("s_lshl_b32 s7, s7, 1"); a(f"s_add_u32 s7, s7, {sT0}")
        a(f"s_and_b32 s8, {sHW}, 1")
        a("s_mul_i32 s9, s7, 3")
        a(f"v_lshrrev_b32 v8, 3, {vLANE}"); a("v_add_u32 v8, s9, v8")
        self.piece_off("v2", "v8", "v9")
        a(f"v_lshlrev_b32 {vUA}, 7, v8"); a(f"v_and_b32 v9, 7, {vLANE}"); a(f"v_lshl_add_u32 {vUA}, v9, 4, {vUA}"); a(f"v_add_u32 {vUA}, {WS_ATT}, {vUA}")
        self.set_srd(SRD_B, sX, size=1152)
        a("v_lshlrev_b32 v8, 5, v8"); a("v_add_u32 v8, v8, v9"); a("v_lshlrev_b32 v8, 1, v8")
        for r in range(4): a(f"buffer_load_ushort v{UX+r}, v8, {srd(SRD_B)}, 0 offen offset:{16*r}")
        a(f"buffer_load_ushort v86, off, {srd(SRD_B)}, 0")
        self.gather_mod([2, 4, 3], "v2", [UGA, UC1, USB], L24, sleep=4)
        a("s_mov_b64 exec, -1")
        for r in range(4): a(f"v_lshlrev_b32 v{UX+r}, 16, v{UX+r}")
        a("v_lshlrev_b32 v86, 16, v86")
        for r in range(4): a(f"v_sub_f32 v{UX+r}, v{UX+r}, v86")
        for r in range(4): a(f"v_add_f32 v{UC1+r}, 1.0, v{UC1+r}")
        self.round4(UC1, "v8")
        a(f"s_mul_i32 {sT0}, {sHW}, {TBLW}"); a(f"s_add_u32 {sT0}, {sT0}, {L_TBL}")
        a(f"v_and_b32 v8, 7, {vLANE}"); a(f"v_mul_u32_u24 {vUT}, 48, v8"); a(f"v_lshrrev_b32 v9, 3, {vLANE}"); a(f"v_lshl_add_u32 {vUT}, v9, 4, {vUT}"); a(f"v_add_u32 {vUT}, {sT0}, {vUT}")
        a(f"v_mul_u32_u24 {vUR}, 48, v9"); a(f"v_add_u32 {vUR}, {sT0}, {vUR}")
        a(f"v_lshrrev_b32 {vUP}, 4, {vLANE}"); a(f"v_lshlrev_b32 {vUP}, 7, {vUP}"); a(f"v_lshl_add_u32 {vUP}, v8, 4, {vUP}")
        a("s_mul_i32 s10, s8, 72"); a("s_add_u32 s10, s10, s6"); a("s_mul_i32 s10, s10, 6"); a("s_add_u32 s10, s10, s7"); a("s_lshl_b32 s10, s10, 8")
        a("s_cmp_eq_u32 s8, 0"); a(f"s_cselect_b32 s12, s{sWG}, s{sWU}"); a(f"s_cselect_b32 s13, s{sWG+1}, s{sWU+1}")
        a(f"s_lshl_b32 {sT2}, s6, 7")
        self.set_srd(SRD_C, 12, off=sT2, size_minus_off=576 * 9216)
        a("s_mul_i32 s11, s7, 96"); a(f"v_lshrrev_b32 v56, 3, {vLANE}"); a("v_add_u32 v56, s11, v56"); a("v_mul_u32_u24 v56, 9216, v56")
        a(f"v_and_b32 v8, 7, {vLANE}"); a("v_lshl_add_u32 v56, v8, 4, v56")
        if p.UEARLY:
            if p.UAT: self.lds_spin(L_W2, target=1, sleep=8)
            a(f"s_mov_b32 {sT0}, 0")
            for t_ in range(12):
                if t_ >= p.UPACE: a(f"s_waitcnt vmcnt({p.UPACE-1})")
                a(f"buffer_load_dwordx4 a[{4*t_}:{4*t_+3}], v56, {srd(SRD_C)}, {sT0} offen nt")
                if t_ < 11: a(f"s_add_u32 {sT0}, {sT0}, {8*9216}")
        if p.DBLEARLY:
            a("s_cmp_lt_u32 s2, 216"); a("s_cbranch_scc1 L_noearly2")
            a(f"s_mov_b32 {sT0}, 128")
            for t_ in range(12):
                if t_ >= p.WOPACE: a(f"s_waitcnt vmcnt({p.WOPACE-1})")
                a(f"buffer_load_dwordx4 a[{48+4*t_}:{51+4*t_}], v56, {srd(SRD_C)}, {sT0} offen nt")
                if t_ < 11: a(f"s_add_u32 {sT0}, {sT0}, {8*9216}")
            a.label("L_noearly2")
        a("s_cmp_ge_u32 s2, 216"); a("s_cbranch_scc1 L_finprep")
        a(f"s_sub_u32 s14, s2, 72")
        a(f"s_mul_i32 {sT2}, s14, {32*1152}"); self.set_srd(SRD_A, sWD, off=sT2, size=32 * 1152)
        a(f"s_lshl_b32 {sT0}, {sHW}, 3")
        a(f"v_lshrrev_b32 v57, 3, {vLANE}"); a(f"v_add_u32 v57, {sT0}, v57"); a("v_mul_u32_u24 v57, 1152, v57")
        a(f"v_and_b32 v8, 7, {vLANE}"); a("v_lshl_add_u32 v57, v8, 4, v57")
        a("s_lshr_b32 s15, s14, 1"); a("s_mul_i32 s15, s15, 1536"); a(f"s_and_b32 {sT0}, s14, 1"); a(f"s_lshl_b32 {sT0}, {sT0}, 7"); a(f"s_add_u32 s15, s15, {sT0}")
        a(f"s_lshl_b32 {sT0}, {sHW}, 2"); a(f"s_add_u32 s15, s15, {sT0}")
        a(f"v_and_b32 v8, 7, {vLANE}"); a("v_min_u32 v8, 5, v8"); a("v_lshlrev_b32 v58, 8, v8"); a(f"v_lshrrev_b32 v9, 3, {vLANE}"); a("v_lshl_add_u32 v58, v9, 4, v58"); a("v_add_u32 v58, s15, v58")
        a("v_lshlrev_b32 v59, 7, v8"); a(f"v_add_u32 v59, {WS_ST}, v59")
        if p.STREP:
            a(f"s_and_b32 {sT0}, s2, 7"); a(f"s_lshl_b32 {sT0}, {sT0}, 10"); a(f"v_add_u32 v59, {sT0}, v59")
        self.dpiece_addr(f"v{FX}", "v8", L_DOWN, 2304)
        a(f"s_mul_i32 {sT0}, {sHW}, 48"); a(f"v_add_u32 v{FX+1}, {sT0}, {vLANE}"); a(f"v_lshlrev_b32 v{FX+1}, 4, v{FX+1}")
        a("s_mul_i32 s15, s14, 2304"); a(f"s_add_u32 s15, s15, {WS_OUT}")
        a("s_branch L_late")
        a.label("L_finprep")
        a("s_cmp_ge_u32 s2, 234"); a("s_cbranch_scc1 L_late")
        a(f"s_sub_u32 s14, s2, 216")
        self.set_srd(SRD_B, sX, size=1152)
        a(f"v_and_b32 v46, 7, {vLANE}")
        a("s_lshl_b32 s15, s14, 6"); a("v_lshlrev_b32 v8, 1, v46")
        for r in range(4): a(f"buffer_load_ushort v{FX+r}, v8, {srd(SRD_B)}, s15 offen offset:{16*r}")
        a("v_mov_b32 v8, s14"); self.piece_off("v2", "v8", "v9")
        self.gather_mod([2, 5], "v2", [FGA, FGB], FULL, sleep=4)
        for r in range(4): a(f"v_lshlrev_b32 v{FX+r}, 16, v{FX+r}")
        a.label("L_late")
        if p.LPACE:
            self.lds_spin(L_WCNT, target=1, sleep=2)
            self.read_ticket()
        if p.GT:
            self.go_watch_u()
            self.lds_spin(L_GO, target=1, sleep=2)
        if not p.UEARLY: self.lds_spin(L_WCNT if p.WTRIG == "issued" else L_OCNT, target=4, sleep=2)
        self.stamp(5)
        if p.LPACE:
            a(f"s_cmp_ge_u32 s63, {p.LPACE_T}"); a("s_cbranch_scc1 L_ufast")
            a(f"s_mov_b32 {sT0}, 0")
            for t in range(12):
                if t >= p.LPACE: a(f"s_waitcnt vmcnt({p.LPACE-1})")
                a(f"buffer_load_dwordx4 a[{4*t}:{4*t+3}], v56, {srd(SRD_C)}, {sT0} offen nt")
                if t < 11: a(f"s_add_u32 {sT0}, {sT0}, {8*9216}")
            a("s_branch L_uissued")
            a.label("L_ufast")
        a(f"s_mov_b32 {sT0}, 0")
        for t in range(12 if not p.UEARLY else 0):
            a(f"buffer_load_dwordx4 a[{4*t}:{4*t+3}], v56, {srd(SRD_C)}, {sT0} offen nt")
            if t < 11: a(f"s_add_u32 {sT0}, {sT0}, {8*9216}")
        a.label("L_uissued")
        a("s_cmp_ge_u32 s2, 216"); a("s_cbranch_scc1 L_late2")
        if p.DOWNLATER: a("s_waitcnt vmcnt(0)")
        for cb in range(9 if not p.DOWNAFTERC else 0):
            a(f"buffer_load_dwordx4 a[{48+4*cb}:{51+4*cb}], v57, {srd(SRD_A)}, 0 offen offset:{128*cb} nt")
        a("s_setprio 3")
        if not p.DOWNLATER: a("s_waitcnt vmcnt(9)")
        a("s_branch L_unit")
        a.label("L_late2")
        if not p.DBLEARLY:
            a(f"s_mov_b32 {sT0}, 128")
            for t in range(12):
                a(f"buffer_load_dwordx4 a[{48+4*t}:{51+4*t}], v56, {srd(SRD_C)}, {sT0} offen nt")
                if t < 11: a(f"s_add_u32 {sT0}, {sT0}, {8*9216}")
        a("s_setprio 3")
        a("s_waitcnt vmcnt(0)")
        a.label("L_unit")
        cnt = [0]
        def unit_pass(src4, area):
            cnt[0] += 1; L = f"L_up{cnt[0]}"
            for k in range(4): a(f"v_cvt_pk_bf16_f32 v{8+k}, v{src4+k}, v{src4+k}")
            self.setexec(L24); a(f"ds_write_b128 {vUT}, v[8:11]"); a("s_mov_b64 exec, -1")
            self.tread(16, 3, vUR)
            for st_ in range(2):
                if st_ == 1:
                    a("s_cmp_lt_u32 s2, 216"); a(f"s_cbranch_scc1 {L}")
                self.gemv(12, 48 * st_, list(range(16, 28)), 36)
                self.half_add(36, 40)
                for r in range(4): a(f"v_bfi_b32 v{36+r}, {sFF}, {vTAG}, v{36+r}")
                a(f"s_add_u32 {sT0}, s10, {area + 1536 * st_}")
                self.setexec(0x00FF00FF); a(f"buffer_store_dwordx4 v[36:39], {vUP}, {srd(SRD_WS)}, {sT0} offen sc1"); a("s_mov_b64 exec, -1")
            a.label(L)
        if p.CMERGE:
            for k in range(4): a(f"v_cvt_pk_bf16_f32 v{8+k}, v{UC1+k}, v{UC1+k}")
            for k in range(4): a(f"v_cvt_pk_bf16_f32 v{12+k}, v{USB+k}, v{USB+k}")
            self.setexec(L24); a(f"ds_write_b128 {vUT}, v[8:11]"); a(f"ds_write_b128 {vUT}, v[12:15] offset:384"); a("s_mov_b64 exec, -1")
            for i_ in range(3): a(f"ds_read_b128 v[{16+4*i_}:{19+4*i_}], {vUR} offset:{16*i_}")
            for i_ in range(3): a(f"ds_read_b128 v[{28+4*i_}:{31+4*i_}], {vUR} offset:{384+16*i_}")
            a("s_waitcnt lgkmcnt(0)")
            for st_ in range(2):
                if st_ == 1:
                    a("s_cmp_lt_u32 s2, 216"); a("s_cbranch_scc1 L_c1done")
                def mk(tt):
                    for r in range(4): a(f"v_and_b32 v{8+r}, v{16+tt}, v{vM[r]}")
                def mk2(tt):
                    for r in range(4): a(f"v_and_b32 v{12+r}, v{28+tt}, v{vM[r]}")
                mk(0)
                for tt in range(12):
                    A_ = f"a[{48*st_+4*tt}:{48*st_+4*tt+3}]"
                    mk2(tt)
                    a(f"v_mfma_f32_16x16x32_bf16 v[40:43], {A_}, v[8:11], {'0' if tt == 0 else 'v[40:43]'}")
                    if tt + 1 < 12: mk(tt + 1)
                    a(f"v_mfma_f32_16x16x32_bf16 v[44:47], {A_}, v[12:15], {'0' if tt == 0 else 'v[44:47]'}")
                for r in range(8): a(f"v_mov_b32 v{48+r}, v{40+r}")
                for r in range(8): a(f"v_permlane32_swap_b32 v{40+r}, v{48+r}")
                for r in range(8): a(f"v_add_f32_dpp v{40+r}, v{48+r}, v{40+r} row_ror:8 row_mask:0xf bank_mask:0xf")
                for r in range(8): a(f"v_bfi_b32 v{40+r}, {sFF}, {vTAG}, v{40+r}")
                a(f"s_add_u32 {sT0}, s10, {WS_C + 1536 * st_}"); a(f"s_add_u32 {sT1}, s10, {WS_C + 2 * MS + 1536 * st_}")
                self.setexec(0x00FF00FF)
                a(f"buffer_store_dwordx4 v[40:43], {vUP}, {srd(SRD_WS)}, {sT0} offen sc1"); a(f"buffer_store_dwordx4 v[44:47], {vUP}, {srd(SRD_WS)}, {sT1} offen sc1")
                a("s_mov_b64 exec, -1")
            a.label("L_c1done")
        else:
            unit_pass(UC1, WS_C)
            unit_pass(USB, WS_C + 2 * MS)
        if p.DOWNAFTERC:
            if p.UEARLY: self.lds_spin(L_WCNT if p.WTRIG == "issued" else L_OCNT, target=4, sleep=2)
            a("s_cmp_ge_u32 s2, 216"); a("s_cbranch_scc1 L_nodl")
            for cb in range(9):
                a(f"buffer_load_dwordx4 a[{48+4*cb}:{51+4*cb}], v57, {srd(SRD_A)}, 0 offen offset:{128*cb} nt")
            a.label("L_nodl")
        self.stamp(1, "fine")
        loads = [(8 + 4 * k, 4, vUA, None if k < 2 else (k & ~1) * 2304, (k & 1) * 2304) for k in range(8)]
        if p.SENT_ATT:
            if p.SENT1:
                a(f"s_cmp_lg_u32 {sHW}, 0"); a("s_cbranch_scc1 L_sentw")
                self.poll([loads[p.SENT_K]], active=0xFF, sleep=p.SENT_ATT)
                a("s_mov_b64 exec, 1"); a(f"v_mov_b32 v61, {L_SENT}"); a("v_mov_b32 v62, 1"); a("ds_write_b32 v61, v62"); a("s_mov_b64 exec, -1")
                a.label("L_sentw")
                self.lds_spin(L_SENT, target=1, sleep=1)
            else:
                self.poll([loads[p.SENT_K]], active=L24, sleep=p.SENT_ATT)
        self.poll(loads, active=L24, sleep=p.SL_ATT)
        self.stamp(6)
        self.sum_rows4([8 + 4 * k for k in range(8)])
        a(f"v_pk_fma_f32 v[{UX}:{UX+1}], v[8:9], v[{UGA}:{UGA+1}], v[{UX}:{UX+1}]"); a(f"v_pk_fma_f32 v[{UX+2}:{UX+3}], v[10:11], v[{UGA+2}:{UGA+3}], v[{UX+2}:{UX+3}]")
        a(f"v_pk_mul_f32 v[{UC1}:{UC1+1}], v[{UX}:{UX+1}], v[{UC1}:{UC1+1}]"); a(f"v_pk_mul_f32 v[{UC1+2}:{UC1+3}], v[{UX+2}:{UX+3}], v[{UC1+2}:{UC1+3}]")
        a("s_mov_b64 exec, -1")
        unit_pass(UC1, WS_G)
        self.stamp(2, "fine")
        a("s_or_b32 s11, s6, s8"); a("s_cmp_lg_u32 s11, 0"); a("s_cbranch_scc1 L_nostat")
        a("v_mov_b32 v12, 0"); a("v_mov_b32 v13, 0")
        self.setexec(L24)
        a(f"v_pk_add_f32 v[14:15], v[{UX}:{UX+1}], v[{UX+2}:{UX+3}]"); a(f"v_pk_mul_f32 v[16:17], v[{UX}:{UX+1}], v[{UX}:{UX+1}]")
        a(f"v_pk_fma_f32 v[16:17], v[{UX+2}:{UX+3}], v[{UX+2}:{UX+3}], v[16:17]")
        a("v_add_f32 v12, v14, v15"); a("v_add_f32 v13, v16, v17")
        a("s_mov_b64 exec, -1")
        self.allreduceN("v_add_f32", [("v12", "v14"), ("v13", "v15")], ["q1", "q2", "r4", "r8", "p16"])
        a("v_mov_b32 v14, 0"); a("v_mov_b32 v15, 0")
        for c in range(4): a(f"v_bfi_b32 v{12+c}, {sFF}, {vTAG}, v{12+c}")
        a("s_lshl_b32 s11, s7, 7"); a(f"s_add_u32 s11, s11, {WS_ST}")
        if p.STREP:
            a(f"v_lshlrev_b32 v16, 10, {vLANE}")
            a("s_mov_b64 exec, 0xff"); a(f"buffer_store_dwordx4 v[12:15], v16, {srd(SRD_WS)}, s11 offen sc1"); a("s_mov_b64 exec, -1")
        else:
            a("s_mov_b64 exec, 1"); a(f"buffer_store_dwordx4 v[12:15], off, {srd(SRD_WS)}, s11 sc1"); a("s_mov_b64 exec, -1")
        a.label("L_nostat")
        a("s_cmp_ge_u32 s2, 234"); a("s_cbranch_scc1 L_hexit")
        a("s_cmp_ge_u32 s2, 216"); a("s_cbranch_scc1 L_fin")
        K6 = 0x3F3F3F3F3F3F3F3F
        for r in (8, 9, 10, 11, 20, 21, 22, 23): a(f"v_mov_b32 v{r}, 0")
        self.poll([(20, 1, "v58", WS_C, 0), (21, 1, "v58", WS_C + 2 * MS, 0), (22, 1, "v58", WS_C + MS, 0), (23, 1, "v58", WS_C + 3 * MS, 0)], active=K6)
        a("s_mov_b64 exec, -1")
        self.allreduceN("v_add_f32", [(f"v{r}", "v12") for r in (20, 21, 22, 23)], ["q1", "q2", "hm"])
        if p.DUP_G: self.poll_dup([(8, 1, "v58", WS_G, 0), (9, 1, "v58", WS_G + MS, 0), (10, 4, "v59", None, 0)], [86, 87, 88], p.DUP_G, strong=(2,), active=K6)
        else: self.poll([(8, 1, "v58", WS_G, 0), (9, 1, "v58", WS_G + MS, 0), (10, 4, "v59", None, 0)], presleep=p.PS_G, strong=(2,), active=K6)
        a("s_mov_b64 exec, -1")
        self.stamp(3, "fine")
        self.allreduceN("v_add_f32", [(f"v{r}", "v14") for r in (8, 9, 10, 11)], ["q1", "q2", "hm"])
        a(f"v_mul_f32 v10, {f32hex(1/576)}, v10"); a(f"v_mul_f32 v11, {f32hex(1/576)}, v11")
        a("v_fma_f32 v11, -v10, v10, v11"); a("v_max_f32 v11, 0, v11"); a(f"v_add_f32 v11, {f32hex(1e-5)}, v11"); a("v_rsq_f32 v11, v11")
        a("v_fma_f32 v8, -v10, v20, v8"); a("v_fma_f32 v9, -v10, v22, v9")
        a("v_fma_f32 v8, v8, v11, v21"); a("v_fma_f32 v9, v9, v11, v23")
        self.sigmoid("v12", "v8", "v12")
        a("v_mul_f32 v8, v12, v9")
        a("v_cvt_pk_bf16_f32 v8, v8, v8")
        for r in range(4): a(f"v_and_b32 v{12+r}, v8, v{vM[r]}")
        for cb in range(9):
            d = 16 + 4 * cb
            a(f"v_mfma_f32_16x16x32_bf16 v[{d}:{d+3}], a[{48+4*cb}:{51+4*cb}], v[12:15], 0")
        self.setexec(self.VALID)
        for cb in range(9): a(f"ds_write_b128 v{FX}, v[{16+4*cb}:{19+4*cb}] offset:{256*cb}")
        a("s_mov_b64 exec, -1")
        a("s_waitcnt lgkmcnt(0)")
        a("s_barrier")
        a(f"s_cmp_ge_u32 {sHW}, 3"); a("s_cbranch_scc1 L_hexit")
        self.setexec(lanes(48))
        for k in range(8): a(f"ds_read_b128 v[{8+4*k}:{11+4*k}], v{FX+1} offset:{L_DOWN + 2304*k}")
        a("s_waitcnt lgkmcnt(0)")
        self.sum_rows4([8 + 4 * k for k in range(8)])
        for c in range(4): a(f"v_bfi_b32 v{8+c}, {sFF}, {vTAG}, v{8+c}")
        a(f"buffer_store_dwordx4 v[8:11], v{FX+1}, {srd(SRD_WS)}, s15 offen sc1")
        self.stamp(7)
        if p.STAMPS and p.MODE == "fin":
            a("s_waitcnt vmcnt(0)"); self.stamp(6, "fin")
        a("s_branch L_hexit")
        a.label("L_fin")
        a(f"v_and_b32 v46, 7, {vLANE}")
        a("s_lshl_b32 s15, s14, 7"); a("v_lshlrev_b32 v47, 4, v46"); a("v_add_u32 v47, s15, v47")
        a(f"v_lshrrev_b32 v8, 3, {vLANE}"); a("v_mul_u32_u24 v42, 2304, v8"); a("v_add_u32 v42, v42, v47"); a(f"v_add_u32 v42, {WS_ATT}, v42")
        a(f"s_mul_i32 {sT0}, {sHW}, 36"); a(f"v_add_u32 v8, {sT0}, v8"); a("v_mul_u32_u24 v43, 2304, v8"); a("v_add_u32 v43, v43, v47"); a(f"v_add_u32 v43, {WS_OUT}, v43")
        a(f"v_add_u32 v44, {4*8*2304}, v43"); a(f"v_cmp_gt_u32 vcc, 32, {vLANE}"); a("v_cndmask_b32 v44, v43, v44, vcc")
        a(f"s_lshl_b32 {sT0}, {sHW}, 7"); a(f"s_add_u32 {sT0}, {sT0}, {L_FIN}"); a("v_lshlrev_b32 v45, 4, v46"); a(f"v_add_u32 v40, {sT0}, v45")
        self.poll([(8, 4, "v42", None, 0)], sleep=p.SL_FA)
        self.allreduceN("v_add_f32", [(f"v{8+c}", f"v{12+c}") for c in range(4)], ["r8", "p16", "p32"])
        a(f"v_pk_fma_f32 v[{FX}:{FX+1}], v[8:9], v[{FGA}:{FGA+1}], v[{FX}:{FX+1}]"); a(f"v_pk_fma_f32 v[{FX+2}:{FX+3}], v[10:11], v[{FGA+2}:{FGA+3}], v[{FX+2}:{FX+3}]")
        a(f"s_or_b32 {sT0}, s14, {sHW}"); a(f"s_cmp_lg_u32 {sT0}, 0"); a("s_cbranch_scc1 L_noepoch")
        a("s_mov_b64 exec, 1")
        a(f"v_mov_b32 v8, {sTAG}")
        a(f"buffer_store_dword v8, off, {srd(SRD_WS)}, 0 sc1")
        a("s_mov_b64 exec, -1")
        a.label("L_noepoch")
        self.set_srd(SRD_B, sOUT, size=1152)
        a("s_lshl_b32 s15, s14, 6"); a("v_lshlrev_b32 v49, 1, v46")
        a(f"v_bfe_u32 v53, {vLANE}, 3, 2")
        a(f"v_mov_b32 v54, v{FX}"); a(f"v_mov_b32 v55, v{FGB}")
        for r in range(1, 4):
            a(f"v_cmp_eq_u32 vcc, {r}, v53"); a(f"v_cndmask_b32 v54, v54, v{FX+r}, vcc"); a(f"v_cndmask_b32 v55, v55, v{FGB+r}, vcc")
        a("v_lshlrev_b32 v50, 4, v46"); a("v_lshl_add_u32 v50, v53, 2, v50")
        a("v_lshlrev_b32 v51, 3, v53"); a("v_add_u32 v51, v51, v46"); a("v_lshlrev_b32 v51, 1, v51")
        self.stamp(3, "fine")
        outl = [(8, 4, "v43", None, 0), (12, 4, "v43", 8*2304, 0), (16, 4, "v43", 16*2304, 0), (20, 4, "v43", 24*2304, 0), (24, 4, "v44", None, 0)]
        if p.DUP_OUT: self.poll_dup(outl, [28, 32, 36, 64, 68], p.DUP_OUT)
        else: self.poll(outl, presleep=p.PS_OUT)
        self.stamp(1, "fin")
        a(f"v_cmp_gt_u32 vcc, 32, {vLANE}")
        self.sum_rows4([8, 12, 16, 20])
        for c in range(4): a(f"v_cndmask_b32 v{24+c}, 0, v{24+c}, vcc")
        self.sum_rows4([8, 24])
        self.allreduceN("v_add_f32", [(f"v{8+c}", f"v{12+c}") for c in range(4)], ["r8", "p16", "p32"])
        self.setexec(0xFF)
        a("ds_write_b128 v40, v[8:11]")
        a("s_mov_b64 exec, -1")
        a("s_waitcnt lgkmcnt(0)")
        self.stamp(2, "fin")
        a("s_barrier")
        self.stamp(3, "fin")
        a(f"s_cmp_lg_u32 {sHW}, 0"); a("s_cbranch_scc1 L_hexit")
        self.setexec(lanes(32))
        for w in range(4): a(f"ds_read_b32 v{8+w}, v50 offset:{L_FIN + 128*w}")
        a("s_waitcnt lgkmcnt(0)")
        a("v_add_f32 v8, v8, v9"); a("v_add_f32 v10, v10, v11"); a("v_add_f32 v8, v8, v10")
        a("v_fma_f32 v8, v8, v55, v54")
        a("v_cvt_pk_bf16_f32 v8, v8, v8")
        a(f"buffer_store_short v8, v51, {srd(SRD_B)}, s15 offen {p.OUTPOL}".rstrip())
        self.stamp(7)
        a("s_branch L_hexit")
        a.label("L_wo")
        a(f"s_and_b32 {sR0}, s2, 7"); a(f"s_lshr_b32 {sR1}, s2, 3")
        a(f"s_lshl_b32 {sT2}, {sR1}, 7")
        self.set_srd(SRD_A, sWO, off=sT2, size_minus_off=4096 * 1152)
        a(f"s_lshl_b32 {sR2}, {sR0}, 2"); a(f"s_add_u32 {sR2}, {sR2}, {sHW}")
        a(f"s_lshl_b32 {sT0}, {sR2}, 7")
        a(f"v_lshrrev_b32 v1, 3, {vLANE}"); a(f"v_add_u32 v1, {sT0}, v1"); a("v_mul_u32_u24 v1, 1152, v1")
        a(f"v_and_b32 v2, 7, {vLANE}"); a("v_lshl_add_u32 v1, v2, 4, v1")
        if p.WOLATE: a("s_branch L_wo_have")
        elif p.WOEARLY:
            if p.MAP2: a("s_branch L_wo_have")
            else: a(f"s_cmp_lg_u32 {sHW}, 0"); a("s_cbranch_scc1 L_wo_have")
        a(f"s_mov_b32 {sT0}, 0")
        for t in range(16):
            if t >= p.WOPACE: a(f"s_waitcnt vmcnt({p.WOPACE-1})")
            a(f"buffer_load_dwordx4 a[{96+4*t}:{99+4*t}], v1, {srd(SRD_A)}, {sT0} offen nt")
            if t < 15: a(f"s_add_u32 {sT0}, {sT0}, 9216")
        a.label("L_wo_have")
        a(f"s_mul_i32 s4, {sR2}, {8*OSLOT}"); a("s_add_u32 s4, s4, " + str(WS_O))
        a(f"s_mul_i32 {sT0}, {sR0}, 2304"); a(f"s_lshl_b32 {sT1}, {sR1}, 8"); a(f"s_add_u32 {sT0}, {sT0}, {sT1}"); a(f"s_add_u32 s5, {sT0}, {WS_ATT}")
        a(f"v_and_b32 v41, 7, {vLANE}"); a(f"v_mul_u32_u24 v41, {OSLOT}, v41")
        a(f"v_lshlrev_b32 v40, 3, {vLANE}")
        a(f"v_and_b32 v8, 3, {vLANE}"); a("v_mul_u32_u24 v8, 160, v8"); a(f"v_lshrrev_b32 v42, 2, {vLANE}"); a("v_lshl_add_u32 v42, v42, 2, v8")
        a(f"s_mul_i32 {sT0}, {sHW}, {TBLW}"); a(f"s_add_u32 {sT0}, {sT0}, {L_TBL}"); a(f"v_add_u32 v42, {sT0}, v42")
        self.taddr_r("v43", 20)
        self.dpiece_addr("v44", "v8", L_PART, 256)
        a(f"v_lshlrev_b32 v45, 4, {vLANE}")
        a("s_add_u32 s15, s4, 3200")
        self.poll([(8, 4, "v41", "s4", 512)], sleep=32, strong=(0,))
        a(f"v_and_b32 v8, {sFFFF0000}, v8")
        a("v_mov_b32 v10, v8")
        self.allreduce("v_max_f32", "v10", "v11", ["q1", "q2", "hm"])
        a("v_sub_f32 v11, v8, v10"); a(f"v_mul_f32 v11, 0x{LOG2E:08x}, v11"); a("v_exp_f32 v11, v11")
        a("v_mul_f32 v12, v11, v9")
        self.allreduce("v_add_f32", "v12", "v13", ["q1", "q2", "hm"])
        a("v_rcp_f32 v12, v12"); a("v_mul_f32 v11, v11, v12")
        for s_ in range(8): a(f"v_mov_b32_dpp v{48+s_}, v11 row_newbcast:{s_} row_mask:0xf bank_mask:0xf")
        if p.LPACE and p.WOLATE:
            self.lds_spin(L_WCNT, target=1, sleep=2)
            self.read_ticket()
        if p.GT:
            self.go_watch_w()
            if p.GT_W: self.lds_spin(L_GO, target=1, sleep=2)
        self.lds_spin(L_W2 if p.WOAT else L_WCNT, target=p.WOTGT, sleep=2)
        if p.WOLATE:
            if p.LPACE:
                a(f"s_cmp_ge_u32 s63, {p.LPACE_T}"); a("s_cbranch_scc1 L_wfast")
                a(f"s_mov_b32 {sT0}, 0")
                for t in range(16):
                    if t >= p.LPACE: a(f"s_waitcnt vmcnt({p.LPACE-1})")
                    a(f"buffer_load_dwordx4 a[{96+4*t}:{99+4*t}], v1, {srd(SRD_A)}, {sT0} offen nt")
                    if t < 15: a(f"s_add_u32 {sT0}, {sT0}, 9216")
                a("s_branch L_wissued")
                a.label("L_wfast")
            a(f"s_mov_b32 {sT0}, 0")
            for t in range(16):
                a(f"buffer_load_dwordx4 a[{96+4*t}:{99+4*t}], v1, {srd(SRD_A)}, {sT0} offen nt")
                if t < 15: a(f"s_add_u32 {sT0}, {sT0}, 9216")
            a.label("L_wissued")
        a("s_setprio 3")
        self.stamp(5)
        if p.STAMPS and p.MODE == "wo":
            a("s_waitcnt vmcnt(0)"); self.stamp(2, "wo")
        ol = [(8 + 2 * s_, 2, "v40", "s4" if s_ < 6 else "s15", s_ * OSLOT if s_ < 6 else (s_ - 5) * OSLOT) for s_ in range(8)]
        if p.DUP_O: self.poll_dup(ol, [64 + 2 * s_ for s_ in range(8)], p.DUP_O)
        else: self.poll(ol, sleep=p.SL_O, adapt=p.AD_O)
        self.stamp(6, "wo")
        a("v_pk_mul_f32 v[24:25], v[8:9], v[48:49] op_sel_hi:[1,0]")
        a("v_pk_mul_f32 v[26:27], v[10:11], v[48:49] op_sel:[0,1]")
        for s_ in range(2, 8):
            d = 24 + 2 * (s_ & 1); w = 48 + (s_ & ~1)
            sel = "op_sel_hi:[1,0,1]" if (s_ & 1) == 0 else "op_sel:[0,1,0]"
            a(f"v_pk_fma_f32 v[{d}:{d+1}], v[{8+2*s_}:{9+2*s_}], v[{w}:{w+1}], v[{d}:{d+1}] {sel}")
        self.pk_add(24, 24, 26)
        a("v_cvt_pk_bf16_f32 v24, v24, v24"); a("v_cvt_pk_bf16_f32 v25, v25, v25")
        a("ds_write_b32 v42, v24"); a("ds_write_b32 v42, v25 offset:80")
        self.tread(16, 4, "v43")
        self.stamp(1, "wo")
        self.gemv(16, 96, list(range(16, 32)), 36)
        self.setexec(self.VALID); a("ds_write_b128 v44, v[36:39]"); a("s_mov_b64 exec, -1")
        a("s_waitcnt lgkmcnt(0)")
        a("s_barrier")
        self.stamp(3, "wo")
        a(f"s_cmp_lg_u32 {sHW}, 0"); a("s_cbranch_scc1 L_hexit")
        self.setexec(0xFFFF)
        for k in range(8): a(f"ds_read_b128 v[{8+4*k}:{11+4*k}], v45 offset:{L_PART + 256*k}")
        a("s_waitcnt lgkmcnt(0)")
        self.sum_rows4([8 + 4 * k for k in range(8)])
        for c in range(4): a(f"v_bfi_b32 v{8+c}, {sFF}, {vTAG}, v{8+c}")
        a(f"buffer_store_dwordx4 v[8:11], v45, {srd(SRD_WS)}, s5 offen sc1")
        self.stamp(7, "wo")
        a.label("L_hexit")
        self.dump_stamps()
        a("s_endpgm")

    def tail_dyn(self):
        a = self.a; p = self.p
        L24 = lanes(24)
        UX, UGA, UC1, USB = 64, 68, 72, 76
        vUT, vUR, vUP, vUA = "v80", "v81", "v82", "v83"
        FX, FGA, FGB = 84, 88, 92
        MS = 72 * 6 * 256
        sTK = "s63"; sDBL = "s62"
        def down_prep():
            a(f"s_mul_i32 {sT2}, s14, {32*1152}"); self.set_srd(SRD_A, sWD, off=sT2, size=32 * 1152)
            a(f"s_lshl_b32 {sT0}, {sHW}, 3")
            a(f"v_lshrrev_b32 v57, 3, {vLANE}"); a(f"v_add_u32 v57, {sT0}, v57"); a("v_mul_u32_u24 v57, 1152, v57")
            a(f"v_and_b32 v8, 7, {vLANE}"); a("v_lshl_add_u32 v57, v8, 4, v57")
            for cb in range(9):
                a(f"buffer_load_dwordx4 a[{48+4*cb}:{51+4*cb}], v57, {srd(SRD_A)}, 0 offen offset:{128*cb} nt")
            a("s_lshr_b32 s15, s14, 1"); a("s_mul_i32 s15, s15, 1536"); a(f"s_and_b32 {sT0}, s14, 1"); a(f"s_lshl_b32 {sT0}, {sT0}, 7"); a(f"s_add_u32 s15, s15, {sT0}")
            a(f"s_lshl_b32 {sT0}, {sHW}, 2"); a(f"s_add_u32 s15, s15, {sT0}")
            a(f"v_and_b32 v8, 7, {vLANE}"); a("v_min_u32 v8, 5, v8"); a("v_lshlrev_b32 v58, 8, v8"); a(f"v_lshrrev_b32 v9, 3, {vLANE}"); a("v_lshl_add_u32 v58, v9, 4, v58"); a("v_add_u32 v58, s15, v58")
            a("v_lshlrev_b32 v59, 7, v8"); a(f"v_add_u32 v59, {WS_ST}, v59")
            self.dpiece_addr(f"v{FX}", "v8", L_DOWN, 2304)
            a(f"s_mul_i32 {sT0}, {sHW}, 48"); a(f"v_add_u32 v{FX+1}, {sT0}, {vLANE}"); a(f"v_lshlrev_b32 v{FX+1}, 4, v{FX+1}")
            a("s_mul_i32 s15, s14, 2304"); a(f"s_add_u32 s15, s15, {WS_OUT}")
        a.label("L_tail")
        a("s_setprio 0")
        self.lds_spin(L_QFLAG, target=1, sleep=8)
        a(f"s_cmp_lg_u32 {sHW}, 2"); a("s_cbranch_scc1 L_tkwait")
        self.lds_spin(L_WCNT, target=p.TKAT, sleep=2)
        self.set_srd(SRD_B, sDBG, size=256)
        a("s_mov_b64 exec, 1")
        a("v_mov_b32 v8, 1")
        a(f"buffer_atomic_add v8, off, {srd(SRD_B)}, 0 sc0")
        a("s_waitcnt vmcnt(0)")
        a(f"v_add_u32 v8, 1, v8"); a(f"v_mov_b32 v9, {L_TICK}"); a("ds_write_b32 v9, v8")
        a("s_mov_b64 exec, -1")
        a.label("L_tkwait")
        self.lds_spin(L_TICK, target=1, sleep=2)
        a(f"s_sub_u32 {sTK}, {sT3}, 1")
        a(f"s_setprio 2")
        self.stamp(4, "fine")
        a(f"s_cmp_ge_u32 {sTK}, 234"); a("s_cbranch_scc1 L_hexit")
        a(f"s_cmp_lt_u32 {sTK}, 72"); a("s_cbranch_scc1 L_wo")
        a(f"s_cmp_ge_u32 {sTK}, 126"); a("s_cbranch_scc1 L_sgl")
        a(f"s_sub_u32 {sT2}, {sTK}, 72"); self.div3("s6", "s7", sT2); a("s_lshl_b32 s6, s6, 1"); a(f"s_mov_b32 {sDBL}, 1")
        a("s_branch L_uprep")
        a.label("L_sgl")
        a(f"s_sub_u32 {sT2}, {sTK}, 126"); self.div3("s6", "s7", sT2); a("s_add_u32 s6, s6, 36"); a(f"s_mov_b32 {sDBL}, 0")
        a.label("L_uprep")
        a(f"s_lshr_b32 {sT0}, {sHW}, 1"); a("s_lshl_b32 s7, s7, 1"); a(f"s_add_u32 s7, s7, {sT0}")
        a(f"s_and_b32 s8, {sHW}, 1")
        a("s_cmp_eq_u32 s8, 0"); a(f"s_cselect_b32 s12, s{sWG}, s{sWU}"); a(f"s_cselect_b32 s13, s{sWG+1}, s{sWU+1}")
        a(f"s_lshl_b32 {sT2}, s6, 7")
        self.set_srd(SRD_C, 12, off=sT2, size_minus_off=576 * 9216)
        a("s_mul_i32 s11, s7, 96"); a(f"v_lshrrev_b32 v56, 3, {vLANE}"); a("v_add_u32 v56, s11, v56"); a("v_mul_u32_u24 v56, 9216, v56")
        a(f"v_and_b32 v8, 7, {vLANE}"); a("v_lshl_add_u32 v56, v8, 4, v56")
        self.lds_spin(L_WCNT if p.WTRIG == "issued" else L_OCNT, target=4, sleep=1)
        self.stamp(5)
        a(f"s_mov_b32 {sT0}, 0")
        for t in range(12):
            a(f"buffer_load_dwordx4 a[{4*t}:{4*t+3}], v56, {srd(SRD_C)}, {sT0} offen nt")
            if t < 11: a(f"s_add_u32 {sT0}, {sT0}, {8*9216}")
        a(f"s_cmp_eq_u32 {sDBL}, 0"); a("s_cbranch_scc1 L_one")
        a(f"s_mov_b32 {sT0}, 128")
        for t in range(12):
            a(f"buffer_load_dwordx4 a[{48+4*t}:{51+4*t}], v56, {srd(SRD_C)}, {sT0} offen nt")
            if t < 11: a(f"s_add_u32 {sT0}, {sT0}, {8*9216}")
        a.label("L_one")
        a("s_mul_i32 s9, s7, 3")
        a(f"v_lshrrev_b32 v8, 3, {vLANE}"); a("v_add_u32 v8, s9, v8")
        self.piece_off("v2", "v8", "v9")
        a(f"v_lshlrev_b32 {vUA}, 7, v8"); a(f"v_and_b32 v9, 7, {vLANE}"); a(f"v_lshl_add_u32 {vUA}, v9, 4, {vUA}"); a(f"v_add_u32 {vUA}, {WS_ATT}, {vUA}")
        self.set_srd(SRD_B, sX, size=1152)
        a("v_lshlrev_b32 v8, 5, v8"); a("v_add_u32 v8, v8, v9"); a("v_lshlrev_b32 v8, 1, v8")
        for r in range(4): a(f"buffer_load_ushort v{UX+r}, v8, {srd(SRD_B)}, 0 offen offset:{16*r}")
        a(f"s_mul_i32 {sT0}, {sHW}, {TBLW}"); a(f"s_add_u32 {sT0}, {sT0}, {L_TBL}")
        a(f"v_and_b32 v8, 7, {vLANE}"); a(f"v_mul_u32_u24 {vUT}, 48, v8"); a(f"v_lshrrev_b32 v9, 3, {vLANE}"); a(f"v_lshl_add_u32 {vUT}, v9, 4, {vUT}"); a(f"v_add_u32 {vUT}, {sT0}, {vUT}")
        a(f"v_mul_u32_u24 {vUR}, 48, v9"); a(f"v_add_u32 {vUR}, {sT0}, {vUR}")
        a(f"v_lshrrev_b32 {vUP}, 4, {vLANE}"); a(f"v_lshlrev_b32 {vUP}, 7, {vUP}"); a(f"v_lshl_add_u32 {vUP}, v8, 4, {vUP}")
        a("s_mul_i32 s10, s8, 72"); a("s_add_u32 s10, s10, s6"); a("s_mul_i32 s10, s10, 6"); a("s_add_u32 s10, s10, s7"); a("s_lshl_b32 s10, s10, 8")
        self.gather_mod([2, 4, 3], "v2", [UGA, UC1, USB], L24, sleep=2)
        a("s_mov_b64 exec, -1")
        for r in range(4): a(f"v_lshlrev_b32 v{UX+r}, 16, v{UX+r}")
        for r in range(4): a(f"v_add_f32 v{UC1+r}, 1.0, v{UC1+r}")
        self.round4(UC1, "v8")
        a(f"s_mov_b32 s61, 0")
        a(f"s_sub_u32 s14, {sTK}, 54"); a(f"s_sub_u32 {sT2}, {sTK}, 126"); a(f"s_cmp_ge_u32 {sT2}, 72"); a("s_cbranch_scc1 L_nodown")
        a("s_mov_b32 s61, 1")
        down_prep()
        a.label("L_nodown")
        a("s_setprio 3")
        for k in range(4): a(f"v_cvt_pk_bf16_f32 v{8+k}, v{UC1+k}, v{UC1+k}")
        for k in range(4): a(f"v_cvt_pk_bf16_f32 v{12+k}, v{USB+k}, v{USB+k}")
        self.setexec(L24); a(f"ds_write_b128 {vUT}, v[8:11]"); a(f"ds_write_b128 {vUT}, v[12:15] offset:384"); a("s_mov_b64 exec, -1")
        for i in range(3): a(f"ds_read_b128 v[{16+4*i}:{19+4*i}], {vUR} offset:{16*i}")
        for i in range(3): a(f"ds_read_b128 v[{28+4*i}:{31+4*i}], {vUR} offset:{384+16*i}")
        a("s_waitcnt lgkmcnt(0)")
        for st_ in range(2):
            if st_ == 1:
                a(f"s_cmp_eq_u32 {sDBL}, 0"); a("s_cbranch_scc1 L_c1done")
            def mk(t):
                for r in range(4): a(f"v_and_b32 v{8+r}, v{16+t}, v{vM[r]}")
            def mk2(t):
                for r in range(4): a(f"v_and_b32 v{12+r}, v{28+t}, v{vM[r]}")
            mk(0)
            for t in range(12):
                A_ = f"a[{48*st_+4*t}:{48*st_+4*t+3}]"
                mk2(t)
                a(f"v_mfma_f32_16x16x32_bf16 v[40:43], {A_}, v[8:11], {'0' if t == 0 else 'v[40:43]'}")
                if t + 1 < 12: mk(t + 1)
                a(f"v_mfma_f32_16x16x32_bf16 v[44:47], {A_}, v[12:15], {'0' if t == 0 else 'v[44:47]'}")
            for r in range(8): a(f"v_mov_b32 v{48+r}, v{40+r}")
            for r in range(8): a(f"v_permlane32_swap_b32 v{40+r}, v{48+r}")
            for r in range(8): a(f"v_add_f32_dpp v{40+r}, v{48+r}, v{40+r} row_ror:8 row_mask:0xf bank_mask:0xf")
            for r in range(8): a(f"v_bfi_b32 v{40+r}, {sFF}, {vTAG}, v{40+r}")
            a(f"s_add_u32 {sT0}, s10, {WS_C + 1536 * st_}"); a(f"s_add_u32 {sT1}, s10, {WS_C + 2 * MS + 1536 * st_}")
            self.setexec(0x00FF00FF)
            a(f"buffer_store_dwordx4 v[40:43], {vUP}, {srd(SRD_WS)}, {sT0} offen sc1"); a(f"buffer_store_dwordx4 v[44:47], {vUP}, {srd(SRD_WS)}, {sT1} offen sc1")
            a("s_mov_b64 exec, -1")
        a.label("L_c1done")
        self.stamp(1, "fine")
        loads = [(8 + 4 * k, 4, vUA, None if k < 2 else (k & ~1) * 2304, (k & 1) * 2304) for k in range(8)]
        if p.CGATE: self.cnt_gate(p.CTGT, p.PS_ATT)
        self.poll(loads, active=L24, sleep=p.SL_ATT)
        self.stamp(6)
        self.sum_rows4([8 + 4 * k for k in range(8)])
        a(f"v_pk_fma_f32 v[{UX}:{UX+1}], v[8:9], v[{UGA}:{UGA+1}], v[{UX}:{UX+1}]"); a(f"v_pk_fma_f32 v[{UX+2}:{UX+3}], v[10:11], v[{UGA+2}:{UGA+3}], v[{UX+2}:{UX+3}]")
        a(f"v_pk_mul_f32 v[{UC1}:{UC1+1}], v[{UX}:{UX+1}], v[{UC1}:{UC1+1}]"); a(f"v_pk_mul_f32 v[{UC1+2}:{UC1+3}], v[{UX+2}:{UX+3}], v[{UC1+2}:{UC1+3}]")
        for k in range(4): a(f"v_cvt_pk_bf16_f32 v{8+k}, v{UC1+k}, v{UC1+k}")
        a(f"ds_write_b128 {vUT}, v[8:11]"); a("s_mov_b64 exec, -1")
        self.tread(16, 3, vUR)
        for st_ in range(2):
            if st_ == 1:
                a(f"s_cmp_eq_u32 {sDBL}, 0"); a("s_cbranch_scc1 L_zdone")
            self.gemv(12, 48 * st_, list(range(16, 28)), 36)
            self.half_add(36, 40)
            for r in range(4): a(f"v_bfi_b32 v{36+r}, {sFF}, {vTAG}, v{36+r}")
            a(f"s_add_u32 {sT0}, s10, {WS_G + 1536 * st_}")
            self.setexec(0x00FF00FF); a(f"buffer_store_dwordx4 v[36:39], {vUP}, {srd(SRD_WS)}, {sT0} offen sc1"); a("s_mov_b64 exec, -1")
        a.label("L_zdone")
        self.stamp(2, "fine")
        a("s_or_b32 s11, s6, s8"); a("s_cmp_lg_u32 s11, 0"); a("s_cbranch_scc1 L_nostat")
        a("v_mov_b32 v12, 0"); a("v_mov_b32 v13, 0")
        self.setexec(L24)
        a(f"v_pk_add_f32 v[14:15], v[{UX}:{UX+1}], v[{UX+2}:{UX+3}]"); a(f"v_pk_mul_f32 v[16:17], v[{UX}:{UX+1}], v[{UX}:{UX+1}]")
        a(f"v_pk_fma_f32 v[16:17], v[{UX+2}:{UX+3}], v[{UX+2}:{UX+3}], v[16:17]")
        a("v_add_f32 v12, v14, v15"); a("v_add_f32 v13, v16, v17")
        a("s_mov_b64 exec, -1")
        self.allreduceN("v_add_f32", [("v12", "v14"), ("v13", "v15")], ["q1", "q2", "r4", "r8", "p16"])
        a("v_mov_b32 v14, 0"); a("v_mov_b32 v15, 0")
        for c in range(4): a(f"v_bfi_b32 v{12+c}, {sFF}, {vTAG}, v{12+c}")
        a("s_lshl_b32 s11, s7, 7"); a(f"s_add_u32 s11, s11, {WS_ST}")
        a("s_mov_b64 exec, 1"); a(f"buffer_store_dwordx4 v[12:15], off, {srd(SRD_WS)}, s11 sc1"); a("s_mov_b64 exec, -1")
        a.label("L_nostat")
        a(f"s_cmp_lt_u32 {sTK}, 90"); a("s_cbranch_scc1 L_fin")
        a("s_cmp_eq_u32 s61, 0"); a("s_cbranch_scc1 L_hexit")
        a.label("L_down")
        self.poll([(20, 1, "v58", WS_C, 0), (21, 1, "v58", WS_C + 2 * MS, 0), (22, 1, "v58", WS_C + MS, 0), (23, 1, "v58", WS_C + 3 * MS, 0)], sleep=p.SL_C)
        self.lane6_reduce([20, 21, 22, 23], 12)
        self.poll([(8, 1, "v58", WS_G, 0), (9, 1, "v58", WS_G + MS, 0), (10, 4, "v59", None, 0)], presleep=p.PS_G, sleep=p.SL_G, strong=(2,))
        self.stamp(3, "fine")
        self.lane6_reduce([8, 9, 10, 11], 14)
        a(f"v_mul_f32 v10, {f32hex(1/576)}, v10"); a(f"v_mul_f32 v11, {f32hex(1/576)}, v11")
        a("v_fma_f32 v11, -v10, v10, v11"); a("v_max_f32 v11, 0, v11"); a(f"v_add_f32 v11, {f32hex(1e-5)}, v11"); a("v_rsq_f32 v11, v11")
        a("v_fma_f32 v8, -v10, v20, v8"); a("v_fma_f32 v9, -v10, v22, v9")
        a("v_fma_f32 v8, v8, v11, v21"); a("v_fma_f32 v9, v9, v11, v23")
        self.sigmoid("v12", "v8", "v12")
        a("v_mul_f32 v8, v12, v9")
        a("v_cvt_pk_bf16_f32 v8, v8, v8")
        for r in range(4): a(f"v_and_b32 v{12+r}, v8, v{vM[r]}")
        for cb in range(9):
            d = 16 + 4 * cb
            a(f"v_mfma_f32_16x16x32_bf16 v[{d}:{d+3}], a[{48+4*cb}:{51+4*cb}], v[12:15], 0")
        self.setexec(self.VALID)
        for cb in range(9): a(f"ds_write_b128 v{FX}, v[{16+4*cb}:{19+4*cb}] offset:{256*cb}")
        a("s_mov_b64 exec, -1")
        a("s_waitcnt lgkmcnt(0)")
        a("s_barrier")
        a(f"s_cmp_ge_u32 {sHW}, 3"); a("s_cbranch_scc1 L_hexit")
        self.setexec(lanes(48))
        for k in range(8): a(f"ds_read_b128 v[{8+4*k}:{11+4*k}], v{FX+1} offset:{L_DOWN + 2304*k}")
        a("s_waitcnt lgkmcnt(0)")
        self.sum_rows4([8 + 4 * k for k in range(8)])
        for c in range(4): a(f"v_bfi_b32 v{8+c}, {sFF}, {vTAG}, v{8+c}")
        a(f"buffer_store_dwordx4 v[8:11], v{FX+1}, {srd(SRD_WS)}, s15 offen sc1")
        self.stamp(7)
        a("s_branch L_hexit")
        a.label("L_fin")
        a(f"s_sub_u32 s14, {sTK}, 72")
        self.set_srd(SRD_B, sX, size=1152)
        a(f"v_and_b32 v46, 7, {vLANE}")
        a("s_lshl_b32 s15, s14, 6"); a("v_lshlrev_b32 v8, 1, v46")
        for r in range(4): a(f"buffer_load_ushort v{FX+r}, v8, {srd(SRD_B)}, s15 offen offset:{16*r}")
        a("v_mov_b32 v8, s14"); self.piece_off("v2", "v8", "v9")
        self.gather_mod([2, 5], "v2", [FGA, FGB], FULL, sleep=2)
        for r in range(4): a(f"v_lshlrev_b32 v{FX+r}, 16, v{FX+r}")
        a("s_lshl_b32 s15, s14, 7"); a("v_lshlrev_b32 v47, 4, v46"); a("v_add_u32 v47, s15, v47")
        a(f"v_lshrrev_b32 v8, 3, {vLANE}"); a("v_mul_u32_u24 v42, 2304, v8"); a("v_add_u32 v42, v42, v47"); a(f"v_add_u32 v42, {WS_ATT}, v42")
        a(f"s_mul_i32 {sT0}, {sHW}, 36"); a(f"v_add_u32 v8, {sT0}, v8"); a("v_mul_u32_u24 v43, 2304, v8"); a("v_add_u32 v43, v43, v47"); a(f"v_add_u32 v43, {WS_OUT}, v43")
        a(f"v_add_u32 v44, {4*8*2304}, v43"); a(f"v_cmp_gt_u32 vcc, 32, {vLANE}"); a("v_cndmask_b32 v44, v43, v44, vcc")
        a(f"s_lshl_b32 {sT0}, {sHW}, 7"); a(f"s_add_u32 {sT0}, {sT0}, {L_FIN}"); a("v_lshlrev_b32 v45, 4, v46"); a(f"v_add_u32 v40, {sT0}, v45")
        self.poll([(8, 4, "v42", None, 0)], sleep=1)
        self.allreduceN("v_add_f32", [(f"v{8+c}", f"v{12+c}") for c in range(4)], ["r8", "p16", "p32"])
        a(f"v_pk_fma_f32 v[{FX}:{FX+1}], v[8:9], v[{FGA}:{FGA+1}], v[{FX}:{FX+1}]"); a(f"v_pk_fma_f32 v[{FX+2}:{FX+3}], v[10:11], v[{FGA+2}:{FGA+3}], v[{FX+2}:{FX+3}]")
        self.set_srd(SRD_B, sOUT, size=1152)
        a("s_lshl_b32 s15, s14, 6"); a("v_lshlrev_b32 v49, 1, v46")
        self.stamp(3, "fine")
        self.poll([(8, 4, "v43", None, 0), (12, 4, "v43", 8*2304, 0), (16, 4, "v43", 16*2304, 0), (20, 4, "v43", 24*2304, 0), (24, 4, "v44", None, 0)], presleep=p.PS_OUT, sleep=p.SL_OUT)
        a(f"v_cmp_gt_u32 vcc, 32, {vLANE}")
        self.sum_rows4([8, 12, 16, 20])
        for c in range(4): a(f"v_cndmask_b32 v{24+c}, 0, v{24+c}, vcc")
        self.sum_rows4([8, 24])
        self.allreduceN("v_add_f32", [(f"v{8+c}", f"v{12+c}") for c in range(4)], ["r8", "p16", "p32"])
        self.setexec(0xFF)
        a("ds_write_b128 v40, v[8:11]")
        a("s_mov_b64 exec, -1")
        a("s_waitcnt lgkmcnt(0)")
        a("s_barrier")
        a(f"s_cmp_lg_u32 {sHW}, 0"); a("s_cbranch_scc1 L_hexit")
        self.setexec(0xFF)
        for w in range(4): a(f"ds_read_b128 v[{8+4*w}:{11+4*w}], v45 offset:{L_FIN + 128*w}")
        a("s_waitcnt lgkmcnt(0)")
        self.sum_rows4([8, 12, 16, 20])
        a(f"v_pk_fma_f32 v[8:9], v[8:9], v[{FGB}:{FGB+1}], v[{FX}:{FX+1}]"); a(f"v_pk_fma_f32 v[10:11], v[10:11], v[{FGB+2}:{FGB+3}], v[{FX+2}:{FX+3}]")
        a("v_cvt_pk_bf16_f32 v12, v8, v9"); a("v_cvt_pk_bf16_f32 v13, v10, v11")
        a(f"buffer_store_short v12, v49, {srd(SRD_B)}, s15 offen"); a(f"buffer_store_short_d16_hi v12, v49, {srd(SRD_B)}, s15 offen offset:16")
        a(f"buffer_store_short v13, v49, {srd(SRD_B)}, s15 offen offset:32"); a(f"buffer_store_short_d16_hi v13, v49, {srd(SRD_B)}, s15 offen offset:48")
        self.stamp(7)
        a("s_cmp_lg_u32 s14, 0"); a("s_cbranch_scc1 L_hexit")
        a("s_mov_b64 exec, 1")
        a(f"v_mov_b32 v8, {sTAG}")
        a(f"buffer_store_dword v8, off, {srd(SRD_WS)}, 0 sc1")
        a("s_branch L_hexit")
        a.label("L_wo")
        a(f"s_and_b32 {sR0}, {sTK}, 7"); a(f"s_lshr_b32 {sR1}, {sTK}, 3")
        a(f"s_lshl_b32 {sT2}, {sR1}, 7")
        self.set_srd(SRD_A, sWO, off=sT2, size_minus_off=4096 * 1152)
        a(f"s_lshl_b32 {sR2}, {sR0}, 2"); a(f"s_add_u32 {sR2}, {sR2}, {sHW}")
        a(f"s_lshl_b32 {sT0}, {sR2}, 7")
        a(f"v_lshrrev_b32 v1, 3, {vLANE}"); a(f"v_add_u32 v1, {sT0}, v1"); a("v_mul_u32_u24 v1, 1152, v1")
        a(f"v_and_b32 v2, 7, {vLANE}"); a("v_lshl_add_u32 v1, v2, 4, v1")
        self.lds_spin(L_WCNT, target=4, sleep=1)
        self.stamp(5)
        a(f"s_mov_b32 {sT0}, 0")
        for t in range(16):
            a(f"buffer_load_dwordx4 a[{96+4*t}:{99+4*t}], v1, {srd(SRD_A)}, {sT0} offen nt")
            if t < 15: a(f"s_add_u32 {sT0}, {sT0}, 9216")
        a(f"s_mul_i32 s4, {sR2}, {8*OSLOT}"); a("s_add_u32 s4, s4, " + str(WS_O))
        a(f"s_mul_i32 {sT0}, {sR0}, 2304"); a(f"s_lshl_b32 {sT1}, {sR1}, 8"); a(f"s_add_u32 {sT0}, {sT0}, {sT1}"); a(f"s_add_u32 s5, {sT0}, {WS_ATT}")
        a(f"v_and_b32 v41, 7, {vLANE}"); a(f"v_mul_u32_u24 v41, {OSLOT}, v41")
        a(f"v_lshlrev_b32 v40, 3, {vLANE}")
        a(f"v_and_b32 v8, 3, {vLANE}"); a("v_mul_u32_u24 v8, 160, v8"); a(f"v_lshrrev_b32 v42, 2, {vLANE}"); a("v_lshl_add_u32 v42, v42, 2, v8")
        a(f"s_mul_i32 {sT0}, {sHW}, {TBLW}"); a(f"s_add_u32 {sT0}, {sT0}, {L_TBL}"); a(f"v_add_u32 v42, {sT0}, v42")
        self.taddr_r("v43", 20)
        self.dpiece_addr("v44", "v8", L_PART, 256)
        a(f"v_lshlrev_b32 v45, 4, {vLANE}")
        a("s_add_u32 s15, s4, 3200")
        self.poll([(8, 4, "v41", "s4", 512)], sleep=4, strong=(0,))
        a(f"v_and_b32 v8, {sFFFF0000}, v8")
        a("v_mov_b32 v10, v8")
        self.allreduce("v_max_f32", "v10", "v11", ["q1", "q2", "hm"])
        a("v_sub_f32 v11, v8, v10"); a(f"v_mul_f32 v11, 0x{LOG2E:08x}, v11"); a("v_exp_f32 v11, v11")
        a("v_mul_f32 v12, v11, v9")
        self.allreduce("v_add_f32", "v12", "v13", ["q1", "q2", "hm"])
        a("v_rcp_f32 v12, v12"); a("v_mul_f32 v11, v11, v12")
        for s_ in range(8): a(f"v_mov_b32_dpp v{48+s_}, v11 row_newbcast:{s_} row_mask:0xf bank_mask:0xf")
        a("s_setprio 3")
        if p.CGATE_O: self.cnt_gate(p.CTGT_O, p.PS_O)
        self.poll([(8 + 2 * s_, 2, "v40", "s4" if s_ < 6 else "s15", s_ * OSLOT if s_ < 6 else (s_ - 5) * OSLOT) for s_ in range(8)], sleep=p.SL_O)
        self.stamp(6, "wo")
        a("v_pk_mul_f32 v[24:25], v[8:9], v[48:49] op_sel_hi:[1,0]")
        a("v_pk_mul_f32 v[26:27], v[10:11], v[48:49] op_sel:[0,1]")
        for s_ in range(2, 8):
            d = 24 + 2 * (s_ & 1); w = 48 + (s_ & ~1)
            sel = "op_sel_hi:[1,0,1]" if (s_ & 1) == 0 else "op_sel:[0,1,0]"
            a(f"v_pk_fma_f32 v[{d}:{d+1}], v[{8+2*s_}:{9+2*s_}], v[{w}:{w+1}], v[{d}:{d+1}] {sel}")
        self.pk_add(24, 24, 26)
        a("v_cvt_pk_bf16_f32 v24, v24, v24"); a("v_cvt_pk_bf16_f32 v25, v25, v25")
        a("ds_write_b32 v42, v24"); a("ds_write_b32 v42, v25 offset:80")
        self.tread(16, 4, "v43")
        self.gemv(16, 96, list(range(16, 32)), 36)
        self.setexec(self.VALID); a("ds_write_b128 v44, v[36:39]"); a("s_mov_b64 exec, -1")
        a("s_waitcnt lgkmcnt(0)")
        a("s_barrier")
        a(f"s_cmp_lg_u32 {sHW}, 0"); a("s_cbranch_scc1 L_wo_done")
        self.setexec(0xFFFF)
        for k in range(8): a(f"ds_read_b128 v[{8+4*k}:{11+4*k}], v45 offset:{L_PART + 256*k}")
        a("s_waitcnt lgkmcnt(0)")
        self.sum_rows4([8 + 4 * k for k in range(8)])
        for c in range(4): a(f"v_bfi_b32 v{8+c}, {sFF}, {vTAG}, v{8+c}")
        a(f"buffer_store_dwordx4 v[8:11], v45, {srd(SRD_WS)}, s5 offen sc1")
        a("s_mov_b64 exec, -1")
        self.stamp(1, "wo")
        a.label("L_wo_done")
        a(f"s_mov_b32 s14, {sTK}")
        down_prep()
        a("s_branch L_down")
        a.label("L_hexit")
        self.dump_stamps(extra=sTK)
        a("s_endpgm")

    def group_watch(self):
        a = self.a; p = self.p
        if not p.GSYNC: return
        a(f"s_cmp_lg_u32 {sHW}, 2"); a("s_cbranch_scc1 L_nogw")
        self.lds_spin(L_MLCNT, target=4, sleep=8)
        a(f"s_lshr_b32 {sT0}, s100, 3"); a(f"s_mul_i32 s4, {sT0}, {8*OSLOT}"); a("s_add_u32 s4, s4, " + str(WS_O))
        a(f"v_and_b32 v41, 7, {vLANE}"); a(f"v_mul_u32_u24 v41, {OSLOT}, v41")
        self.poll([(8, 4, "v41", "s4", 512)], active=0xFF, sleep=p.SL_GW, strong=(0,))
        a("s_mov_b64 exec, 1")
        a(f"v_mov_b32 v8, {L_GRP}"); a("v_mov_b32 v9, 1"); a("ds_write_b32 v8, v9")
        a("s_mov_b64 exec, -1")
        a.label("L_nogw")

    def read_ticket(self):
        a = self.a; L = a.uid("Ltk")
        a(f"s_cmp_lg_u32 {sHW}, 0"); a(f"s_cbranch_scc1 {L}")
        self.set_srd(SRD_B, sDBG, size=256)
        a("s_mov_b64 exec, 1")
        a("v_mov_b32 v8, 1")
        a(f"buffer_atomic_add v8, off, {srd(SRD_B)}, 0 sc0")
        a("s_waitcnt vmcnt(0)")
        a(f"v_add_u32 v8, 1, v8"); a(f"v_mov_b32 v9, {L_TICK}"); a("ds_write_b32 v9, v8")
        a("s_mov_b64 exec, -1")
        a.label(L)
        self.lds_spin(L_TICK, target=1, sleep=1)
        a(f"s_sub_u32 s63, {sT3}, 1")

    def go_watch(self, lab):
        a = self.a; p = self.p
        if not p.GT: return
        L = a.uid("Lgo"); E = a.uid("Lgoe")
        a(f"s_cmp_lg_u32 {sHW}, 2"); a(f"s_cbranch_scc1 {lab}")
        self.lds_spin(L_WCNT, target=4, sleep=2)
        self.set_srd(SRD_B, sDBG, size=256)
        a("s_mov_b64 exec, 1")
        a("v_mov_b32 v8, 1")
        a(f"buffer_atomic_add v8, off, {srd(SRD_B)}, 0 sc0")
        a("s_waitcnt vmcnt(0)")
        a(f"v_readfirstlane_b32 {sT3}, v8"); a(f"s_add_u32 {sT3}, {sT3}, 1")
        a(f"s_mov_b32 {sSPIN}, 0")
        a.label(L)
        a(f"s_cmp_ge_u32 {sT3}, {p.GT}"); a(f"s_cbranch_scc1 {E}")
        a(f"s_sleep {p.GSL}")
        a(f"buffer_load_dword v8, off, {srd(SRD_B)}, 0 sc1")
        a("s_waitcnt vmcnt(0)")
        a(f"v_readfirstlane_b32 {sT3}, v8")
        a(f"s_add_u32 {sSPIN}, {sSPIN}, 1"); a(f"s_cmp_lt_u32 {sSPIN}, {SPIN_MAX}"); a(f"s_cbranch_scc1 {L}")
        a.label(E)
        a(f"v_mov_b32 v8, {L_GO}"); a("v_mov_b32 v9, 1"); a("ds_write_b32 v8, v9")
        a("s_mov_b64 exec, -1")
        a.label(lab)

    def go_watch_u(self): self.go_watch("L_nogo_u")
    def go_watch_w(self): self.go_watch("L_nogo_w")

    def cnt_gate(self, target, presleep):
        a = self.a; L = a.uid("Lcg"); E = a.uid("Lcge")
        self.set_srd(SRD_B, sDBG, size=256)
        a(f"s_mov_b32 {sSPIN}, 0")
        a.label(L)
        a(f"buffer_load_dword v61, off, {srd(SRD_B)}, 0 sc1")
        a("s_waitcnt vmcnt(0)")
        a(f"v_readfirstlane_b32 {sT3}, v61")
        a(f"s_cmp_ge_u32 {sT3}, {target}"); a(f"s_cbranch_scc1 {E}")
        a("s_sleep 6")
        a(f"s_add_u32 {sSPIN}, {sSPIN}, 1"); a(f"s_cmp_lt_u32 {sSPIN}, {SPIN_MAX}"); a(f"s_cbranch_scc1 {L}")
        a.label(E)
        n = presleep
        while n > 0:
            a(f"s_sleep {min(n, 127)}"); n -= 127

    def lane6_reduce(self, regs, T):
        a = self.a
        a(f"v_and_b32 v{T}, 7, {vLANE}"); a(f"v_cmp_gt_u32 vcc, 6, v{T}")
        for r in regs: a(f"v_cndmask_b32 v{r}, 0, v{r}, vcc")
        self.allreduceN("v_add_f32", [(f"v{r}", f"v{T}") for r in regs], ["q1", "q2", "hm"])

    def build(self):
        self.prologue(); self.swave(); self.hwave()
        self.a.label("L_exit"); self.a("s_endpgm")
        return autonop(self.a.lines)

HEADER = open("adaLN_cond__mha_block_cached__glu_gated_glu__decode.s.ref").read().split("; Override launch geometry")[0]

LAST_SITES = {}
def make(p=P):
    g = Gen(p)
    body = g.build()
    global LAST_SITES
    LAST_SITES = getattr(g, "sites", {})
    txt = HEADER + "; Override launch geometry by editing the next line (default: block=256,\n; grid=ceil(out_elems/256), lds=0). Harness parses it; keep it on one line.\n"
    txt += f"; @launch grid=(256,1,1) block=(512,1,1) lds={LDS_BYTES}\n"
    txt += f""".amdgcn_target "amdgcn-amd-amdhsa--gfx950"
.text
.globl {KNAME}
.p2align 8
.type {KNAME},@function
{KNAME}:
"""
    txt += "\n".join(("" if l.endswith(":") else "    ") + l for l in body) + "\n"
    txt += f""".section .rodata,"a"
.p2align 6
.amdhsa_kernel {KNAME}
  .amdhsa_next_free_vgpr 256
  .amdhsa_next_free_sgpr 102
  .amdhsa_accum_offset {NVGPR}
  .amdhsa_group_segment_fixed_size 0
  .amdhsa_kernarg_size 112
  .amdhsa_user_sgpr_count 2
  .amdhsa_user_sgpr_kernarg_segment_ptr 1
  .amdhsa_system_sgpr_workgroup_id_x 1
.end_amdhsa_kernel
"""
    return txt

def report_h(pr, hw, mode, dyn=True):
    if not dyn:
        u = hw[72:252]
        if mode == "fine":
            pr("late trigger", u[:, :, 5]); pr("unit: C done", u[:, :, 1]); pr("unit: attn gathered", u[:, :, 6]); pr("unit: G published", u[:, :, 2])
            pr("  C done singles", hw[72:216, :, 1]); pr("  C done doubles", hw[216:252, :, 1]); pr("  attn gath singles", hw[72:216, :, 6]); pr("  attn gath doubles", hw[216:252, :, 6])
            pr("  G pub singles", hw[72:216, :, 2]); pr("  G pub doubles", hw[216:252, :, 2])
            g = hw[72:252, :, 2]; late = np.argsort(g.max(1))[-8:]
            print("   latest G publishers (id, trig, Cdone, attn, Gpub):", [(int(72 + k), round(float(hw[72+k, :, 5].max()), 2), round(float(hw[72+k, :, 1].max()), 2), round(float(hw[72+k, :, 6].max()), 2), round(float(g[k].max()), 2)) for k in late])
            pr("down: G gathered", hw[72:216, :, 3]); pr("down: published", hw[72:216, :3, 7]); pr("fin: x1", hw[216:234, :, 3]); pr("fin: done", hw[216:234, 0, 7])
        elif mode == "fin":
            f = hw[216:234]
            pr("down: published", hw[72:216, :3, 7]); pr("down: store acked", hw[72:216, :3, 6]); pr("fin: OUT gathered", f[:, :, 1]); pr("fin: before barrier", f[:, :, 2]); pr("fin: after barrier", f[:, :, 3]); pr("fin: done", f[:, 0, 7])
        elif mode == "wo":
            w = hw[:72]; pr("wo: trigger", w[:, :, 5]); pr("wo: ML+weights done", w[:, :, 2]); pr("wo: gathered", w[:, :, 6]); pr("wo: barrier passed", w[:, :, 3]); pr("wo: published", w[:, 0, 7])
        return
    if mode == "pre":
        qs = hw[:192, 0]; mc = hw[192:246, 0]; mn = hw[72:180, 1]
        pr("q gathered (H3)", hw[:, 3, 4])
    elif mode == "wo":
        w = hw[:72]
        pr("wo: trigger", w[:, :, 5]); pr("wo: gathered", w[:, :, 6]); pr("wo: published", w[:, 0, 1])
    elif mode == "fine":
        u = hw[72:234]
        pr("ticket known", hw[:234, :, 4]); pr("ticket W", hw[:72, :, 4]); pr("ticket D", hw[72:126, :, 4]); pr("ticket S", hw[126:234, :, 4])
        pr("unit trigger", u[:, :, 5]); pr("unit: C done D", hw[72:126, :, 1]); pr("unit: C done S", hw[126:234, :, 1]); pr("unit: attn gathered D", hw[72:126, :, 6]); pr("unit: attn gathered S+dn", hw[126:198, :, 6]); pr("unit: attn gathered S", hw[198:234, :, 6])
        pr("G published D", hw[72:126, :, 2]); pr("G published S+dn", hw[126:198, :, 2]); pr("G published S", hw[198:234, :, 2])
        print("   attn gathered by wave:", [round(float(u[:, w, 6].mean()), 2) for w in range(4)], "max", [round(float(u[:, w, 6].max()), 2) for w in range(4)])
        late = np.argsort(u[:, :, 6].max(1))[-6:]; print("   latest attn gathers (ticket, times, Cdone):", [(int(72 + k), u[k, :, 6].round(2).tolist(), u[k, :, 1].round(2).tolist()) for k in late])
        dn = np.concatenate([hw[:72], hw[126:198]])
        pr("down: G gathered", dn[:, :, 3]); pr("down: published", dn[:, :3, 7]); pr("fin: x1", hw[72:90, :, 3]); pr("fin: done", hw[72:90, 0, 7])
    else:
        u = hw[72:234]
        pr("unit trigger", u[:, :, 5]); pr("unit: attn gathered", u[:, :, 6]); pr("fin: done", hw[72:90, 0, 7])
def end_time(hw, dyn=True): return hw[72:90, 0, 7].max() if dyn else hw[216:234, 0, 7].max()
def order_h(hw, tickets):
    o = np.argsort(tickets, kind="stable")
    return hw[o]
import numpy as np

if __name__ == "__main__":
    out = sys.argv[1] if len(sys.argv) > 1 else "adaLN_cond__mha_block_cached__glu_gated_glu__decode.s"
    open(out, "w").write(make())
    print("wrote", out)
```

```python
import sys
from asmlib import Asm, autonop

KNAME = "adaLN_cond__mha_block_cached__glu_gated_glu__decode_kernel"

WS_EPOCH = 0
WS_O = 0x10000
OSLOT = 640
WS_ATT = 0x40000
WS_MOD = 0x80000
WS_Q = 0x90000
WS_OUT = 0xA0000
WS_G = 0x100000
WS_C = 0x140000
WS_ST = 0x1B0000
WS_DBG = 0x200000
WS_SIZE = 0x300000

L_QFLAG = 0
L_WCNT = 4
L_MLCNT = 8
L_OCNT = 12
L_TICK = 16
L_GRP = 20
L_W2 = 24
L_GO = 28
L_SENT = 32
L_Q = 0x40
L_ML = 0x180
L_STAT = 0x1C0
L_TBL = 0x200
TBLW = 768
L_PART = 0x1000
L_OPART = 0x1800
L_FIN = 0x2000
L_DOWN = 0x3000
L_KRING = 0x8000
LDS_BYTES = 0x8000 + 4 * 24 * 1024

LOG2E = 0x3FB8AA3B
SCALE = 0x3DB504F3
SPIN_MAX = 200000
NVGPR = 96

class P:
    R = 44
    D = 5
    NP = 44
    STAMPS = False
    MODE = "tail"
    QSLEEP = 16
    WTRIG = 'done'
    FULLCHECK = False
    LATEMOD = False
    WOEARLY = True
    MAP2 = False
    WOLATE = True
    DYN = False
    DOWNAFTERC = False
    LPACE = 0
    LPACE_T = 150
    NOTAIL = False
    MAPKV = 0
    DBLEARLY = True
    CMERGE = True
    GSYNC = 0
    MLAT = 12
    SL_GW = 8
    TKAT = 1
    SL_C = 2
    SL_O = 0
    CGATE = False
    CTGT = 256
    PS_ATT = 60
    CGATE_O = False
    CTGT_O = 256
    PS_O = 10
    SL_ATT = 0
    SL_G = 0
    SL_OUT = 0
    KVPOL = 'nt'
    WPOL = 'nt'
    DOWNLATER = True
    WOTGT = 4
    WOAT = 0
    CODEPF = False
    OUTPOL = ''
    MAP3 = False
    REPAIR = False
    UNITPACE = 0
    TOUTDBG = False
    SENT_ATT = 8
    SENT1 = False
    AD_O = None
    STREP = False
    SL_FA = 1
    SENT_K = 0
    GT = 0
    GT_W = False
    GSL = 8
    DUP_G = 0
    DUP_OUT = 0
    DUP_O = 0
    UEARLY = False
    UPACE = 2
    UAT = 0
    PRETOUCH = False
    HPRIO0 = 1
    HDELAY = 0
    KLDS = True
    PS_A = 60
    SL_A = 16
    PS_QG = 240
    PS_G = 0
    PS_OUT = 0
    PS_Q = 0
    DEND = 10
    DENDAT = 32
    D2 = 0
    NEARLY = 0
    EPACE = 1
    WTHR = 0
    SPRIO = 2
    WOPACE = 2

def f32hex(x):
    import struct
    return "0x%08x" % struct.unpack("<I", struct.pack("<f", x))[0]

sWAVE = "s3"
sX, sK, sV, sWQ, sWO, sWG, sWU, sWD, sC, sWM, sOUT, sDBG, sWS = 16, 18, 20, 22, 24, 28, 30, 32, 34, 36, 38, 40, 42
SRD_A, SRD_B, SRD_WS, SRD_C = 44, 48, 52, 56
sTAG = "s64"
sT0, sT1, sT2, sT3 = "s65", "s66", "s67", "s68"
sSPIN = "s69"
sSAVE = 72
sHW = "s76"
sR0, sR1, sR2, sR3 = "s77", "s78", "s79", "s83"
sFFFF0000 = "s80"
sFF = "s81"
sSTAMP = 84
def srd(b): return f"s[{b}:{b+3}]"
def sp(b): return f"s[{b}:{b+1}]"
vLANE = "v3"
vM = [4, 5, 6, 7]
vTAG = "v60"
FULL = (1 << 64) - 1
def lanes(n): return (1 << n) - 1

class Gen:
    def __init__(self, p=P):
        self.a = Asm(); self.p = p

    def mask64(self, sreg, val):
        self.a(f"s_mov_b32 s{sreg}, 0x{val & 0xffffffff:08x}"); self.a(f"s_mov_b32 s{sreg+1}, 0x{(val >> 32) & 0xffffffff:08x}")
    def setexec(self, val):
        a = self.a
        if val == FULL: a("s_mov_b64 exec, -1")
        elif val <= 64: a(f"s_mov_b64 exec, {val}")
        elif val < (1 << 31): a(f"s_mov_b64 exec, 0x{val:x}")
        else:
            a(f"s_mov_b32 exec_lo, 0x{val & 0xffffffff:08x}"); a(f"s_mov_b32 exec_hi, 0x{(val >> 32) & 0xffffffff:08x}")
    def stamp(self, idx, mode="tail"):
        if self.p.STAMPS and (mode == self.p.MODE or mode == "all" or (mode == "tail" and self.p.MODE in ("fine", "fin", "wo"))):
            self.a(f"s_memrealtime s[{sSTAMP+2*idx}:{sSTAMP+2*idx+1}]")
    def dump_stamps(self, n=8, extra=None):
        if not self.p.STAMPS: return
        a = self.a
        a("s_waitcnt lgkmcnt(0)")
        a("s_mov_b64 exec, -1")
        a(f"s_lshl_b32 {sT0}, s2, 3"); a(f"s_add_u32 {sT0}, {sT0}, {sWAVE}"); a(f"s_lshl_b32 {sT0}, {sT0}, 7")
        a(f"s_add_u32 {sT0}, {sT0}, {WS_DBG}")
        for i in range(2 * n): a(f"v_writelane_b32 v8, s{sSTAMP+i}, {i}")
        if extra: a(f"v_writelane_b32 v8, {extra}, 16")
        a(f"v_lshlrev_b32 v9, 2, {vLANE}")
        a("s_mov_b64 exec, 0x1ffff")
        a(f"buffer_store_dword v8, v9, {srd(SRD_WS)}, {sT0} offen")
    def tout(self, site):
        if not self.p.TOUTDBG: return
        a = self.a
        self.site = getattr(self, "site", 0) + 1
        self.sites = getattr(self, "sites", {}); self.sites[self.site] = site
        a("s_mov_b64 s[96:97], exec"); a("s_mov_b64 exec, 1")
        a(f"s_lshl_b32 s98, s2, 3"); a(f"s_add_u32 s98, s98, {sWAVE}"); a("s_lshl_b32 s98, s98, 2"); a(f"s_add_u32 s98, s98, {WS_DBG + 0x10000}")
        a(f"v_mov_b32 v63, {self.site}")
        a(f"buffer_store_dword v63, off, {srd(SRD_WS)}, s98 sc1")
        a("s_mov_b64 exec, s[96:97]")
    def lds_spin(self, addr, target=1, vtmp="v61", vaddr="v62", sleep=1):
        a = self.a; L = a.uid("Lspin"); E = a.uid("Lspun")
        a(f"v_mov_b32 {vaddr}, {addr}")
        a(f"s_mov_b32 {sSPIN}, 0")
        a.label(L)
        a(f"ds_read_b32 {vtmp}, {vaddr}")
        a("s_waitcnt lgkmcnt(0)")
        a(f"v_readfirstlane_b32 {sT3}, {vtmp}")
        a(f"s_cmp_ge_u32 {sT3}, {target}")
        a(f"s_cbranch_scc1 {E}")
        if sleep: a(f"s_sleep {sleep}")
        a(f"s_add_u32 {sSPIN}, {sSPIN}, 1")
        a(f"s_cmp_lt_u32 {sSPIN}, {SPIN_MAX * 4}")
        a(f"s_cbranch_scc1 {L}")
        self.tout(f"lds_spin addr={addr} target={target}")
        a.label(E)
    def lds_add1(self, addr, va, vb):
        a = self.a
        a("s_mov_b64 exec, 1")
        a(f"v_mov_b32 {va}, {addr}"); a(f"v_mov_b32 {vb}, 1"); a(f"ds_add_u32 {va}, {vb}")
        a("s_mov_b64 exec, -1")
    def poll(self, loads, active=None, sleep=0, tmps=("v61", "v62", "v63"), presleep=0, strong=(), adapt=None):
        a = self.a; L = a.uid("Lpoll"); E = a.uid("Lpolled")
        t0, t1, t2 = tmps
        sMISS = "s70"
        if active is not None: self.setexec(active)
        if presleep: a(f"s_sleep {presleep}")
        n = len(loads)
        def issue(ld):
            (dst, k, voff, soff, imm) = ld
            op = {1: "buffer_load_dword", 2: "buffer_load_dwordx2", 4: "buffer_load_dwordx4"}[k]
            r = f"v{dst}" if k == 1 else f"v[{dst}:{dst+k-1}]"
            if soff is not None and not str(soff).startswith("s"):
                a(f"s_mov_b32 {sT3}, {soff}"); so = sT3
            else: so = soff if soff is not None else "0"
            a(f"{op} {r}, {voff}, {srd(SRD_WS)}, {so} offen offset:{imm} sc1")
        def test(li, ld):
            if li in strong or self.p.FULLCHECK:
                a(f"v_xor_b32 {t0}, {vTAG}, v{ld[0]}")
                k = 1
                while k < ld[1]:
                    if k + 1 < ld[1]:
                        a(f"v_xor_b32 {t1}, {vTAG}, v{ld[0]+k}"); a(f"v_xor_b32 {t2}, {vTAG}, v{ld[0]+k+1}"); a(f"v_or3_b32 {t0}, {t0}, {t1}, {t2}"); k += 2
                    else:
                        a(f"v_xor_b32 {t1}, {vTAG}, v{ld[0]+k}"); a(f"v_or_b32 {t0}, {t0}, {t1}"); k += 1
                a(f"v_cmp_ne_u32_sdwa vcc, 0, {t0} src0_sel:DWORD src1_sel:BYTE_0") if False else (a(f"v_and_b32 {t0}, 0xff, {t0}"), a(f"v_cmp_ne_u32 vcc, 0, {t0}"))
            else:
                a(f"v_cmp_ne_u32_sdwa vcc, {vTAG}, v{ld[0]} src0_sel:BYTE_0 src1_sel:BYTE_0")
        if n == 1:
            a(f"s_mov_b32 {sSPIN}, 0")
            a.label(L)
            issue(loads[0]); a("s_waitcnt vmcnt(0)")
            test(0, loads[0])
            a(f"s_cbranch_vccz {E}")
            if sleep: a(f"s_sleep {sleep}")
            a(f"s_add_u32 {sSPIN}, {sSPIN}, 1"); a(f"s_cmp_lt_u32 {sSPIN}, {SPIN_MAX}"); a(f"s_cbranch_scc1 {L}")
            self.tout(f"poll1 {loads[0]}")
            a.label(E)
            return
        for ld in loads: issue(ld)
        a(f"s_mov_b32 {sMISS}, 0")
        for li, ld in enumerate(loads):
            Lk = a.uid("Lk")
            a(f"s_waitcnt vmcnt({n-1-li})")
            test(li, ld)
            a(f"s_cbranch_vccz {Lk}")
            a(f"s_bitset1_b32 {sMISS}, {li}")
            a.label(Lk)
        a(f"s_cmp_eq_u32 {sMISS}, 0"); a(f"s_cbranch_scc1 {E}")
        a(f"s_mov_b32 {sSPIN}, 0")
        a.label(L)
        if sleep: a(f"s_sleep {sleep}")
        if adapt:
            Lk = a.uid("La")
            a(f"s_bcnt1_i32_b32 {sT3}, {sMISS}"); a(f"s_cmp_lt_u32 {sT3}, {adapt[0]}"); a(f"s_cbranch_scc1 {Lk}")
            a(f"s_sleep {adapt[1]}"); a.label(Lk)
        for li, ld in enumerate(loads):
            Lk = a.uid("Ls")
            a(f"s_bitcmp1_b32 {sMISS}, {li}"); a(f"s_cbranch_scc0 {Lk}")
            issue(ld); a.label(Lk)
        a("s_waitcnt vmcnt(0)")
        for li, ld in enumerate(loads):
            Lk = a.uid("Lt")
            a(f"s_bitcmp1_b32 {sMISS}, {li}"); a(f"s_cbranch_scc0 {Lk}")
            test(li, ld)
            a(f"s_cbranch_vccnz {Lk}")
            a(f"s_bitset0_b32 {sMISS}, {li}")
            a.label(Lk)
        a(f"s_cmp_eq_u32 {sMISS}, 0"); a(f"s_cbranch_scc1 {E}")
        a(f"s_add_u32 {sSPIN}, {sSPIN}, 1"); a(f"s_cmp_lt_u32 {sSPIN}, {SPIN_MAX}"); a(f"s_cbranch_scc1 {L}")
        self.tout(f"pollN n={n} first={loads[0]}")
        a.label(E)
    def poll_dup(self, loads, bdst, gap, active=None, strong=(), tmps=("v61", "v62", "v63")):
        a = self.a; L = a.uid("Lpd"); E = a.uid("Lpde"); B = a.uid("Lpdb")
        t0, t1, t2 = tmps
        if active is not None: self.setexec(active)
        n = len(loads)
        def issue(ld, dst):
            (_, k, voff, soff, imm) = ld
            op = {1: "buffer_load_dword", 2: "buffer_load_dwordx2", 4: "buffer_load_dwordx4"}[k]
            r = f"v{dst}" if k == 1 else f"v[{dst}:{dst+k-1}]"
            if soff is not None and not str(soff).startswith("s"):
                a(f"s_mov_b32 {sT3}, {soff}"); so = sT3
            else: so = soff if soff is not None else "0"
            a(f"{op} {r}, {voff}, {srd(SRD_WS)}, {so} offen offset:{imm} sc1")
        def test(dsts):
            regs = []
            for li, (ld, d) in enumerate(zip(loads, dsts)):
                regs += [d + k for k in range(ld[1])] if li in strong else [d]
            a(f"v_xor_b32 {t0}, {vTAG}, v{regs[0]}")
            k = 1
            while k < len(regs):
                if k + 1 < len(regs):
                    a(f"v_xor_b32 {t1}, {vTAG}, v{regs[k]}"); a(f"v_xor_b32 {t2}, {vTAG}, v{regs[k+1]}"); a(f"v_or3_b32 {t0}, {t0}, {t1}, {t2}"); k += 2
                else:
                    a(f"v_xor_b32 {t1}, {vTAG}, v{regs[k]}"); a(f"v_or_b32 {t0}, {t0}, {t1}"); k += 1
            a(f"v_cmp_ne_u32_sdwa vcc, 0, {t0} src0_sel:DWORD src1_sel:BYTE_0")
        adst = [ld[0] for ld in loads]
        a(f"s_mov_b32 {sSPIN}, 0")
        a.label(L)
        for ld in loads: issue(ld, ld[0])
        a(f"s_sleep {gap}")
        for ld, d in zip(loads, bdst): issue(ld, d)
        a(f"s_waitcnt vmcnt({n})")
        test(adst)
        a(f"s_cbranch_vccz {E}")
        a("s_waitcnt vmcnt(0)")
        test(bdst)
        a(f"s_cbranch_vccz {B}")
        a(f"s_add_u32 {sSPIN}, {sSPIN}, 1"); a(f"s_cmp_lt_u32 {sSPIN}, {SPIN_MAX}"); a(f"s_cbranch_scc1 {L}")
        a.label(B)
        for ld, d in zip(loads, bdst):
            for k in range(ld[1]): a(f"v_mov_b32 v{ld[0]+k}, v{d+k}")
        a.label(E)

    def bf16_round(self, dst, src, tmp):
        self.a(f"v_cvt_pk_bf16_f32 {tmp}, {src}, {src}"); self.a(f"v_lshlrev_b32 {dst}, 16, {tmp}")
    def bf16_round2(self, d0, d1, s0, s1, tmp):
        a = self.a
        a(f"v_cvt_pk_bf16_f32 {tmp}, {s0}, {s1}"); a(f"v_lshlrev_b32 {d0}, 16, {tmp}"); a(f"v_and_b32 {d1}, {sFFFF0000}, {tmp}")
    def allreduce(self, op, v, t, steps):
        self.allreduceN(op, [(v, t)], steps)
    def allreduceN(self, op, vts, steps):
        a = self.a
        dpp = {"q1": "quad_perm:[1,0,3,2]", "q2": "quad_perm:[2,3,0,1]", "hm": "row_half_mirror", "r4": "row_ror:4", "r8": "row_ror:8"}
        for s in steps:
            if s in dpp:
                for (v, t) in vts: a(f"{op}_dpp {v}, {v}, {v} {dpp[s]} row_mask:0xf bank_mask:0xf")
            else:
                ins = "v_permlane16_swap_b32" if s == "p16" else "v_permlane32_swap_b32"
                for (v, t) in vts: a(f"v_mov_b32 {t}, {v}")
                for (v, t) in vts: a(f"{ins} {v}, {t}")
                for (v, t) in vts: a(f"{op} {v}, {v}, {t}")
    def pk_add(self, d, x, y): self.a(f"v_pk_add_f32 v[{d}:{d+1}], v[{x}:{x+1}], v[{y}:{y+1}]")
    def sum_rows4(self, bases):
        b = list(bases)
        while len(b) > 1:
            nb = []
            for i in range(0, len(b) - 1, 2):
                self.pk_add(b[i], b[i], b[i+1]); self.pk_add(b[i] + 2, b[i] + 2, b[i+1] + 2); nb.append(b[i])
            if len(b) % 2: nb.append(b[-1])
            b = nb
    def gemv(self, ntiles, abase, xx, D, bsets=(8, 12), waits=None):
        a = self.a
        def mkB(t):
            b = bsets[t & 1]
            for r in range(4): a(f"v_and_b32 v{b+r}, v{xx[t]}, v{vM[r]}")
        mkB(0)
        for t in range(ntiles):
            if t + 1 < ntiles: mkB(t + 1)
            if waits and t in waits: a(f"s_waitcnt vmcnt({waits[t]})")
            b = bsets[t & 1]
            c = "0" if t == 0 else f"v[{D}:{D+3}]"
            a(f"v_mfma_f32_16x16x32_bf16 v[{D}:{D+3}], a[{abase+4*t}:{abase+4*t+3}], v[{b}:{b+3}], {c}")
    def taddr_w(self, vaddr, vt, TS):
        a = self.a
        a(f"v_and_b32 {vt}, 1, {vLANE}"); a(f"v_mul_u32_u24 {vt}, {TS*16}, {vt}")
        a(f"v_lshrrev_b32 {vaddr}, 1, {vLANE}"); a(f"v_lshl_add_u32 {vaddr}, {vaddr}, 2, {vt}")
        a(f"s_mul_i32 {sT0}, {sHW}, {TBLW}"); a(f"s_add_u32 {sT0}, {sT0}, {L_TBL}")
        a(f"v_add_u32 {vaddr}, {sT0}, {vaddr}")
    def taddr_r(self, vaddr, TS):
        a = self.a
        a(f"v_lshrrev_b32 {vaddr}, 3, {vLANE}"); a(f"v_mul_u32_u24 {vaddr}, {TS*4}, {vaddr}")
        a(f"s_mul_i32 {sT0}, {sHW}, {TBLW}"); a(f"s_add_u32 {sT0}, {sT0}, {L_TBL}")
        a(f"v_add_u32 {vaddr}, {sT0}, {vaddr}")
    def twrite4(self, regs, vaddr, TS):
        for k in range(4): self.a(f"ds_write_b32 {vaddr}, v{regs[k]} offset:{k*TS*4}")
    def tread(self, first, nb128, vaddr):
        a = self.a
        for i in range(nb128): a(f"ds_read_b128 v[{first+4*i}:{first+4*i+3}], {vaddr} offset:{16*i}")
        a("s_waitcnt lgkmcnt(0)")
    VALID = 0xFF00FF0000FF00FF
    def paddr(self, vaddr, vt, base, rowlen):
        a = self.a
        a(f"v_lshrrev_b32 {vaddr}, 5, {vLANE}"); a(f"v_mul_u32_u24 {vaddr}, {rowlen*4}, {vaddr}")
        a(f"v_bfe_u32 {vt}, {vLANE}, 4, 1"); a(f"v_lshl_add_u32 {vaddr}, {vt}, 7, {vaddr}")
        a(f"v_and_b32 {vt}, 7, {vLANE}"); a(f"v_lshl_add_u32 {vaddr}, {vt}, 2, {vaddr}")
        a(f"s_mul_i32 {sT0}, {sHW}, {2*rowlen*4}"); a(f"s_add_u32 {sT0}, {sT0}, {base}")
        a(f"v_add_u32 {vaddr}, {sT0}, {vaddr}")
    def pwrite(self, D, vaddr, off=0):
        for r in range(4): self.a(f"ds_write_b32 {vaddr}, v{D+r} offset:{off + r*32}")
    def sigmoid(self, dst, v, t):
        a = self.a
        a(f"v_mul_f32 {t}, 0x{(LOG2E | 0x80000000):08x}, {v}"); a(f"v_exp_f32 {t}, {t}")
        a(f"v_add_f32 {t}, 1.0, {t}"); a(f"v_rcp_f32 {dst}, {t}")
    def unpack4(self, dst, src):
        a = self.a
        a(f"v_lshlrev_b32 v{dst}, 16, v{src}"); a(f"v_and_b32 v{dst+1}, {sFFFF0000}, v{src}")
        a(f"v_lshlrev_b32 v{dst+2}, 16, v{src+1}"); a(f"v_and_b32 v{dst+3}, {sFFFF0000}, v{src+1}")
    def round4(self, X, tmp):
        for k in (0, 2): self.bf16_round2(f"v{X+k}", f"v{X+k+1}", f"v{X+k}", f"v{X+k+1}", tmp)
    def set_srd(self, s, base, off=None, size=None, size_minus_off=None):
        a = self.a
        if off is None:
            a(f"s_mov_b32 s{s}, s{base}"); a(f"s_mov_b32 s{s+1}, s{base+1}")
        else:
            a(f"s_add_u32 s{s}, s{base}, {off}"); a(f"s_addc_u32 s{s+1}, s{base+1}, 0")
        if size_minus_off is not None: a(f"s_sub_u32 s{s+2}, {size_minus_off}, {off}")
        else: a(f"s_mov_b32 s{s+2}, {size}")
        a(f"s_mov_b32 s{s+3}, 0x20000")
    def div3(self, q, r, x):
        a = self.a
        a(f"s_mul_i32 {q}, {x}, 0x5556"); a(f"s_lshr_b32 {q}, {q}, 16")
        a(f"s_mul_i32 {r}, {q}, 3"); a(f"s_sub_u32 {r}, {x}, {r}")

    def prologue(self):
        a = self.a
        a("s_cmp_ge_u32 s2, 256"); a("s_cbranch_scc1 L_exit")
        self.stamp(0, "all")
        a("s_load_dwordx16 s[16:31], s[0:1], 0")
        a("s_load_dwordx8 s[32:39], s[0:1], 64")
        a("s_load_dwordx4 s[40:43], s[0:1], 96")
        a("v_lshrrev_b32 v1, 6, v0")
        a(f"v_and_b32 {vLANE}, 63, v0")
        a(f"v_readfirstlane_b32 {sWAVE}, v1")
        a(f"v_and_b32 v8, 1, {vLANE}"); a("v_cmp_eq_u32 vcc, 1, v8")
        a("v_mov_b32 v9, 0xffff"); a("v_mov_b32 v10, 0xffff0000")
        a("v_cndmask_b32 v9, v9, v10, vcc")
        a(f"v_bfe_u32 v8, {vLANE}, 1, 2")
        for r in range(4):
            a(f"v_cmp_eq_u32 vcc, {r}, v8"); a(f"v_cndmask_b32 v{vM[r]}, 0, v9, vcc")
        a(f"s_mov_b32 {sFFFF0000}, 0xffff0000"); a(f"s_mov_b32 {sFF}, 0xff")
        if self.p.MAPKV == 0: a("s_mov_b32 s100, s2")
        elif self.p.MAPKV == 1:
            a("s_and_b32 s100, s2, 31"); a("s_lshl_b32 s100, s100, 3"); a("s_lshr_b32 s101, s2, 5"); a("s_add_u32 s100, s100, s101")
        else:
            a("s_lshr_b32 s101, s2, 3"); a("s_xor_b32 s101, s101, s2"); a("s_and_b32 s101, s101, 7"); a("s_andn2_b32 s100, s2, 7"); a("s_or_b32 s100, s100, s101")
        a(f"s_lshl_b32 {sT0}, {sWAVE}, 10")
        a(f"v_lshrrev_b32 v8, 4, {vLANE}"); a("v_lshlrev_b32 v8, 6, v8")
        a(f"v_bfe_u32 v9, {vLANE}, 2, 2"); a("v_lshl_add_u32 v8, v9, 8, v8")
        a(f"v_and_b32 v9, 3, {vLANE}"); a("v_lshl_add_u32 v8, v9, 4, v8")
        a(f"v_add_u32 v1, {sT0}, v8")
        a(f"v_lshlrev_b32 v9, 4, {vLANE}"); a(f"v_add_u32 v2, {sT0}, v9")
        a(f"s_lshl_b32 {sT2}, s100, 18")
        a(f"s_cmp_ge_u32 {sWAVE}, 4")
        a("s_waitcnt lgkmcnt(0)")
        a("s_cbranch_scc1 L_helper")
    def common_setup(self):
        a = self.a
        a(f"s_load_dword {sTAG}, s[{sWS}:{sWS+1}], 0")
        self.set_srd(SRD_WS, sWS, size=WS_SIZE)
    def get_tag(self):
        a = self.a
        a("s_waitcnt lgkmcnt(0)")
        a(f"s_add_u32 {sTAG}, {sTAG}, 1")
        a(f"s_and_b32 {sT3}, {sTAG}, 0xff")
        a(f"v_mov_b32 {vTAG}, {sT3}")

    def swave(self):
        a = self.a; p = self.p
        R, D, NP = p.R, max(p.D, p.D2), p.NP
        Dlo = p.D
        vK, vV = "v1", "v2"
        B_T = 8; S = 24; DQ = (40, 44); DO = 48; T = 52
        vm, vl, vf = "v56", "v57", "v58"
        vOW, vPUB = "v64", "v65"
        self.set_srd(SRD_A, sK, off=sT2, size=0x40000)
        N = 128
        def slot(i):
            if p.KLDS:
                k = i if i < 64 else (i - 64) % 40
                return f"a[{4*k}:{4*k+3}]"
            k = i % R
            return f"a[{4*k}:{4*k+3}]" if k < 40 else f"v[{68+4*(k-40)}:{71+4*(k-40)}]"
        st = dict(issued=0)
        KL = p.KLDS
        RK = R if not KL else 40
        def issue(throttle=True):
            nonlocal D, Dlo
            i = st["issued"]
            if p.DEND and i >= 64 + p.DENDAT: D = Dlo = p.DEND
            if throttle and i >= Dlo and D != Dlo:
                L = a.uid("Lthr")
                a(f"s_cbranch_vccnz {L}"); a(f"s_waitcnt vmcnt({Dlo-1})"); a.label(L)
            if throttle and i >= D: a(f"s_waitcnt vmcnt({D-1})")
            a(f"s_mov_b32 {sT1}, {(i % 64) * 4096}")
            s_, v_ = (SRD_A, vK) if i < 64 else (SRD_B, vV)
            if KL and RK <= i < 64:
                a(f"s_add_u32 m0, s60, {(i - RK) * 1024}")
                a("s_nop 0")
                a(f"buffer_load_dwordx4 {v_}, {srd(s_)}, {sT1} offen {p.KVPOL} lds")
            else:
                a(f"buffer_load_dwordx4 {slot(i)}, {v_}, {srd(s_)}, {sT1} offen {p.KVPOL}")
            st["issued"] = i + 1
            if i == N - 1: self.lds_add1(L_WCNT, f"v{T}", f"v{T+1}")
            if (p.WOAT and i == 64 + p.WOAT) or (p.UAT and i == 64 + p.UAT): self.lds_add1(L_W2, f"v{T}", f"v{T+1}")
        def need(tile): a(f"s_waitcnt vmcnt({st['issued'] - 1 - tile})")
        if D != Dlo:
            a("s_mov_b64 vcc, 0"); a("s_cmp_lt_u32 s2, 72"); a("s_cbranch_scc1 L_vset"); a("s_cmp_ge_u32 s2, 216"); a("s_cbranch_scc1 L_vset")
            a("s_mov_b64 vcc, -1"); a.label("L_vset")
        self.stamp(3, "start")
        for _ in range(min(Dlo, NP)): issue(False)
        if p.SPRIO: a(f"s_setprio {p.SPRIO}")
        self.set_srd(SRD_B, sV, off=sT2, size=0x40000)
        self.common_setup()
        self.stamp(4, "start")
        a("s_barrier")
        self.stamp(5, "start")
        if p.STAMPS and p.MODE == "start":
            a(f"s_waitcnt vmcnt({D-1})"); self.stamp(6, "start")
        a(f"v_lshrrev_b32 v8, 4, {vLANE}"); a("v_lshlrev_b32 v8, 7, v8")
        a(f"v_and_b32 v9, 7, {vLANE}"); a("v_lshl_add_u32 v8, v9, 2, v8")
        a(f"s_lshl_b32 {sT0}, {sWAVE}, 9"); a(f"s_add_u32 {sT0}, {sT0}, {L_OPART}")
        a(f"v_add_u32 {vOW}, {sT0}, v8")
        a(f"v_lshlrev_b32 {vPUB}, 4, {vLANE}")
        if p.KLDS:
            a(f"s_mul_i32 s60, {sWAVE}, {24*1024}"); a(f"s_add_u32 s60, s60, {L_KRING}")
            a(f"v_lshlrev_b32 v66, 4, {vLANE}"); a("v_add_u32 v66, s60, v66")
        mT = [6, 8, 10, 12]; m1, m3, m23 = 14, 4, 62
        for t in range(4): self.mask64(mT[t], 0x000F000F000F000F << (4 * t))
        self.mask64(m1, 0x2222222222222222); self.mask64(m3, 0x8888888888888888); self.mask64(m23, 0xCCCCCCCCCCCCCCCC)
        while st["issued"] < (64 if p.KLDS else NP): issue()
        self.stamp(1, "all")
        self.get_tag()
        self.lds_spin(L_QFLAG)
        self.stamp(2, "all")
        a(f"v_lshrrev_b32 v{T}, 4, {vLANE}"); a(f"v_lshlrev_b32 v{T}, 6, v{T}")
        a(f"v_and_b32 v{T+1}, 3, {vLANE}"); a(f"v_lshl_add_u32 v{T}, v{T+1}, 4, v{T}")
        a(f"ds_read_b128 v[{T+4}:{T+7}], v{T} offset:{L_Q}")
        a("s_waitcnt lgkmcnt(0)")
        for t in range(4):
            for k in range(4): a(f"v_cndmask_b32 v{B_T+4*t+k}, 0, v{T+4+k}, {sp(mT[t])}")
        STG = (68, 84)
        def stage(g):
            b = 68
            for t in range(4):
                a(f"ds_read_b128 v[{b+4*t}:{b+4*t+3}], v66 offset:{(4*g+t-RK)*1024}")
        def qk_mfma(g):
            d = DQ[g & 1]
            lds = KL and 4 * g >= RK
            if lds: a("s_waitcnt lgkmcnt(0)")
            else: need(4 * g + 3)
            for t in range(4):
                c = "0" if t == 0 else f"v[{d}:{d+3}]"
                b = 68
                src = f"v[{b+4*t}:{b+4*t+3}]" if lds else slot(4*g+t)
                a(f"v_mfma_f32_16x16x32_bf16 v[{d}:{d+3}], {src}, v[{B_T+4*t}:{B_T+4*t+3}], {c}")
        def qk_post(g):
            d = DQ[g & 1]
            a(f"v_cndmask_b32 v{T}, v{d}, v{d+1}, {sp(m1)}")
            a(f"v_cndmask_b32 v{T+1}, v{d+2}, v{d+3}, {sp(m3)}")
            a(f"v_cndmask_b32 v{T}, v{T}, v{T+1}, {sp(m23)}")
            a(f"v_add_f32_dpp v{T+1}, v{T}, v{T} quad_perm:[1,0,3,2] row_mask:0xf bank_mask:0xf")
            a(f"v_add_f32_dpp v{S+g}, v{T+1}, v{T+1} quad_perm:[2,3,0,1] row_mask:0xf bank_mask:0xf")
        g = 0
        if KL:
            while g < 16:
                if 4 * (g + 1) >= RK and g + 1 < 16 and False: pass
                if 4 * g >= RK:
                    need(4 * g + 3); stage(g)
                qk_mfma(g)
                if g > 0: qk_post(g - 1)
                g += 1
                free = min(4 * g, RK) - (st["issued"] - 64)
                nissue = 2 if g <= 3 else 1
                for _ in range(max(0, min(nissue, free))):
                    if st["issued"] < N: issue()
        else:
            while g < 16:
                lag = st["issued"] - 4 * g
                qk_mfma(g)
                if g > 0: qk_post(g - 1)
                g += 1
                free = 4 * g + R - st["issued"]
                nissue = (1 if (g % 3 == 0) else 0) if lag > D + 8 else 4
                for _ in range(min(nissue, free)):
                    if st["issued"] < N: issue()
        qk_post(15)
        self.stamp(3, "tail")
        for _ in range(3): issue(False)
        a(f"s_mov_b32 {sT0}, 0x{SCALE:08x}")
        for k in range(0, 16, 2):
            x, y = f"v{S+k}", f"v{S+k+1}"; t = f"v{T + (k // 2) % 4}"
            a(f"v_cvt_pk_bf16_f32 {t}, {x}, {y}")
            a(f"v_lshlrev_b32 {x}, 16, {t}"); a(f"v_and_b32 {y}, {sFFFF0000}, {t}")
            a(f"v_mul_f32 {x}, {sT0}, {x}"); a(f"v_mul_f32 {y}, {sT0}, {y}")
            a(f"v_cvt_pk_bf16_f32 {t}, {x}, {y}")
            a(f"v_lshlrev_b32 {x}, 16, {t}"); a(f"v_and_b32 {y}, {sFFFF0000}, {t}")
        a(f"v_max3_f32 {vm}, v{S}, v{S+1}, v{S+2}")
        for k in range(3, 15, 2): a(f"v_max3_f32 {vm}, {vm}, v{S+k}, v{S+k+1}")
        a(f"v_max_f32 {vm}, {vm}, v{S+15}")
        self.allreduce("v_max_f32", vm, f"v{T}", ["r4", "r8", "p16", "p32"])
        a(f"s_mov_b32 {sT0}, 0x{LOG2E:08x}")
        a(f"v_mul_f32 v{T+3}, {sT0}, {vm}")
        for k in range(16): a(f"v_fma_f32 v{S+k}, v{S+k}, {sT0}, -v{T+3}")
        for k in range(16): a(f"v_exp_f32 v{S+k}, v{S+k}")
        a(f"v_add_f32 {vl}, v{S}, v{S+1}")
        for k in range(2, 16): a(f"v_add_f32 {vl}, {vl}, v{S+k}")
        for k in range(16): a(f"v_cvt_pk_bf16_f32 v{S+k}, v{S+k}, v{S+k}")
        self.allreduce("v_add_f32", vl, f"v{T}", ["r4", "r8", "p16", "p32"])
        a("s_mov_b64 exec, 1")
        a(f"s_lshl_b32 {sT0}, {sWAVE}, 3"); a(f"s_add_u32 {sT0}, {sT0}, {L_ML}")
        a(f"v_mov_b32 v{T}, {sT0}"); a(f"ds_write_b64 v{T}, v[56:57]")
        a(f"v_mov_b32 v{T}, {L_MLCNT}"); a(f"v_mov_b32 v{T+1}, 1"); a(f"ds_add_u32 v{T}, v{T+1}")
        a("s_mov_b64 exec, -1")
        self.stamp(4, "tail")
        BV = (8, 12)
        def mkB(vi):
            g_, t_ = vi >> 2, vi & 3; b = BV[vi & 1]
            for r in range(4): a(f"v_and_b32_dpp v{b+r}, v{S+g_}, v{vM[r]} row_newbcast:{4*t_} row_mask:0xf bank_mask:0xf")
        def ml_exchange():
            self.lds_spin(L_MLCNT, target=4)
            a(f"v_mov_b32 v16, {L_ML}")
            a("ds_read_b128 v[20:23], v16"); a("ds_read_b128 v[40:43], v16 offset:16")
            a("s_waitcnt lgkmcnt(0)")
            a("v_max3_f32 v16, v20, v22, v40"); a("v_max_f32 v16, v16, v42")
            a(f"s_mov_b32 {sT0}, 0x{LOG2E:08x}")
            a(f"v_sub_f32 {vf}, {vm}, v16"); a(f"v_mul_f32 {vf}, {sT0}, {vf}"); a(f"v_exp_f32 {vf}, {vf}")
            L = a.uid("Lnoml")
            a(f"s_cmp_lg_u32 {sWAVE}, 0"); a(f"s_cbranch_scc1 {L}")
            for i, r in enumerate((20, 22, 40, 42)):
                a(f"v_sub_f32 v{r}, v{r}, v16"); a(f"v_mul_f32 v{r}, {sT0}, v{r}"); a(f"v_exp_f32 v{r}, v{r}")
            a("v_mul_f32 v17, v20, v21"); a("v_fmac_f32 v17, v22, v23"); a("v_fmac_f32 v17, v40, v41"); a("v_fmac_f32 v17, v42, v43")
            a("v_mov_b32 v18, 0"); a("v_mov_b32 v19, 0")
            for c in range(4): a(f"v_bfi_b32 v{16+c}, {sFF}, {vTAG}, v{16+c}")
            a(f"s_mul_i32 {sT0}, s100, {OSLOT}"); a(f"s_add_u32 {sT0}, {sT0}, {WS_O + 512}")
            a("s_mov_b64 exec, 1")
            a(f"buffer_store_dwordx4 v[16:19], off, {srd(SRD_WS)}, {sT0} sc1")
            a("s_mov_b64 exec, -1")
            st["extra_wave0"] = True
            a.label(L)
        mkB(0)
        for vi in range(64):
            if vi + 1 < 64: mkB(vi + 1)
            tile = 64 + vi
            while st["issued"] < N and st["issued"] - tile < (p.DEND if (p.DEND and st["issued"] >= 64 + p.DENDAT) else D) + 1: issue()
            need(tile)
            b = BV[vi & 1]
            c = "0" if vi == 0 else f"v[{DO}:{DO+3}]"
            a(f"v_mfma_f32_16x16x32_bf16 v[{DO}:{DO+3}], {slot(tile)}, v[{b}:{b+3}], {c}")
            if vi == p.MLAT:
                ml_exchange()
            if p.GSYNC and vi == p.GSYNC:
                self.lds_spin(L_GRP, target=1, sleep=2)
        self.stamp(5, "tail")
        for r in range(4): a(f"v_mul_f32 v{DO+r}, {vf}, v{DO+r}")
        self.setexec(0x00FF00FF00FF00FF)
        for r in range(4): a(f"ds_write_b32 {vOW}, v{DO+r} offset:{32*r}")
        a("s_mov_b64 exec, 1")
        a(f"v_mov_b32 v8, {L_OCNT}"); a("v_mov_b32 v9, 1"); a("ds_add_rtn_u32 v9, v8, v9")
        a(f"s_mul_i32 {sT0}, s100, {OSLOT}"); a(f"s_add_u32 {sT0}, {sT0}, {WS_O}")
        a("s_waitcnt lgkmcnt(0)")
        a(f"v_readfirstlane_b32 {sT1}, v9")
        a(f"s_cmp_lg_u32 {sT1}, 3"); a("s_cbranch_scc1 L_sdone")
        self.setexec(lanes(32))
        for w in range(4): a(f"ds_read_b128 v[{12+4*w}:{15+4*w}], {vPUB} offset:{L_OPART + 512*w}")
        a("s_waitcnt lgkmcnt(0)")
        self.sum_rows4([12, 16, 20, 24])
        for c in range(4): a(f"v_bfi_b32 v{12+c}, {sFF}, {vTAG}, v{12+c}")
        a(f"buffer_store_dwordx4 v[12:15], {vPUB}, {srd(SRD_WS)}, {sT0} offen sc1")
        self.stamp(6, "tail")
        a.label("L_sdone")
        self.dump_stamps()
        a("s_endpgm")

    def unit_loads(self, stride_s, tau_s):
        a = self.a
        a(f"s_mul_i32 {sT0}, {tau_s}, 192")
        a(f"v_lshrrev_b32 v1, 3, {vLANE}"); a(f"v_add_u32 v1, {sT0}, v1")
        a(f"v_mul_lo_u32 v1, v1, {stride_s}")
        a(f"v_and_b32 v2, 7, {vLANE}"); a("v_lshl_add_u32 v1, v2, 4, v1")
        a(f"s_lshl_b32 {sT1}, {stride_s}, 3"); a(f"s_mov_b32 {sT0}, 0")
        for t in range(24):
            if self.p.UNITPACE and t >= self.p.UNITPACE: a(f"s_waitcnt vmcnt({self.p.UNITPACE-1})")
            a(f"buffer_load_dwordx4 a[{4*t}:{4*t+3}], v1, {srd(SRD_A)}, {sT0} offen nt")
            if t < 23: a(f"s_add_u32 {sT0}, {sT0}, {sT1}")

    def hwave(self):
        a = self.a; p = self.p
        a.label("L_helper")
        self.common_setup()
        for q in (SRD_A, SRD_B, SRD_C): self.set_srd(q, sWS, size=0)
        a(f"s_setprio {p.HPRIO0}")
        a(f"s_sub_u32 {sHW}, {sWAVE}, 4")
        a("s_mov_b32 s71, 0")
        a(f"s_cmp_lg_u32 {sHW}, 2"); a("s_cbranch_scc1 L_noinit")
        a(f"v_lshlrev_b32 v8, 2, {vLANE}"); a("v_mov_b32 v9, 0")
        self.setexec(0xFFFF); a("ds_write_b32 v8, v9"); a("s_mov_b64 exec, -1"); a("s_waitcnt lgkmcnt(0)")
        a.label("L_noinit")
        a("s_barrier")
        if p.PRETOUCH:
            a(f"s_cmp_lg_u32 {sHW}, 2"); a("s_cbranch_scc1 L_notouch")
            a(f"v_lshlrev_b32 v8, 21, {vLANE}")
            a(f"v_lshlrev_b32 v9, 16, {vLANE}")
            self.setexec(0xF)
            a(f"s_lshl_b32 {sT0}, s100, 18"); self.set_srd(SRD_A, sV, off=sT0, size=0x40000)
            a(f"buffer_load_dword v10, v9, {srd(SRD_A)}, 0 offen nt")
            for k, (ptr, sz) in enumerate(((sWO, 4096 * 1152), (sWG, 576 * 9216), (sWU, 576 * 9216), (sWD, 4608 * 1152))):
                self.set_srd(SRD_A, ptr, size=sz)
                a(f"buffer_load_dword v{11+k}, v8, {srd(SRD_A)}, 0 offen nt")
            a("s_mov_b64 exec, -1")
            self.set_srd(SRD_A, sWS, size=0)
            a.label("L_notouch")
        if p.HDELAY: a(f"s_sleep {p.HDELAY}")
        for r in list(range(40, 60)) + list(range(80, 90)): a(f"v_mov_b32 v{r}, 0")
        if p.WOEARLY and not p.WOLATE:
            a("s_cmp_ge_u32 s2, 72"); a("s_cbranch_scc1 L_nowoearly")
            if not p.MAP2: a(f"s_cmp_eq_u32 {sHW}, 0"); a("s_cbranch_scc1 L_nowoearly")
            a(f"s_and_b32 {sT0}, s2, 7"); a(f"s_lshr_b32 {sT1}, s2, 3"); a(f"s_lshl_b32 {sT2}, {sT1}, 7")
            self.set_srd(SRD_C, sWO, off=sT2, size_minus_off=4096 * 1152)
            a(f"s_lshl_b32 {sT0}, {sT0}, 2"); a(f"s_add_u32 {sT0}, {sT0}, {sHW}"); a(f"s_lshl_b32 {sT0}, {sT0}, 7")
            a(f"v_lshrrev_b32 v1, 3, {vLANE}"); a(f"v_add_u32 v1, {sT0}, v1"); a("v_mul_u32_u24 v1, 1152, v1")
            a(f"v_and_b32 v2, 7, {vLANE}"); a("v_lshl_add_u32 v1, v2, 4, v1")
            a("s_setprio 0")
            a(f"s_mov_b32 {sT0}, 0")
            for t in range(16):
                a(f"buffer_load_dwordx4 a[{96+4*t}:{99+4*t}], v1, {srd(SRD_C)}, {sT0} offen nt")
                if t < 15: a(f"s_add_u32 {sT0}, {sT0}, 9216")
            a(f"s_setprio {p.HPRIO0}")
            a.label("L_nowoearly")
        a(f"s_cmp_eq_u32 {sHW}, 0"); a("s_cbranch_scc1 L_h0")
        a(f"s_cmp_eq_u32 {sHW}, 1"); a("s_cbranch_scc1 L_h1")
        a("s_branch L_nounit")
        a.label("L_h0")
        if p.MAP2:
            a("s_cmp_lt_u32 s2, 72"); a("s_cbranch_scc1 L_nounit")
            a("s_sub_u32 s62, s2, 72"); a("s_branch L_qunit")
            a.label("L_h1")
            a("s_cmp_lt_u32 s2, 72"); a("s_cbranch_scc1 L_nounit")
            a("s_cmp_ge_u32 s2, 242"); a("s_cbranch_scc1 L_nounit")
            a("s_add_u32 s62, s2, 112"); a("s_cmp_lt_u32 s2, 80"); a("s_cbranch_scc1 L_qunit")
            a(f"s_sub_u32 {sT2}, s2, 80"); self.div3(sR0, sR1, sT2)
        else:
            a("s_mov_b32 s62, s2")
            a("s_cmp_lt_u32 s2, 192"); a("s_cbranch_scc1 L_qunit")
            a("s_cmp_ge_u32 s2, 246"); a("s_cbranch_scc1 L_nounit")
            a(f"s_sub_u32 {sT2}, s2, 192"); self.div3(sR0, sR1, sT2)
            a("s_branch L_munit")
            a.label("L_h1")
            if p.MAP3:
                a(f"s_mov_b32 {sT2}, s2"); a("s_cmp_lt_u32 s2, 72"); a("s_cbranch_scc1 L_m3")
                a("s_cmp_lt_u32 s2, 180"); a("s_cbranch_scc1 L_nounit")
                a("s_cmp_ge_u32 s2, 216"); a("s_cbranch_scc1 L_nounit")
                a(f"s_sub_u32 {sT2}, s2, 108")
                a.label("L_m3")
                self.div3(sR0, sR1, sT2); a(f"s_add_u32 {sR0}, {sR0}, 18")
            else:
                a("s_cmp_lt_u32 s2, 72"); a("s_cbranch_scc1 L_nounit")
                a("s_cmp_ge_u32 s2, 180"); a("s_cbranch_scc1 L_nounit")
                a(f"s_sub_u32 {sT2}, s2, 72"); self.div3(sR0, sR1, sT2); a(f"s_add_u32 {sR0}, {sR0}, 18")
        if p.LATEMOD:
            self.lds_spin(L_QFLAG, target=1, sleep=8)
            a("s_setprio 0")
            a("s_mov_b32 s71, 1")
        a.label("L_munit")
        a(f"s_lshl_b32 {sT2}, {sR0}, 7")
        self.set_srd(SRD_A, sWM, off=sT2, size_minus_off=576 * 6912)
        self.set_srd(SRD_B, sC, size=1152)
        a(f"s_mul_i32 {sT0}, {sR1}, 384"); a(f"v_lshlrev_b32 v8, 3, {vLANE}")
        a(f"buffer_load_dwordx2 v[40:41], v8, {srd(SRD_B)}, {sT0} offen")
        a(f"s_mov_b32 {sR2}, 6912")
        self.unit_loads(sR2, sR1)
        self.get_tag()
        self.stamp(1, "pre")
        a(f"s_mul_i32 {sR2}, {sR0}, 3"); a(f"s_add_u32 {sR2}, {sR2}, {sR1}"); a(f"s_lshl_b32 {sR2}, {sR2}, 8"); a(f"s_add_u32 {sR2}, {sR2}, {WS_MOD}")
        self.taddr_w("v2", "v8", 24)
        a("s_waitcnt vmcnt(24)")
        self.unpack4(44, 40)
        for k in range(4): self.sigmoid(f"v{48+k}", f"v{44+k}", f"v{48+k}")
        for k in range(4): a(f"v_mul_f32 v{44+k}, v{44+k}, v{48+k}")
        for k in range(4): a(f"v_cvt_pk_bf16_f32 v{44+k}, v{44+k}, v{44+k}")
        self.setexec(lanes(48)); self.twrite4([44, 45, 46, 47], "v2", 24); a("s_mov_b64 exec, -1")
        self.stamp(2, "pre")
        a("s_branch L_unit_gemv")
        a.label("L_qunit")
        self.div3(sR0, sR1, "s62")
        a(f"s_lshl_b32 {sT2}, {sR0}, 7")
        self.set_srd(SRD_A, sWQ, off=sT2, size_minus_off=576 * 8192)
        self.set_srd(SRD_B, sX, size=1152)
        a(f"v_lshrrev_b32 v8, 3, {vLANE}"); a("v_lshlrev_b32 v8, 5, v8"); a(f"v_and_b32 v9, 7, {vLANE}"); a("v_add_u32 v8, v8, v9"); a("v_lshlrev_b32 v8, 1, v8")
        a(f"s_mul_i32 {sT0}, {sR1}, 384")
        for r in range(4): a(f"buffer_load_ushort v{44+r}, v8, {srd(SRD_B)}, {sT0} offen offset:{16*r}")
        a(f"v_lshlrev_b32 v9, 5, {vLANE}")
        a(f"buffer_load_dwordx4 v[16:19], v9, {srd(SRD_B)}, 0 offen")
        a(f"buffer_load_dwordx4 v[20:23], v9, {srd(SRD_B)}, 0 offen offset:16")
        a(f"s_mov_b32 {sR2}, 8192")
        self.unit_loads(sR2, sR1)
        self.get_tag()
        a(f"s_mul_i32 {sR2}, {sR0}, 3"); a(f"s_add_u32 {sR2}, {sR2}, {sR1}"); a(f"s_lshl_b32 {sR2}, {sR2}, 8"); a(f"s_add_u32 {sR2}, {sR2}, {WS_Q}")
        a(f"s_mul_i32 {sT0}, {sR1}, 6"); a(f"v_lshrrev_b32 v8, 3, {vLANE}"); a(f"v_add_u32 v8, {sT0}, v8")
        a("v_lshrrev_b32 v9, 1, v8"); a("v_mul_u32_u24 v9, 768, v9")
        a("v_and_b32 v8, 1, v8"); a("v_lshl_add_u32 v9, v8, 7, v9")
        a(f"v_and_b32 v8, 7, {vLANE}"); a("v_lshl_add_u32 v50, v8, 4, v9")
        a(f"v_mul_u32_u24 v51, 96, v8"); a(f"v_lshrrev_b32 v9, 3, {vLANE}"); a("v_lshl_add_u32 v51, v9, 4, v51")
        a(f"s_mul_i32 {sT0}, {sHW}, {TBLW}"); a(f"s_add_u32 {sT0}, {sT0}, {L_TBL}"); a(f"v_add_u32 v51, {sT0}, v51")
        a("s_waitcnt vmcnt(24)")
        for r in range(4): a(f"v_lshlrev_b32 v{44+r}, 16, v{44+r}")
        for i in range(8):
            a(f"v_lshlrev_b32 v{24+2*i}, 16, v{16+i}"); a(f"v_and_b32 v{25+2*i}, {sFFFF0000}, v{16+i}")
        a("v_add_f32 v48, v24, v25")
        for i in range(2, 16): a(f"v_add_f32 v48, v48, v{24+i}")
        self.allreduce("v_add_f32", "v48", "v49", ["q1", "q2", "r4", "r8", "p16", "p32"])
        a(f"v_mul_f32 v48, {f32hex(1/576)}, v48")
        for i in range(16): a(f"v_sub_f32 v{24+i}, v{24+i}, v48")
        a("v_mul_f32 v49, v24, v24")
        for i in range(1, 16): a(f"v_fmac_f32 v49, v{24+i}, v{24+i}")
        a(f"v_cmp_gt_u32 vcc, 36, {vLANE}"); a("v_cndmask_b32 v49, 0, v49, vcc")
        self.allreduce("v_add_f32", "v49", "v52", ["q1", "q2", "r4", "r8", "p16", "p32"])
        a(f"v_mul_f32 v49, {f32hex(1/576)}, v49")
        self.bf16_round2("v48", "v49", "v48", "v49", "v52")
        a(f"v_add_f32 v49, {f32hex(1e-5)}, v49"); self.bf16_round("v49", "v49", "v52")
        a("v_sqrt_f32 v49, v49"); self.bf16_round("v49", "v49", "v52"); a("v_rcp_f32 v49, v49")
        for k in range(4): a(f"v_sub_f32 v{44+k}, v{44+k}, v48")
        self.round4(44, "v52")
        for k in range(4): a(f"v_mul_f32 v{44+k}, v{44+k}, v49")
        self.round4(44, "v52")
        self.stamp(1, "pre")
        self.poll([(8 + 4 * t, 4, "v50", WS_MOD, 256 * t) for t in range(3)] + [(20 + 4 * t, 4, "v50", WS_MOD + 9 * 768, 256 * t) for t in range(3)],
                  active=lanes(48), sleep=p.SL_A, presleep=p.PS_A)
        self.stamp(2, "pre")
        self.sum_rows4([8, 12, 16]); self.sum_rows4([20, 24, 28])
        self.round4(8, "v52"); self.round4(20, "v53")
        for k in range(4): a(f"v_add_f32 v{20+k}, 1.0, v{20+k}")
        self.round4(20, "v52")
        for k in range(4): a(f"v_mul_f32 v{44+k}, v{44+k}, v{20+k}")
        self.round4(44, "v52")
        for k in range(4): a(f"v_add_f32 v{44+k}, v{44+k}, v{8+k}")
        for k in range(4): a(f"v_cvt_pk_bf16_f32 v{44+k}, v{44+k}, v{44+k}")
        a("ds_write_b128 v51, v[44:47]")
        a("s_mov_b64 exec, -1")
        a.label("L_unit_gemv")
        self.taddr_r("v2", 24)
        self.tread(16, 6, "v2")
        self.gemv(24, 0, list(range(16, 40)), 40, waits={0: 20, 4: 16, 8: 12, 12: 8, 16: 4, 20: 0})
        self.stamp(3, "pre")
        a(f"v_lshrrev_b32 v2, 4, {vLANE}"); a("v_lshlrev_b32 v2, 7, v2"); a(f"v_and_b32 v8, 7, {vLANE}"); a("v_lshl_add_u32 v2, v8, 4, v2")
        for r in range(4): a(f"v_mov_b32 v{44+r}, v{40+r}")
        for r in range(4): a(f"v_permlane32_swap_b32 v{40+r}, v{44+r}")
        for r in range(4): a(f"v_add_f32_dpp v{40+r}, v{44+r}, v{40+r} row_ror:8 row_mask:0xf bank_mask:0xf")
        for r in range(4): a(f"v_bfi_b32 v{40+r}, {sFF}, {vTAG}, v{40+r}")
        self.setexec(0x00FF00FF)
        a(f"buffer_store_dwordx4 v[40:43], v2, {srd(SRD_WS)}, {sR2} offen sc1")
        a("s_mov_b64 exec, -1")
        if p.STAMPS and p.MODE == "pre":
            a("s_waitcnt vmcnt(0)")
        self.stamp(7, "pre")
        a("s_branch L_pre_done")
        a.label("L_nounit")
        self.get_tag()
        a.label("L_pre_done")
        a(f"s_cmp_lg_u32 {sHW}, 3"); a("s_cbranch_scc1 L_noq")
        a(f"s_lshr_b32 {sT0}, s100, 3"); a(f"s_mul_i32 {sT0}, {sT0}, {2*768}"); a(f"s_add_u32 {sR0}, {sT0}, {WS_Q}")
        a(f"v_lshrrev_b32 v8, 4, {vLANE}"); a("v_mul_u32_u24 v2, 768, v8"); a(f"v_and_b32 v9, 15, {vLANE}"); a("v_lshl_add_u32 v2, v9, 4, v2")
        a("v_lshlrev_b32 v8, 6, v8"); a(f"v_bfe_u32 v9, {vLANE}, 3, 1"); a("v_lshl_add_u32 v8, v9, 5, v8")
        a(f"v_and_b32 v9, 7, {vLANE}"); a("v_add_u32 v8, v8, v9"); a("v_lshlrev_b32 v24, 1, v8")
        if p.PS_QG > 127: a("s_sleep 127")
        self.poll([(8 + 4 * t, 4, "v2", sR0, 256 * t) for t in range(3)], active=lanes(32), sleep=p.QSLEEP, presleep=(p.PS_QG - 127 if p.PS_QG > 127 else p.PS_QG))
        self.sum_rows4([8, 12, 16])
        a("v_cvt_pk_bf16_f32 v12, v8, v9"); a("v_cvt_pk_bf16_f32 v13, v10, v11")
        a(f"ds_write_b16 v24, v12 offset:{L_Q}"); a(f"ds_write_b16_d16_hi v24, v12 offset:{L_Q + 16}")
        a(f"ds_write_b16 v24, v13 offset:{L_Q + 32}"); a(f"ds_write_b16_d16_hi v24, v13 offset:{L_Q + 48}")
        a("s_waitcnt lgkmcnt(0)")
        a("s_mov_b64 exec, 1")
        a(f"v_mov_b32 v8, {L_QFLAG}"); a("v_mov_b32 v9, 1"); a("ds_write_b32 v8, v9")
        a("s_mov_b64 exec, -1")
        if p.MODE != "fine": self.stamp(4, "all")
        a.label("L_noq")
        if p.NOTAIL:
            self.dump_stamps(); a("s_endpgm")
        elif p.DYN: self.tail_dyn()
        else: self.tail()

    def piece_off(self, dst, gam_v, tmp):
        a = self.a
        a(f"v_lshrrev_b32 {tmp}, 1, {gam_v}"); a(f"v_mul_u32_u24 {tmp}, 768, {tmp}")
        a(f"v_and_b32 {dst}, 1, {gam_v}"); a(f"v_lshl_add_u32 {tmp}, {dst}, 7, {tmp}")
        a(f"v_and_b32 {dst}, 7, {vLANE}"); a(f"v_lshl_add_u32 {dst}, {dst}, 4, {tmp}")
    def gather_mod(self, vecs, voff, dsts, active, tmp0=8, sleep=16):
        a = self.a
        loads = []
        for i, v in enumerate(vecs):
            for t in range(3): loads.append((tmp0 + 12 * i + 4 * t, 4, voff, WS_MOD + 9 * v * 768, 256 * t))
        self.poll(loads, active=active, sleep=sleep)
        for i, v in enumerate(vecs):
            b = tmp0 + 12 * i
            self.sum_rows4([b, b + 4, b + 8]); self.round4(b, "v61")
            for r in range(4): a(f"v_mov_b32 v{dsts[i]+r}, v{b+r}")
    def half_add(self, D, T):
        a = self.a
        for r in range(4): a(f"v_mov_b32 v{T+r}, v{D+r}")
        for r in range(4): a(f"v_permlane32_swap_b32 v{D+r}, v{T+r}")
        for r in range(4): a(f"v_add_f32_dpp v{D+r}, v{T+r}, v{D+r} row_ror:8 row_mask:0xf bank_mask:0xf")
    def dpiece_addr(self, vaddr, vt, base, rowbytes):
        a = self.a
        a(f"v_lshrrev_b32 {vaddr}, 5, {vLANE}"); a(f"v_mul_u32_u24 {vaddr}, {rowbytes}, {vaddr}")
        a(f"v_bfe_u32 {vt}, {vLANE}, 4, 1"); a(f"v_lshl_add_u32 {vaddr}, {vt}, 7, {vaddr}")
        a(f"v_and_b32 {vt}, 7, {vLANE}"); a(f"v_lshl_add_u32 {vaddr}, {vt}, 4, {vaddr}")
        a(f"s_mul_i32 {sT0}, {sHW}, {2*rowbytes}"); a(f"s_add_u32 {sT0}, {sT0}, {base}")
        a(f"v_add_u32 {vaddr}, {sT0}, {vaddr}")

    def tail(self):
        a = self.a; p = self.p
        L24 = lanes(24)
        UX, UGA, UC1, USB = 64, 68, 72, 76
        vUT, vUR, vUP, vUA = "v80", "v81", "v82", "v83"
        FX, FGA, FGB = 84, 88, 92
        MS = 72 * 6 * 256
        a.label("L_tail")
        a("s_setprio 0")
        self.lds_spin(L_QFLAG, target=1, sleep=8)
        if p.CODEPF: self.code_prefetch("L_tail", "L_exit", 16, "L_pc1")
        self.group_watch()
        a("s_cmp_lt_u32 s2, 72"); a("s_cbranch_scc1 L_wo")
        a("s_cmp_ge_u32 s2, 252"); a("s_cbranch_scc1 L_hexit")
        a("s_cmp_ge_u32 s2, 216"); a("s_cbranch_scc1 L_dbl")
        a(f"s_sub_u32 {sT2}, s2, 72"); self.div3("s6", "s7", sT2)
        if p.REPAIR:
            a("s_cmp_ge_u32 s6, 24"); a("s_cbranch_scc1 L_hi24")
            a(f"s_lshr_b32 {sT0}, s6, 2"); a(f"s_lshl_b32 {sT0}, {sT0}, 3"); a(f"s_and_b32 {sT1}, s6, 1"); a(f"s_add_u32 {sT0}, {sT0}, {sT1}")
            a(f"s_and_b32 {sT1}, s6, 2"); a(f"s_lshl_b32 {sT1}, {sT1}, 1"); a(f"s_add_u32 {sT0}, {sT0}, {sT1}"); a(f"s_add_u32 s6, {sT0}, 2")
            a("s_branch L_uprep")
            a.label("L_hi24")
            a("s_add_u32 s6, s6, 24")
        a("s_branch L_uprep")
        a.label("L_dbl")
        a(f"s_sub_u32 {sT2}, s2, 216"); self.div3("s6", "s7", sT2)
        if p.REPAIR:
            a(f"s_lshr_b32 {sT0}, s6, 1"); a(f"s_lshl_b32 {sT0}, {sT0}, 3"); a("s_and_b32 s6, s6, 1"); a("s_lshl_b32 s6, s6, 2"); a(f"s_add_u32 s6, s6, {sT0}")
        else:
            a("s_lshl_b32 s6, s6, 1"); a("s_add_u32 s6, s6, 48")
        a.label("L_uprep")
        a(f"s_lshr_b32 {sT0}, {sHW}, 1"); a("s_lshl_b32 s7, s7, 1"); a(f"s_add_u32 s7, s7, {sT0}")
        a(f"s_and_b32 s8, {sHW}, 1")
        a("s_mul_i32 s9, s7, 3")
        a(f"v_lshrrev_b32 v8, 3, {vLANE}"); a("v_add_u32 v8, s9, v8")
        self.piece_off("v2", "v8", "v9")
        a(f"v_lshlrev_b32 {vUA}, 7, v8"); a(f"v_and_b32 v9, 7, {vLANE}"); a(f"v_lshl_add_u32 {vUA}, v9, 4, {vUA}"); a(f"v_add_u32 {vUA}, {WS_ATT}, {vUA}")
        self.set_srd(SRD_B, sX, size=1152)
        a("v_lshlrev_b32 v8, 5, v8"); a("v_add_u32 v8, v8, v9"); a("v_lshlrev_b32 v8, 1, v8")
        for r in range(4): a(f"buffer_load_ushort v{UX+r}, v8, {srd(SRD_B)}, 0 offen offset:{16*r}")
        a(f"buffer_load_ushort v86, off, {srd(SRD_B)}, 0")
        self.gather_mod([2, 4, 3], "v2", [UGA, UC1, USB], L24, sleep=4)
        a("s_mov_b64 exec, -1")
        for r in range(4): a(f"v_lshlrev_b32 v{UX+r}, 16, v{UX+r}")
        a("v_lshlrev_b32 v86, 16, v86")
        for r in range(4): a(f"v_sub_f32 v{UX+r}, v{UX+r}, v86")
        for r in range(4): a(f"v_add_f32 v{UC1+r}, 1.0, v{UC1+r}")
        self.round4(UC1, "v8")
        a(f"s_mul_i32 {sT0}, {sHW}, {TBLW}"); a(f"s_add_u32 {sT0}, {sT0}, {L_TBL}")
        a(f"v_and_b32 v8, 7, {vLANE}"); a(f"v_mul_u32_u24 {vUT}, 48, v8"); a(f"v_lshrrev_b32 v9, 3, {vLANE}"); a(f"v_lshl_add_u32 {vUT}, v9, 4, {vUT}"); a(f"v_add_u32 {vUT}, {sT0}, {vUT}")
        a(f"v_mul_u32_u24 {vUR}, 48, v9"); a(f"v_add_u32 {vUR}, {sT0}, {vUR}")
        a(f"v_lshrrev_b32 {vUP}, 4, {vLANE}"); a(f"v_lshlrev_b32 {vUP}, 7, {vUP}"); a(f"v_lshl_add_u32 {vUP}, v8, 4, {vUP}")
        a("s_mul_i32 s10, s8, 72"); a("s_add_u32 s10, s10, s6"); a("s_mul_i32 s10, s10, 6"); a("s_add_u32 s10, s10, s7"); a("s_lshl_b32 s10, s10, 8")
        a("s_cmp_eq_u32 s8, 0"); a(f"s_cselect_b32 s12, s{sWG}, s{sWU}"); a(f"s_cselect_b32 s13, s{sWG+1}, s{sWU+1}")
        a(f"s_lshl_b32 {sT2}, s6, 7")
        self.set_srd(SRD_C, 12, off=sT2, size_minus_off=576 * 9216)
        a("s_mul_i32 s11, s7, 96"); a(f"v_lshrrev_b32 v56, 3, {vLANE}"); a("v_add_u32 v56, s11, v56"); a("v_mul_u32_u24 v56, 9216, v56")
        a(f"v_and_b32 v8, 7, {vLANE}"); a("v_lshl_add_u32 v56, v8, 4, v56")
        if p.UEARLY:
            if p.UAT: self.lds_spin(L_W2, target=1, sleep=8)
            a(f"s_mov_b32 {sT0}, 0")
            for t_ in range(12):
                if t_ >= p.UPACE: a(f"s_waitcnt vmcnt({p.UPACE-1})")
                a(f"buffer_load_dwordx4 a[{4*t_}:{4*t_+3}], v56, {srd(SRD_C)}, {sT0} offen nt")
                if t_ < 11: a(f"s_add_u32 {sT0}, {sT0}, {8*9216}")
        if p.DBLEARLY:
            a("s_cmp_lt_u32 s2, 216"); a("s_cbranch_scc1 L_noearly2")
            a(f"s_mov_b32 {sT0}, 128")
            for t_ in range(12):
                if t_ >= p.WOPACE: a(f"s_waitcnt vmcnt({p.WOPACE-1})")
                a(f"buffer_load_dwordx4 a[{48+4*t_}:{51+4*t_}], v56, {srd(SRD_C)}, {sT0} offen nt")
                if t_ < 11: a(f"s_add_u32 {sT0}, {sT0}, {8*9216}")
            a.label("L_noearly2")
        a("s_cmp_ge_u32 s2, 216"); a("s_cbranch_scc1 L_finprep")
        a(f"s_sub_u32 s14, s2, 72")
        a(f"s_mul_i32 {sT2}, s14, {32*1152}"); self.set_srd(SRD_A, sWD, off=sT2, size=32 * 1152)
        a(f"s_lshl_b32 {sT0}, {sHW}, 3")
        a(f"v_lshrrev_b32 v57, 3, {vLANE}"); a(f"v_add_u32 v57, {sT0}, v57"); a("v_mul_u32_u24 v57, 1152, v57")
        a(f"v_and_b32 v8, 7, {vLANE}"); a("v_lshl_add_u32 v57, v8, 4, v57")
        a("s_lshr_b32 s15, s14, 1"); a("s_mul_i32 s15, s15, 1536"); a(f"s_and_b32 {sT0}, s14, 1"); a(f"s_lshl_b32 {sT0}, {sT0}, 7"); a(f"s_add_u32 s15, s15, {sT0}")
        a(f"s_lshl_b32 {sT0}, {sHW}, 2"); a(f"s_add_u32 s15, s15, {sT0}")
        a(f"v_and_b32 v8, 7, {vLANE}"); a("v_min_u32 v8, 5, v8"); a("v_lshlrev_b32 v58, 8, v8"); a(f"v_lshrrev_b32 v9, 3, {vLANE}"); a("v_lshl_add_u32 v58, v9, 4, v58"); a("v_add_u32 v58, s15, v58")
        a("v_lshlrev_b32 v59, 7, v8"); a(f"v_add_u32 v59, {WS_ST}, v59")
        if p.STREP:
            a(f"s_and_b32 {sT0}, s2, 7"); a(f"s_lshl_b32 {sT0}, {sT0}, 10"); a(f"v_add_u32 v59, {sT0}, v59")
        self.dpiece_addr(f"v{FX}", "v8", L_DOWN, 2304)
        a(f"s_mul_i32 {sT0}, {sHW}, 48"); a(f"v_add_u32 v{FX+1}, {sT0}, {vLANE}"); a(f"v_lshlrev_b32 v{FX+1}, 4, v{FX+1}")
        a("s_mul_i32 s15, s14, 2304"); a(f"s_add_u32 s15, s15, {WS_OUT}")
        a("s_branch L_late")
        a.label("L_finprep")
        a("s_cmp_ge_u32 s2, 234"); a("s_cbranch_scc1 L_late")
        a(f"s_sub_u32 s14, s2, 216")
        self.set_srd(SRD_B, sX, size=1152)
        a(f"v_and_b32 v46, 7, {vLANE}")
        a("s_lshl_b32 s15, s14, 6"); a("v_lshlrev_b32 v8, 1, v46")
        for r in range(4): a(f"buffer_load_ushort v{FX+r}, v8, {srd(SRD_B)}, s15 offen offset:{16*r}")
        a("v_mov_b32 v8, s14"); self.piece_off("v2", "v8", "v9")
        self.gather_mod([2, 5], "v2", [FGA, FGB], FULL, sleep=4)
        for r in range(4): a(f"v_lshlrev_b32 v{FX+r}, 16, v{FX+r}")
        a.label("L_late")
        if p.LPACE:
            self.lds_spin(L_WCNT, target=1, sleep=2)
            self.read_ticket()
        if p.GT:
            self.go_watch_u()
            self.lds_spin(L_GO, target=1, sleep=2)
        if not p.UEARLY: self.lds_spin(L_WCNT if p.WTRIG == "issued" else L_OCNT, target=4, sleep=2)
        self.stamp(5)
        if p.LPACE:
            a(f"s_cmp_ge_u32 s63, {p.LPACE_T}"); a("s_cbranch_scc1 L_ufast")
            a(f"s_mov_b32 {sT0}, 0")
            for t in range(12):
                if t >= p.LPACE: a(f"s_waitcnt vmcnt({p.LPACE-1})")
                a(f"buffer_load_dwordx4 a[{4*t}:{4*t+3}], v56, {srd(SRD_C)}, {sT0} offen nt")
                if t < 11: a(f"s_add_u32 {sT0}, {sT0}, {8*9216}")
            a("s_branch L_uissued")
            a.label("L_ufast")
        a(f"s_mov_b32 {sT0}, 0")
        for t in range(12 if not p.UEARLY else 0):
            a(f"buffer_load_dwordx4 a[{4*t}:{4*t+3}], v56, {srd(SRD_C)}, {sT0} offen nt")
            if t < 11: a(f"s_add_u32 {sT0}, {sT0}, {8*9216}")
        a.label("L_uissued")
        a("s_cmp_ge_u32 s2, 216"); a("s_cbranch_scc1 L_late2")
        if p.DOWNLATER: a("s_waitcnt vmcnt(0)")
        for cb in range(9 if not p.DOWNAFTERC else 0):
            a(f"buffer_load_dwordx4 a[{48+4*cb}:{51+4*cb}], v57, {srd(SRD_A)}, 0 offen offset:{128*cb} nt")
        a("s_setprio 3")
        if not p.DOWNLATER: a("s_waitcnt vmcnt(9)")
        a("s_branch L_unit")
        a.label("L_late2")
        if not p.DBLEARLY:
            a(f"s_mov_b32 {sT0}, 128")
            for t in range(12):
                a(f"buffer_load_dwordx4 a[{48+4*t}:{51+4*t}], v56, {srd(SRD_C)}, {sT0} offen nt")
                if t < 11: a(f"s_add_u32 {sT0}, {sT0}, {8*9216}")
        a("s_setprio 3")
        a("s_waitcnt vmcnt(0)")
        a.label("L_unit")
        cnt = [0]
        def unit_pass(src4, area):
            cnt[0] += 1; L = f"L_up{cnt[0]}"
            for k in range(4): a(f"v_cvt_pk_bf16_f32 v{8+k}, v{src4+k}, v{src4+k}")
            self.setexec(L24); a(f"ds_write_b128 {vUT}, v[8:11]"); a("s_mov_b64 exec, -1")
            self.tread(16, 3, vUR)
            for st_ in range(2):
                if st_ == 1:
                    a("s_cmp_lt_u32 s2, 216"); a(f"s_cbranch_scc1 {L}")
                self.gemv(12, 48 * st_, list(range(16, 28)), 36)
                self.half_add(36, 40)
                for r in range(4): a(f"v_bfi_b32 v{36+r}, {sFF}, {vTAG}, v{36+r}")
                a(f"s_add_u32 {sT0}, s10, {area + 1536 * st_}")
                self.setexec(0x00FF00FF); a(f"buffer_store_dwordx4 v[36:39], {vUP}, {srd(SRD_WS)}, {sT0} offen sc1"); a("s_mov_b64 exec, -1")
            a.label(L)
        if p.CMERGE:
            for k in range(4): a(f"v_cvt_pk_bf16_f32 v{8+k}, v{UC1+k}, v{UC1+k}")
            for k in range(4): a(f"v_cvt_pk_bf16_f32 v{12+k}, v{USB+k}, v{USB+k}")
            self.setexec(L24); a(f"ds_write_b128 {vUT}, v[8:11]"); a(f"ds_write_b128 {vUT}, v[12:15] offset:384"); a("s_mov_b64 exec, -1")
            for i_ in range(3): a(f"ds_read_b128 v[{16+4*i_}:{19+4*i_}], {vUR} offset:{16*i_}")
            for i_ in range(3): a(f"ds_read_b128 v[{28+4*i_}:{31+4*i_}], {vUR} offset:{384+16*i_}")
            a("s_waitcnt lgkmcnt(0)")
            for st_ in range(2):
                if st_ == 1:
                    a("s_cmp_lt_u32 s2, 216"); a("s_cbranch_scc1 L_c1done")
                def mk(tt):
                    for r in range(4): a(f"v_and_b32 v{8+r}, v{16+tt}, v{vM[r]}")
                def mk2(tt):
                    for r in range(4): a(f"v_and_b32 v{12+r}, v{28+tt}, v{vM[r]}")
                mk(0)
                for tt in range(12):
                    A_ = f"a[{48*st_+4*tt}:{48*st_+4*tt+3}]"
                    mk2(tt)
                    a(f"v_mfma_f32_16x16x32_bf16 v[40:43], {A_}, v[8:11], {'0' if tt == 0 else 'v[40:43]'}")
                    if tt + 1 < 12: mk(tt + 1)
                    a(f"v_mfma_f32_16x16x32_bf16 v[44:47], {A_}, v[12:15], {'0' if tt == 0 else 'v[44:47]'}")
                for r in range(8): a(f"v_mov_b32 v{48+r}, v{40+r}")
                for r in range(8): a(f"v_permlane32_swap_b32 v{40+r}, v{48+r}")
                for r in range(8): a(f"v_add_f32_dpp v{40+r}, v{48+r}, v{40+r} row_ror:8 row_mask:0xf bank_mask:0xf")
                for r in range(8): a(f"v_bfi_b32 v{40+r}, {sFF}, {vTAG}, v{40+r}")
                a(f"s_add_u32 {sT0}, s10, {WS_C + 1536 * st_}"); a(f"s_add_u32 {sT1}, s10, {WS_C + 2 * MS + 1536 * st_}")
                self.setexec(0x00FF00FF)
                a(f"buffer_store_dwordx4 v[40:43], {vUP}, {srd(SRD_WS)}, {sT0} offen sc1"); a(f"buffer_store_dwordx4 v[44:47], {vUP}, {srd(SRD_WS)}, {sT1} offen sc1")
                a("s_mov_b64 exec, -1")
            a.label("L_c1done")
        else:
            unit_pass(UC1, WS_C)
            unit_pass(USB, WS_C + 2 * MS)
        if p.DOWNAFTERC:
            if p.UEARLY: self.lds_spin(L_WCNT if p.WTRIG == "issued" else L_OCNT, target=4, sleep=2)
            a("s_cmp_ge_u32 s2, 216"); a("s_cbranch_scc1 L_nodl")
            for cb in range(9):
                a(f"buffer_load_dwordx4 a[{48+4*cb}:{51+4*cb}], v57, {srd(SRD_A)}, 0 offen offset:{128*cb} nt")
            a.label("L_nodl")
        self.stamp(1, "fine")
        loads = [(8 + 4 * k, 4, vUA, None if k < 2 else (k & ~1) * 2304, (k & 1) * 2304) for k in range(8)]
        if p.SENT_ATT:
            if p.SENT1:
                a(f"s_cmp_lg_u32 {sHW}, 0"); a("s_cbranch_scc1 L_sentw")
                self.poll([loads[p.SENT_K]], active=0xFF, sleep=p.SENT_ATT)
                a("s_mov_b64 exec, 1"); a(f"v_mov_b32 v61, {L_SENT}"); a("v_mov_b32 v62, 1"); a("ds_write_b32 v61, v62"); a("s_mov_b64 exec, -1")
                a.label("L_sentw")
                self.lds_spin(L_SENT, target=1, sleep=1)
            else:
                self.poll([loads[p.SENT_K]], active=L24, sleep=p.SENT_ATT)
        self.poll(loads, active=L24, sleep=p.SL_ATT)
        self.stamp(6)
        self.sum_rows4([8 + 4 * k for k in range(8)])
        a(f"v_pk_fma_f32 v[{UX}:{UX+1}], v[8:9], v[{UGA}:{UGA+1}], v[{UX}:{UX+1}]"); a(f"v_pk_fma_f32 v[{UX+2}:{UX+3}], v[10:11], v[{UGA+2}:{UGA+3}], v[{UX+2}:{UX+3}]")
        a(f"v_pk_mul_f32 v[{UC1}:{UC1+1}], v[{UX}:{UX+1}], v[{UC1}:{UC1+1}]"); a(f"v_pk_mul_f32 v[{UC1+2}:{UC1+3}], v[{UX+2}:{UX+3}], v[{UC1+2}:{UC1+3}]")
        a("s_mov_b64 exec, -1")
        unit_pass(UC1, WS_G)
        self.stamp(2, "fine")
        a("s_or_b32 s11, s6, s8"); a("s_cmp_lg_u32 s11, 0"); a("s_cbranch_scc1 L_nostat")
        a("v_mov_b32 v12, 0"); a("v_mov_b32 v13, 0")
        self.setexec(L24)
        a(f"v_pk_add_f32 v[14:15], v[{UX}:{UX+1}], v[{UX+2}:{UX+3}]"); a(f"v_pk_mul_f32 v[16:17], v[{UX}:{UX+1}], v[{UX}:{UX+1}]")
        a(f"v_pk_fma_f32 v[16:17], v[{UX+2}:{UX+3}], v[{UX+2}:{UX+3}], v[16:17]")
        a("v_add_f32 v12, v14, v15"); a("v_add_f32 v13, v16, v17")
        a("s_mov_b64 exec, -1")
        self.allreduceN("v_add_f32", [("v12", "v14"), ("v13", "v15")], ["q1", "q2", "r4", "r8", "p16"])
        a("v_mov_b32 v14, 0"); a("v_mov_b32 v15, 0")
        for c in range(4): a(f"v_bfi_b32 v{12+c}, {sFF}, {vTAG}, v{12+c}")
        a("s_lshl_b32 s11, s7, 7"); a(f"s_add_u32 s11, s11, {WS_ST}")
        if p.STREP:
            a(f"v_lshlrev_b32 v16, 10, {vLANE}")
            a("s_mov_b64 exec, 0xff"); a(f"buffer_store_dwordx4 v[12:15], v16, {srd(SRD_WS)}, s11 offen sc1"); a("s_mov_b64 exec, -1")
        else:
            a("s_mov_b64 exec, 1"); a(f"buffer_store_dwordx4 v[12:15], off, {srd(SRD_WS)}, s11 sc1"); a("s_mov_b64 exec, -1")
        a.label("L_nostat")
        a("s_cmp_ge_u32 s2, 234"); a("s_cbranch_scc1 L_hexit")
        a("s_cmp_ge_u32 s2, 216"); a("s_cbranch_scc1 L_fin")
        K6 = 0x3F3F3F3F3F3F3F3F
        for r in (8, 9, 10, 11, 20, 21, 22, 23): a(f"v_mov_b32 v{r}, 0")
        self.poll([(20, 1, "v58", WS_C, 0), (21, 1, "v58", WS_C + 2 * MS, 0), (22, 1, "v58", WS_C + MS, 0), (23, 1, "v58", WS_C + 3 * MS, 0)], active=K6)
        a("s_mov_b64 exec, -1")
        self.allreduceN("v_add_f32", [(f"v{r}", "v12") for r in (20, 21, 22, 23)], ["q1", "q2", "hm"])
        if p.DUP_G: self.poll_dup([(8, 1, "v58", WS_G, 0), (9, 1, "v58", WS_G + MS, 0), (10, 4, "v59", None, 0)], [86, 87, 88], p.DUP_G, strong=(2,), active=K6)
        else: self.poll([(8, 1, "v58", WS_G, 0), (9, 1, "v58", WS_G + MS, 0), (10, 4, "v59", None, 0)], presleep=p.PS_G, strong=(2,), active=K6)
        a("s_mov_b64 exec, -1")
        self.stamp(3, "fine")
        self.allreduceN("v_add_f32", [(f"v{r}", "v14") for r in (8, 9, 10, 11)], ["q1", "q2", "hm"])
        a(f"v_mul_f32 v10, {f32hex(1/576)}, v10"); a(f"v_mul_f32 v11, {f32hex(1/576)}, v11")
        a("v_fma_f32 v11, -v10, v10, v11"); a("v_max_f32 v11, 0, v11"); a(f"v_add_f32 v11, {f32hex(1e-5)}, v11"); a("v_rsq_f32 v11, v11")
        a("v_fma_f32 v8, -v10, v20, v8"); a("v_fma_f32 v9, -v10, v22, v9")
        a("v_fma_f32 v8, v8, v11, v21"); a("v_fma_f32 v9, v9, v11, v23")
        self.sigmoid("v12", "v8", "v12")
        a("v_mul_f32 v8, v12, v9")
        a("v_cvt_pk_bf16_f32 v8, v8, v8")
        for r in range(4): a(f"v_and_b32 v{12+r}, v8, v{vM[r]}")
        for cb in range(9):
            d = 16 + 4 * cb
            a(f"v_mfma_f32_16x16x32_bf16 v[{d}:{d+3}], a[{48+4*cb}:{51+4*cb}], v[12:15], 0")
        self.setexec(self.VALID)
        for cb in range(9): a(f"ds_write_b128 v{FX}, v[{16+4*cb}:{19+4*cb}] offset:{256*cb}")
        a("s_mov_b64 exec, -1")
        a("s_waitcnt lgkmcnt(0)")
        a("s_barrier")
        a(f"s_cmp_ge_u32 {sHW}, 3"); a("s_cbranch_scc1 L_hexit")
        self.setexec(lanes(48))
        for k in range(8): a(f"ds_read_b128 v[{8+4*k}:{11+4*k}], v{FX+1} offset:{L_DOWN + 2304*k}")
        a("s_waitcnt lgkmcnt(0)")
        self.sum_rows4([8 + 4 * k for k in range(8)])
        for c in range(4): a(f"v_bfi_b32 v{8+c}, {sFF}, {vTAG}, v{8+c}")
        a(f"buffer_store_dwordx4 v[8:11], v{FX+1}, {srd(SRD_WS)}, s15 offen sc1")
        self.stamp(7)
        if p.STAMPS and p.MODE == "fin":
            a("s_waitcnt vmcnt(0)"); self.stamp(6, "fin")
        a("s_branch L_hexit")
        a.label("L_fin")
        a(f"v_and_b32 v46, 7, {vLANE}")
        a("s_lshl_b32 s15, s14, 7"); a("v_lshlrev_b32 v47, 4, v46"); a("v_add_u32 v47, s15, v47")
        a(f"v_lshrrev_b32 v8, 3, {vLANE}"); a("v_mul_u32_u24 v42, 2304, v8"); a("v_add_u32 v42, v42, v47"); a(f"v_add_u32 v42, {WS_ATT}, v42")
        a(f"s_mul_i32 {sT0}, {sHW}, 36"); a(f"v_add_u32 v8, {sT0}, v8"); a("v_mul_u32_u24 v43, 2304, v8"); a("v_add_u32 v43, v43, v47"); a(f"v_add_u32 v43, {WS_OUT}, v43")
        a(f"v_add_u32 v44, {4*8*2304}, v43"); a(f"v_cmp_gt_u32 vcc, 32, {vLANE}"); a("v_cndmask_b32 v44, v43, v44, vcc")
        a(f"s_lshl_b32 {sT0}, {sHW}, 7"); a(f"s_add_u32 {sT0}, {sT0}, {L_FIN}"); a("v_lshlrev_b32 v45, 4, v46"); a(f"v_add_u32 v40, {sT0}, v45")
        self.poll([(8, 4, "v42", None, 0)], sleep=p.SL_FA)
        self.allreduceN("v_add_f32", [(f"v{8+c}", f"v{12+c}") for c in range(4)], ["r8", "p16", "p32"])
        a(f"v_pk_fma_f32 v[{FX}:{FX+1}], v[8:9], v[{FGA}:{FGA+1}], v[{FX}:{FX+1}]"); a(f"v_pk_fma_f32 v[{FX+2}:{FX+3}], v[10:11], v[{FGA+2}:{FGA+3}], v[{FX+2}:{FX+3}]")
        a(f"s_or_b32 {sT0}, s14, {sHW}"); a(f"s_cmp_lg_u32 {sT0}, 0"); a("s_cbranch_scc1 L_noepoch")
        a("s_mov_b64 exec, 1")
        a(f"v_mov_b32 v8, {sTAG}")
        a(f"buffer_store_dword v8, off, {srd(SRD_WS)}, 0 sc1")
        a("s_mov_b64 exec, -1")
        a.label("L_noepoch")
        self.set_srd(SRD_B, sOUT, size=1152)
        a("s_lshl_b32 s15, s14, 6"); a("v_lshlrev_b32 v49, 1, v46")
        a(f"v_bfe_u32 v53, {vLANE}, 3, 2")
        a(f"v_mov_b32 v54, v{FX}"); a(f"v_mov_b32 v55, v{FGB}")
        for r in range(1, 4):
            a(f"v_cmp_eq_u32 vcc, {r}, v53"); a(f"v_cndmask_b32 v54, v54, v{FX+r}, vcc"); a(f"v_cndmask_b32 v55, v55, v{FGB+r}, vcc")
        a("v_lshlrev_b32 v50, 4, v46"); a("v_lshl_add_u32 v50, v53, 2, v50")
        a("v_lshlrev_b32 v51, 3, v53"); a("v_add_u32 v51, v51, v46"); a("v_lshlrev_b32 v51, 1, v51")
        self.stamp(3, "fine")
        outl = [(8, 4, "v43", None, 0), (12, 4, "v43", 8*2304, 0), (16, 4, "v43", 16*2304, 0), (20, 4, "v43", 24*2304, 0), (24, 4, "v44", None, 0)]
        if p.DUP_OUT: self.poll_dup(outl, [28, 32, 36, 64, 68], p.DUP_OUT)
        else: self.poll(outl, presleep=p.PS_OUT)
        self.stamp(1, "fin")
        a(f"v_cmp_gt_u32 vcc, 32, {vLANE}")
        self.sum_rows4([8, 12, 16, 20])
        for c in range(4): a(f"v_cndmask_b32 v{24+c}, 0, v{24+c}, vcc")
        self.sum_rows4([8, 24])
        self.allreduceN("v_add_f32", [(f"v{8+c}", f"v{12+c}") for c in range(4)], ["r8", "p16", "p32"])
        self.setexec(0xFF)
        a("ds_write_b128 v40, v[8:11]")
        a("s_mov_b64 exec, -1")
        a("s_waitcnt lgkmcnt(0)")
        self.stamp(2, "fin")
        a("s_barrier")
        self.stamp(3, "fin")
        a(f"s_cmp_lg_u32 {sHW}, 0"); a("s_cbranch_scc1 L_hexit")
        self.setexec(lanes(32))
        for w in range(4): a(f"ds_read_b32 v{8+w}, v50 offset:{L_FIN + 128*w}")
        a("s_waitcnt lgkmcnt(0)")
        a("v_add_f32 v8, v8, v9"); a("v_add_f32 v10, v10, v11"); a("v_add_f32 v8, v8, v10")
        a("v_fma_f32 v8, v8, v55, v54")
        a("v_cvt_pk_bf16_f32 v8, v8, v8")
        a(f"buffer_store_short v8, v51, {srd(SRD_B)}, s15 offen {p.OUTPOL}".rstrip())
        self.stamp(7)
        a("s_branch L_hexit")
        a.label("L_wo")
        a(f"s_and_b32 {sR0}, s2, 7"); a(f"s_lshr_b32 {sR1}, s2, 3")
        a(f"s_lshl_b32 {sT2}, {sR1}, 7")
        self.set_srd(SRD_A, sWO, off=sT2, size_minus_off=4096 * 1152)
        a(f"s_lshl_b32 {sR2}, {sR0}, 2"); a(f"s_add_u32 {sR2}, {sR2}, {sHW}")
        a(f"s_lshl_b32 {sT0}, {sR2}, 7")
        a(f"v_lshrrev_b32 v1, 3, {vLANE}"); a(f"v_add_u32 v1, {sT0}, v1"); a("v_mul_u32_u24 v1, 1152, v1")
        a(f"v_and_b32 v2, 7, {vLANE}"); a("v_lshl_add_u32 v1, v2, 4, v1")
        if p.WOLATE: a("s_branch L_wo_have")
        elif p.WOEARLY:
            if p.MAP2: a("s_branch L_wo_have")
            else: a(f"s_cmp_lg_u32 {sHW}, 0"); a("s_cbranch_scc1 L_wo_have")
        a(f"s_mov_b32 {sT0}, 0")
        for t in range(16):
            if t >= p.WOPACE: a(f"s_waitcnt vmcnt({p.WOPACE-1})")
            a(f"buffer_load_dwordx4 a[{96+4*t}:{99+4*t}], v1, {srd(SRD_A)}, {sT0} offen nt")
            if t < 15: a(f"s_add_u32 {sT0}, {sT0}, 9216")
        a.label("L_wo_have")
        a(f"s_mul_i32 s4, {sR2}, {8*OSLOT}"); a("s_add_u32 s4, s4, " + str(WS_O))
        a(f"s_mul_i32 {sT0}, {sR0}, 2304"); a(f"s_lshl_b32 {sT1}, {sR1}, 8"); a(f"s_add_u32 {sT0}, {sT0}, {sT1}"); a(f"s_add_u32 s5, {sT0}, {WS_ATT}")
        a(f"v_and_b32 v41, 7, {vLANE}"); a(f"v_mul_u32_u24 v41, {OSLOT}, v41")
        a(f"v_lshlrev_b32 v40, 3, {vLANE}")
        a(f"v_and_b32 v8, 3, {vLANE}"); a("v_mul_u32_u24 v8, 160, v8"); a(f"v_lshrrev_b32 v42, 2, {vLANE}"); a("v_lshl_add_u32 v42, v42, 2, v8")
        a(f"s_mul_i32 {sT0}, {sHW}, {TBLW}"); a(f"s_add_u32 {sT0}, {sT0}, {L_TBL}"); a(f"v_add_u32 v42, {sT0}, v42")
        self.taddr_r("v43", 20)
        self.dpiece_addr("v44", "v8", L_PART, 256)
        a(f"v_lshlrev_b32 v45, 4, {vLANE}")
        a("s_add_u32 s15, s4, 3200")
        self.poll([(8, 4, "v41", "s4", 512)], sleep=32, strong=(0,))
        a(f"v_and_b32 v8, {sFFFF0000}, v8")
        a("v_mov_b32 v10, v8")
        self.allreduce("v_max_f32", "v10", "v11", ["q1", "q2", "hm"])
        a("v_sub_f32 v11, v8, v10"); a(f"v_mul_f32 v11, 0x{LOG2E:08x}, v11"); a("v_exp_f32 v11, v11")
        a("v_mul_f32 v12, v11, v9")
        self.allreduce("v_add_f32", "v12", "v13", ["q1", "q2", "hm"])
        a("v_rcp_f32 v12, v12"); a("v_mul_f32 v11, v11, v12")
        for s_ in range(8): a(f"v_mov_b32_dpp v{48+s_}, v11 row_newbcast:{s_} row_mask:0xf bank_mask:0xf")
        if p.LPACE and p.WOLATE:
            self.lds_spin(L_WCNT, target=1, sleep=2)
            self.read_ticket()
        if p.GT:
            self.go_watch_w()
            if p.GT_W: self.lds_spin(L_GO, target=1, sleep=2)
        self.lds_spin(L_W2 if p.WOAT else L_WCNT, target=p.WOTGT, sleep=2)
        if p.WOLATE:
            if p.LPACE:
                a(f"s_cmp_ge_u32 s63, {p.LPACE_T}"); a("s_cbranch_scc1 L_wfast")
                a(f"s_mov_b32 {sT0}, 0")
                for t in range(16):
                    if t >= p.LPACE: a(f"s_waitcnt vmcnt({p.LPACE-1})")
                    a(f"buffer_load_dwordx4 a[{96+4*t}:{99+4*t}], v1, {srd(SRD_A)}, {sT0} offen nt")
                    if t < 15: a(f"s_add_u32 {sT0}, {sT0}, 9216")
                a("s_branch L_wissued")
                a.label("L_wfast")
            a(f"s_mov_b32 {sT0}, 0")
            for t in range(16):
                a(f"buffer_load_dwordx4 a[{96+4*t}:{99+4*t}], v1, {srd(SRD_A)}, {sT0} offen nt")
                if t < 15: a(f"s_add_u32 {sT0}, {sT0}, 9216")
            a.label("L_wissued")
        a("s_setprio 3")
        self.stamp(5)
        if p.STAMPS and p.MODE == "wo":
            a("s_waitcnt vmcnt(0)"); self.stamp(2, "wo")
        ol = [(8 + 2 * s_, 2, "v40", "s4" if s_ < 6 else "s15", s_ * OSLOT if s_ < 6 else (s_ - 5) * OSLOT) for s_ in range(8)]
        if p.DUP_O: self.poll_dup(ol, [64 + 2 * s_ for s_ in range(8)], p.DUP_O)
        else: self.poll(ol, sleep=p.SL_O, adapt=p.AD_O)
        self.stamp(6, "wo")
        a("v_pk_mul_f32 v[24:25], v[8:9], v[48:49] op_sel_hi:[1,0]")
        a("v_pk_mul_f32 v[26:27], v[10:11], v[48:49] op_sel:[0,1]")
        for s_ in range(2, 8):
            d = 24 + 2 * (s_ & 1); w = 48 + (s_ & ~1)
            sel = "op_sel_hi:[1,0,1]" if (s_ & 1) == 0 else "op_sel:[0,1,0]"
            a(f"v_pk_fma_f32 v[{d}:{d+1}], v[{8+2*s_}:{9+2*s_}], v[{w}:{w+1}], v[{d}:{d+1}] {sel}")
        self.pk_add(24, 24, 26)
        a("v_cvt_pk_bf16_f32 v24, v24, v24"); a("v_cvt_pk_bf16_f32 v25, v25, v25")
        a("ds_write_b32 v42, v24"); a("ds_write_b32 v42, v25 offset:80")
        self.tread(16, 4, "v43")
        self.stamp(1, "wo")
        self.gemv(16, 96, list(range(16, 32)), 36)
        self.setexec(self.VALID); a("ds_write_b128 v44, v[36:39]"); a("s_mov_b64 exec, -1")
        a("s_waitcnt lgkmcnt(0)")
        a("s_barrier")
        self.stamp(3, "wo")
        a(f"s_cmp_lg_u32 {sHW}, 0"); a("s_cbranch_scc1 L_hexit")
        self.setexec(0xFFFF)
        for k in range(8): a(f"ds_read_b128 v[{8+4*k}:{11+4*k}], v45 offset:{L_PART + 256*k}")
        a("s_waitcnt lgkmcnt(0)")
        self.sum_rows4([8 + 4 * k for k in range(8)])
        for c in range(4): a(f"v_bfi_b32 v{8+c}, {sFF}, {vTAG}, v{8+c}")
        a(f"buffer_store_dwordx4 v[8:11], v45, {srd(SRD_WS)}, s5 offen sc1")
        self.stamp(7, "wo")
        a.label("L_hexit")
        self.dump_stamps()
        a("s_endpgm")

    def tail_dyn(self):
        a = self.a; p = self.p
        L24 = lanes(24)
        UX, UGA, UC1, USB = 64, 68, 72, 76
        vUT, vUR, vUP, vUA = "v80", "v81", "v82", "v83"
        FX, FGA, FGB = 84, 88, 92
        MS = 72 * 6 * 256
        sTK = "s63"; sDBL = "s62"
        def down_prep():
            a(f"s_mul_i32 {sT2}, s14, {32*1152}"); self.set_srd(SRD_A, sWD, off=sT2, size=32 * 1152)
            a(f"s_lshl_b32 {sT0}, {sHW}, 3")
            a(f"v_lshrrev_b32 v57, 3, {vLANE}"); a(f"v_add_u32 v57, {sT0}, v57"); a("v_mul_u32_u24 v57, 1152, v57")
            a(f"v_and_b32 v8, 7, {vLANE}"); a("v_lshl_add_u32 v57, v8, 4, v57")
            for cb in range(9):
                a(f"buffer_load_dwordx4 a[{48+4*cb}:{51+4*cb}], v57, {srd(SRD_A)}, 0 offen offset:{128*cb} nt")
            a("s_lshr_b32 s15, s14, 1"); a("s_mul_i32 s15, s15, 1536"); a(f"s_and_b32 {sT0}, s14, 1"); a(f"s_lshl_b32 {sT0}, {sT0}, 7"); a(f"s_add_u32 s15, s15, {sT0}")
            a(f"s_lshl_b32 {sT0}, {sHW}, 2"); a(f"s_add_u32 s15, s15, {sT0}")
            a(f"v_and_b32 v8, 7, {vLANE}"); a("v_min_u32 v8, 5, v8"); a("v_lshlrev_b32 v58, 8, v8"); a(f"v_lshrrev_b32 v9, 3, {vLANE}"); a("v_lshl_add_u32 v58, v9, 4, v58"); a("v_add_u32 v58, s15, v58")
            a("v_lshlrev_b32 v59, 7, v8"); a(f"v_add_u32 v59, {WS_ST}, v59")
            self.dpiece_addr(f"v{FX}", "v8", L_DOWN, 2304)
            a(f"s_mul_i32 {sT0}, {sHW}, 48"); a(f"v_add_u32 v{FX+1}, {sT0}, {vLANE}"); a(f"v_lshlrev_b32 v{FX+1}, 4, v{FX+1}")
            a("s_mul_i32 s15, s14, 2304"); a(f"s_add_u32 s15, s15, {WS_OUT}")
        a.label("L_tail")
        a("s_setprio 0")
        self.lds_spin(L_QFLAG, target=1, sleep=8)
        a(f"s_cmp_lg_u32 {sHW}, 2"); a("s_cbranch_scc1 L_tkwait")
        self.lds_spin(L_WCNT, target=p.TKAT, sleep=2)
        self.set_srd(SRD_B, sDBG, size=256)
        a("s_mov_b64 exec, 1")
        a("v_mov_b32 v8, 1")
        a(f"buffer_atomic_add v8, off, {srd(SRD_B)}, 0 sc0")
        a("s_waitcnt vmcnt(0)")
        a(f"v_add_u32 v8, 1, v8"); a(f"v_mov_b32 v9, {L_TICK}"); a("ds_write_b32 v9, v8")
        a("s_mov_b64 exec, -1")
        a.label("L_tkwait")
        self.lds_spin(L_TICK, target=1, sleep=2)
        a(f"s_sub_u32 {sTK}, {sT3}, 1")
        a(f"s_setprio 2")
        self.stamp(4, "fine")
        a(f"s_cmp_ge_u32 {sTK}, 234"); a("s_cbranch_scc1 L_hexit")
        a(f"s_cmp_lt_u32 {sTK}, 72"); a("s_cbranch_scc1 L_wo")
        a(f"s_cmp_ge_u32 {sTK}, 126"); a("s_cbranch_scc1 L_sgl")
        a(f"s_sub_u32 {sT2}, {sTK}, 72"); self.div3("s6", "s7", sT2); a("s_lshl_b32 s6, s6, 1"); a(f"s_mov_b32 {sDBL}, 1")
        a("s_branch L_uprep")
        a.label("L_sgl")
        a(f"s_sub_u32 {sT2}, {sTK}, 126"); self.div3("s6", "s7", sT2); a("s_add_u32 s6, s6, 36"); a(f"s_mov_b32 {sDBL}, 0")
        a.label("L_uprep")
        a(f"s_lshr_b32 {sT0}, {sHW}, 1"); a("s_lshl_b32 s7, s7, 1"); a(f"s_add_u32 s7, s7, {sT0}")
        a(f"s_and_b32 s8, {sHW}, 1")
        a("s_cmp_eq_u32 s8, 0"); a(f"s_cselect_b32 s12, s{sWG}, s{sWU}"); a(f"s_cselect_b32 s13, s{sWG+1}, s{sWU+1}")
        a(f"s_lshl_b32 {sT2}, s6, 7")
        self.set_srd(SRD_C, 12, off=sT2, size_minus_off=576 * 9216)
        a("s_mul_i32 s11, s7, 96"); a(f"v_lshrrev_b32 v56, 3, {vLANE}"); a("v_add_u32 v56, s11, v56"); a("v_mul_u32_u24 v56, 9216, v56")
        a(f"v_and_b32 v8, 7, {vLANE}"); a("v_lshl_add_u32 v56, v8, 4, v56")
        self.lds_spin(L_WCNT if p.WTRIG == "issued" else L_OCNT, target=4, sleep=1)
        self.stamp(5)
        a(f"s_mov_b32 {sT0}, 0")
        for t in range(12):
            a(f"buffer_load_dwordx4 a[{4*t}:{4*t+3}], v56, {srd(SRD_C)}, {sT0} offen nt")
            if t < 11: a(f"s_add_u32 {sT0}, {sT0}, {8*9216}")
        a(f"s_cmp_eq_u32 {sDBL}, 0"); a("s_cbranch_scc1 L_one")
        a(f"s_mov_b32 {sT0}, 128")
        for t in range(12):
            a(f"buffer_load_dwordx4 a[{48+4*t}:{51+4*t}], v56, {srd(SRD_C)}, {sT0} offen nt")
            if t < 11: a(f"s_add_u32 {sT0}, {sT0}, {8*9216}")
        a.label("L_one")
        a("s_mul_i32 s9, s7, 3")
        a(f"v_lshrrev_b32 v8, 3, {vLANE}"); a("v_add_u32 v8, s9, v8")
        self.piece_off("v2", "v8", "v9")
        a(f"v_lshlrev_b32 {vUA}, 7, v8"); a(f"v_and_b32 v9, 7, {vLANE}"); a(f"v_lshl_add_u32 {vUA}, v9, 4, {vUA}"); a(f"v_add_u32 {vUA}, {WS_ATT}, {vUA}")
        self.set_srd(SRD_B, sX, size=1152)
        a("v_lshlrev_b32 v8, 5, v8"); a("v_add_u32 v8, v8, v9"); a("v_lshlrev_b32 v8, 1, v8")
        for r in range(4): a(f"buffer_load_ushort v{UX+r}, v8, {srd(SRD_B)}, 0 offen offset:{16*r}")
        a(f"s_mul_i32 {sT0}, {sHW}, {TBLW}"); a(f"s_add_u32 {sT0}, {sT0}, {L_TBL}")
        a(f"v_and_b32 v8, 7, {vLANE}"); a(f"v_mul_u32_u24 {vUT}, 48, v8"); a(f"v_lshrrev_b32 v9, 3, {vLANE}"); a(f"v_lshl_add_u32 {vUT}, v9, 4, {vUT}"); a(f"v_add_u32 {vUT}, {sT0}, {vUT}")
        a(f"v_mul_u32_u24 {vUR}, 48, v9"); a(f"v_add_u32 {vUR}, {sT0}, {vUR}")
        a(f"v_lshrrev_b32 {vUP}, 4, {vLANE}"); a(f"v_lshlrev_b32 {vUP}, 7, {vUP}"); a(f"v_lshl_add_u32 {vUP}, v8, 4, {vUP}")
        a("s_mul_i32 s10, s8, 72"); a("s_add_u32 s10, s10, s6"); a("s_mul_i32 s10, s10, 6"); a("s_add_u32 s10, s10, s7"); a("s_lshl_b32 s10, s10, 8")
        self.gather_mod([2, 4, 3], "v2", [UGA, UC1, USB], L24, sleep=2)
        a("s_mov_b64 exec, -1")
        for r in range(4): a(f"v_lshlrev_b32 v{UX+r}, 16, v{UX+r}")
        for r in range(4): a(f"v_add_f32 v{UC1+r}, 1.0, v{UC1+r}")
        self.round4(UC1, "v8")
        a(f"s_mov_b32 s61, 0")
        a(f"s_sub_u32 s14, {sTK}, 54"); a(f"s_sub_u32 {sT2}, {sTK}, 126"); a(f"s_cmp_ge_u32 {sT2}, 72"); a("s_cbranch_scc1 L_nodown")
        a("s_mov_b32 s61, 1")
        down_prep()
        a.label("L_nodown")
        a("s_setprio 3")
        for k in range(4): a(f"v_cvt_pk_bf16_f32 v{8+k}, v{UC1+k}, v{UC1+k}")
        for k in range(4): a(f"v_cvt_pk_bf16_f32 v{12+k}, v{USB+k}, v{USB+k}")
        self.setexec(L24); a(f"ds_write_b128 {vUT}, v[8:11]"); a(f"ds_write_b128 {vUT}, v[12:15] offset:384"); a("s_mov_b64 exec, -1")
        for i in range(3): a(f"ds_read_b128 v[{16+4*i}:{19+4*i}], {vUR} offset:{16*i}")
        for i in range(3): a(f"ds_read_b128 v[{28+4*i}:{31+4*i}], {vUR} offset:{384+16*i}")
        a("s_waitcnt lgkmcnt(0)")
        for st_ in range(2):
            if st_ == 1:
                a(f"s_cmp_eq_u32 {sDBL}, 0"); a("s_cbranch_scc1 L_c1done")
            def mk(t):
                for r in range(4): a(f"v_and_b32 v{8+r}, v{16+t}, v{vM[r]}")
            def mk2(t):
                for r in range(4): a(f"v_and_b32 v{12+r}, v{28+t}, v{vM[r]}")
            mk(0)
            for t in range(12):
                A_ = f"a[{48*st_+4*t}:{48*st_+4*t+3}]"
                mk2(t)
                a(f"v_mfma_f32_16x16x32_bf16 v[40:43], {A_}, v[8:11], {'0' if t == 0 else 'v[40:43]'}")
                if t + 1 < 12: mk(t + 1)
                a(f"v_mfma_f32_16x16x32_bf16 v[44:47], {A_}, v[12:15], {'0' if t == 0 else 'v[44:47]'}")
            for r in range(8): a(f"v_mov_b32 v{48+r}, v{40+r}")
            for r in range(8): a(f"v_permlane32_swap_b32 v{40+r}, v{48+r}")
            for r in range(8): a(f"v_add_f32_dpp v{40+r}, v{48+r}, v{40+r} row_ror:8 row_mask:0xf bank_mask:0xf")
            for r in range(8): a(f"v_bfi_b32 v{40+r}, {sFF}, {vTAG}, v{40+r}")
            a(f"s_add_u32 {sT0}, s10, {WS_C + 1536 * st_}"); a(f"s_add_u32 {sT1}, s10, {WS_C + 2 * MS + 1536 * st_}")
            self.setexec(0x00FF00FF)
            a(f"buffer_store_dwordx4 v[40:43], {vUP}, {srd(SRD_WS)}, {sT0} offen sc1"); a(f"buffer_store_dwordx4 v[44:47], {vUP}, {srd(SRD_WS)}, {sT1} offen sc1")
            a("s_mov_b64 exec, -1")
        a.label("L_c1done")
        self.stamp(1, "fine")
        loads = [(8 + 4 * k, 4, vUA, None if k < 2 else (k & ~1) * 2304, (k & 1) * 2304) for k in range(8)]
        if p.CGATE: self.cnt_gate(p.CTGT, p.PS_ATT)
        self.poll(loads, active=L24, sleep=p.SL_ATT)
        self.stamp(6)
        self.sum_rows4([8 + 4 * k for k in range(8)])
        a(f"v_pk_fma_f32 v[{UX}:{UX+1}], v[8:9], v[{UGA}:{UGA+1}], v[{UX}:{UX+1}]"); a(f"v_pk_fma_f32 v[{UX+2}:{UX+3}], v[10:11], v[{UGA+2}:{UGA+3}], v[{UX+2}:{UX+3}]")
        a(f"v_pk_mul_f32 v[{UC1}:{UC1+1}], v[{UX}:{UX+1}], v[{UC1}:{UC1+1}]"); a(f"v_pk_mul_f32 v[{UC1+2}:{UC1+3}], v[{UX+2}:{UX+3}], v[{UC1+2}:{UC1+3}]")
        for k in range(4): a(f"v_cvt_pk_bf16_f32 v{8+k}, v{UC1+k}, v{UC1+k}")
        a(f"ds_write_b128 {vUT}, v[8:11]"); a("s_mov_b64 exec, -1")
        self.tread(16, 3, vUR)
        for st_ in range(2):
            if st_ == 1:
                a(f"s_cmp_eq_u32 {sDBL}, 0"); a("s_cbranch_scc1 L_zdone")
            self.gemv(12, 48 * st_, list(range(16, 28)), 36)
            self.half_add(36, 40)
            for r in range(4): a(f"v_bfi_b32 v{36+r}, {sFF}, {vTAG}, v{36+r}")
            a(f"s_add_u32 {sT0}, s10, {WS_G + 1536 * st_}")
            self.setexec(0x00FF00FF); a(f"buffer_store_dwordx4 v[36:39], {vUP}, {srd(SRD_WS)}, {sT0} offen sc1"); a("s_mov_b64 exec, -1")
        a.label("L_zdone")
        self.stamp(2, "fine")
        a("s_or_b32 s11, s6, s8"); a("s_cmp_lg_u32 s11, 0"); a("s_cbranch_scc1 L_nostat")
        a("v_mov_b32 v12, 0"); a("v_mov_b32 v13, 0")
        self.setexec(L24)
        a(f"v_pk_add_f32 v[14:15], v[{UX}:{UX+1}], v[{UX+2}:{UX+3}]"); a(f"v_pk_mul_f32 v[16:17], v[{UX}:{UX+1}], v[{UX}:{UX+1}]")
        a(f"v_pk_fma_f32 v[16:17], v[{UX+2}:{UX+3}], v[{UX+2}:{UX+3}], v[16:17]")
        a("v_add_f32 v12, v14, v15"); a("v_add_f32 v13, v16, v17")
        a("s_mov_b64 exec, -1")
        self.allreduceN("v_add_f32", [("v12", "v14"), ("v13", "v15")], ["q1", "q2", "r4", "r8", "p16"])
        a("v_mov_b32 v14, 0"); a("v_mov_b32 v15, 0")
        for c in range(4): a(f"v_bfi_b32 v{12+c}, {sFF}, {vTAG}, v{12+c}")
        a("s_lshl_b32 s11, s7, 7"); a(f"s_add_u32 s11, s11, {WS_ST}")
        a("s_mov_b64 exec, 1"); a(f"buffer_store_dwordx4 v[12:15], off, {srd(SRD_WS)}, s11 sc1"); a("s_mov_b64 exec, -1")
        a.label("L_nostat")
        a(f"s_cmp_lt_u32 {sTK}, 90"); a("s_cbranch_scc1 L_fin")
        a("s_cmp_eq_u32 s61, 0"); a("s_cbranch_scc1 L_hexit")
        a.label("L_down")
        self.poll([(20, 1, "v58", WS_C, 0), (21, 1, "v58", WS_C + 2 * MS, 0), (22, 1, "v58", WS_C + MS, 0), (23, 1, "v58", WS_C + 3 * MS, 0)], sleep=p.SL_C)
        self.lane6_reduce([20, 21, 22, 23], 12)
        self.poll([(8, 1, "v58", WS_G, 0), (9, 1, "v58", WS_G + MS, 0), (10, 4, "v59", None, 0)], presleep=p.PS_G, sleep=p.SL_G, strong=(2,))
        self.stamp(3, "fine")
        self.lane6_reduce([8, 9, 10, 11], 14)
        a(f"v_mul_f32 v10, {f32hex(1/576)}, v10"); a(f"v_mul_f32 v11, {f32hex(1/576)}, v11")
        a("v_fma_f32 v11, -v10, v10, v11"); a("v_max_f32 v11, 0, v11"); a(f"v_add_f32 v11, {f32hex(1e-5)}, v11"); a("v_rsq_f32 v11, v11")
        a("v_fma_f32 v8, -v10, v20, v8"); a("v_fma_f32 v9, -v10, v22, v9")
        a("v_fma_f32 v8, v8, v11, v21"); a("v_fma_f32 v9, v9, v11, v23")
        self.sigmoid("v12", "v8", "v12")
        a("v_mul_f32 v8, v12, v9")
        a("v_cvt_pk_bf16_f32 v8, v8, v8")
        for r in range(4): a(f"v_and_b32 v{12+r}, v8, v{vM[r]}")
        for cb in range(9):
            d = 16 + 4 * cb
            a(f"v_mfma_f32_16x16x32_bf16 v[{d}:{d+3}], a[{48+4*cb}:{51+4*cb}], v[12:15], 0")
        self.setexec(self.VALID)
        for cb in range(9): a(f"ds_write_b128 v{FX}, v[{16+4*cb}:{19+4*cb}] offset:{256*cb}")
        a("s_mov_b64 exec, -1")
        a("s_waitcnt lgkmcnt(0)")
        a("s_barrier")
        a(f"s_cmp_ge_u32 {sHW}, 3"); a("s_cbranch_scc1 L_hexit")
        self.setexec(lanes(48))
        for k in range(8): a(f"ds_read_b128 v[{8+4*k}:{11+4*k}], v{FX+1} offset:{L_DOWN + 2304*k}")
        a("s_waitcnt lgkmcnt(0)")
        self.sum_rows4([8 + 4 * k for k in range(8)])
        for c in range(4): a(f"v_bfi_b32 v{8+c}, {sFF}, {vTAG}, v{8+c}")
        a(f"buffer_store_dwordx4 v[8:11], v{FX+1}, {srd(SRD_WS)}, s15 offen sc1")
        self.stamp(7)
        a("s_branch L_hexit")
        a.label("L_fin")
        a(f"s_sub_u32 s14, {sTK}, 72")
        self.set_srd(SRD_B, sX, size=1152)
        a(f"v_and_b32 v46, 7, {vLANE}")
        a("s_lshl_b32 s15, s14, 6"); a("v_lshlrev_b32 v8, 1, v46")
        for r in range(4): a(f"buffer_load_ushort v{FX+r}, v8, {srd(SRD_B)}, s15 offen offset:{16*r}")
        a("v_mov_b32 v8, s14"); self.piece_off("v2", "v8", "v9")
        self.gather_mod([2, 5], "v2", [FGA, FGB], FULL, sleep=2)
        for r in range(4): a(f"v_lshlrev_b32 v{FX+r}, 16, v{FX+r}")
        a("s_lshl_b32 s15, s14, 7"); a("v_lshlrev_b32 v47, 4, v46"); a("v_add_u32 v47, s15, v47")
        a(f"v_lshrrev_b32 v8, 3, {vLANE}"); a("v_mul_u32_u24 v42, 2304, v8"); a("v_add_u32 v42, v42, v47"); a(f"v_add_u32 v42, {WS_ATT}, v42")
        a(f"s_mul_i32 {sT0}, {sHW}, 36"); a(f"v_add_u32 v8, {sT0}, v8"); a("v_mul_u32_u24 v43, 2304, v8"); a("v_add_u32 v43, v43, v47"); a(f"v_add_u32 v43, {WS_OUT}, v43")
        a(f"v_add_u32 v44, {4*8*2304}, v43"); a(f"v_cmp_gt_u32 vcc, 32, {vLANE}"); a("v_cndmask_b32 v44, v43, v44, vcc")
        a(f"s_lshl_b32 {sT0}, {sHW}, 7"); a(f"s_add_u32 {sT0}, {sT0}, {L_FIN}"); a("v_lshlrev_b32 v45, 4, v46"); a(f"v_add_u32 v40, {sT0}, v45")
        self.poll([(8, 4, "v42", None, 0)], sleep=1)
        self.allreduceN("v_add_f32", [(f"v{8+c}", f"v{12+c}") for c in range(4)], ["r8", "p16", "p32"])
        a(f"v_pk_fma_f32 v[{FX}:{FX+1}], v[8:9], v[{FGA}:{FGA+1}], v[{FX}:{FX+1}]"); a(f"v_pk_fma_f32 v[{FX+2}:{FX+3}], v[10:11], v[{FGA+2}:{FGA+3}], v[{FX+2}:{FX+3}]")
        self.set_srd(SRD_B, sOUT, size=1152)
        a("s_lshl_b32 s15, s14, 6"); a("v_lshlrev_b32 v49, 1, v46")
        self.stamp(3, "fine")
        self.poll([(8, 4, "v43", None, 0), (12, 4, "v43", 8*2304, 0), (16, 4, "v43", 16*2304, 0), (20, 4, "v43", 24*2304, 0), (24, 4, "v44", None, 0)], presleep=p.PS_OUT, sleep=p.SL_OUT)
        a(f"v_cmp_gt_u32 vcc, 32, {vLANE}")
        self.sum_rows4([8, 12, 16, 20])
        for c in range(4): a(f"v_cndmask_b32 v{24+c}, 0, v{24+c}, vcc")
        self.sum_rows4([8, 24])
        self.allreduceN("v_add_f32", [(f"v{8+c}", f"v{12+c}") for c in range(4)], ["r8", "p16", "p32"])
        self.setexec(0xFF)
        a("ds_write_b128 v40, v[8:11]")
        a("s_mov_b64 exec, -1")
        a("s_waitcnt lgkmcnt(0)")
        a("s_barrier")
        a(f"s_cmp_lg_u32 {sHW}, 0"); a("s_cbranch_scc1 L_hexit")
        self.setexec(0xFF)
        for w in range(4): a(f"ds_read_b128 v[{8+4*w}:{11+4*w}], v45 offset:{L_FIN + 128*w}")
        a("s_waitcnt lgkmcnt(0)")
        self.sum_rows4([8, 12, 16, 20])
        a(f"v_pk_fma_f32 v[8:9], v[8:9], v[{FGB}:{FGB+1}], v[{FX}:{FX+1}]"); a(f"v_pk_fma_f32 v[10:11], v[10:11], v[{FGB+2}:{FGB+3}], v[{FX+2}:{FX+3}]")
        a("v_cvt_pk_bf16_f32 v12, v8, v9"); a("v_cvt_pk_bf16_f32 v13, v10, v11")
        a(f"buffer_store_short v12, v49, {srd(SRD_B)}, s15 offen"); a(f"buffer_store_short_d16_hi v12, v49, {srd(SRD_B)}, s15 offen offset:16")
        a(f"buffer_store_short v13, v49, {srd(SRD_B)}, s15 offen offset:32"); a(f"buffer_store_short_d16_hi v13, v49, {srd(SRD_B)}, s15 offen offset:48")
        self.stamp(7)
        a("s_cmp_lg_u32 s14, 0"); a("s_cbranch_scc1 L_hexit")
        a("s_mov_b64 exec, 1")
        a(f"v_mov_b32 v8, {sTAG}")
        a(f"buffer_store_dword v8, off, {srd(SRD_WS)}, 0 sc1")
        a("s_branch L_hexit")
        a.label("L_wo")
        a(f"s_and_b32 {sR0}, {sTK}, 7"); a(f"s_lshr_b32 {sR1}, {sTK}, 3")
        a(f"s_lshl_b32 {sT2}, {sR1}, 7")
        self.set_srd(SRD_A, sWO, off=sT2, size_minus_off=4096 * 1152)
        a(f"s_lshl_b32 {sR2}, {sR0}, 2"); a(f"s_add_u32 {sR2}, {sR2}, {sHW}")
        a(f"s_lshl_b32 {sT0}, {sR2}, 7")
        a(f"v_lshrrev_b32 v1, 3, {vLANE}"); a(f"v_add_u32 v1, {sT0}, v1"); a("v_mul_u32_u24 v1, 1152, v1")
        a(f"v_and_b32 v2, 7, {vLANE}"); a("v_lshl_add_u32 v1, v2, 4, v1")
        self.lds_spin(L_WCNT, target=4, sleep=1)
        self.stamp(5)
        a(f"s_mov_b32 {sT0}, 0")
        for t in range(16):
            a(f"buffer_load_dwordx4 a[{96+4*t}:{99+4*t}], v1, {srd(SRD_A)}, {sT0} offen nt")
            if t < 15: a(f"s_add_u32 {sT0}, {sT0}, 9216")
        a(f"s_mul_i32 s4, {sR2}, {8*OSLOT}"); a("s_add_u32 s4, s4, " + str(WS_O))
        a(f"s_mul_i32 {sT0}, {sR0}, 2304"); a(f"s_lshl_b32 {sT1}, {sR1}, 8"); a(f"s_add_u32 {sT0}, {sT0}, {sT1}"); a(f"s_add_u32 s5, {sT0}, {WS_ATT}")
        a(f"v_and_b32 v41, 7, {vLANE}"); a(f"v_mul_u32_u24 v41, {OSLOT}, v41")
        a(f"v_lshlrev_b32 v40, 3, {vLANE}")
        a(f"v_and_b32 v8, 3, {vLANE}"); a("v_mul_u32_u24 v8, 160, v8"); a(f"v_lshrrev_b32 v42, 2, {vLANE}"); a("v_lshl_add_u32 v42, v42, 2, v8")
        a(f"s_mul_i32 {sT0}, {sHW}, {TBLW}"); a(f"s_add_u32 {sT0}, {sT0}, {L_TBL}"); a(f"v_add_u32 v42, {sT0}, v42")
        self.taddr_r("v43", 20)
        self.dpiece_addr("v44", "v8", L_PART, 256)
        a(f"v_lshlrev_b32 v45, 4, {vLANE}")
        a("s_add_u32 s15, s4, 3200")
        self.poll([(8, 4, "v41", "s4", 512)], sleep=4, strong=(0,))
        a(f"v_and_b32 v8, {sFFFF0000}, v8")
        a("v_mov_b32 v10, v8")
        self.allreduce("v_max_f32", "v10", "v11", ["q1", "q2", "hm"])
        a("v_sub_f32 v11, v8, v10"); a(f"v_mul_f32 v11, 0x{LOG2E:08x}, v11"); a("v_exp_f32 v11, v11")
        a("v_mul_f32 v12, v11, v9")
        self.allreduce("v_add_f32", "v12", "v13", ["q1", "q2", "hm"])
        a("v_rcp_f32 v12, v12"); a("v_mul_f32 v11, v11, v12")
        for s_ in range(8): a(f"v_mov_b32_dpp v{48+s_}, v11 row_newbcast:{s_} row_mask:0xf bank_mask:0xf")
        a("s_setprio 3")
        if p.CGATE_O: self.cnt_gate(p.CTGT_O, p.PS_O)
        self.poll([(8 + 2 * s_, 2, "v40", "s4" if s_ < 6 else "s15", s_ * OSLOT if s_ < 6 else (s_ - 5) * OSLOT) for s_ in range(8)], sleep=p.SL_O)
        self.stamp(6, "wo")
        a("v_pk_mul_f32 v[24:25], v[8:9], v[48:49] op_sel_hi:[1,0]")
        a("v_pk_mul_f32 v[26:27], v[10:11], v[48:49] op_sel:[0,1]")
        for s_ in range(2, 8):
            d = 24 + 2 * (s_ & 1); w = 48 + (s_ & ~1)
            sel = "op_sel_hi:[1,0,1]" if (s_ & 1) == 0 else "op_sel:[0,1,0]"
            a(f"v_pk_fma_f32 v[{d}:{d+1}], v[{8+2*s_}:{9+2*s_}], v[{w}:{w+1}], v[{d}:{d+1}] {sel}")
        self.pk_add(24, 24, 26)
        a("v_cvt_pk_bf16_f32 v24, v24, v24"); a("v_cvt_pk_bf16_f32 v25, v25, v25")
        a("ds_write_b32 v42, v24"); a("ds_write_b32 v42, v25 offset:80")
        self.tread(16, 4, "v43")
        self.gemv(16, 96, list(range(16, 32)), 36)
        self.setexec(self.VALID); a("ds_write_b128 v44, v[36:39]"); a("s_mov_b64 exec, -1")
        a("s_waitcnt lgkmcnt(0)")
        a("s_barrier")
        a(f"s_cmp_lg_u32 {sHW}, 0"); a("s_cbranch_scc1 L_wo_done")
        self.setexec(0xFFFF)
        for k in range(8): a(f"ds_read_b128 v[{8+4*k}:{11+4*k}], v45 offset:{L_PART + 256*k}")
        a("s_waitcnt lgkmcnt(0)")
        self.sum_rows4([8 + 4 * k for k in range(8)])
        for c in range(4): a(f"v_bfi_b32 v{8+c}, {sFF}, {vTAG}, v{8+c}")
        a(f"buffer_store_dwordx4 v[8:11], v45, {srd(SRD_WS)}, s5 offen sc1")
        a("s_mov_b64 exec, -1")
        self.stamp(1, "wo")
        a.label("L_wo_done")
        a(f"s_mov_b32 s14, {sTK}")
        down_prep()
        a("s_branch L_down")
        a.label("L_hexit")
        self.dump_stamps(extra=sTK)
        a("s_endpgm")

    def group_watch(self):
        a = self.a; p = self.p
        if not p.GSYNC: return
        a(f"s_cmp_lg_u32 {sHW}, 2"); a("s_cbranch_scc1 L_nogw")
        self.lds_spin(L_MLCNT, target=4, sleep=8)
        a(f"s_lshr_b32 {sT0}, s100, 3"); a(f"s_mul_i32 s4, {sT0}, {8*OSLOT}"); a("s_add_u32 s4, s4, " + str(WS_O))
        a(f"v_and_b32 v41, 7, {vLANE}"); a(f"v_mul_u32_u24 v41, {OSLOT}, v41")
        self.poll([(8, 4, "v41", "s4", 512)], active=0xFF, sleep=p.SL_GW, strong=(0,))
        a("s_mov_b64 exec, 1")
        a(f"v_mov_b32 v8, {L_GRP}"); a("v_mov_b32 v9, 1"); a("ds_write_b32 v8, v9")
        a("s_mov_b64 exec, -1")
        a.label("L_nogw")

    def read_ticket(self):
        a = self.a; L = a.uid("Ltk")
        a(f"s_cmp_lg_u32 {sHW}, 0"); a(f"s_cbranch_scc1 {L}")
        self.set_srd(SRD_B, sDBG, size=256)
        a("s_mov_b64 exec, 1")
        a("v_mov_b32 v8, 1")
        a(f"buffer_atomic_add v8, off, {srd(SRD_B)}, 0 sc0")
        a("s_waitcnt vmcnt(0)")
        a(f"v_add_u32 v8, 1, v8"); a(f"v_mov_b32 v9, {L_TICK}"); a("ds_write_b32 v9, v8")
        a("s_mov_b64 exec, -1")
        a.label(L)
        self.lds_spin(L_TICK, target=1, sleep=1)
        a(f"s_sub_u32 s63, {sT3}, 1")

    def go_watch(self, lab):
        a = self.a; p = self.p
        if not p.GT: return
        L = a.uid("Lgo"); E = a.uid("Lgoe")
        a(f"s_cmp_lg_u32 {sHW}, 2"); a(f"s_cbranch_scc1 {lab}")
        self.lds_spin(L_WCNT, target=4, sleep=2)
        self.set_srd(SRD_B, sDBG, size=256)
        a("s_mov_b64 exec, 1")
        a("v_mov_b32 v8, 1")
        a(f"buffer_atomic_add v8, off, {srd(SRD_B)}, 0 sc0")
        a("s_waitcnt vmcnt(0)")
        a(f"v_readfirstlane_b32 {sT3}, v8"); a(f"s_add_u32 {sT3}, {sT3}, 1")
        a(f"s_mov_b32 {sSPIN}, 0")
        a.label(L)
        a(f"s_cmp_ge_u32 {sT3}, {p.GT}"); a(f"s_cbranch_scc1 {E}")
        a(f"s_sleep {p.GSL}")
        a(f"buffer_load_dword v8, off, {srd(SRD_B)}, 0 sc1")
        a("s_waitcnt vmcnt(0)")
        a(f"v_readfirstlane_b32 {sT3}, v8")
        a(f"s_add_u32 {sSPIN}, {sSPIN}, 1"); a(f"s_cmp_lt_u32 {sSPIN}, {SPIN_MAX}"); a(f"s_cbranch_scc1 {L}")
        a.label(E)
        a(f"v_mov_b32 v8, {L_GO}"); a("v_mov_b32 v9, 1"); a("ds_write_b32 v8, v9")
        a("s_mov_b64 exec, -1")
        a.label(lab)

    def go_watch_u(self): self.go_watch("L_nogo_u")
    def go_watch_w(self): self.go_watch("L_nogo_w")

    def code_prefetch(self, start, end_label, nkb, lab):
        a = self.a
        a("s_getpc_b64 s[12:13]")
        a.label(lab)
        a(f"s_sub_u32 s12, s12, {lab}-{start}"); a("s_subb_u32 s13, s13, 0")
        a(f"s_mov_b32 s{SRD_C}, s12"); a(f"s_mov_b32 s{SRD_C+1}, s13"); a(f"s_sub_u32 s{SRD_C+2}, {end_label}-{start}, 0"); a(f"s_mov_b32 s{SRD_C+3}, 0x20000")
        a(f"v_lshlrev_b32 v8, 4, {vLANE}"); a(f"s_lshl_b32 {sT0}, {sHW}, 10"); a(f"v_add_u32 v8, {sT0}, v8")
        for k in range((nkb + 3) // 4):
            a(f"s_mov_b32 {sT0}, {k * 4096}")
            a(f"buffer_load_dwordx4 v[{12+4*k}:{15+4*k}], v8, {srd(SRD_C)}, {sT0} offen")
        self.set_srd(SRD_C, sWS, size=0)

    def cnt_gate(self, target, presleep):
        a = self.a; L = a.uid("Lcg"); E = a.uid("Lcge")
        self.set_srd(SRD_B, sDBG, size=256)
        a(f"s_mov_b32 {sSPIN}, 0")
        a.label(L)
        a(f"buffer_load_dword v61, off, {srd(SRD_B)}, 0 sc1")
        a("s_waitcnt vmcnt(0)")
        a(f"v_readfirstlane_b32 {sT3}, v61")
        a(f"s_cmp_ge_u32 {sT3}, {target}"); a(f"s_cbranch_scc1 {E}")
        a("s_sleep 6")
        a(f"s_add_u32 {sSPIN}, {sSPIN}, 1"); a(f"s_cmp_lt_u32 {sSPIN}, {SPIN_MAX}"); a(f"s_cbranch_scc1 {L}")
        a.label(E)
        n = presleep
        while n > 0:
            a(f"s_sleep {min(n, 127)}"); n -= 127

    def lane6_reduce(self, regs, T):
        a = self.a
        a(f"v_and_b32 v{T}, 7, {vLANE}"); a(f"v_cmp_gt_u32 vcc, 6, v{T}")
        for r in regs: a(f"v_cndmask_b32 v{r}, 0, v{r}, vcc")
        self.allreduceN("v_add_f32", [(f"v{r}", f"v{T}") for r in regs], ["q1", "q2", "hm"])

    def build(self):
        self.prologue(); self.swave(); self.hwave()
        self.a.label("L_exit"); self.a("s_endpgm")
        return autonop(self.a.lines)

HEADER = open("adaLN_cond__mha_block_cached__glu_gated_glu__decode.s.ref").read().split("; Override launch geometry")[0]

LAST_SITES = {}
def make(p=P):
    g = Gen(p)
    body = g.build()
    global LAST_SITES
    LAST_SITES = getattr(g, "sites", {})
    txt = HEADER + "; Override launch geometry by editing the next line (default: block=256,\n; grid=ceil(out_elems/256), lds=0). Harness parses it; keep it on one line.\n"
    txt += f"; @launch grid=(256,1,1) block=(512,1,1) lds={LDS_BYTES}\n"
    txt += f""".amdgcn_target "amdgcn-amd-amdhsa--gfx950"
.text
.globl {KNAME}
.p2align 8
.type {KNAME},@function
{KNAME}:
"""
    txt += "\n".join(("" if l.endswith(":") else "    ") + l for l in body) + "\n"
    txt += f""".section .rodata,"a"
.p2align 6
.amdhsa_kernel {KNAME}
  .amdhsa_next_free_vgpr 256
  .amdhsa_next_free_sgpr 102
  .amdhsa_accum_offset {NVGPR}
  .amdhsa_group_segment_fixed_size 0
  .amdhsa_kernarg_size 112
  .amdhsa_user_sgpr_count 2
  .amdhsa_user_sgpr_kernarg_segment_ptr 1
  .amdhsa_system_sgpr_workgroup_id_x 1
.end_amdhsa_kernel
"""
    return txt

def report_h(pr, hw, mode, dyn=True):
    if not dyn:
        u = hw[72:252]
        if mode == "fine":
            pr("late trigger", u[:, :, 5]); pr("unit: C done", u[:, :, 1]); pr("unit: attn gathered", u[:, :, 6]); pr("unit: G published", u[:, :, 2])
            pr("  C done singles", hw[72:216, :, 1]); pr("  C done doubles", hw[216:252, :, 1]); pr("  attn gath singles", hw[72:216, :, 6]); pr("  attn gath doubles", hw[216:252, :, 6])
            pr("  G pub singles", hw[72:216, :, 2]); pr("  G pub doubles", hw[216:252, :, 2])
            g = hw[72:252, :, 2]; late = np.argsort(g.max(1))[-8:]
            print("   latest G publishers (id, trig, Cdone, attn, Gpub):", [(int(72 + k), round(float(hw[72+k, :, 5].max()), 2), round(float(hw[72+k, :, 1].max()), 2), round(float(hw[72+k, :, 6].max()), 2), round(float(g[k].max()), 2)) for k in late])
            pr("down: G gathered", hw[72:216, :, 3]); pr("down: published", hw[72:216, :3, 7]); pr("fin: x1", hw[216:234, :, 3]); pr("fin: done", hw[216:234, 0, 7])
        elif mode == "fin":
            f = hw[216:234]
            pr("down: published", hw[72:216, :3, 7]); pr("down: store acked", hw[72:216, :3, 6]); pr("fin: OUT gathered", f[:, :, 1]); pr("fin: before barrier", f[:, :, 2]); pr("fin: after barrier", f[:, :, 3]); pr("fin: done", f[:, 0, 7])
        elif mode == "wo":
            w = hw[:72]; pr("wo: trigger", w[:, :, 5]); pr("wo: ML+weights done", w[:, :, 2]); pr("wo: gathered", w[:, :, 6]); pr("wo: barrier passed", w[:, :, 3]); pr("wo: published", w[:, 0, 7])
        return
    if mode == "pre":
        qs = hw[:192, 0]; mc = hw[192:246, 0]; mn = hw[72:180, 1]
        pr("q gathered (H3)", hw[:, 3, 4])
    elif mode == "wo":
        w = hw[:72]
        pr("wo: trigger", w[:, :, 5]); pr("wo: gathered", w[:, :, 6]); pr("wo: published", w[:, 0, 1])
    elif mode == "fine":
        u = hw[72:234]
        pr("ticket known", hw[:234, :, 4]); pr("ticket W", hw[:72, :, 4]); pr("ticket D", hw[72:126, :, 4]); pr("ticket S", hw[126:234, :, 4])
        pr("unit trigger", u[:, :, 5]); pr("unit: C done D", hw[72:126, :, 1]); pr("unit: C done S", hw[126:234, :, 1]); pr("unit: attn gathered D", hw[72:126, :, 6]); pr("unit: attn gathered S+dn", hw[126:198, :, 6]); pr("unit: attn gathered S", hw[198:234, :, 6])
        pr("G published D", hw[72:126, :, 2]); pr("G published S+dn", hw[126:198, :, 2]); pr("G published S", hw[198:234, :, 2])
        print("   attn gathered by wave:", [round(float(u[:, w, 6].mean()), 2) for w in range(4)], "max", [round(float(u[:, w, 6].max()), 2) for w in range(4)])
        late = np.argsort(u[:, :, 6].max(1))[-6:]; print("   latest attn gathers (ticket, times, Cdone):", [(int(72 + k), u[k, :, 6].round(2).tolist(), u[k, :, 1].round(2).tolist()) for k in late])
        dn = np.concatenate([hw[:72], hw[126:198]])
        pr("down: G gathered", dn[:, :, 3]); pr("down: published", dn[:, :3, 7]); pr("fin: x1", hw[72:90, :, 3]); pr("fin: done", hw[72:90, 0, 7])
    else:
        u = hw[72:234]
        pr("unit trigger", u[:, :, 5]); pr("unit: attn gathered", u[:, :, 6]); pr("fin: done", hw[72:90, 0, 7])
def end_time(hw, dyn=True): return hw[72:90, 0, 7].max() if dyn else hw[216:234, 0, 7].max()
def order_h(hw, tickets):
    o = np.argsort(tickets, kind="stable")
    return hw[o]
import numpy as np

if __name__ == "__main__":
    out = sys.argv[1] if len(sys.argv) > 1 else "adaLN_cond__mha_block_cached__glu_gated_glu__decode.s"
    open(out, "w").write(make())
    print("wrote", out)
```
